```python
import torch

def _softmax(x, axis=-1):
    return torch.softmax(x, dim=axis)

def _gelu(x):
    return torch.nn.functional.gelu(x, approximate='tanh')

def _silu(x):
    return torch.nn.functional.silu(x)

def _sigmoid(x):
    return torch.sigmoid(x)

def _layernorm(x, axis=-1, eps=1e-05):
    m = x.mean(dim=axis, keepdim=True)
    v = x.var(dim=axis, keepdim=True, unbiased=False)
    return (x - m) / torch.sqrt(v + eps)

def _scatter_add(tgt, idx, src, axis=0):
    return tgt.clone().index_add_(axis, idx, src)

def _segment_sum(src, seg, n):
    out = torch.zeros((n,) + src.shape[1:], dtype=src.dtype)
    return out.index_add_(0, seg, src)

def _pad(x, pw):
    flat = tuple((v for pair in reversed(pw) for v in pair))
    return torch.nn.functional.pad(x, flat)
kernel_name = 'standalone__varlen_attn_packed__ragged'

def setup_inputs():

    _w = lambda a: (lambda t: t.to(torch.bfloat16) if t.is_floating_point() else t)(torch.as_tensor(a))
    cu = torch.tensor([0, 289, 520, 939, 1289, 1402, 1666, 1973, 2275], dtype=torch.int64)
    T, H, D = (int(cu[-1]), 16, 128)
    return {'q': _w((lambda *s: torch.randn(*s, dtype=torch.bfloat16) * 0.8)(T, H, D)), 'k': _w((lambda *s: torch.randn(*s, dtype=torch.bfloat16) * 0.8)(T, H, D)), 'v': _w((lambda *s: torch.randn(*s, dtype=torch.bfloat16) * 0.05)(T, H, D)), 'cu': _w(cu)}

def reference(q, k, v, cu):
    T, H, D = q.shape
    out = torch.zeros_like(q)
    scale = D ** (-0.5)
    outs = []
    for i in range(len(cu) - 1):
        s, e = (int(cu[i]), int(cu[i + 1]))
        qi, ki, vi = (q[s:e].clone(), k[s:e].clone(), v[s:e].clone())
        p = _softmax(torch.einsum('qhd,khd->hqk', qi, ki) * scale, axis=-1)
        outs.append(torch.einsum('hqk,khd->qhd', p, vi))
    return torch.concatenate(outs, axis=0)
```

```python
import sys, struct, math

CU = [0, 289, 520, 939, 1289, 1402, 1666, 1973, 2275]
NAME = "standalone__varlen_attn_packed__ragged"

def f32bits(x):
    return struct.unpack("<I", struct.pack("<f", x))[0]

class Opt:
    stamps = False
    headmap = 0
    nocompute = False

opt = Opt()
for a in sys.argv[2:]:
    k, v = a.split("=")
    setattr(opt, k, int(v))

KSLOT = 8320
VSLOT = 8192
NS = 8
VBASE = NS * KSLOT
QBASE = VBASE + 7 * VSLOT
LDS_BYTES = 157184
OROW = 272
OWAVE = 32 * OROW
D = NS - 2

V_TID, V_LANE, V_DMA, V_DMA2 = 0, 1, 2, 3
V_KA = 4
V_VA = 8
V_L, V_PS, V_T0, V_T1 = 12, 13, 14, 15
V_NEGM = 16
V_Q = 32
V_K = 64
V_V = 96
V_S = [128, 144]
V_P = [160, 168]
V_E = 176
V_O = 192

S_Q, S_K, S_V, S_O = 16, 20, 24, 28
S_MASK = 32
S_HEAD, S_JOB, S_W, S_L, S_NK, S_Q0 = 64, 65, 66, 67, 68, 69
S_THR, S_WAVE = 70, 71
S_KSOFF, S_VSOFF, S_KDMA, S_VDMA = 72, 73, 74, 75
S_U, S_J, S_T0, S_T1, S_DK, S_DV = 76, 77, 78, 79, 80, 81
S_WK, S_WV = 82, 83
S_C = 84
S_NKM1 = 86
S_STAMP = 88

out = []
def e(s):
    out.append("    " + s)
def lab(s):
    out.append(s + ":")
def vr(b, n):
    return f"v[{b}:{b+n-1}]"
def sr(b, n):
    return f"s[{b}:{b+n-1}]"

order = sorted(range(8), key=lambda s: -(CU[s+1]-CU[s]))
jobs_first = []
nj = 0
for s in order:
    L = CU[s+1]-CU[s]
    jobs_first.append((s, nj))
    nj += (L + 127)//128
NJOB = nj
NWG = NJOB * 16

def stamp(i):
    if opt.stamps:
        e(f"s_memtime {sr(S_STAMP + 2*i, 2)}")

def mfma(d, a, b, c):
    cs = "0" if c is None else vr(c, 16)
    return f"v_mfma_f32_32x32x16_bf16 {vr(d,16)}, {vr(a,4)}, {vr(b,4)}, {cs}"

def kread(ks, off):
    return f"ds_read_b128 {vr(V_K+4*ks,4)}, v{V_KA+(ks>>1)} offset:{off+(ks&1)*32}"
def vread(i, jj, off):
    kg, dt = i >> 2, i & 3
    return f"ds_read_b64_tr_b16 {vr(V_V+4*i+2*jj,2)}, v{V_VA+dt} offset:{off+jj*2048+kg*4096}"

def dma_pair(koff, voff):
    return [
        [f"s_add_u32 m0, s{S_KDMA}, {koff}", f"s_nop 0", f"buffer_load_dwordx4 v{V_DMA}, {sr(S_K,4)}, s{S_KSOFF} offen lds"],
        [f"s_add_u32 m0, s{S_KDMA}, {koff+4*1040}", f"s_nop 0", f"buffer_load_dwordx4 v{V_DMA2}, {sr(S_K,4)}, s{S_KSOFF} offen lds"],
        [f"s_add_u32 m0, s{S_VDMA}, {voff}", f"s_nop 0", f"buffer_load_dwordx4 v{V_DMA}, {sr(S_V,4)}, s{S_VSOFF} offen lds"],
        [f"s_add_u32 m0, s{S_VDMA}, {voff+4096}", f"s_add_u32 s{S_KSOFF}, s{S_KSOFF}, 0x20000",
         f"buffer_load_dwordx4 v{V_DMA2}, {sr(S_V,4)}, s{S_VSOFF} offen lds", f"s_add_u32 s{S_VSOFF}, s{S_VSOFF}, 0x20000"],
    ]

rare_sites = []

def softmax_ops(par):
    S, P = V_S[par], V_P[par]
    slots = [[] for _ in range(18)]
    for r in range(16):
        slots[r].append(f"v_exp_f32 v{V_E+r}, v{S+r}")
    for r in range(16):
        if r == 1:
            slots[r+1].append(f"v_add_f32 v{V_PS}, v{V_E}, v{V_E+1}")
        elif r > 1:
            slots[r+1].append(f"v_add_f32 v{V_PS}, v{V_PS}, v{V_E+r}")
        if r & 1:
            slots[r+1].append(f"v_cvt_pk_bf16_f32 v{P+(r>>1)}, v{V_E+r-1}, v{V_E+r}")
    return slots

def iteration(par, do_qk, do_pv, koff, voff, dma, vm, tail=False, upd=False, tag="", first=False):
    mf = []
    for i in range(8):
        if do_qk:
            mf.append(("qk", i))
        if do_pv:
            mf.append(("pv", i))
    n = len(mf)
    gaps = [[] for _ in range(n)]
    sm = softmax_ops(par)
    per = 16 // n
    for g in range(n):
        for k in range(per):
            gaps[g] += sm[g*per+k]
    post = sm[16] + sm[17]
    pre = []
    if not first:
        pre.append(f"v_add_f32 v{V_L}, v{V_L}, v{V_PS}")
    if tail:
        for r in range(16):
            pre.append(f"v_cndmask_b32 v{V_S[par]+r}, v{V_T1}, v{V_S[par]+r}, {sr(S_MASK+2*r,2)}")
    lds = [[] for _ in range(n)]
    for g, (kind, i) in enumerate(mf):
        if kind == "qk":
            lds[g].append(kread(i, koff))
            if not do_pv:
                lds[g] += [vread(i, 0, voff), vread(i, 1, voff)]
        else:
            lds[g] += [vread(i, 0, voff), vread(i, 1, voff)]
    extra = [[] for _ in range(n)]
    if dma is not None:
        for k, grp in enumerate(dma):
            extra[min(n-1, 1 + k*(n//8))] += grp
    if upd:
        extra[n//2] += [f"s_add_u32 s{S_U}, s{S_U}, 1", f"s_and_b32 s{S_U}, s{S_U}, 3",
                        f"s_mul_i32 s{S_KDMA}, s{S_U}, {2*KSLOT}", f"s_add_u32 s{S_KDMA}, s{S_KDMA}, s{S_WK}"]
        extra[n//2+1] += [f"s_add_u32 s{S_T0}, s{S_U}, 3", f"s_and_b32 s{S_T0}, s{S_T0}, 3",
                          f"s_lshl_b32 s{S_T0}, s{S_T0}, 14", f"s_add_u32 s{S_VDMA}, s{S_T0}, s{S_WV}"]
    for x in pre:
        e(x)
    nl = 0
    for g, (kind, i) in enumerate(mf):
        if g == 0:
            e("s_waitcnt lgkmcnt(12)" if n == 16 else "s_waitcnt lgkmcnt(0)")
        if g == n//2 and n == 16:
            e("s_waitcnt lgkmcnt(12)")
        if kind == "qk":
            e(mfma(V_S[1-par], V_K+4*i, V_Q+4*i, V_NEGM if i == 0 else V_S[1-par]))
        else:
            kg, dt = i >> 2, i & 3
            e(mfma(V_O+16*dt, V_V+4*i, V_P[1-par]+4*kg, V_O+16*dt))
        if g == 0:
            e(f"s_waitcnt vmcnt({vm})")
            e("s_barrier")
        for x in lds[g]:
            e(x)
        for x in gaps[g]:
            e(x)
        for x in extra[g]:
            e(x)
        if upd:
            if kind == "qk" and (i & 1):
                e(f"v_add_u32 v{V_KA+(i>>1)}, s{S_DK}, v{V_KA+(i>>1)}")
            if kind == "pv" and i >= 4:
                e(f"v_add_u32 v{V_VA+(i&3)}, s{S_DV}, v{V_VA+(i&3)}")
    for x in post:
        e(x)
    e(f"v_cmp_lt_f32 vcc, s{S_THR}, v{V_PS}")
    e(f"s_cbranch_vccnz L_rare_{tag}")
    lab(f"L_back_{tag}")
    rare_sites.append((tag, par))

def blockmax(S, t0, t1):
    e(f"v_max3_f32 v{t0}, v{S}, v{S+1}, v{S+2}")
    e(f"v_max3_f32 v{t1}, v{S+3}, v{S+4}, v{S+5}")
    e(f"v_max3_f32 v{t0}, v{t0}, v{S+6}, v{S+7}")
    e(f"v_max3_f32 v{t1}, v{t1}, v{S+8}, v{S+9}")
    e(f"v_max3_f32 v{t0}, v{t0}, v{S+10}, v{S+11}")
    e(f"v_max3_f32 v{t1}, v{t1}, v{S+12}, v{S+13}")
    e(f"v_max3_f32 v{t0}, v{t0}, v{S+14}, v{S+15}")
    e(f"v_max_f32 v{t0}, v{t0}, v{t1}")
    e(f"v_mov_b32 v{t1}, v{t0}")
    e("s_nop 1")
    e(f"v_permlane32_swap_b32 v{t0}, v{t1}")
    e("s_nop 1")
    e(f"v_max_f32 v{t0}, v{t0}, v{t1}")

def rare(tag, par):
    S, Sn, P = V_S[par], V_S[1-par], V_P[par]
    lab(f"L_rare_{tag}")
    e("s_nop 15")
    e("s_nop 7")
    blockmax(S, V_E, V_E+1)
    e(f"v_max_f32 v{V_T0}, 0, v{V_E}")
    e(f"v_sub_f32 v{V_E+1}, 0, v{V_T0}")
    e(f"v_exp_f32 v{V_E+1}, v{V_E+1}")
    for r in range(16):
        e(f"v_sub_f32 v{S+r}, v{S+r}, v{V_T0}")
        e(f"v_sub_f32 v{Sn+r}, v{Sn+r}, v{V_T0}")
        e(f"v_sub_f32 v{V_NEGM+r}, v{V_NEGM+r}, v{V_T0}")
    for r in range(64):
        e(f"v_mul_f32 v{V_O+r}, v{V_O+r}, v{V_E+1}")
    e(f"v_mul_f32 v{V_L}, v{V_L}, v{V_E+1}")
    for sl in softmax_ops(par):
        for x in sl:
            e(x)
        e("s_nop 0")
    e("s_nop 1")
    e(f"s_branch L_back_{tag}")

hdr = open("cdna_kernels/" + NAME + ".s.ref").read().split("\n")
for line in hdr:
    if line.startswith("; @launch"):
        break
    out.append(line)
out.append(f"; @launch grid=({NWG},1,1) block=(256,1,1) lds={LDS_BYTES}")
out.append('.amdgcn_target "amdgcn-amd-amdhsa--gfx950"')
out.append(".text")
out.append(f".globl {NAME}_kernel")
out.append(".p2align 8")
out.append(f".type {NAME}_kernel,@function")
lab(f"{NAME}_kernel")
e("s_load_dwordx8 s[4:11], s[0:1], 0")
e("s_load_dwordx2 s[12:13], s[0:1], 32")
if opt.stamps:
    e("s_load_dwordx2 s[14:15], s[0:1], 48")
stamp(0)
e(f"s_cmp_ge_u32 s2, {NWG}")
e("s_cbranch_scc1 L_end")
e(f"v_lshrrev_b32 v{V_T0}, 6, v0")
e(f"v_and_b32 v{V_LANE}, 63, v0")
e(f"v_readfirstlane_b32 s{S_WAVE}, v{V_T0}")
e(f"s_and_b32 s{S_HEAD}, s2, 7")
e(f"s_lshr_b32 s{S_JOB}, s2, 3")
e(f"s_and_b32 s{S_T0}, s{S_JOB}, 1")
if opt.headmap == 0:
    e(f"s_lshl_b32 s{S_HEAD}, s{S_HEAD}, 1")
else:
    e(f"s_lshl_b32 s{S_T0}, s{S_T0}, 3")
e(f"s_or_b32 s{S_HEAD}, s{S_HEAD}, s{S_T0}")
e(f"s_lshr_b32 s{S_JOB}, s{S_JOB}, 1")
for k, (s, f) in enumerate(jobs_first):
    w = CU[s] | ((CU[s+1]-CU[s]) << 12) | (f << 21)
    if k == 0:
        e(f"s_mov_b32 s{S_W}, {w:#x}")
    else:
        e(f"s_cmp_ge_u32 s{S_JOB}, {f}")
        e(f"s_cselect_b32 s{S_W}, {w:#x}, s{S_W}")
e(f"s_bfe_u32 s{S_L}, s{S_W}, {12 | (9 << 16):#x}")
e(f"s_lshr_b32 s{S_T0}, s{S_W}, 21")
e(f"s_sub_u32 s{S_Q0}, s{S_JOB}, s{S_T0}")
e(f"s_lshl_b32 s{S_Q0}, s{S_Q0}, 2")
e(f"s_add_u32 s{S_Q0}, s{S_Q0}, s{S_WAVE}")
e(f"s_lshl_b32 s{S_Q0}, s{S_Q0}, 17")
e(f"s_and_b32 s{S_T0}, s{S_W}, 0xfff")
e(f"s_lshl_b32 s{S_T0}, s{S_T0}, 12")
e(f"s_lshl_b32 s{S_T1}, s{S_HEAD}, 8")
e(f"s_add_u32 s{S_T0}, s{S_T0}, s{S_T1}")
e(f"s_lshl_b32 s{S_T1}, s{S_L}, 12")
e(f"s_sub_u32 s{S_T1}, s{S_T1}, {4096-256}")
e(f"s_add_u32 s{S_NK}, s{S_L}, 31")
e(f"s_lshr_b32 s{S_NK}, s{S_NK}, 5")
e(f"v_lshrrev_b32 v{V_T0}, 4, v{V_LANE}")
e(f"v_lshlrev_b32 v{V_T1}, 2, v{V_T0}")
e(f"v_and_b32 v{V_DMA}, 15, v{V_LANE}")
e(f"v_xor_b32 v{V_DMA}, v{V_DMA}, v{V_T1}")
e(f"v_lshlrev_b32 v{V_DMA}, 4, v{V_DMA}")
e(f"v_lshl_add_u32 v{V_DMA}, v{V_T0}, 12, v{V_DMA}")
e(f"s_mul_i32 s{S_WK}, s{S_WAVE}, 1040")
e(f"s_lshl_b32 s{S_WV}, s{S_WAVE}, 10")
e(f"s_add_u32 s{S_WV}, s{S_WV}, {VBASE}")
e(f"s_mul_i32 s{S_KDMA}, s{S_WAVE}, {KSLOT}")
e(f"s_add_u32 s{S_KDMA}, s{S_KDMA}, {QBASE}")
for srd in (S_Q, S_K, S_V, S_O):
    e(f"s_mov_b32 s{srd+2}, s{S_T1}")
    e(f"s_mov_b32 s{srd+3}, 0x20000")
e("s_waitcnt lgkmcnt(0)")
for srd, p in ((S_Q, 4), (S_K, 6), (S_V, 8), (S_O, 12)):
    e(f"s_add_u32 s{srd}, s{p}, s{S_T0}")
    e(f"s_addc_u32 s{srd+1}, s{p+1}, 0")
stamp(1)
e(f"s_mov_b32 s{S_T1}, s{S_Q0}")
for i in range(8):
    e(f"s_add_u32 m0, s{S_KDMA}, {i*1040}")
    if i:
        e(f"s_add_u32 s{S_T1}, s{S_T1}, 0x4000")
    else:
        e("s_nop 0")
    e(f"buffer_load_dwordx4 v{V_DMA}, {sr(S_Q,4)}, s{S_T1} offen lds")
e(f"s_lshl_b32 s{S_T0}, s{S_WAVE}, 14")
e(f"v_add_u32 v{V_DMA}, s{S_T0}, v{V_DMA}")
e(f"v_add_u32 v{V_DMA2}, 0x10000, v{V_DMA}")
e(f"s_mov_b32 s{S_T1}, s{S_KDMA}")
def dma_k(b):
    slot = (b+1) & 7
    e(f"s_add_u32 m0, s{S_WK}, {slot*KSLOT}")
    e(f"s_mov_b32 s{S_KSOFF}, {b*0x20000:#x}")
    e(f"buffer_load_dwordx4 v{V_DMA}, {sr(S_K,4)}, s{S_KSOFF} offen lds")
    e(f"s_add_u32 m0, s{S_WK}, {slot*KSLOT+4160}")
    e("s_nop 0")
    e(f"buffer_load_dwordx4 v{V_DMA2}, {sr(S_K,4)}, s{S_KSOFF} offen lds")
def dma_v(b):
    slot = (b+1) & 7
    e(f"s_add_u32 m0, s{S_WV}, {slot*VSLOT}")
    e(f"s_mov_b32 s{S_VSOFF}, {b*0x20000:#x}")
    e(f"buffer_load_dwordx4 v{V_DMA}, {sr(S_V,4)}, s{S_VSOFF} offen lds")
    e(f"s_add_u32 m0, s{S_WV}, {slot*VSLOT+4096}")
    e("s_nop 0")
    e(f"buffer_load_dwordx4 v{V_DMA2}, {sr(S_V,4)}, s{S_VSOFF} offen lds")
dma_k(0); dma_k(1)
for p in range(D):
    dma_k(p+2); dma_v(p)
e(f"s_mov_b32 s{S_KSOFF}, {(D+2)*0x20000:#x}")
e(f"s_mov_b32 s{S_VSOFF}, {D*0x20000:#x}")
stamp(2)
e(f"v_and_b32 v{V_T0}, 3, v{V_LANE}")
e(f"v_bfe_u32 v{V_T1}, v{V_LANE}, 2, 3")
e(f"v_mul_u32_u24 v{V_T1}, 1040, v{V_T1}")
e(f"v_lshl_add_u32 v{V_T1}, v{V_T0}, 8, v{V_T1}")
e(f"v_lshrrev_b32 v{V_L}, 5, v{V_LANE}")
e(f"v_lshl_add_u32 v{V_T1}, v{V_L}, 4, v{V_T1}")
for t in range(4):
    e(f"v_xor_b32 v{V_KA+t}, {t}, v{V_T0}")
    e(f"v_lshl_add_u32 v{V_KA+t}, v{V_KA+t}, 6, v{V_T1}")
    e(f"v_add_u32 v{V_E+t}, s{S_T1}, v{V_KA+t}")
e(f"v_bfe_u32 v{V_T0}, v{V_LANE}, 2, 2")
e(f"v_lshl_add_u32 v{V_T1}, v{V_L}, 2, v{V_T0}")
e(f"v_lshlrev_b32 v{V_T1}, 8, v{V_T1}")
e(f"v_bfe_u32 v{V_PS}, v{V_LANE}, 4, 1")
e(f"v_lshl_add_u32 v{V_T1}, v{V_PS}, 5, v{V_T1}")
e(f"v_and_b32 v{V_PS}, 3, v{V_LANE}")
e(f"v_lshl_add_u32 v{V_T1}, v{V_PS}, 3, v{V_T1}")
e(f"v_add_u32 v{V_T1}, {VBASE}, v{V_T1}")
for dt in range(4):
    e(f"v_xor_b32 v{V_VA+dt}, {dt}, v{V_T0}")
    e(f"v_lshl_add_u32 v{V_VA+dt}, v{V_VA+dt}, 6, v{V_T1}")
e(f"s_sub_u32 s{S_NKM1}, s{S_NK}, 1")
e(f"s_lshl_b32 s{S_T0}, s{S_NKM1}, 5")
e(f"s_sub_u32 s{S_T0}, s{S_L}, s{S_T0}")
e(f"v_lshlrev_b32 v{V_T0}, 2, v{V_L}")
e(f"v_sub_u32 v{V_T0}, s{S_T0}, v{V_T0}")
for r in range(16):
    kr = (r & 3) + 8*(r >> 2)
    e(f"v_cmp_lt_i32 {sr(S_MASK+2*r,2)}, {kr}, v{V_T0}")
for r in range(64):
    e(f"v_mov_b32 v{V_O+r}, 0")
e(f"v_mov_b32 v{V_L}, 0")
c = math.log2(math.e) / math.sqrt(128.0)
e(f"s_mov_b32 s{S_C}, {f32bits(c):#x}")
e(f"s_mov_b32 s{S_C+1}, {f32bits(c):#x}")
e(f"s_mov_b32 s{S_THR}, {f32bits(16384.0):#x}")
e(f"s_mov_b32 s{S_T0}, 0xffff0000")
nq_after = 4 + 4*D
e(f"s_waitcnt vmcnt({nq_after})")
stamp(3)
for ks in range(8):
    e(f"ds_read_b128 {vr(V_Q+4*ks,4)}, v{V_E+(ks>>1)} offset:{(ks&1)*32}")
for ks in range(8):
    e(f"s_waitcnt lgkmcnt({7-ks})")
    for k in range(4):
        r = V_Q+4*ks+k
        t = V_E + 8 + 2*k
        e(f"v_lshlrev_b32 v{t}, 16, v{r}")
        e(f"v_and_b32 v{t+1}, s{S_T0}, v{r}")
    for k in range(4):
        t = V_E + 8 + 2*k
        e(f"v_pk_mul_f32 {vr(t,2)}, {vr(t,2)}, {sr(S_C,2)}")
    for k in range(4):
        r = V_Q+4*ks+k
        t = V_E + 8 + 2*k
        e(f"v_cvt_pk_bf16_f32 v{r}, v{t}, v{t+1}")
e(f"s_waitcnt vmcnt({4*D})")
e("s_barrier")
stamp(4)
for ks in range(8):
    e(kread(ks, 1*KSLOT))
for ks in range(8):
    e(f"s_waitcnt lgkmcnt({7})")
    e(mfma(V_S[0], V_K+4*ks, V_Q+4*ks, None if ks == 0 else V_S[0]))
    e(kread(ks, 2*KSLOT))
e("s_nop 15")
blockmax(V_S[0], V_T0, V_T1)
for r in range(16):
    e(f"v_sub_f32 v{V_NEGM+r}, 0, v{V_T0}")
for r in range(16):
    e(f"v_sub_f32 v{V_S[0]+r}, v{V_S[0]+r}, v{V_T0}")
e(f"v_mov_b32 v{V_T1}, 0xff800000")
e(f"s_mov_b32 s{S_KDMA}, s{S_WK}")
e(f"s_mov_b32 s{S_VDMA}, s{S_WV}")
VM = 4*(D-1)
iteration(0, True, False, 3*KSLOT, 1*VSLOT, dma_pair(((D+3)&7)*KSLOT, ((D+1)&7)*VSLOT), VM, tag="i0", first=True)
e(f"s_mov_b32 s{S_U}, 1")
e(f"s_add_u32 s{S_KDMA}, s{S_WK}, {2*KSLOT}")
e(f"s_mov_b32 s{S_VDMA}, s{S_WV}")
for t in range(4):
    e(f"v_add_u32 v{V_KA+t}, {4*KSLOT}, v{V_KA+t}")
    e(f"v_add_u32 v{V_VA+t}, {2*VSLOT}, v{V_VA+t}")
e(f"s_mov_b32 s{S_J}, 2")
e(f"s_mov_b32 s{S_T1}, {2*KSLOT}")
lab("L_loop")
e(f"s_cmp_eq_u32 s{S_U}, 3")
e(f"s_cselect_b32 s{S_DV}, {(-6*VSLOT)&0xffffffff:#x}, s{S_T1}")
out.pop()
e(f"s_movk_i32 s{S_DV}, {2*VSLOT}")
e(f"s_cselect_b32 s{S_DV}, {(-6*VSLOT)&0xffffffff:#x}, s{S_DV}")
e(f"s_cmp_eq_u32 s{S_U}, 2")
e(f"s_cselect_b32 s{S_DK}, {(-6*KSLOT)&0xffffffff:#x}, s{S_T1}")
iteration(1, True, True, 0, 0, dma_pair(0, 0), VM, tag="A")
e(f"s_cmp_eq_u32 s{S_J}, s{S_NKM1}")
e("s_cbranch_scc1 L_tail_even")
iteration(0, True, True, KSLOT, VSLOT, dma_pair(KSLOT, VSLOT), VM, upd=True, tag="B")
e(f"s_add_u32 s{S_J}, s{S_J}, 2")
e(f"s_cmp_eq_u32 s{S_J}, s{S_NK}")
e("s_cbranch_scc0 L_loop")

def final(par):
    e(f"v_add_f32 v{V_L}, v{V_L}, v{V_PS}")
    e(f"v_mov_b32 v{V_T0}, v{V_L}")
    e("s_waitcnt lgkmcnt(0)")
    e("s_nop 0")
    e(f"v_permlane32_swap_b32 v{V_L}, v{V_T0}")
    order_pv = [0, 4, 1, 5, 2, 6, 3, 7]
    for n_, i in enumerate(order_pv):
        kg, dt = i >> 2, i & 3
        e(mfma(V_O+16*dt, V_V+4*i, V_P[par]+4*kg, V_O+16*dt))
        if n_ == 0:
            e(f"v_add_f32 v{V_L}, v{V_L}, v{V_T0}")
            e(f"v_rcp_f32 v{V_L}, v{V_L}")
            e(f"s_mul_i32 s{S_T0}, s{S_WAVE}, {OWAVE}")
            e(f"v_and_b32 v{V_T0}, 31, v{V_LANE}")
            e(f"v_mul_u32_u24 v{V_T0}, {OROW}, v{V_T0}")
        if n_ == 1:
            e(f"v_lshrrev_b32 v{V_T1}, 5, v{V_LANE}")
            e(f"v_lshl_add_u32 v{V_T0}, v{V_T1}, 3, v{V_T0}")
            e(f"v_add_u32 v{V_T0}, s{S_T0}, v{V_T0}")
            e(f"v_lshrrev_b32 v{V_PS}, 4, v{V_LANE}")
            e(f"v_and_b32 v{V_DMA2}, 15, v{V_LANE}")
        if n_ == 2:
            e(f"v_mul_u32_u24 v{V_T1}, {OROW}, v{V_PS}")
            e(f"v_lshl_add_u32 v{V_T1}, v{V_DMA2}, 4, v{V_T1}")
            e(f"v_add_u32 v{V_T1}, s{S_T0}, v{V_T1}")
            e(f"v_lshlrev_b32 v{V_DMA2}, 4, v{V_DMA2}")
            e(f"v_lshl_add_u32 v{V_DMA}, v{V_PS}, 12, v{V_DMA2}")
    e("s_nop 7")
    for dt in range(4):
        if dt == 3:
            e("s_nop 3")
        for r in range(16):
            e(f"v_mul_f32 v{V_O+16*dt+r}, v{V_O+16*dt+r}, v{V_L}")
        for rq in range(4):
            b = V_O+16*dt+4*rq
            t = V_E + 2*((dt*4+rq) & 7)
            e(f"v_cvt_pk_bf16_f32 v{t}, v{b}, v{b+1}")
            e(f"v_cvt_pk_bf16_f32 v{t+1}, v{b+2}, v{b+3}")
            e(f"ds_write_b64 v{V_T0}, {vr(t,2)} offset:{(4*dt+rq)*16}")
    e("s_waitcnt lgkmcnt(0)")
    for i in range(8):
        e(f"ds_read_b128 {vr(V_K+4*i,4)}, v{V_T1} offset:{i*4*OROW}")
    for i in range(8):
        e(f"s_waitcnt lgkmcnt({7-i})")
        e(f"buffer_store_dwordx4 {vr(V_K+4*i,4)}, v{V_DMA}, {sr(S_O,4)}, s{S_Q0} offen")
        if i < 7:
            e(f"s_add_u32 s{S_Q0}, s{S_Q0}, 0x4000")
    stamp(5)
    if opt.stamps:
        e("s_branch L_stamps")
    else:
        e("s_endpgm")

iteration(1, False, True, 0, 0, None, 0, tail=True, tag="TO")
final(1)
lab("L_tail_even")
iteration(0, False, True, 0, VSLOT, None, 0, tail=True, tag="TE")
final(0)
for tag, par in rare_sites:
    rare(tag, par)
if opt.stamps:
    lab("L_stamps")
    e("s_waitcnt vmcnt(0)")
    e(f"s_memtime {sr(S_MASK, 2)}")
    e(f"s_getreg_b32 s{S_MASK+2}, hwreg(HW_REG_HW_ID)")
    e(f"s_getreg_b32 s{S_MASK+3}, hwreg(HW_REG_XCC_ID)")
    e(f"s_memrealtime {sr(S_MASK+4, 2)}")
    e("s_waitcnt lgkmcnt(0)")
    e(f"s_lshl_b32 s{S_T0}, s2, 2")
    e(f"s_add_u32 s{S_T0}, s{S_T0}, s{S_WAVE}")
    e(f"s_lshl_b32 s{S_T0}, s{S_T0}, 7")
    e(f"v_mov_b32 v0, s{S_T0}")
    e("s_mov_b64 exec, 1")
    regs = [S_STAMP+i for i in range(12)] + [S_MASK+i for i in range(6)]
    for i, r_ in enumerate(regs):
        e(f"v_mov_b32 v1, s{r_}")
        e(f"global_store_dword v0, v1, s[14:15] offset:{4*i}")
lab("L_end")
e("s_endpgm")
out.append('.section .rodata,"a"')
out.append(".p2align 6")
out.append(f".amdhsa_kernel {NAME}_kernel")
out.append("  .amdhsa_next_free_vgpr 256")
out.append("  .amdhsa_next_free_sgpr 102")
out.append("  .amdhsa_accum_offset 256")
out.append("  .amdhsa_group_segment_fixed_size 0")
out.append("  .amdhsa_kernarg_size 56")
out.append("  .amdhsa_user_sgpr_count 2")
out.append("  .amdhsa_user_sgpr_kernarg_segment_ptr 1")
out.append("  .amdhsa_system_sgpr_workgroup_id_x 1")
out.append(".end_amdhsa_kernel")
open(sys.argv[1], "w").write("\n".join(out) + "\n")
```

```python
import sys, struct, math

CU = [0, 289, 520, 939, 1289, 1402, 1666, 1973, 2275]
NAME = "standalone__varlen_attn_packed__ragged"

def f32bits(x):
    return struct.unpack("<I", struct.pack("<f", x))[0]

class Opt:
    stamps = False
    headmap = 0
    nocompute = False

opt = Opt()
for a in sys.argv[2:]:
    k, v = a.split("=")
    setattr(opt, k, int(v))

KSLOT = 8320
VSLOT = 8192
NS = 8
VBASE = NS * KSLOT
QBASE = VBASE + 7 * VSLOT
LDS_BYTES = 157184
OROW = 272
OWAVE = 32 * OROW
D = NS - 2

V_TID, V_LANE, V_DMA, V_DMA2 = 0, 1, 2, 3
V_KA = 4
V_VA = 8
V_L, V_PS, V_T0, V_T1 = 12, 13, 14, 15
V_NEGM = 16
V_Q = 32
V_K = 64
V_V = 96
V_S = [128, 144]
V_P = [160, 168]
V_E = 176
V_O = 192

S_Q, S_K, S_V, S_O = 16, 20, 24, 28
S_MASK = 32
S_HEAD, S_JOB, S_W, S_L, S_NK, S_Q0 = 64, 65, 66, 67, 68, 69
S_THR, S_WAVE = 70, 71
S_KSOFF, S_VSOFF, S_KDMA, S_VDMA = 72, 73, 74, 75
S_U, S_J, S_T0, S_T1, S_DK, S_DV = 76, 77, 78, 79, 80, 81
S_WK, S_WV = 82, 83
S_C = 84
S_NKM1 = 86
S_STAMP = 88

out = []
def e(s):
    out.append("    " + s)
def lab(s):
    out.append(s + ":")
def vr(b, n):
    return f"v[{b}:{b+n-1}]"
def sr(b, n):
    return f"s[{b}:{b+n-1}]"

order = sorted(range(8), key=lambda s: -(CU[s+1]-CU[s]))
jobs_first = []
nj = 0
for s in order:
    L = CU[s+1]-CU[s]
    jobs_first.append((s, nj))
    nj += (L + 127)//128
NJOB = nj
NWG = NJOB * 16

def stamp(i):
    if opt.stamps:
        e(f"s_memtime {sr(S_STAMP + 2*i, 2)}")

def mfma(d, a, b, c):
    cs = "0" if c is None else vr(c, 16)
    return f"v_mfma_f32_32x32x16_bf16 {vr(d,16)}, {vr(a,4)}, {vr(b,4)}, {cs}"

def kread(ks, off):
    return f"ds_read_b128 {vr(V_K+4*ks,4)}, v{V_KA+(ks>>1)} offset:{off+(ks&1)*32}"
def vread(i, jj, off):
    kg, dt = i >> 2, i & 3
    return f"ds_read_b64_tr_b16 {vr(V_V+4*i+2*jj,2)}, v{V_VA+dt} offset:{off+jj*2048+kg*4096}"

def dma_pair(koff, voff):
    return [
        [f"s_add_u32 m0, s{S_KDMA}, {koff}", f"s_nop 0", f"buffer_load_dwordx4 v{V_DMA}, {sr(S_K,4)}, s{S_KSOFF} offen lds"],
        [f"s_add_u32 m0, s{S_KDMA}, {koff+4*1040}", f"s_nop 0", f"buffer_load_dwordx4 v{V_DMA2}, {sr(S_K,4)}, s{S_KSOFF} offen lds"],
        [f"s_add_u32 m0, s{S_VDMA}, {voff}", f"s_nop 0", f"buffer_load_dwordx4 v{V_DMA}, {sr(S_V,4)}, s{S_VSOFF} offen lds"],
        [f"s_add_u32 m0, s{S_VDMA}, {voff+4096}", f"s_add_u32 s{S_KSOFF}, s{S_KSOFF}, 0x20000",
         f"buffer_load_dwordx4 v{V_DMA2}, {sr(S_V,4)}, s{S_VSOFF} offen lds", f"s_add_u32 s{S_VSOFF}, s{S_VSOFF}, 0x20000"],
    ]

rare_sites = []

def softmax_ops(par):
    S, P = V_S[par], V_P[par]
    slots = [[] for _ in range(18)]
    for r in range(16):
        slots[r].append(f"v_exp_f32 v{V_E+r}, v{S+r}")
    for r in range(16):
        if r == 1:
            slots[r+1].append(f"v_add_f32 v{V_PS}, v{V_E}, v{V_E+1}")
        elif r > 1:
            slots[r+1].append(f"v_add_f32 v{V_PS}, v{V_PS}, v{V_E+r}")
        if r & 1:
            slots[r+1].append(f"v_cvt_pk_bf16_f32 v{P+(r>>1)}, v{V_E+r-1}, v{V_E+r}")
    return slots

def iteration(par, do_qk, do_pv, koff, voff, dma, vm, tail=False, upd=False, tag="", first=False):
    mf = []
    for i in range(8):
        if do_qk:
            mf.append(("qk", i))
        if do_pv:
            mf.append(("pv", i))
    n = len(mf)
    gaps = [[] for _ in range(n)]
    sm = softmax_ops(par)
    per = 16 // n
    for g in range(n):
        for k in range(per):
            gaps[g] += sm[g*per+k]
    post = sm[16] + sm[17]
    pre = []
    if not first:
        pre.append(f"v_add_f32 v{V_L}, v{V_L}, v{V_PS}")
    if tail:
        for r in range(16):
            pre.append(f"v_cndmask_b32 v{V_S[par]+r}, v{V_T1}, v{V_S[par]+r}, {sr(S_MASK+2*r,2)}")
    lds = [[] for _ in range(n)]
    for g, (kind, i) in enumerate(mf):
        if kind == "qk":
            lds[g].append(kread(i, koff))
            if not do_pv:
                lds[g] += [vread(i, 0, voff), vread(i, 1, voff)]
        else:
            lds[g] += [vread(i, 0, voff), vread(i, 1, voff)]
    extra = [[] for _ in range(n)]
    if dma is not None:
        for k, grp in enumerate(dma):
            extra[min(n-1, 1 + k*(n//8))] += grp
    if upd:
        extra[n//2] += [f"s_add_u32 s{S_U}, s{S_U}, 1", f"s_and_b32 s{S_U}, s{S_U}, 3",
                        f"s_mul_i32 s{S_KDMA}, s{S_U}, {2*KSLOT}", f"s_add_u32 s{S_KDMA}, s{S_KDMA}, s{S_WK}"]
        extra[n//2+1] += [f"s_add_u32 s{S_T0}, s{S_U}, 3", f"s_and_b32 s{S_T0}, s{S_T0}, 3",
                          f"s_lshl_b32 s{S_T0}, s{S_T0}, 14", f"s_add_u32 s{S_VDMA}, s{S_T0}, s{S_WV}"]
    for x in pre:
        e(x)
    nl = 0
    for g, (kind, i) in enumerate(mf):
        if g == 0:
            e("s_waitcnt lgkmcnt(12)" if n == 16 else "s_waitcnt lgkmcnt(0)")
        if g == n//2 and n == 16:
            e("s_waitcnt lgkmcnt(12)")
        if kind == "qk":
            e(mfma(V_S[1-par], V_K+4*i, V_Q+4*i, V_NEGM if i == 0 else V_S[1-par]))
        else:
            kg, dt = i >> 2, i & 3
            e(mfma(V_O+16*dt, V_V+4*i, V_P[1-par]+4*kg, V_O+16*dt))
        if g == 0:
            e(f"s_waitcnt vmcnt({vm})")
            e("s_barrier")
        for x in lds[g]:
            e(x)
        for x in gaps[g]:
            e(x)
        for x in extra[g]:
            e(x)
        if upd:
            if kind == "qk" and (i & 1):
                e(f"v_add_u32 v{V_KA+(i>>1)}, s{S_DK}, v{V_KA+(i>>1)}")
            if kind == "pv" and i >= 4:
                e(f"v_add_u32 v{V_VA+(i&3)}, s{S_DV}, v{V_VA+(i&3)}")
    for x in post:
        e(x)
    e(f"v_cmp_lt_f32 vcc, s{S_THR}, v{V_PS}")
    e(f"s_cbranch_vccnz L_rare_{tag}")
    lab(f"L_back_{tag}")
    rare_sites.append((tag, par))

def blockmax(S, t0, t1):
    e(f"v_max3_f32 v{t0}, v{S}, v{S+1}, v{S+2}")
    e(f"v_max3_f32 v{t1}, v{S+3}, v{S+4}, v{S+5}")
    e(f"v_max3_f32 v{t0}, v{t0}, v{S+6}, v{S+7}")
    e(f"v_max3_f32 v{t1}, v{t1}, v{S+8}, v{S+9}")
    e(f"v_max3_f32 v{t0}, v{t0}, v{S+10}, v{S+11}")
    e(f"v_max3_f32 v{t1}, v{t1}, v{S+12}, v{S+13}")
    e(f"v_max3_f32 v{t0}, v{t0}, v{S+14}, v{S+15}")
    e(f"v_max_f32 v{t0}, v{t0}, v{t1}")
    e(f"v_mov_b32 v{t1}, v{t0}")
    e("s_nop 1")
    e(f"v_permlane32_swap_b32 v{t0}, v{t1}")
    e("s_nop 1")
    e(f"v_max_f32 v{t0}, v{t0}, v{t1}")

def rare(tag, par):
    S, Sn, P = V_S[par], V_S[1-par], V_P[par]
    lab(f"L_rare_{tag}")
    e("s_nop 15")
    e("s_nop 7")
    blockmax(S, V_E, V_E+1)
    e(f"v_max_f32 v{V_T0}, 0, v{V_E}")
    e(f"v_sub_f32 v{V_E+1}, 0, v{V_T0}")
    e(f"v_exp_f32 v{V_E+1}, v{V_E+1}")
    for r in range(16):
        e(f"v_sub_f32 v{S+r}, v{S+r}, v{V_T0}")
        e(f"v_sub_f32 v{Sn+r}, v{Sn+r}, v{V_T0}")
        e(f"v_sub_f32 v{V_NEGM+r}, v{V_NEGM+r}, v{V_T0}")
    for r in range(64):
        e(f"v_mul_f32 v{V_O+r}, v{V_O+r}, v{V_E+1}")
    e(f"v_mul_f32 v{V_L}, v{V_L}, v{V_E+1}")
    for sl in softmax_ops(par):
        for x in sl:
            e(x)
        e("s_nop 0")
    e("s_nop 1")
    e(f"s_branch L_back_{tag}")

hdr = open("cdna_kernels/" + NAME + ".s.ref").read().split("\n")
for line in hdr:
    if line.startswith("; @launch"):
        break
    out.append(line)
out.append(f"; @launch grid=({NWG},1,1) block=(256,1,1) lds={LDS_BYTES}")
out.append('.amdgcn_target "amdgcn-amd-amdhsa--gfx950"')
out.append(".text")
out.append(f".globl {NAME}_kernel")
out.append(".p2align 8")
out.append(f".type {NAME}_kernel,@function")
lab(f"{NAME}_kernel")
e("s_load_dwordx8 s[4:11], s[0:1], 0")
e("s_load_dwordx2 s[12:13], s[0:1], 32")
if opt.stamps:
    e(f"s_load_dwordx2 s[14:15], s[0:1], {48 if opt.stamps == 1 else 40}")
    e("s_memrealtime s[100:101]")
stamp(0)
e(f"s_cmp_ge_u32 s2, {NWG}")
e("s_cbranch_scc1 L_end")
e(f"v_lshrrev_b32 v{V_T0}, 6, v0")
e(f"v_and_b32 v{V_LANE}, 63, v0")
e(f"v_readfirstlane_b32 s{S_WAVE}, v{V_T0}")
e(f"s_and_b32 s{S_HEAD}, s2, 7")
e(f"s_lshr_b32 s{S_JOB}, s2, 3")
e(f"s_and_b32 s{S_T0}, s{S_JOB}, 1")
if opt.headmap == 0:
    e(f"s_lshl_b32 s{S_HEAD}, s{S_HEAD}, 1")
else:
    e(f"s_lshl_b32 s{S_T0}, s{S_T0}, 3")
e(f"s_or_b32 s{S_HEAD}, s{S_HEAD}, s{S_T0}")
e(f"s_lshr_b32 s{S_JOB}, s{S_JOB}, 1")
for k, (s, f) in enumerate(jobs_first):
    w = CU[s] | ((CU[s+1]-CU[s]) << 12) | (f << 21)
    if k == 0:
        e(f"s_mov_b32 s{S_W}, {w:#x}")
    else:
        e(f"s_cmp_ge_u32 s{S_JOB}, {f}")
        e(f"s_cselect_b32 s{S_W}, {w:#x}, s{S_W}")
e(f"s_bfe_u32 s{S_L}, s{S_W}, {12 | (9 << 16):#x}")
e(f"s_lshr_b32 s{S_T0}, s{S_W}, 21")
e(f"s_sub_u32 s{S_Q0}, s{S_JOB}, s{S_T0}")
e(f"s_lshl_b32 s{S_Q0}, s{S_Q0}, 2")
e(f"s_add_u32 s{S_Q0}, s{S_Q0}, s{S_WAVE}")
e(f"s_lshl_b32 s{S_Q0}, s{S_Q0}, 17")
e(f"s_and_b32 s{S_T0}, s{S_W}, 0xfff")
e(f"s_lshl_b32 s{S_T0}, s{S_T0}, 12")
e(f"s_lshl_b32 s{S_T1}, s{S_HEAD}, 8")
e(f"s_add_u32 s{S_T0}, s{S_T0}, s{S_T1}")
e(f"s_lshl_b32 s{S_T1}, s{S_L}, 12")
e(f"s_sub_u32 s{S_T1}, s{S_T1}, {4096-256}")
e(f"s_add_u32 s{S_NK}, s{S_L}, 31")
e(f"s_lshr_b32 s{S_NK}, s{S_NK}, 5")
e(f"v_lshrrev_b32 v{V_T0}, 4, v{V_LANE}")
e(f"v_lshlrev_b32 v{V_T1}, 2, v{V_T0}")
e(f"v_and_b32 v{V_DMA}, 15, v{V_LANE}")
e(f"v_xor_b32 v{V_DMA}, v{V_DMA}, v{V_T1}")
e(f"v_lshlrev_b32 v{V_DMA}, 4, v{V_DMA}")
e(f"v_lshl_add_u32 v{V_DMA}, v{V_T0}, 12, v{V_DMA}")
e(f"s_mul_i32 s{S_WK}, s{S_WAVE}, 1040")
e(f"s_lshl_b32 s{S_WV}, s{S_WAVE}, 10")
e(f"s_add_u32 s{S_WV}, s{S_WV}, {VBASE}")
e(f"s_mul_i32 s{S_KDMA}, s{S_WAVE}, {KSLOT}")
e(f"s_add_u32 s{S_KDMA}, s{S_KDMA}, {QBASE}")
for srd in (S_Q, S_K, S_V, S_O):
    e(f"s_mov_b32 s{srd+2}, s{S_T1}")
    e(f"s_mov_b32 s{srd+3}, 0x20000")
e("s_waitcnt lgkmcnt(0)")
for srd, p in ((S_Q, 4), (S_K, 6), (S_V, 8), (S_O, 12)):
    e(f"s_add_u32 s{srd}, s{p}, s{S_T0}")
    e(f"s_addc_u32 s{srd+1}, s{p+1}, 0")
stamp(1)
e(f"s_mov_b32 s{S_T1}, s{S_Q0}")
for i in range(8):
    e(f"s_add_u32 m0, s{S_KDMA}, {i*1040}")
    if i:
        e(f"s_add_u32 s{S_T1}, s{S_T1}, 0x4000")
    else:
        e("s_nop 0")
    e(f"buffer_load_dwordx4 v{V_DMA}, {sr(S_Q,4)}, s{S_T1} offen lds")
e(f"s_lshl_b32 s{S_T0}, s{S_WAVE}, 14")
e(f"v_add_u32 v{V_DMA}, s{S_T0}, v{V_DMA}")
e(f"v_add_u32 v{V_DMA2}, 0x10000, v{V_DMA}")
e(f"s_mov_b32 s{S_T1}, s{S_KDMA}")
def dma_k(b):
    slot = (b+1) & 7
    e(f"s_add_u32 m0, s{S_WK}, {slot*KSLOT}")
    e(f"s_mov_b32 s{S_KSOFF}, {b*0x20000:#x}")
    e(f"buffer_load_dwordx4 v{V_DMA}, {sr(S_K,4)}, s{S_KSOFF} offen lds")
    e(f"s_add_u32 m0, s{S_WK}, {slot*KSLOT+4160}")
    e("s_nop 0")
    e(f"buffer_load_dwordx4 v{V_DMA2}, {sr(S_K,4)}, s{S_KSOFF} offen lds")
def dma_v(b):
    slot = (b+1) & 7
    e(f"s_add_u32 m0, s{S_WV}, {slot*VSLOT}")
    e(f"s_mov_b32 s{S_VSOFF}, {b*0x20000:#x}")
    e(f"buffer_load_dwordx4 v{V_DMA}, {sr(S_V,4)}, s{S_VSOFF} offen lds")
    e(f"s_add_u32 m0, s{S_WV}, {slot*VSLOT+4096}")
    e("s_nop 0")
    e(f"buffer_load_dwordx4 v{V_DMA2}, {sr(S_V,4)}, s{S_VSOFF} offen lds")
dma_k(0); dma_k(1)
for p in range(D):
    dma_k(p+2); dma_v(p)
e(f"s_mov_b32 s{S_KSOFF}, {(D+2)*0x20000:#x}")
e(f"s_mov_b32 s{S_VSOFF}, {D*0x20000:#x}")
stamp(2)
e(f"v_and_b32 v{V_T0}, 3, v{V_LANE}")
e(f"v_bfe_u32 v{V_T1}, v{V_LANE}, 2, 3")
e(f"v_mul_u32_u24 v{V_T1}, 1040, v{V_T1}")
e(f"v_lshl_add_u32 v{V_T1}, v{V_T0}, 8, v{V_T1}")
e(f"v_lshrrev_b32 v{V_L}, 5, v{V_LANE}")
e(f"v_lshl_add_u32 v{V_T1}, v{V_L}, 4, v{V_T1}")
for t in range(4):
    e(f"v_xor_b32 v{V_KA+t}, {t}, v{V_T0}")
    e(f"v_lshl_add_u32 v{V_KA+t}, v{V_KA+t}, 6, v{V_T1}")
    e(f"v_add_u32 v{V_E+t}, s{S_T1}, v{V_KA+t}")
e(f"v_bfe_u32 v{V_T0}, v{V_LANE}, 2, 2")
e(f"v_lshl_add_u32 v{V_T1}, v{V_L}, 2, v{V_T0}")
e(f"v_lshlrev_b32 v{V_T1}, 8, v{V_T1}")
e(f"v_bfe_u32 v{V_PS}, v{V_LANE}, 4, 1")
e(f"v_lshl_add_u32 v{V_T1}, v{V_PS}, 5, v{V_T1}")
e(f"v_and_b32 v{V_PS}, 3, v{V_LANE}")
e(f"v_lshl_add_u32 v{V_T1}, v{V_PS}, 3, v{V_T1}")
e(f"v_add_u32 v{V_T1}, {VBASE}, v{V_T1}")
for dt in range(4):
    e(f"v_xor_b32 v{V_VA+dt}, {dt}, v{V_T0}")
    e(f"v_lshl_add_u32 v{V_VA+dt}, v{V_VA+dt}, 6, v{V_T1}")
e(f"s_sub_u32 s{S_NKM1}, s{S_NK}, 1")
e(f"s_lshl_b32 s{S_T0}, s{S_NKM1}, 5")
e(f"s_sub_u32 s{S_T0}, s{S_L}, s{S_T0}")
e(f"v_lshlrev_b32 v{V_T0}, 2, v{V_L}")
e(f"v_sub_u32 v{V_T0}, s{S_T0}, v{V_T0}")
for r in range(16):
    kr = (r & 3) + 8*(r >> 2)
    e(f"v_cmp_lt_i32 {sr(S_MASK+2*r,2)}, {kr}, v{V_T0}")
for r in range(64):
    e(f"v_mov_b32 v{V_O+r}, 0")
e(f"v_mov_b32 v{V_L}, 0")
c = math.log2(math.e) / math.sqrt(128.0)
e(f"s_mov_b32 s{S_C}, {f32bits(c):#x}")
e(f"s_mov_b32 s{S_C+1}, {f32bits(c):#x}")
e(f"s_mov_b32 s{S_THR}, {f32bits(16384.0):#x}")
e(f"s_mov_b32 s{S_T0}, 0xffff0000")
nq_after = 4 + 4*D
e(f"s_waitcnt vmcnt({nq_after})")
stamp(3)
for ks in range(8):
    e(f"ds_read_b128 {vr(V_Q+4*ks,4)}, v{V_E+(ks>>1)} offset:{(ks&1)*32}")
for ks in range(8):
    e(f"s_waitcnt lgkmcnt({7-ks})")
    for k in range(4):
        r = V_Q+4*ks+k
        t = V_E + 8 + 2*k
        e(f"v_lshlrev_b32 v{t}, 16, v{r}")
        e(f"v_and_b32 v{t+1}, s{S_T0}, v{r}")
    for k in range(4):
        t = V_E + 8 + 2*k
        e(f"v_pk_mul_f32 {vr(t,2)}, {vr(t,2)}, {sr(S_C,2)}")
    for k in range(4):
        r = V_Q+4*ks+k
        t = V_E + 8 + 2*k
        e(f"v_cvt_pk_bf16_f32 v{r}, v{t}, v{t+1}")
e(f"s_waitcnt vmcnt({4*D})")
e("s_barrier")
stamp(4)
for ks in range(8):
    e(kread(ks, 1*KSLOT))
for ks in range(8):
    e(f"s_waitcnt lgkmcnt({7})")
    e(mfma(V_S[0], V_K+4*ks, V_Q+4*ks, None if ks == 0 else V_S[0]))
    e(kread(ks, 2*KSLOT))
e("s_nop 15")
blockmax(V_S[0], V_T0, V_T1)
for r in range(16):
    e(f"v_sub_f32 v{V_NEGM+r}, 0, v{V_T0}")
for r in range(16):
    e(f"v_sub_f32 v{V_S[0]+r}, v{V_S[0]+r}, v{V_T0}")
e(f"v_mov_b32 v{V_T1}, 0xff800000")
e(f"s_mov_b32 s{S_KDMA}, s{S_WK}")
e(f"s_mov_b32 s{S_VDMA}, s{S_WV}")
VM = 4*(D-1)
iteration(0, True, False, 3*KSLOT, 1*VSLOT, dma_pair(((D+3)&7)*KSLOT, ((D+1)&7)*VSLOT), VM, tag="i0", first=True)
e(f"s_mov_b32 s{S_U}, 1")
e(f"s_add_u32 s{S_KDMA}, s{S_WK}, {2*KSLOT}")
e(f"s_mov_b32 s{S_VDMA}, s{S_WV}")
for t in range(4):
    e(f"v_add_u32 v{V_KA+t}, {4*KSLOT}, v{V_KA+t}")
    e(f"v_add_u32 v{V_VA+t}, {2*VSLOT}, v{V_VA+t}")
e(f"s_mov_b32 s{S_J}, 2")
e(f"s_mov_b32 s{S_T1}, {2*KSLOT}")
lab("L_loop")
e(f"s_cmp_eq_u32 s{S_U}, 3")
e(f"s_cselect_b32 s{S_DV}, {(-6*VSLOT)&0xffffffff:#x}, s{S_T1}")
out.pop()
e(f"s_movk_i32 s{S_DV}, {2*VSLOT}")
e(f"s_cselect_b32 s{S_DV}, {(-6*VSLOT)&0xffffffff:#x}, s{S_DV}")
e(f"s_cmp_eq_u32 s{S_U}, 2")
e(f"s_cselect_b32 s{S_DK}, {(-6*KSLOT)&0xffffffff:#x}, s{S_T1}")
iteration(1, True, True, 0, 0, dma_pair(0, 0), VM, tag="A")
e(f"s_cmp_eq_u32 s{S_J}, s{S_NKM1}")
e("s_cbranch_scc1 L_tail_even")
iteration(0, True, True, KSLOT, VSLOT, dma_pair(KSLOT, VSLOT), VM, upd=True, tag="B")
e(f"s_add_u32 s{S_J}, s{S_J}, 2")
e(f"s_cmp_eq_u32 s{S_J}, s{S_NK}")
e("s_cbranch_scc0 L_loop")

def final(par):
    e(f"v_add_f32 v{V_L}, v{V_L}, v{V_PS}")
    e(f"v_mov_b32 v{V_T0}, v{V_L}")
    e("s_waitcnt lgkmcnt(0)")
    e("s_nop 0")
    e(f"v_permlane32_swap_b32 v{V_L}, v{V_T0}")
    order_pv = [0, 4, 1, 5, 2, 6, 3, 7]
    for n_, i in enumerate(order_pv):
        kg, dt = i >> 2, i & 3
        e(mfma(V_O+16*dt, V_V+4*i, V_P[par]+4*kg, V_O+16*dt))
        if n_ == 0:
            e(f"v_add_f32 v{V_L}, v{V_L}, v{V_T0}")
            e(f"v_rcp_f32 v{V_L}, v{V_L}")
            e(f"s_mul_i32 s{S_T0}, s{S_WAVE}, {OWAVE}")
            e(f"v_and_b32 v{V_T0}, 31, v{V_LANE}")
            e(f"v_mul_u32_u24 v{V_T0}, {OROW}, v{V_T0}")
        if n_ == 1:
            e(f"v_lshrrev_b32 v{V_T1}, 5, v{V_LANE}")
            e(f"v_lshl_add_u32 v{V_T0}, v{V_T1}, 3, v{V_T0}")
            e(f"v_add_u32 v{V_T0}, s{S_T0}, v{V_T0}")
            e(f"v_lshrrev_b32 v{V_PS}, 4, v{V_LANE}")
            e(f"v_and_b32 v{V_DMA2}, 15, v{V_LANE}")
        if n_ == 2:
            e(f"v_mul_u32_u24 v{V_T1}, {OROW}, v{V_PS}")
            e(f"v_lshl_add_u32 v{V_T1}, v{V_DMA2}, 4, v{V_T1}")
            e(f"v_add_u32 v{V_T1}, s{S_T0}, v{V_T1}")
            e(f"v_lshlrev_b32 v{V_DMA2}, 4, v{V_DMA2}")
            e(f"v_lshl_add_u32 v{V_DMA}, v{V_PS}, 12, v{V_DMA2}")
    e("s_nop 7")
    for dt in range(4):
        if dt == 3:
            e("s_nop 3")
        for r in range(16):
            e(f"v_mul_f32 v{V_O+16*dt+r}, v{V_O+16*dt+r}, v{V_L}")
        for rq in range(4):
            b = V_O+16*dt+4*rq
            t = V_E + 2*((dt*4+rq) & 7)
            e(f"v_cvt_pk_bf16_f32 v{t}, v{b}, v{b+1}")
            e(f"v_cvt_pk_bf16_f32 v{t+1}, v{b+2}, v{b+3}")
            e(f"ds_write_b64 v{V_T0}, {vr(t,2)} offset:{(4*dt+rq)*16}")
    e("s_waitcnt lgkmcnt(0)")
    for i in range(8):
        e(f"ds_read_b128 {vr(V_K+4*i,4)}, v{V_T1} offset:{i*4*OROW}")
    for i in range(8):
        e(f"s_waitcnt lgkmcnt({7-i})")
        e(f"buffer_store_dwordx4 {vr(V_K+4*i,4)}, v{V_DMA}, {sr(S_O,4)}, s{S_Q0} offen")
        if i < 7:
            e(f"s_add_u32 s{S_Q0}, s{S_Q0}, 0x4000")
    stamp(5)
    if opt.stamps:
        e("s_branch L_stamps")
    else:
        e("s_endpgm")

iteration(1, False, True, 0, 0, None, 0, tail=True, tag="TO")
final(1)
lab("L_tail_even")
iteration(0, False, True, 0, VSLOT, None, 0, tail=True, tag="TE")
final(0)
for tag, par in rare_sites:
    rare(tag, par)
if opt.stamps:
    lab("L_stamps")
    e("s_waitcnt vmcnt(0)")
    e(f"s_memtime {sr(S_MASK, 2)}")
    e(f"s_getreg_b32 s{S_MASK+2}, hwreg(HW_REG_HW_ID)")
    e(f"s_getreg_b32 s{S_MASK+3}, hwreg(HW_REG_XCC_ID)")
    e(f"s_memrealtime {sr(S_MASK+4, 2)}")
    e("s_waitcnt lgkmcnt(0)")
    e(f"s_lshl_b32 s{S_T0}, s2, 2")
    e(f"s_add_u32 s{S_T0}, s{S_T0}, s{S_WAVE}")
    e(f"s_lshl_b32 s{S_T0}, s{S_T0}, 7")
    e(f"v_mov_b32 v0, s{S_T0}")
    e("s_mov_b64 exec, 1")
    if opt.stamps == 1:
        regs = [S_STAMP+i for i in range(12)] + [S_MASK+i for i in range(6)] + [100, 101]
        for i, r_ in enumerate(regs):
            e(f"v_mov_b32 v1, s{r_}")
            e(f"global_store_dword v0, v1, s[14:15] offset:{4*i}")
    else:
        e("v_mov_b32 v0, 0")
        e(f"v_mov_b32 v1, s{S_MASK+4}")
        e("global_atomic_umax v0, v1, s[14:15] offset:0")
        e("s_not_b32 s100, s100")
        e("v_mov_b32 v1, s100")
        e("global_atomic_umax v0, v1, s[14:15] offset:4")
        e("s_not_b32 s100, s100")
        e("v_mov_b32 v1, s100")
        e("global_atomic_umax v0, v1, s[14:15] offset:8")
        for i in range(6):
            nxt = S_STAMP+2*(i+1) if i < 5 else S_MASK
            e(f"s_sub_u32 s{S_T0}, s{nxt}, s{S_STAMP+2*i}")
            e(f"v_mov_b32 v1, s{S_T0}")
            e(f"global_atomic_umax v0, v1, s[14:15] offset:{16+4*i}")
lab("L_end")
e("s_endpgm")
out.append('.section .rodata,"a"')
out.append(".p2align 6")
out.append(f".amdhsa_kernel {NAME}_kernel")
out.append("  .amdhsa_next_free_vgpr 256")
out.append("  .amdhsa_next_free_sgpr 102")
out.append("  .amdhsa_accum_offset 256")
out.append("  .amdhsa_group_segment_fixed_size 0")
out.append("  .amdhsa_kernarg_size 56")
out.append("  .amdhsa_user_sgpr_count 2")
out.append("  .amdhsa_user_sgpr_kernarg_segment_ptr 1")
out.append("  .amdhsa_system_sgpr_workgroup_id_x 1")
out.append(".end_amdhsa_kernel")
open(sys.argv[1], "w").write("\n".join(out) + "\n")
```

```python
import sys, struct, math

CU = [0, 289, 520, 939, 1289, 1402, 1666, 1973, 2275]
NAME = "standalone__varlen_attn_packed__ragged"
def f32bits(x):
    return struct.unpack("<I", struct.pack("<f", x))[0]

class Opt:
    stamps = 0
    D4 = 4
    D1 = 3
    slack = 2
    npre4 = 1
    hold = 1
    npre1 = 1
    stflag = ""
    hprio = 1
    lprio = 2
    pf = 1
    budget = 24
    ntq = 0
    ntkv = 0
opt = Opt()
for a in sys.argv[2:]:
    k, v = a.split("=")
    setattr(opt, k, int(v) if v.lstrip("-").isdigit() else v)

G = 1040
KSLOT = 8 * G
VSLOT = 8192
KBASE = 10 * VSLOT
LDS_BYTES = 163840
FBASE = KBASE + 1024
PROG0 = 32
MRG0 = 40
THR = 16384.0
NWG = 256
def kslot(s): return KBASE + s*KSLOT
def vslot(s): return s*VSLOT
def ent(n): return FBASE + n*G

V_FA, V_LANE, V_PA, V_FL = 0, 1, 2, 3
V_KA = 4
V_VA = 8
V_L, V_PS, V_T0, V_T1 = 12, 13, 14, 15
V_NEGM = 16
V_Q = 32
V_K = 64
V_V = 96
V_S = [128, 144]
V_P = [160, 168]
V_E = 176
V_WA = 184
V_RA, V_SA, V_CK, V_X = 188, 189, 190, 191
V_O = 192
V_DMA, V_DMA2, V_SIG, V_THRV, V_POLL, V_PV, V_DL = 64, 65, 66, 67, 68, 69, 70

S_P1, S_K, S_V, S_O = 16, 20, 24, 28
S_MASK = 32
S_K2, S_V2 = 32, 36
T = 64
(T_SOFF, T_NREC, T_P1S, T_P1L, T_PK, T_QOFF, T_QST, T_KB, T_VB, T_FB, T_N, T_NV, T_OST, T_MB, T_MIN, T_MOUT) = range(T, T+16)
S_U, S_J, S_T0, S_T1, S_DK, S_DV = 80, 81, 82, 83, 84, 85
S_KWRAP, S_VWRAP, S_NM1, S_T2, S_THR, S_LO = 86, 87, 14, 15, 3, 98
S_2K, S_2V = 99, 10
S_BASE = 11
S_STAMP = 88

out = []
def e(s): out.append("    " + s)
def lab(s): out.append(s + ":")
def vr(b, n): return f"v[{b}:{b+n-1}]"
def sr(b, n): return f"s[{b}:{b+n-1}]"
def stamp(i):
    if opt.stamps: e(f"{'s_memrealtime' if opt.stamps == 3 else 's_memtime'} {sr(S_STAMP + 2*i, 2)}")

R_MAIN, R_INIT, R_IDLE, R_L4, R_L1 = 0, 1, 2, 3, 4
def seqL(s): return CU[s+1]-CU[s]
def seqnk(s): return (seqL(s)+31)//32
programs = []
def prog_id(desc):
    if desc not in programs: programs.append(desc)
    return 3 + programs.index(desc)
tails_used = set()
def entry(role, seq, tile=None, b0=0, n=None, slot0=0, f0=0, qst=0, ost=0, lo=0, hi=0, mb=0, ml=0, mi=None, mo=None,
          init=None, prio=0, qsrc=None, lvl1=0, swait=0):
    L = seqL(seq); nk = seqnk(seq)
    n = nk - b0 if n is None else n
    nv = L - 32*(b0+n-1)
    second = 1 if (init is not None and tile is not None and qsrc is None) else 0
    if mi is not None or mo is not None: tail = 2
    elif nv <= 8: tail = 0
    else: tail = 1
    if tile is not None: tails_used.add((tail, (n-1) & 1))
    ring = 1 if nk > 10 else 0
    pk = role | second << 6 | ring << 7 | lo << 8 | hi << 11 | tail << 14 | (1 if prio else 0) << 16 | lvl1 << 17 | swait << 18 | (0 if qsrc is None else 1) << 19
    return [CU[seq]*4096, (L-1)*4096+256, 0, 400000, pk, (tile or 0)*0x20000, qst,
            kslot(slot0+b0), vslot(slot0+b0), ent(f0+b0), n, min(nv, 64), ost, mb | (qsrc or 0) << 24,
            0 if mi is None else ent(MRG0+mi), 0 if mo is None else ent(MRG0+mo)]
MLOFF = vslot(1)
QH = [KBASE - (4-k)*KSLOT for k in range(4)]
table = []
def T4(seq, t0, nt):
    rows = []
    for w in range(4):
        if w < nt:
            rows.append(entry(R_MAIN, seq, tile=t0+w, qst=kslot(5+w), ost=vslot(9)+2048*w, lo=w, hi=w))
        else:
            rows.append(entry(R_IDLE, seq))
    pid = prog_id(("L4", seqnk(seq)))
    for w in range(4):
        rows.append(entry(pid, seq, init=w))
    return rows
def T5(seq, t0):
    rows = [entry(R_MAIN, seq, tile=t0+w, qst=kslot(5+w), ost=vslot(0)+2048*w, lo=0, hi=4) for w in range(4)]
    rng = [(0, 3), (3, 3), (6, 2), (8, 2)]
    pid = prog_id(("L1", seqnk(seq), 4))
    for h in range(4):
        rows.append(entry(R_INIT if h < 3 else pid, seq, tile=t0+4, b0=rng[h][0], n=rng[h][1], qst=QH[3], ost=vslot(1),
                          lo=0, hi=(3 if h < 3 else 4), mb=kslot(0), mi=(h-1 if h else None), mo=(h if h < 3 else None), init=h,
                          prio=opt.hprio, qsrc=(4 if h else None), lvl1=(1 if h < 3 else 0), swait=(1 if h == 0 else 0)))
    return rows
def T8(seq):
    pid = prog_id(("L1", seqnk(seq), None))
    rows = [entry(R_MAIN, seq, tile=w, qst=kslot(5+w), ost=vslot(8)+2048*w, lo=w, hi=w) for w in range(4)]
    for h in range(4):
        rows.append(entry(R_INIT if h < 3 else pid, seq, tile=4+h, qst=QH[h], ost=vslot(9)+2048*h, lo=4+h, hi=4+h, init=h,
                          prio=(opt.hprio if h == 3 else 0)))
    return rows
def T6(seq):
    pid = prog_id(("L1", seqnk(seq), 5))
    rows = [entry(R_MAIN, seq, tile=w, qst=kslot(5+w), ost=vslot(9)+2048*w, lo=w, hi=w) for w in range(4)]
    spec = [(4, 0, 5, None, 0, 0), (5, 0, 6, None, 1, 1), (4, 5, 4, 0, None, 0), (5, 6, 3, 1, None, 1)]
    for h, (tile, b0, n, mi, mo, buf) in enumerate(spec):
        rows.append(entry(R_INIT if h < 3 else pid, seq, tile=tile, b0=b0, n=n, qst=QH[2+buf], ost=kslot(9)+2048*buf,
                          lo=0, hi=5, mb=kslot(2*buf), mi=mi, mo=mo, init=h, prio=opt.hprio, qsrc=(h+2 if h >= 2 else None),
                          lvl1=(1 if buf == 0 else 0), swait=(1 if h < 2 else 0)))
    return rows
def T34(seqA, seqB, tB0):
    qa = [vslot(1) + k*KSLOT for k in range(4)]
    rows = [entry(R_MAIN, seqA, tile=w, slot0=6, f0=16, qst=kslot(2+w), ost=vslot(0)+2048*w, lo=4, hi=6) for w in range(4)]
    pid = prog_id(("L2", seqA, seqB))
    for h in range(3):
        rows.append(entry(R_INIT, seqB, tile=tB0+h, qst=vslot(2)+h*KSLOT, ost=vslot(1)+2048*h, lo=4, hi=6, init=h))
    rows.append(entry(pid, seqB, init=3))
    return rows
table += T4(2, 0, 4) + T4(2, 4, 4) + T4(2, 8, 3) + T4(2, 11, 3)
table += T8(1)
table += T5(6, 0) + T5(6, 5) + T5(7, 0) + T5(7, 5) + T5(0, 0) + T5(0, 5)
table += T6(5) + T34(4, 5, 6)
table += T4(3, 0, 4) + T4(3, 4, 4) + T4(3, 8, 3)
assert len(table) == 128
def small(seq, t0, nt, two=0):
    return CU[seq] | seqL(seq) << 12 | t0 << 21 | nt << 25 | two << 28
stab = [small(2,0,4), small(2,4,4), small(2,8,3), small(2,11,3), small(1,0,4), small(6,0,4), small(6,5,4), small(7,0,4), small(7,5,4),
        small(0,0,4), small(0,5,4), small(5,0,4), small(4,0,4,1), small(3,0,4), small(3,4,4), small(3,8,3)]

def mfma(d, a, b, c):
    cs = "0" if c is None else vr(c, 16)
    return f"v_mfma_f32_32x32x16_bf16 {vr(d,16)}, {vr(a,4)}, {vr(b,4)}, {cs}"
def kread(ks, off):
    return f"ds_read_b128 {vr(V_K+4*ks,4)}, v{V_KA+(ks>>1)} offset:{off+(ks&1)*32}"
def vread(i, jj, off, base=V_V):
    kg, dt = i >> 2, i & 3
    return f"ds_read_b64_tr_b16 {vr(base+4*i+2*jj,2)}, v{V_VA+dt} offset:{off+jj*2048+kg*4096}"
def E(r): return V_E + (r & 7)

def softmax_list(par, R=16, mask=False):
    S, P = V_S[par], V_P[par]
    def ex(r):
        o = []
        if mask:
            if r == 0: o.append(f"v_cndmask_b32 v{S}, v{V_T1}, v{S}, {sr(S_MASK,2)}")
            if r+1 < R: o.append(f"v_cndmask_b32 v{S+r+1}, v{V_T1}, v{S+r+1}, {sr(S_MASK+2*r+2,2)}")
        o.append(f"v_exp_f32 v{E(r)}, v{S+r}")
        return o
    ops = ex(0) + ex(1)
    for r in range(2, R+1):
        if r < R: ops += ex(r)
        q = r - 1
        if q == 1: ops.append(f"v_add_f32 v{V_PS}, v{E(0)}, v{E(1)}")
        else: ops.append(f"v_add_f32 v{V_PS}, v{V_PS}, v{E(q)}")
        if q & 1: ops.append(f"v_cvt_pk_bf16_f32 v{P+(q>>1)}, v{E(q-1)}, v{E(q)}")
    return ops

def cost(x):
    if x.startswith("v_exp") or x.startswith("v_rcp") or x.startswith("v_permlane"): return 8
    if x.startswith("s_cbranch"): return 12
    return 4

rare_sites = []
def itstamp():
    if opt.stamps == 2:
        e(f"v_writelane_b32 v{V_LANE}, s100, m0")
        e("s_add_u32 m0, m0, 1")
        e("s_memtime s[100:101]")

def iteration(par, do_pv, koff, voff, foff, tag, first=False, misc=None, last_ops=None):
    itstamp()
    mf = []
    for i in range(8):
        mf.append(("qk", i))
        if do_pv: mf.append(("pv", i))
    n = len(mf)
    fixed = [[] for _ in range(n)]
    for g, (kind, i) in enumerate(mf):
        if kind == "qk":
            fixed[g].append(kread(i, koff))
            if not do_pv: fixed[g] += [vread(i, 0, voff), vread(i, 1, voff)]
        else:
            fixed[g] += [vread(i, 0, voff), vread(i, 1, voff)]
    fgap = 6 if n == 16 else 3
    fixed[fgap].append(f"ds_read_b32 v{V_FL}, v{V_FA} offset:{foff}")
    q = []
    if not first: q.append(f"v_add_f32 v{V_L}, v{V_L}, v{V_PS}")
    q += softmax_list(par)
    q.append("WAITFLAG")
    q.append(f"v_cmp_lt_f32 vcc, v{V_FL}, v{V_PS}")
    if first: q.append(f"v_cmp_gt_f32 {sr(S_DK,2)}, s{S_LO}, v{V_PS}")
    misc = [(g_, x) for g_, ops in (misc or []) for x in ops]
    budget = opt.budget if n == 16 else (sum(cost(x) for x in q) + sum(4*len(f) for f in fixed) + n - 1)//n + 4
    nl = 0
    for g, (kind, i) in enumerate(mf):
        if n == 16:
            if g == 0: e("s_waitcnt lgkmcnt(12)")
            if g == 8: e("s_waitcnt lgkmcnt(13)")
        else:
            if g == 0: e("s_waitcnt lgkmcnt(4)")
            if g == 2: e("s_waitcnt lgkmcnt(6)")
        if kind == "qk":
            e(mfma(V_S[1-par], V_K+4*i, V_Q+4*i, V_NEGM if i == 0 else V_S[1-par]))
        else:
            kg, dt = i >> 2, i & 3
            e(mfma(V_O+16*dt, V_V+4*i, V_P[1-par]+4*kg, V_O+16*dt))
        used = 0
        for x in fixed[g]:
            e(x); used += 4
        if g > fgap: nl += len(fixed[g])
        nw = 4 if (n == 16 and g+1 in (8, 16)) else 0
        lastgap = g == n-1
        while q and (used + cost(q[0]) + nw <= budget or lastgap):
            x = q.pop(0)
            if x == "WAITFLAG": x = f"s_waitcnt lgkmcnt({min(nl, 15)})"
            e(x); used += cost(x)
        while misc and misc[0][0] <= g and (used + cost(misc[0][1]) + nw <= budget or lastgap):
            x = misc.pop(0)[1]
            e(x); used += cost(x)
            if x.startswith("ds_") and g >= fgap: nl += 1
    assert not q and not misc
    if first: e(f"s_or_b64 vcc, vcc, {sr(S_DK,2)}")
    e(f"s_cbranch_vccnz L_rare_{tag}")
    lab(f"L_back_{tag}")
    for x in (last_ops or []): e(x)
    rare_sites.append((tag, par, foff - (2*G if tag == "B" else 0), first, 16))

def blockmax(S, t0, t1, R=16):
    if R == 16:
        e(f"v_max3_f32 v{t0}, v{S}, v{S+1}, v{S+2}")
        e(f"v_max3_f32 v{t1}, v{S+3}, v{S+4}, v{S+5}")
        e(f"v_max3_f32 v{t0}, v{t0}, v{S+6}, v{S+7}")
        e(f"v_max3_f32 v{t1}, v{t1}, v{S+8}, v{S+9}")
        e(f"v_max3_f32 v{t0}, v{t0}, v{S+10}, v{S+11}")
        e(f"v_max3_f32 v{t1}, v{t1}, v{S+12}, v{S+13}")
        e(f"v_max3_f32 v{t0}, v{t0}, v{S+14}, v{S+15}")
        e(f"v_max_f32 v{t0}, v{t0}, v{t1}")
    else:
        e(f"v_max3_f32 v{t0}, v{S}, v{S+1}, v{S+2}")
        e(f"v_max_f32 v{t0}, v{t0}, v{S+3}")
    e(f"v_mov_b32 v{t1}, v{t0}")
    e("s_nop 1")
    e(f"v_permlane32_swap_b32 v{t0}, v{t1}")
    e("s_nop 1")
    e(f"v_max_f32 v{t0}, v{t0}, v{t1}")

def bound():
    e(f"s_cselect_b32 s{T_SOFF}, 1, 0")
    e(f"s_sub_u32 s{T_P1L}, s{T_P1L}, 1")
    e("s_cbranch_scc1 L_end")
    e(f"s_cmp_lg_u32 s{T_SOFF}, 0")

def spin(label, foff, sleep=0):
    lab(label)
    bound()
    if sleep: e(f"s_sleep {sleep}")
    e(f"ds_read_b32 v{V_FL}, v{V_FA} offset:{foff}")
    e("s_waitcnt lgkmcnt(0)")
    e(f"v_cmp_gt_f32 vcc, 0, v{V_FL}")
    e(f"s_cbranch_vccnz {label}")

def rare(tag, par, foff, first, R, pprev=False):
    S, Sn = V_S[par], V_S[1-par]
    lab(f"L_rare_{tag}")
    if foff is not None:
        e(f"v_cmp_lt_f32 vcc, s{S_THR}, v{V_PS}")
        if first:
            e("s_nop 1")
            e(f"s_or_b64 vcc, vcc, {sr(S_DK,2)}")
        e(f"s_cbranch_vccz L_spin_{tag}")
    e("s_nop 15")
    e("s_nop 7")
    blockmax(S, V_E, V_E+1, R)
    if first:
        e(f"v_mov_b32 v{V_T0}, v{V_E}")
    else:
        e(f"v_max_f32 v{V_T0}, 0, v{V_E}")
        e(f"v_sub_f32 v{V_E+1}, 0, v{V_T0}")
        e(f"v_exp_f32 v{V_E+1}, v{V_E+1}")
    for r in range(16):
        e(f"v_sub_f32 v{S+r}, v{S+r}, v{V_T0}")
        if foff is not None: e(f"v_sub_f32 v{Sn+r}, v{Sn+r}, v{V_T0}")
        e(f"v_sub_f32 v{V_NEGM+r}, v{V_NEGM+r}, v{V_T0}")
    if not first:
        for r in range(64):
            e(f"v_mul_f32 v{V_O+r}, v{V_O+r}, v{V_E+1}")
        e(f"v_mul_f32 v{V_L}, v{V_L}, v{V_E+1}")
    for x in softmax_list(par, R): e(x)
    e("s_nop 1")
    if foff is not None: spin(f"L_spin_{tag}", foff)
    e(f"s_branch L_back_{tag}")

def finish():
    e("s_branch L_stamps" if opt.stamps else "s_endpgm")

stage_spins = []
def norm_ops(dt, pk=False):
    o = V_O+16*dt; ops = []
    for rq in range(4):
        if pk:
            ops += [f"v_pk_mul_f32 {vr(o+4*rq+2*k,2)}, {vr(o+4*rq+2*k,2)}, {vr(V_L,2)} op_sel_hi:[1,0]" for k in range(2)]
        elif pk is not None:
            ops += [f"v_mul_f32 v{o+4*rq+r}, v{o+4*rq+r}, v{V_L}" for r in range(4)]
        t = V_E + 2*rq
        ops.append(f"v_cvt_pk_bf16_f32 v{t}, v{o+4*rq}, v{o+4*rq+1}")
        ops.append(f"v_cvt_pk_bf16_f32 v{t+1}, v{o+4*rq+2}, v{o+4*rq+3}")
        ops.append(f"ds_write_b64 v{V_WA+rq}, {vr(t,2)}")
    return ops
def rd_ops(dt):
    return [f"ds_read_b128 {vr(V_Q+8*dt+4*i,4)}, v{V_RA} offset:{i*1024}" for i in range(2)]
def st_ops(dt):
    fl = opt.stflag.replace('+', ' ')
    return [f"buffer_store_dwordx4 {vr(V_Q+8*dt+4*i,4)}, v{V_SA}, {sr(S_O,4)}, s{T_QOFF if i == 0 else S_T1} offen offset:{64*dt} {fl}".rstrip() for i in range(2)]
def store_stream(pk):
    s = []
    for dt in range(4):
        s.append(f"NEED {dt}")
        s += norm_ops(dt, pk)
        if dt:
            s.append("s_waitcnt lgkmcnt(4)")
            s += st_ops(dt-1)
        s += rd_ops(dt)
    s.append("s_waitcnt lgkmcnt(0)")
    s += st_ops(3)
    return s

def tail(kind, par):
    tag = f"T{kind}{par}"
    lab(f"L_tail_{kind}_{par}")
    itstamp()
    voff = VSLOT if par else 2*VSLOT
    R = 4 if kind == 0 else 16
    nkg = 1 if kind == 0 else 2
    a = lambda i: mfma(V_O+16*(i & 3), V_V+4*i, V_P[1-par]+4*(i >> 2), V_O+16*(i & 3))
    f = lambda i: mfma(V_O+16*(i & 3), V_K+4*i, V_P[par]+4*(i >> 2), V_O+16*(i & 3))
    reads = [vread(i, jj, voff, V_K) for i in range(4*nkg) for jj in range(2)]
    q = [f"v_add_f32 v{V_L}, v{V_L}, v{V_PS}"] + softmax_list(par, R, mask=True)
    if kind == 0: q += [f"v_mov_b64 {vr(V_P[par]+2,2)}, 0"]
    q += [f"v_cmp_lt_f32 vcc, s{S_THR}, v{V_PS}"]
    per = (sum(cost(x) for x in q) + 4*len(reads) + 7)//8 + 4
    per = max(per, 24)
    e("s_waitcnt lgkmcnt(12)")
    nrd = 0
    for g in range(8):
        if g == 4:
            e(f"s_waitcnt lgkmcnt({nrd})")
        e(a(g)); used = 0
        if g == 4:
            e(f"ds_write_b32 v{V_PA}, v{V_FA}")
            e(f"ds_read_b32 v{V_FL}, v{V_CK}")
            used += 8
        for _ in range(2):
            if reads:
                e(reads.pop(0)); used += 4; nrd += 1
        while q and (used + cost(q[0]) <= per or g == 7):
            x = q.pop(0); e(x); used += cost(x)
    e(f"s_cbranch_vccnz L_rare_{tag}")
    lab(f"L_back_{tag}")
    rare_sites.append((tag, par, None, False, R))
    e(f"v_add_f32 v{V_L}, v{V_L}, v{V_PS}")
    e("s_waitcnt lgkmcnt(0)")
    e(f"v_cmp_gt_i32 vcc, s{S_T2}, v{V_FL}")
    fin = [i + 4*k for i in range(4) for k in range(nkg)]
    if kind == 2:
        for i in fin: e(f(i))
        e(f"s_cbranch_vccnz L_stg_{tag}")
        lab(f"L_stgback_{tag}")
        stage_spins.append(tag)
        e("s_branch L_merge")
        return
    e(f"v_mov_b32 v{V_T0}, v{V_L}")
    for _ in range(nkg): e(f(fin.pop(0)))
    e(f"s_add_u32 s{S_T1}, s{T_QOFF}, 0x10000")
    e(f"v_permlane32_swap_b32 v{V_L}, v{V_T0}")
    e(f"s_cbranch_vccnz L_stg_{tag}")
    lab(f"L_stgback_{tag}")
    stage_spins.append(tag)
    e(f(fin.pop(0)))
    e(f"v_add_f32 v{V_L}, v{V_L}, v{V_T0}")
    e(f"v_rcp_f32 v{V_L}, v{V_L}")
    e(f(fin.pop(0)))
    e("s_nop 4")
    cnt = 6
    for x in store_stream(False):
        if x.startswith("NEED"): continue
        if fin and cnt >= 6:
            e(f(fin.pop(0))); cnt = 0
        e(x); cnt += 1
    itstamp()
    finish()

def merge_code():
    lab("L_merge")
    MA, ML = V_KA, V_KA+1
    e(f"v_mov_b32 v{V_T1}, v{V_L}")
    e(f"v_mbcnt_lo_u32_b32 v{V_T0}, -1, 0")
    e(f"v_mbcnt_hi_u32_b32 v{V_T0}, -1, v{V_T0}")
    e(f"s_and_b32 s{T_MB}, s{T_MB}, 0xffffff")
    e(f"v_permlane32_swap_b32 v{V_L}, v{V_T1}")
    e(f"v_lshl_add_u32 v{MA}, v{V_T0}, 4, s{T_MB}")
    e(f"s_cmp_eq_u32 s{T_MB}, {KBASE}")
    e(f"s_cselect_b32 s{S_T0}, {ent(48)}, {ent(16)}") if False else None
    e(f"s_cselect_b32 s{S_T0}, {32*G}, 0")
    e(f"v_add_f32 v{V_L}, v{V_L}, v{V_T1}")
    e(f"s_add_u32 s{S_T0}, s{S_T0}, {ent(16)}")
    e(f"v_bfe_u32 v{ML}, v{V_T0}, 1, 4")
    e(f"v_mul_u32_u24 v{ML}, {G}, v{ML}")
    e(f"v_and_b32 v{V_T0}, 1, v{V_T0}")
    e(f"v_lshl_add_u32 v{ML}, v{V_T0}, 3, v{ML}")
    e(f"v_add_u32 v{ML}, s{S_T0}, v{ML}")
    e(f"s_add_u32 s{S_T1}, s{T_QOFF}, 0x10000")
    e(f"s_cmp_eq_u32 s{T_MIN}, 0")
    e("s_cbranch_scc1 L_merge_out")
    e(f"v_mov_b32 v{V_FA}, s{T_MIN}")
    spin("L_merge_wait", 0, sleep=1)
    e(f"ds_read_b64 {vr(V_E,2)}, v{ML}")
    for i in range(12):
        e(f"ds_read_b128 {vr(V_K+4*i,4)}, v{MA} offset:{i*G}")
    e("s_waitcnt lgkmcnt(12)")
    e(f"v_cmp_neq_f32 vcc, v{V_NEGM}, v{V_E}")
    for i in range(12, 16):
        e(f"ds_read_b128 {vr(V_K+4*i,4)}, v{MA} offset:{i*G}")
    e("s_cbranch_vccnz L_merge_slow")
    lab("L_merge_add")
    e(f"v_add_f32 v{V_L}, v{V_L}, v{V_E+1}")
    e(f"s_cmp_lg_u32 s{T_MOUT}, 0")
    for i in range(4):
        e(f"s_waitcnt lgkmcnt({12-4*i})")
        for r in range(16*i, 16*i+16):
            e(f"v_add_f32 v{V_O+r}, v{V_O+r}, v{V_K+r}")
    e("s_cbranch_scc1 L_merge_out")
    e(f"v_rcp_f32 v{V_L}, v{V_L}")
    e("s_nop 0")
    for x in store_stream(False):
        if not x.startswith("NEED"): e(x)
    itstamp()
    finish()
    lab("L_merge_slow")
    e(f"v_min_f32 v{V_E+2}, v{V_NEGM}, v{V_E}")
    e(f"v_sub_f32 v{V_E+4}, v{V_E+2}, v{V_NEGM}")
    e(f"v_sub_f32 v{V_E+6}, v{V_E+2}, v{V_E}")
    e(f"v_exp_f32 v{V_E+4}, v{V_E+4}")
    e(f"v_exp_f32 v{V_E+6}, v{V_E+6}")
    e(f"v_mov_b32 v{V_NEGM}, v{V_E+2}")
    e(f"v_mul_f32 v{V_L}, v{V_L}, v{V_E+4}")
    e(f"v_mul_f32 v{V_E+1}, v{V_E+1}, v{V_E+6}")
    e("s_waitcnt lgkmcnt(0)")
    for r in range(64):
        e(f"v_mul_f32 v{V_O+r}, v{V_O+r}, v{V_E+4}")
        e(f"v_mul_f32 v{V_K+r}, v{V_K+r}, v{V_E+6}")
    e("s_branch L_merge_add")
    lab("L_merge_out")
    e(f"v_mov_b32 v{V_E}, v{V_NEGM}")
    e(f"v_mov_b32 v{V_E+1}, v{V_L}")
    e(f"v_mov_b32 v{V_FA}, s{T_MOUT}")
    e(f"v_mov_b32 v{V_T0}, 1.0")
    e(f"ds_write_b64 v{ML}, {vr(V_E,2)}")
    for i in range(16):
        e(f"ds_write_b128 v{MA}, {vr(V_O+4*i,4)} offset:{i*G}")
    e(f"ds_write_b32 v{V_FA}, v{V_T0}")
    e("s_waitcnt lgkmcnt(0)")
    itstamp()
    finish()

def setup_compute():
    e(f"s_mov_b32 s{S_O+2}, s{T_NREC}")
    e(f"s_mov_b32 s{S_O+3}, 0x20000")
    e(f"s_add_u32 s{S_O}, s12, s{S_BASE}")
    e(f"s_addc_u32 s{S_O+1}, s13, 0")
    e(f"v_and_b32 v{V_T0}, 3, v{V_LANE}")
    e(f"v_lshl_add_u32 v{V_FA}, v{V_T0}, 2, s{T_FB}")
    e(f"v_bfe_u32 v{V_T1}, v{V_LANE}, 2, 3")
    e(f"v_mul_u32_u24 v{V_T1}, {G}, v{V_T1}")
    e(f"v_lshl_add_u32 v{V_T1}, v{V_T0}, 8, v{V_T1}")
    e(f"v_lshrrev_b32 v{V_L}, 5, v{V_LANE}")
    e(f"v_lshl_add_u32 v{V_T1}, v{V_L}, 4, v{V_T1}")
    for t in range(4):
        e(f"v_xor_b32 v{V_KA+t}, {t}, v{V_T0}")
        e(f"v_lshl_add_u32 v{V_KA+t}, v{V_KA+t}, 6, v{V_T1}")
        e(f"v_add_u32 v{V_E+t}, s{T_QST}, v{V_KA+t}")
        e(f"v_add_u32 v{V_KA+t}, s{T_KB}, v{V_KA+t}")
    e(f"v_lshrrev_b32 v{V_T1}, 2, v{V_LANE}")
    e(f"v_lshlrev_b32 v{V_T0}, 4, v{V_T0}")
    e(f"v_lshl_add_u32 v{V_SA}, v{V_T1}, 12, v{V_T0}")
    e(f"v_bfe_u32 v{V_T0}, v{V_LANE}, 3, 2")
    e(f"v_xor_b32 v{V_T0}, v{V_T0}, v{V_LANE}")
    e(f"v_lshl_add_u32 v{V_RA}, v{V_T0}, 4, s{T_OST}")
    e(f"v_and_b32 v{V_T0}, 31, v{V_LANE}")
    e(f"v_lshl_add_u32 v{V_T0}, v{V_T0}, 6, s{T_OST}")
    e(f"v_lshl_add_u32 v{V_T0}, v{V_L}, 3, v{V_T0}")
    e(f"v_bfe_u32 v{V_T1}, v{V_LANE}, 1, 2")
    for rq in range(4):
        e(f"v_xor_b32 v{V_WA+rq}, {rq}, v{V_T1}")
        e(f"v_lshl_add_u32 v{V_WA+rq}, v{V_WA+rq}, 4, v{V_T0}")
    e(f"v_bfe_u32 v{V_T0}, v{V_LANE}, 2, 2")
    e(f"v_lshl_add_u32 v{V_T1}, v{V_L}, 2, v{V_T0}")
    e(f"v_lshl_add_u32 v{V_T1}, v{V_T1}, 8, s{T_VB}")
    e(f"v_bfe_u32 v{V_PS}, v{V_LANE}, 4, 1")
    e(f"v_lshl_add_u32 v{V_T1}, v{V_PS}, 5, v{V_T1}")
    e(f"v_and_b32 v{V_PS}, 3, v{V_LANE}")
    e(f"v_lshl_add_u32 v{V_T1}, v{V_PS}, 3, v{V_T1}")
    for dt in range(4):
        e(f"v_xor_b32 v{V_VA+dt}, {dt}, v{V_T0}")
        e(f"v_lshl_add_u32 v{V_VA+dt}, v{V_VA+dt}, 6, v{V_T1}")
    e(f"s_bfe_u32 s{S_T0}, s{T_PK}, {8 | 3 << 16:#x}")
    e(f"s_bfe_u32 s{S_T1}, s{T_PK}, {11 | 3 << 16:#x}")
    e(f"v_and_b32 v{V_CK}, 7, v{V_LANE}")
    e(f"v_max_u32 v{V_CK}, s{S_T0}, v{V_CK}")
    e(f"v_min_u32 v{V_CK}, s{S_T1}, v{V_CK}")
    e(f"v_mul_u32_u24 v{V_CK}, {G}, v{V_CK}")
    e(f"v_add_u32 v{V_CK}, {ent(PROG0)}, v{V_CK}")
    e(f"v_lshlrev_b32 v{V_T0}, 2, v{V_L}")
    e(f"v_sub_u32 v{V_T0}, s{T_NV}, v{V_T0}")
    for r in range(16):
        e(f"v_cmp_lt_i32 {sr(S_MASK+2*r,2)}, {(r & 3) + 8*(r >> 2)}, v{V_T0}")
    for r in range(0, 64, 2): e(f"v_mov_b64 {vr(V_O+r,2)}, 0")
    for r in range(0, 16, 2): e(f"v_mov_b64 {vr(V_NEGM+r,2)}, 0")
    e(f"v_mov_b32 v{V_L}, 0")
    e(f"v_mov_b32 v{V_T1}, 0xff800000")
    e(f"v_mov_b32 v{V_X}, 1")
    e(f"s_mov_b32 s{S_LO}, {f32bits(1.0/THR):#x}")
    e(f"s_mov_b32 s{S_THR}, {f32bits(THR):#x}")
    e(f"s_bitcmp1_b32 s{T_PK}, 7")
    e(f"s_cselect_b32 s{S_KWRAP}, 6, 0")
    e(f"s_cselect_b32 s{S_VWRAP}, 8, 0")
    e(f"s_mov_b32 s{S_2K}, {2*KSLOT}")
    e(f"s_mov_b32 s{S_2V}, {2*VSLOT}")
    e(f"s_mov_b32 s{S_J}, 2")
    e(f"s_sub_u32 s{S_NM1}, s{T_N}, 1")
    e(f"s_bitcmp1_b32 s{T_PK}, 17")
    e(f"s_cselect_b32 s{S_T2}, 1, {FBASE}")

def prog_addr():
    e(f"s_mul_i32 s{S_T0}, s{S_U}, {G}")
    e(f"s_add_u32 s{S_T0}, s{S_T0}, {ent(PROG0)}")
    e(f"v_mov_b32 v{V_PA}, s{S_T0}")

def q_read():
    for ks in range(8):
        e(f"ds_read_b128 {vr(V_Q+4*ks,4)}, v{V_E+(ks>>1)} offset:{(ks&1)*32}")

def qscale(ks):
    tb = V_S[1] + 8*(ks & 1)
    for k in range(4):
        r = V_Q+4*ks+k
        e(f"v_lshlrev_b32 v{tb+2*k}, 16, v{r}")
        e(f"v_and_b32 v{tb+2*k+1}, s{S_T0}, v{r}")
    for k in range(4):
        e(f"v_pk_mul_f32 {vr(tb+2*k,2)}, {vr(tb+2*k,2)}, {sr(S_DK,2)}")
    for k in range(4):
        e(f"v_cvt_pk_bf16_f32 v{V_Q+4*ks+k}, v{tb+2*k}, v{tb+2*k+1}")

def flag_init():
    e(f"v_mul_u32_u24 v{V_T0}, {G}, v{V_LANE}")
    e(f"v_add_u32 v{V_T0}, {FBASE}, v{V_T0}")
    for k in range(4): e(f"v_mov_b32 v{V_V+k}, -1.0")
    e(f"ds_write_b128 v{V_T0}, {vr(V_V,4)}")

def init_signal_regs(f0):
    e(f"s_and_b32 s{S_T0}, s{S_U}, 3")
    e(f"s_lshl_b32 s{S_T0}, s{S_T0}, 2")
    if f0 is None:
        e(f"s_cmp_lt_u32 s{S_U}, 4")
        e(f"s_cselect_b32 s{S_T1}, {16*G}, 0")
        e(f"s_add_u32 s{S_T0}, s{S_T0}, s{S_T1}")
    e(f"s_add_u32 s{S_T0}, s{S_T0}, {FBASE}")
    e(f"v_mov_b32 v{V_SIG}, s{S_T0}")
    e(f"v_mov_b32 v{V_THRV}, {f32bits(THR):#x}")

def kv_srds(sk, sv, base_s, nrec):
    for srd, p in ((sk, 6), (sv, 8)):
        e(f"s_add_u32 s{srd}, s{p}, s{base_s}")
        e(f"s_addc_u32 s{srd+1}, s{p+1}, 0")
        e(f"s_mov_b32 s{srd+2}, {nrec}")
        e(f"s_mov_b32 s{srd+3}, 0x20000")

class Loader:
    def __init__(self, name, quarter):
        self.name = name; self.quarter = quarter; self.issued = []; self.npoll = 0; self.seen = {}
    def poll(self, lo, hi, thr):
        key = (lo, hi)
        if self.seen.get(key, -1) >= thr: return
        self.seen[key] = thr
        l_ = f"L_pw_{self.name}_{self.npoll}"; self.npoll += 1
        e(f"v_and_b32 v{V_POLL}, 7, v{V_LANE}")
        e(f"v_max_u32 v{V_POLL}, {lo}, v{V_POLL}")
        e(f"v_min_u32 v{V_POLL}, {hi}, v{V_POLL}")
        e(f"v_mul_u32_u24 v{V_POLL}, {G}, v{V_POLL}")
        e(f"v_add_u32 v{V_POLL}, {ent(PROG0)}, v{V_POLL}")
        e(f"s_mov_b32 s{S_T0}, {thr}")
        lab(l_)
        e(f"ds_read_b32 v{V_PV}, v{V_POLL}")
        e("s_waitcnt lgkmcnt(0)")
        e(f"v_cmp_gt_i32 vcc, s{S_T0}, v{V_PV}")
        e(f"s_cbranch_vccz {l_}_ok")
        e("s_sleep 1")
        bound()
        e(f"s_branch {l_}")
        lab(f"{l_}_ok")
    def block(self, tag, srd, b, lds, stride):
        if self.quarter:
            wreg = S_DK if stride == G else S_DV
            e(f"s_add_u32 m0, s{wreg}, {lds}")
            e(f"s_mov_b32 s{S_T1}, {b*0x20000:#x}")
            e(f"buffer_load_dwordx4 v{V_DMA}, {sr(srd,4)}, s{S_T1} offen lds")
            e(f"s_add_u32 m0, s{wreg}, {lds+4*stride}")
            e("s_nop 0")
            e(f"buffer_load_dwordx4 v{V_DMA2}, {sr(srd,4)}, s{S_T1} offen lds")
            self.issued += [tag]*2
        else:
            for g in range(8):
                e(f"s_mov_b32 m0, {lds+g*stride}")
                e(f"s_mov_b32 s{S_T1}, {b*0x20000+g*0x4000:#x}")
                e(f"buffer_load_dwordx4 v{V_DMA}, {sr(srd,4)}, s{S_T1} offen lds")
            self.issued += [tag]*8
    def wait(self, tag):
        last = max(i for i, t in enumerate(self.issued) if t == tag)
        n = len(self.issued)-1-last
        assert n <= 63
        e(f"s_waitcnt vmcnt({n})")

def loader_single_stream(desc, pid):
    kind, nk = desc[0], desc[1]
    quarter = kind == "L4"
    late = not quarter
    D = opt.D4 if quarter else opt.D1
    ld = Loader(f"{kind}_{nk}", quarter)
    lab(f"L_prog_{pid}")
    if opt.lprio: e(f"s_setprio {opt.lprio}")
    ld.issued += ["i1"]*4 + ["i2"]*4
    qsrc = desc[2] if late else None
    if late and qsrc is None: ld.issued += ["q"]*8
    if late: e(f"v_mov_b32 v{V_DMA}, v{V_DL}")
    ring = nk > 10
    ks = lambda b: b & 7 if ring else b
    vs = lambda b: (((b-1) & 7) + 1) if (ring and b > 8) else b
    hi = 3 if quarter else 6
    def req(p):
        lv = []
        b = p+2
        if b < nk:
            if ks(b) != b:
                o = b-8
                if o <= 1: lv.append((1, 0))
                else:
                    j = o-1 + ((o-1) & 1); lv.append((FBASE+(j-2)*G, j+opt.slack))
            elif b >= 5: lv.append((0, 0))
        if vs(p) != p:
            j = p-8+1; j += j & 1; lv.append((FBASE+(j-2)*G, j+opt.slack))
        elif late and p >= 5: lv.append((0, 0))
        return lv
    nxt = [1]
    def pairs_upto(p, sig):
        while nxt[0] <= min(p, nk-1):
            r = req(nxt[0])
            if any(s_ > sig for _, s_ in r): break
            if r: ld.poll(0, hi, max(x for x, _ in r))
            p_ = nxt[0]
            if p_+2 < nk: ld.block(p_, S_K, p_+2, kslot(ks(p_+2)), G)
            ld.block(p_, S_V, p_, vslot(vs(p_)), 1024)
            nxt[0] += 1
    pairs_upto(opt.npre4 if quarter else opt.npre1, -1)
    ld.wait("i2")
    e(f"ds_write_b32 v{V_SIG}, v{V_THRV} offset:{G}")
    stamp(3)
    if late:
        e(f"v_and_b32 v{V_SIG}, 3, v{V_LANE}")
        e(f"v_lshlrev_b32 v{V_SIG}, 2, v{V_SIG}")
        e(f"v_add_u32 v{V_SIG}, {FBASE}, v{V_SIG}")
        pairs_upto(2, -1)
        setup_compute(); prog_addr()
        if qsrc is None: ld.wait("q")
        else: ld.poll(qsrc, qsrc, 0)
        q_read()
        e("s_waitcnt lgkmcnt(0)")
    pairs_upto(D, 0)
    for j in range(1, nk):
        assert nxt[0] > j
        ld.wait(j)
        e(f"ds_write_b32 v{V_SIG}, v{V_THRV} offset:{(j+1)*G}")
        pairs_upto(j+D, j)
    if late:
        e(f"s_setprio {opt.hprio}")
        e("s_branch L_scale")
    else:
        e("s_waitcnt lgkmcnt(0)")
        stamp(4)
        finish()

def loader_two_streams(desc, pid):
    _, sa, sb = desc
    nka, nkb = seqnk(sa), seqnk(sb)
    ld = Loader("L2", False)
    lab(f"L_prog_{pid}")
    if opt.lprio: e(f"s_setprio {opt.lprio}")
    ld.issued += ["i1"]*4 + ["i2"]*4
    e(f"v_mov_b32 v{V_DMA}, v{V_DL}")
    for k in range(8): e(f"s_mov_b32 s{S_K2+k}, s{S_K+k}") if k % 4 != 3 else e(f"s_mov_b32 s{S_K2+k}, 0x20000")
    kv_srds(S_K, S_V, S_BASE, f"s{T_NREC}")
    def pa(p):
        if p+2 < nka: ld.block(("a", p), S_K2, p+2, kslot(6+p+2), G)
        ld.block(("a", p), S_V2, p, vslot(6+p), 1024)
    def pb(p):
        if p+2 >= 6 and p+2 < nkb: ld.poll(0, 3, ent(16))
        if p == 8: ld.poll(0, 3, ent(16)+2*G)
        if p+2 < nkb: ld.block(("b", p), S_K, p+2, kslot(p+2), G)
        ld.block(("b", p), S_V, p, vslot(p), 1024)
    def sig(t, p):
        ld.wait((t, p))
        e(f"ds_write_b32 v{V_SIG}, v{V_THRV} offset:{(p + 1 + (16 if t == 'a' else 0))*G}")
    pa(1)
    ld.wait("i2")
    e(f"ds_write_b32 v{V_SIG}, v{V_THRV} offset:{G}")
    stamp(3)
    e(f"v_and_b32 v{V_SIG}, 3, v{V_LANE}")
    e(f"v_lshlrev_b32 v{V_SIG}, 2, v{V_SIG}")
    e(f"v_add_u32 v{V_SIG}, {FBASE}, v{V_SIG}")
    pa(2); pa(3)
    ld.block(("b", -1), S_K, 0, kslot(0), G)
    sig("a", 1)
    ld.block(("b", -1), S_K, 1, kslot(1), G)
    sig("a", 2)
    ld.poll(0, 6, 0)
    pb(0); sig("a", 3)
    pb(1); sig("b", -1)
    pb(2); sig("b", 0)
    pb(3); sig("b", 1)
    pb(4); sig("b", 2)
    pb(5); sig("b", 3)
    pb(6); sig("b", 4)
    pb(7); sig("b", 5)
    pb(8); sig("b", 6); sig("b", 7); sig("b", 8)
    e("s_waitcnt lgkmcnt(0)")
    stamp(4)
    finish()

hdr = open("cdna_kernels/" + NAME + ".s.ref").read().split("\n")
for line in hdr:
    if line.startswith("; @launch"): break
    out.append(line)
out.append(f"; @launch grid=({NWG},1,1) block=(512,1,1) lds={LDS_BYTES}")
out.append('.amdgcn_target "amdgcn-amd-amdhsa--gfx950"')
out.append(".text")
out.append(f".globl {NAME}_kernel")
out.append(".p2align 8")
out.append(f".type {NAME}_kernel,@function")
lab(f"{NAME}_kernel")
S_W, S_HOFF = S_KWRAP, S_VWRAP
e("s_load_dwordx4 s[4:7], s[0:1], 0")
e("s_load_dwordx2 s[8:9], s[0:1], 16")
e("s_load_dwordx2 s[12:13], s[0:1], 32")
e(f"s_getpc_b64 {sr(S_DK,2)}")
lab("L_pc")
e(f"s_lshr_b32 s{S_T0}, s2, 2")
e(f"s_and_b32 s{S_T0}, s{S_T0}, 60")
e(f"s_add_u32 s{S_T1}, s{S_T0}, L_small-L_pc")
e(f"s_load_dword s{S_W}, {sr(S_DK,2)}, s{S_T1}")
e(f"v_lshrrev_b32 v{V_T0}, 6, v0")
e("s_branch L_go")
out.append(".type L_small,@object")
lab("L_small")
out.append("    .long " + ", ".join(f"{x:#x}" for x in stab))
out.append(".size L_small, .-L_small")
lab("L_go")
e(f"s_cmp_ge_u32 s2, {NWG}")
e("s_cbranch_scc1 L_end")
e(f"v_readfirstlane_b32 s{S_U}, v{V_T0}")
if opt.stamps:
    e("s_memrealtime s[100:101]")
stamp(0)
if opt.pf:
    e(f"s_cmp_lt_u32 s2, {NWG-8}")
    e("s_cbranch_scc1 L_nopf")
    e(f"v_lshlrev_b32 v{V_T0}, 7, v0")
    e(f"global_load_dword v{V_S[0]}, v{V_T0}, {sr(S_DK,2)}")
    lab("L_nopf")
e(f"v_and_b32 v{V_LANE}, 63, v0")
e(f"s_lshl_b32 s{S_T0}, s{S_T0}, 1")
e(f"s_add_u32 s{S_T0}, s{S_T0}, s{S_U}")
e(f"s_lshl_b32 s{S_T0}, s{S_T0}, 6")
e(f"s_add_u32 s{S_T2}, s{S_T0}, L_table-L_pc")
e(f"v_mov_b32 v{V_T0}, s{S_T2}")
e(f"global_load_dword v{V_S[0]+1}, v{V_T0}, {sr(S_DK,2)}")
e(f"s_and_b32 s{S_T0}, s2, 7")
e(f"s_lshl_b32 s{S_T0}, s{S_T0}, 9")
e(f"s_bfe_u32 s{S_T1}, s2, {3 | 1 << 16:#x}")
e(f"s_lshl_b32 s{S_T1}, s{S_T1}, 8")
e(f"s_add_u32 s{S_HOFF}, s{S_T0}, s{S_T1}")
e(f"v_lshrrev_b32 v{V_T0}, 4, v{V_LANE}")
e(f"v_lshlrev_b32 v{V_T1}, 2, v{V_T0}")
e(f"v_and_b32 v{V_DL}, 15, v{V_LANE}")
e(f"v_xor_b32 v{V_DL}, v{V_DL}, v{V_T1}")
e(f"v_lshlrev_b32 v{V_DL}, 4, v{V_DL}")
e(f"v_lshl_add_u32 v{V_DL}, v{V_T0}, 12, v{V_DL}")
e(f"s_mov_b32 s{S_P1+3}, 0x20000")
e(f"s_mov_b32 s{S_K+3}, 0x20000")
e(f"s_and_b32 s{S_J}, s{S_U}, 3")
e(f"s_lshl_b32 s{S_T0}, s{S_J}, 14")
e(f"v_add_u32 v{V_DMA}, s{S_T0}, v{V_DL}")
e(f"v_add_u32 v{V_DMA2}, 0x10000, v{V_DMA}")
flag_init()
e("s_waitcnt lgkmcnt(0)")
e(f"s_load_dwordx16 {sr(T,16)}, {sr(S_DK,2)}, s{S_T2}")
stamp(1)
e(f"s_and_b32 s{S_BASE}, s{S_W}, 0xfff")
e(f"s_lshl_b32 s{S_BASE}, s{S_BASE}, 12")
e(f"s_add_u32 s{S_BASE}, s{S_BASE}, s{S_HOFF}")
e(f"s_and_b32 s{S_T0}, s{S_W}, 0x1ff000")
e(f"s_sub_u32 s{S_P1+2}, s{S_T0}, {4096-256}")
e(f"s_bitcmp1_b32 s{S_W}, 28")
e(f"s_cselect_b32 s{S_T2}, 1, 0")
e(f"s_cmp_ge_u32 s{S_U}, 4")
e("s_cbranch_scc1 L_first_kv")
def dma_pass(soff):
    e(f"s_add_u32 s{S_P1}, s4, s{S_BASE}")
    e(f"s_addc_u32 s{S_P1+1}, s5, 0")
    for i in range(8):
        e(f"buffer_load_dwordx4 v{V_DL}, {sr(S_P1,4)}, s{soff} offen lds")
        if i < 7:
            e(f"s_add_u32 m0, m0, {G}")
            e(f"s_addk_i32 s{soff}, 0x4000")
e(f"s_bfe_u32 s{S_T0}, s{S_W}, {25 | 3 << 16:#x}")
e(f"s_cmp_ge_u32 s{S_U}, s{S_T0}")
e("s_cbranch_scc1 L_idle")
e(f"s_mul_i32 s{S_T0}, s{S_T2}, {-3*KSLOT}")
e(f"s_mul_i32 s{S_T1}, s{S_U}, {KSLOT}")
e(f"s_add_u32 s{S_T0}, s{S_T0}, s{S_T1}")
e(f"s_add_u32 m0, s{S_T0}, {kslot(5)}")
e(f"s_bfe_u32 s{S_T0}, s{S_W}, {21 | 4 << 16:#x}")
e(f"s_add_u32 s{S_T0}, s{S_T0}, s{S_U}")
e(f"s_lshl_b32 s{S_T0}, s{S_T0}, 17")
dma_pass(S_T0)
e("s_barrier")
e("s_waitcnt lgkmcnt(0)")
e(f"s_mov_b32 s{S_J}, {R_MAIN}")
stamp(2)
e("s_branch L_compute")
lab("L_first_kv")
e(f"s_add_u32 s{S_K}, s6, s{S_BASE}")
e(f"s_addc_u32 s{S_K+1}, s7, 0")
e(f"s_mov_b32 s{S_K+2}, s{S_P1+2}")
e(f"s_mul_i32 s{S_DK}, s{S_J}, {G}")
e(f"s_mul_i32 s{S_T0}, s{S_T2}, {6*KSLOT}")
e(f"s_add_u32 s{S_T0}, s{S_T0}, s{S_DK}")
e(f"s_add_u32 m0, s{S_T0}, {KBASE}")
e(f"s_mov_b32 s{S_T1}, 0x20000")
e(f"buffer_load_dwordx4 v{V_DMA}, {sr(S_K,4)}, 0 offen lds")
e(f"s_add_u32 m0, m0, {4*G}")
e(f"s_add_u32 s{S_V}, s8, s{S_BASE}")
e(f"buffer_load_dwordx4 v{V_DMA2}, {sr(S_K,4)}, 0 offen lds")
e(f"s_addc_u32 s{S_V+1}, s9, 0")
e(f"s_add_u32 m0, m0, {4*G}")
e(f"s_mov_b32 s{S_V+2}, s{S_P1+2}")
e(f"buffer_load_dwordx4 v{V_DMA}, {sr(S_K,4)}, s{S_T1} offen lds")
e(f"s_add_u32 m0, m0, {4*G}")
e(f"s_mov_b32 s{S_V+3}, 0x20000")
e(f"buffer_load_dwordx4 v{V_DMA2}, {sr(S_K,4)}, s{S_T1} offen lds")
e(f"s_add_u32 m0, m0, {4*G}")
e(f"s_mov_b32 s{S_T1}, 0x40000")
e(f"s_mul_i32 s{S_T0}, s{S_T2}, {16*G}")
e(f"s_lshl_b32 s{S_DV}, s{S_J}, 2")
e(f"s_add_u32 s{S_T0}, s{S_T0}, s{S_DV}")
e(f"s_add_u32 s{S_T0}, s{S_T0}, {FBASE}")
e(f"v_mov_b32 v{V_SIG}, s{S_T0}")
e(f"v_mov_b32 v{V_THRV}, {f32bits(THR):#x}")
e(f"s_lshl_b32 s{S_DV}, s{S_J}, 10")
e(f"s_mul_i32 s{S_T0}, s{S_T2}, {6*VSLOT}")
e("s_barrier")
if opt.hold:
    e("s_waitcnt vmcnt(0)")
    e(f"ds_write_b32 v{V_SIG}, v{V_THRV}")
    stamp(2)
e(f"buffer_load_dwordx4 v{V_DMA}, {sr(S_K,4)}, s{S_T1} offen lds")
e(f"s_add_u32 m0, m0, {4*G}")
e("s_nop 0")
e(f"buffer_load_dwordx4 v{V_DMA2}, {sr(S_K,4)}, s{S_T1} offen lds")
e(f"s_add_u32 m0, s{S_T0}, s{S_DV}")
e("s_nop 0")
e(f"buffer_load_dwordx4 v{V_DMA}, {sr(S_V,4)}, 0 offen lds")
e(f"s_add_u32 m0, m0, 4096")
e("s_nop 0")
e(f"buffer_load_dwordx4 v{V_DMA2}, {sr(S_V,4)}, 0 offen lds")
if not opt.hold:
    e("s_waitcnt vmcnt(4)")
    e(f"ds_write_b32 v{V_SIG}, v{V_THRV}")
    stamp(2)
e("s_waitcnt lgkmcnt(0)")
e(f"s_add_u32 s{S_BASE}, s{S_HOFF}, s{T_SOFF}")
e(f"s_and_b32 s{S_J}, s{T_PK}, 15")
e(f"s_bitcmp1_b32 s{T_PK}, 6")
e("s_cbranch_scc0 L_pass_done")
e(f"s_mov_b32 s{S_P1+2}, s{T_NREC}")
e(f"s_mov_b32 s{S_T0}, s{T_QOFF}")
e(f"s_mov_b32 m0, s{T_QST}")
dma_pass(S_T0)
lab("L_pass_done")
e(f"s_cmp_ge_u32 s{S_J}, 3")
e("s_cbranch_scc1 L_loaders")
lab("L_compute")
e(f"s_mov_b32 s{S_DK}, s{S_J}")
setup_compute()
prog_addr()
e(f"s_cmp_lg_u32 s{S_DK}, {R_MAIN}")
e("s_cbranch_scc1 L_init")
lab("L_noinit")
e("s_waitcnt vmcnt(0)")
stamp(3)
q_read()
e("s_waitcnt lgkmcnt(0)")
e(f"ds_write_b32 v{V_PA}, v{V_L}")
lab("L_scale")
c = math.log2(math.e) / math.sqrt(128.0)
e(f"s_mov_b32 s{S_DK}, {f32bits(c):#x}")
e(f"s_mov_b32 s{S_DV}, {f32bits(c):#x}")
e(f"s_mov_b32 s{S_T0}, 0xffff0000")
for ks in range(5):
    if ks == 4: e(f"ds_read_b32 v{V_FL}, v{V_FA}")
    qscale(ks)
e("s_waitcnt lgkmcnt(0)")
e(f"v_cmp_gt_f32 vcc, 0, v{V_FL}")
qscale(5)
e("s_cbranch_vccz L_back_pre0")
spin("L_spin_pre", 0, sleep=1)
lab("L_back_pre0")
e(f"s_bitcmp1_b32 s{T_PK}, 16")
e("s_cbranch_scc1 L_helper_start")
lab("L_back_pre")
stamp(4)
if opt.stamps == 2:
    e("s_mov_b32 m0, 0")
    e("s_memtime s[100:101]")
for ks in range(8): e(kread(ks, 0))
qscale(6)
qscale(7)
for ks in range(8):
    if ks == 0: e("s_waitcnt lgkmcnt(0)")
    if ks == 7: e(f"v_cmp_gt_f32 vcc, 0, v{V_FL}")
    e(mfma(V_S[0], V_K+4*ks, V_Q+4*ks, None if ks == 0 else V_S[0]))
    e(kread(ks, 1*KSLOT))
    if ks == 3: e(f"ds_read_b32 v{V_FL}, v{V_FA} offset:{G}")
    if ks == 6: e("s_waitcnt lgkmcnt(3)")
e("s_cbranch_vccz L_back_pre2")
spin("L_spin_pre2", G)
lab("L_back_pre2")
e("s_nop 7")
iteration(0, False, 2*KSLOT, 0, 2*G, "i0", first=True, misc=[(4, [f"ds_write_b32 v{V_PA}, v{V_X}"])],
          last_ops=[f"s_cmp_eq_u32 s{T_N}, 2", "s_cbranch_scc1 L_tail_odd"])
lab("L_loop")
ma = [(0, [f"s_cmp_eq_u32 s{S_J}, s{S_KWRAP}", f"s_cselect_b32 s{S_DK}, {(-6*KSLOT)&0xffffffff:#x}, s{S_2K}"])]
ma += [(2+4*t, [f"v_add_u32 v{V_KA+t}, s{S_DK}, v{V_KA+t}"]) for t in range(4)]
ma.insert(4, (10, [f"s_cmp_eq_u32 s{S_J}, s{S_NM1}"]))
iteration(1, True, 3*KSLOT, VSLOT, 3*G, "A", misc=ma, last_ops=["s_cbranch_scc1 L_tail_even"])
mb = [(0, [f"s_cmp_eq_u32 s{S_J}, s{S_VWRAP}", f"s_cselect_b32 s{S_DV}, {(-6*VSLOT)&0xffffffff:#x}, s{S_2V}"]),
      (0, [f"s_add_u32 s{S_J}, s{S_J}, 2", f"s_cmp_eq_u32 s{S_J}, s{T_N}"]),
      (8, [f"ds_write_b32 v{V_PA}, v{V_FA}", f"v_add_u32 v{V_FA}, {2*G}, v{V_FA}"])]
mb += [(9+2*t, [f"v_add_u32 v{V_VA+t}, s{S_DV}, v{V_VA+t}"]) for t in range(4)]
iteration(0, True, 2*KSLOT, 2*VSLOT, 4*G, "B", misc=mb, last_ops=["s_cbranch_scc0 L_loop"])
for par, nm in ((1, "odd"), (0, "even")):
    lab(f"L_tail_{nm}")
    kinds = [k for k in (0, 1, 2) if (k, par) in tails_used]
    for k in kinds[1:]:
        e(f"s_bitcmp1_b32 s{T_PK}, {14 + (k-1)}")
        e(f"s_cbranch_scc1 L_tail_{k}_{par}")
    assert kinds[0] == 0 or len(kinds) == 1 or True
    for k in kinds:
        tail(k, par)
merge_code()
lab("L_idle")
prog_addr()
e(f"v_mov_b32 v{V_T0}, 0x7fffffff")
e("s_barrier")
e(f"ds_write_b32 v{V_PA}, v{V_T0}")
e("s_waitcnt lgkmcnt(0)")
finish()
lab("L_loaders")
for i in range(1, len(programs)):
    e(f"s_cmp_eq_u32 s{S_J}, {3+i}")
    e(f"s_cbranch_scc1 L_prog_{3+i}")
for i, d in enumerate(programs):
    if d[0] == "L2": loader_two_streams(d, 3+i)
    else: loader_single_stream(d, 3+i)
lab("L_helper_start")
e(f"s_bitcmp1_b32 s{T_PK}, 18")
e("s_cbranch_scc0 L_helper_go")
e(f"v_and_b32 v{V_T0}, 3, v{V_LANE}")
e(f"v_mul_u32_u24 v{V_T0}, {G}, v{V_T0}")
e(f"v_add_u32 v{V_T0}, {ent(PROG0)}, v{V_T0}")
lab("L_helper_wait")
bound()
e("s_sleep 1")
e(f"ds_read_b32 v{V_FL}, v{V_T0}")
e("s_waitcnt lgkmcnt(0)")
e(f"v_cmp_gt_i32 vcc, 1, v{V_FL}")
e("s_cbranch_vccnz L_helper_wait")
lab("L_helper_go")
e(f"s_setprio {max(opt.hprio, 0)}")
e("s_branch L_back_pre")
lab("L_init")
e(f"s_bitcmp1_b32 s{T_PK}, 19")
e("s_cbranch_scc1 L_init_shared")
e("s_waitcnt vmcnt(8)")
e(f"ds_write_b32 v{V_SIG}, v{V_THRV} offset:{G}")
e("s_branch L_noinit")
lab("L_init_shared")
e("s_waitcnt vmcnt(0)")
e(f"ds_write_b32 v{V_SIG}, v{V_THRV} offset:{G}")
e(f"s_lshr_b32 s{S_T0}, s{T_MB}, 24")
e(f"s_mul_i32 s{S_T0}, s{S_T0}, {G}")
e(f"s_add_u32 s{S_T0}, s{S_T0}, {ent(PROG0)}")
e(f"v_mov_b32 v{V_T0}, s{S_T0}")
lab("L_init_wait")
bound()
e("s_sleep 1")
e(f"ds_read_b32 v{V_FL}, v{V_T0}")
e("s_waitcnt lgkmcnt(0)")
e(f"v_cmp_gt_i32 vcc, 0, v{V_FL}")
e("s_cbranch_vccnz L_init_wait")
e("s_branch L_noinit")
for tag in stage_spins:
    lab(f"L_stg_{tag}")
    bound()
    e(f"ds_read_b32 v{V_FL}, v{V_CK}")
    e("s_waitcnt lgkmcnt(0)")
    e(f"v_cmp_gt_i32 vcc, s{S_T2}, v{V_FL}")
    e(f"s_cbranch_vccnz L_stg_{tag}")
    e(f"s_branch L_stgback_{tag}")
for site in rare_sites:
    rare(*site)
if opt.stamps:
    lab("L_stamps")
    e(f"s_load_dwordx2 {sr(S_MASK+6,2)}, s[0:1], 48")
    e("s_waitcnt vmcnt(0)")
    e(f"s_memtime {sr(S_MASK, 2)}")
    e(f"s_getreg_b32 s{S_MASK+2}, hwreg(HW_REG_HW_ID)")
    e(f"s_getreg_b32 s{S_MASK+3}, hwreg(HW_REG_XCC_ID)")
    e(f"s_memrealtime {sr(S_MASK+4, 2)}")
    e("s_waitcnt lgkmcnt(0)")
    e(f"s_lshl_b32 s{S_T0}, s2, 3")
    e(f"s_add_u32 s{S_T0}, s{S_T0}, s{S_U}")
    e(f"s_lshl_b32 s{S_T0}, s{S_T0}, 7")
    if opt.stamps == 2:
        e(f"v_writelane_b32 v{V_LANE}, s100, m0")
        e(f"s_lshl_b32 s{S_T1}, s{S_T0}, 1")
        e(f"s_add_u32 s{S_T1}, s{S_T1}, 0x100000")
        e(f"v_mbcnt_lo_u32_b32 v2, -1, 0")
        e(f"v_mbcnt_hi_u32_b32 v2, -1, v2")
        e(f"v_lshl_add_u32 v0, v2, 2, s{S_T1}")
        e(f"global_store_dword v0, v{V_LANE}, {sr(S_MASK+6,2)}")
    e(f"v_mov_b32 v0, s{S_T0}")
    e("s_mov_b64 exec, 1")
    regs = [S_STAMP+i for i in range(10)] + [S_MASK+i for i in range(6)] + [100, 101]
    for i, r_ in enumerate(regs):
        e(f"v_mov_b32 v2, s{r_}")
        e(f"global_store_dword v0, v2, {sr(S_MASK+6,2)} offset:{4*i}")
lab("L_end")
e("s_endpgm")
out.append(".p2align 6")
out.append(".type L_table,@object")
lab("L_table")
for row in table:
    out.append("    .long " + ", ".join(f"{x & 0xffffffff:#x}" for x in row))
out.append(".size L_table, .-L_table")
if opt.pf:
    out.append(".type L_padding,@object")
    lab("L_padding")
    out.append("    .fill 8192, 4, 0")
    out.append(".size L_padding, .-L_padding")
out.append('.section .rodata,"a"')
out.append(".p2align 6")
out.append(f".amdhsa_kernel {NAME}_kernel")
for x in ("next_free_vgpr 256", "next_free_sgpr 102", "accum_offset 256", "group_segment_fixed_size 0", "kernarg_size 56",
          "user_sgpr_count 2", "user_sgpr_kernarg_segment_ptr 1", "system_sgpr_workgroup_id_x 1"):
    out.append("  .amdhsa_" + x)
out.append(".end_amdhsa_kernel")
for i_, o_ in enumerate(out):
    if o_ and o_.rstrip().endswith("offen lds"):
        isq = f"s[{S_P1}:{S_P1+3}]" in o_
        if (isq and opt.ntq) or (not isq and opt.ntkv):
            out[i_] = o_.replace("offen lds", "offen nt lds")
open(sys.argv[1], "w").write("\n".join(o for o in out if o is not None) + "\n")
```

```python
import sys, struct, math

CU = [0, 289, 520, 939, 1289, 1402, 1666, 1973, 2275]
NAME = "standalone__varlen_attn_packed__ragged"
def f32bits(x):
    return struct.unpack("<I", struct.pack("<f", x))[0]

class Opt:
    stamps = 0
    D4 = 5
    D1 = 2
    slack = 3
    npre4 = 2
    hold = 1
    npre1 = 1
    stflag = "sc1"
    hprio = 1
    lprio = 0
    pf = 1
    budget = 24
    ntq = 0
    skew = 1
    pace = 2
    tstart = -1
    tp0 = 3
    hl = "0000"
    hcls = 0
    q4v = 1
    md = 1
    mdq = 1
    side = 0
    tw = 0
    t3 = 1
    str4 = 1
    t5 = "433"
    t6b = 6
    D3 = 4
    D5 = 2
    D6 = 3
    D8 = 3
    cls = "000000"
    mprio = 1
    ftail = 1
    kfirst = 2
    ntkv = 0
opt = Opt()
for a in sys.argv[2:]:
    k, v = a.split("=")
    setattr(opt, k, int(v) if v.lstrip("-").isdigit() and k not in ("cls", "t5", "hl") else v)

G = 1040
QSIG = max(0, max(int(c) for c in opt.hl) - 2)
assert QSIG <= 1
KSLOT = 8 * G
VSLOT = 8192
KBASE = 10 * VSLOT
LDS_BYTES = 163840
FBASE = KBASE + 1024
PROG0 = 32
MRG0 = 40
THR = 16384.0
NWG = 256
def kslot(s): return KBASE + s*KSLOT
def vslot(s): return s*VSLOT
def ent(n): return FBASE + n*G

V_FA, V_LANE, V_PA, V_FL = 0, 1, 2, 3
V_KA = 4
V_VA = 8
V_L, V_PS, V_T0, V_T1 = 12, 13, 14, 15
V_NEGM = 16
V_Q = 32
V_K = 64
V_V = 96
V_S = [128, 144]
V_P = [160, 168]
V_E = 176
V_WA = 184
V_RA, V_SA, V_CK, V_X = 188, 189, 190, 191
V_O = 192
V_DMA, V_DMA2, V_SIG, V_THRV, V_POLL, V_PV, V_DL = 64, 65, 66, 67, 68, 69, 70

S_P1, S_K, S_V, S_O = 16, 20, 24, 28
S_MASK = 32
S_K2, S_V2 = 32, 36
T = 64
(T_SOFF, T_NREC, T_P1S, T_P1L, T_PK, T_QOFF, T_QST, T_KB, T_VB, T_FB, T_N, T_NV, T_OST, T_MB, T_MIN, T_MOUT) = range(T, T+16)
S_U, S_J, S_T0, S_T1, S_DK, S_DV = 80, 81, 82, 83, 84, 85
S_KWRAP, S_VWRAP, S_NM1, S_T2, S_THR, S_LO = 86, 87, 14, 15, 3, 98
S_2K, S_2V = 99, 10
S_BASE = 11
S_STAMP = 88

out = []
def e(s): out.append("    " + s)
def lab(s): out.append(s + ":")
def vr(b, n): return f"v[{b}:{b+n-1}]"
def sr(b, n): return f"s[{b}:{b+n-1}]"
def stamp(i):
    if opt.stamps: e(f"{'s_memrealtime' if opt.stamps >= 3 else 's_memtime'} {sr(S_STAMP + 2*i, 2)}")

R_MAIN, R_INIT, R_IDLE, R_L4, R_L1 = 0, 1, 2, 3, 4
def seqL(s): return CU[s+1]-CU[s]
def seqnk(s): return (seqL(s)+31)//32
programs = []
def prog_id(desc):
    if desc not in programs: programs.append(desc)
    return 3 + programs.index(desc)
tails_used = set()
def entry(role, seq, tile=None, b0=0, n=None, slot0=0, f0=0, qst=0, ost=0, lo=0, hi=0, mb=0, ml=0, mi=None, mo=None,
          init=None, prio=0, ownq=True, qsrc=None, lvl1=0, swait=0, thr=None):
    L = seqL(seq); nk = seqnk(seq)
    n = nk - b0 if n is None else n
    nv = L - 32*(b0+n-1)
    second = 1 if (init is not None and tile is not None and qsrc is None and ownq) else 0
    if mi is not None or mo is not None: tail = 2
    elif nv <= 8: tail = 0
    else: tail = 1
    if tile is not None: tails_used.add((tail, (n-1) & 1))
    ring = 1 if nk > 10 else 0
    leave = 1 if n == 2 else 0
    pk = role | leave << 20 | second << 6 | ring << 7 | lo << 8 | hi << 11 | tail << 14 | (1 if prio else 0) << 16 | lvl1 << 17 | swait << 18 | (0 if qsrc is None else 1) << 19
    return [CU[seq]*4096, (L-1)*4096+256, (1 if lvl1 else FBASE) if thr is None else thr, 400000, pk, (tile or 0)*0x20000, qst,
            kslot(slot0+b0), vslot(slot0+b0), ent(f0+b0), n, min(nv, 64), ost, mb | (qsrc or 0) << 24,
            0 if mi is None else ent(MRG0+mi), 0 if mo is None else ent(MRG0+mo)]
MLOFF = vslot(1)
QH = [KBASE - (4-k)*KSLOT for k in range(4)]
table = []
touches = []
def T4(seq, t0, nt, touch=None):
    rows = []
    for w in range(4):
        if w < nt:
            rows.append(entry(R_MAIN, seq, tile=t0+w, qst=(QH[w] if opt.q4v else kslot(5+w)), ost=(vslot(9) if w < 2 else kslot(8))+4096*(w & 1), lo=w, hi=w))
        else:
            if touch and opt.tw:
                touches.append(touch[1]); r_ = entry(R_IDLE, touch[0]); r_[10] = len(touches); rows.append(r_)
            else:
                r_ = entry(R_IDLE, seq); r_[10] = 0; rows.append(r_)
    pid = prog_id(("L4", seqnk(seq), False, None, opt.D4 if seqnk(seq) > 11 else opt.D3))
    for w in range(4):
        rows.append(entry(pid, seq, init=w))
    return rows
def T5(seq, t0):
    rows = [entry(R_MAIN, seq, tile=t0+w, qst=kslot(5+w), ost=vslot(0)+4096*w, lo=0, hi=4) for w in range(4)]
    cnt = [int(c) for c in opt.t5]; nh = len(cnt)
    assert sum(cnt) == seqnk(seq) and cnt[0] >= 3
    pid = prog_id(("L1", seqnk(seq), nh == 4, 4, opt.D5))
    for h in range(nh):
        rows.append(entry(R_INIT if h < 3 else pid, seq, tile=t0+4, b0=sum(cnt[:h]), n=cnt[h], qst=QH[3], ost=kslot(2),
                          lo=0, hi=(3 if h < nh-1 else 4), mb=kslot(0), mi=(h-1 if h else None), mo=(h if h < nh-1 else None), init=h,
                          prio=opt.hprio, qsrc=(4 if h else None), lvl1=(1 if h < nh-1 else 0), swait=(1 if h == 0 else 0)))
    if nh == 3: rows.append(entry(pid, seq, init=3))
    return rows
def T8(seq):
    pid = prog_id(("MD", seqnk(seq))) if opt.md else prog_id(("L4", seqnk(seq), True, None, opt.D8))
    if opt.md:
        rows = [entry(R_MAIN, seq, tile=w, qst=kslot(5+w), ost=(kslot(8)+4096*w if w < 3 else vslot(0)), lo=(w if w < 3 else 0), hi=(w if w < 3 else 7)) for w in range(4)]
    else:
        rows = [entry(R_MAIN, seq, tile=w, qst=kslot(5+w), ost=vslot(8)+4096*w, lo=w, hi=w) for w in range(4)]
    for h in range(4):
        r_ = entry(pid, seq, tile=4+h, qst=QH[h], ost=(vslot(8)+4096*h if opt.md else (kslot(8)+4096*h if h < 3 else vslot(0))),
                   lo=(4+h if h < 3 or opt.md else 0), hi=4+h, init=h,
                   ownq=bool(opt.md and not opt.mdq), prio=opt.md)
        if opt.md: r_[4] |= 1 << 20
        rows.append(r_)
    return rows
def T6(seq):
    pid = prog_id(("L1", seqnk(seq), True, 5, opt.D6))
    rows = [entry(R_MAIN, seq, tile=w, qst=kslot(5+w), ost=vslot(0)+4096*w, lo=0, hi=5) for w in range(4)]
    spec = [(4, 0, 5, None, 0, 0), (5, 0, opt.t6b, None, 1, 1), (4, 5, 4, 0, None, 0), (5, opt.t6b, 9-opt.t6b, 1, None, 1)]
    for h, (tile, b0, n, mi, mo, buf) in enumerate(spec):
        rows.append(entry(R_INIT if h < 3 else pid, seq, tile=tile, b0=b0, n=n, qst=QH[2+buf], ost=vslot(9)+4096*buf,
                          lo=0, hi=5, mb=kslot(2*buf), mi=mi, mo=mo, init=h, prio=opt.hprio, qsrc=(h+2 if h >= 2 else None),
                          lvl1=(1 if buf == 0 else 0), swait=(1 if h < 2 else 0)))
    return rows
def T34(seqA, seqB, tB0):
    qa = [vslot(1) + k*KSLOT for k in range(4)]
    rows = [entry(R_MAIN, seqA, tile=w, slot0=6, f0=16, qst=kslot(2+w), ost=vslot(0)+4096*w, lo=4, hi=6) for w in range(4)]
    pid = prog_id(("L2", seqA, seqB))
    for h in range(3):
        rows.append(entry(R_INIT, seqB, tile=tB0+h, qst=vslot(2)+h*KSLOT, ost=vslot(2)+4096*h, lo=4, hi=6, init=h, thr=FBASE+2*G))
    rows.append(entry(pid, seqB, init=3))
    return rows
def small(seq, t0, nt, two=0):
    return CU[seq] | seqL(seq) << 12 | t0 << 21 | nt << 25 | two << 28
TL8 = "K2 V0 K3 V1 Q4 Q5 Q6 Q7 K4 V2 K5 V3 K6 V4 K7 V5 V6 V7".split()
TL5 = "Q4 Q5 K3 V1 Q6 Q7 K4 V2 K5 V3 K6 V4 K7 V5 K8 V6 V7".split()
def own_touch(nk, par, mod=2):
    o = []
    for p_ in range(opt.tp0, nk):
        if p_ % mod == par:
            if p_+2 < nk: o.append(f"K{p_+2}")
            o.append(f"V{p_}")
    return o
jobs = {"s2a": (lambda: T4(2,0,4), small(2,0,4)), "s2b": (lambda: T4(2,4,4), small(2,4,4)), "s2c": (lambda: T4(2,8,3,(2,own_touch(14,0))), small(2,8,3)),
        "s2d": (lambda: T4(2,11,3,(2,own_touch(14,1))), small(2,11,3)), "T8": (lambda: T8(1), small(1,0,4) | (1 << 31 if opt.md and opt.mdq else 0)),
        "s6a": (lambda: T5(6,0), small(6,0,4)), "s6b": (lambda: T5(6,5), small(6,5,4)), "s7a": (lambda: T5(7,0), small(7,0,4)),
        "s7b": (lambda: T5(7,5), small(7,5,4)), "s0a": (lambda: T5(0,0), small(0,0,4)), "s0b": (lambda: T5(0,5), small(0,5,4)),
        "T6": (lambda: T6(5), small(5,0,4)), "T34": (lambda: T34(4,5,6), small(4,0,4,1)),
        "s3a": (lambda: T4(3,0,4), small(3,0,4)), "s3b": (lambda: T4(3,4,4), small(3,4,4)), "s3c": (lambda: T4(3,8,3,(3,own_touch(11,1)) if opt.t3 else None), small(3,8,3))}
JOBORDER = ["s2a", "s2b", "s2c", "s2d", "T8", "s6a", "s6b",  "s0a", "s0b", "T6", "T34", "s3a", "s3b", "s3c",  "s7a", "s7b"]
stab = []
for j in JOBORDER:
    k_ = {"s2": 0, "T8": 1, "s6": 2, "s7": 2, "s0": 2, "T6": 3, "T3": 4, "s3": 5}[j[:2]]
    table += jobs[j][0](); stab.append(jobs[j][1] | int(opt.cls[k_]) << 29)
assert len(table) == 128

def mfma(d, a, b, c):
    cs = "0" if c is None else vr(c, 16)
    return f"v_mfma_f32_32x32x16_bf16 {vr(d,16)}, {vr(a,4)}, {vr(b,4)}, {cs}"
def kread(ks, off):
    return f"ds_read_b128 {vr(V_K+4*ks,4)}, v{V_KA+(ks>>1)} offset:{off+(ks&1)*32}"
def vread(i, jj, off, base=V_V):
    kg, dt = i >> 2, i & 3
    return f"ds_read_b64_tr_b16 {vr(base+4*i+2*jj,2)}, v{V_VA+dt} offset:{off+jj*2048+kg*4096}"
def E(r): return V_E + (r & 7)

def softmax_list(par, R=16, mask=False):
    S, P = V_S[par], V_P[par]
    def ex(r):
        o = []
        if mask:
            if r == 0: o.append(f"v_cndmask_b32 v{S}, v{V_T1}, v{S}, {sr(S_MASK,2)}")
            if r+1 < R: o.append(f"v_cndmask_b32 v{S+r+1}, v{V_T1}, v{S+r+1}, {sr(S_MASK+2*r+2,2)}")
        o.append(f"v_exp_f32 v{E(r)}, v{S+r}")
        return o
    ops = ex(0) + ex(1)
    for r in range(2, R+1):
        if r < R: ops += ex(r)
        q = r - 1
        if q == 1: ops.append(f"v_add_f32 v{V_PS}, v{E(0)}, v{E(1)}")
        else: ops.append(f"v_add_f32 v{V_PS}, v{V_PS}, v{E(q)}")
        if q & 1: ops.append(f"v_cvt_pk_bf16_f32 v{P+(q>>1)}, v{E(q-1)}, v{E(q)}")
    return ops

def cost(x):
    if x.startswith("v_exp") or x.startswith("v_rcp") or x.startswith("v_permlane"): return 8
    if x.startswith("s_cbranch"): return 12
    return 4

rare_sites = []
def itstamp():
    if opt.stamps == 2:
        e(f"v_writelane_b32 v{V_LANE}, s100, m0")
        e("s_add_u32 m0, m0, 1")
        e("s_memtime s[100:101]")

def iteration(par, do_pv, koff, voff, foff, tag, first=False, misc=None, last_ops=None, extra=None):
    itstamp()
    mf = []
    for i in range(8):
        mf.append(("qk", i))
        if do_pv: mf.append(("pv", i))
    n = len(mf)
    fixed = [[] for _ in range(n)]
    for g, (kind, i) in enumerate(mf):
        if kind == "qk":
            fixed[g].append(kread(i, koff))
            if not do_pv: fixed[g] += [vread(i, 0, voff), vread(i, 1, voff)]
        else:
            fixed[g] += [vread(i, 0, voff), vread(i, 1, voff)]
    fgap = 6 if n == 16 else 3
    fixed[fgap].append(f"ds_read_b32 v{V_FL}, v{V_FA} offset:{foff}")
    q = []
    if not first: q.append(f"v_add_f32 v{V_L}, v{V_L}, v{V_PS}")
    q += softmax_list(par)
    q.append("WAITFLAG")
    q.append(f"v_cmp_lt_f32 vcc, v{V_FL}, v{V_PS}")
    if first: q.append(f"v_cmp_gt_f32 {sr(S_DK,2)}, s{S_LO}, v{V_PS}")
    misc = [(g_, x) for g_, ops in (misc or []) for x in ops]
    budget = opt.budget if n == 16 else (sum(cost(x) for x in q) + sum(4*len(f) for f in fixed) + n - 1)//n + 4
    nl = 0
    for g, (kind, i) in enumerate(mf):
        if n == 16:
            if g == 0: e("s_waitcnt lgkmcnt(12)")
            if g == 8: e("s_waitcnt lgkmcnt(13)")
        else:
            if g == 0: e("s_waitcnt lgkmcnt(4)")
            if g == 2: e("s_waitcnt lgkmcnt(6)")
        if kind == "qk":
            e(mfma(V_S[1-par], V_K+4*i, V_Q+4*i, V_NEGM if i == 0 else V_S[1-par]))
        else:
            kg, dt = i >> 2, i & 3
            e(mfma(V_O+16*dt, V_V+4*i, V_P[1-par]+4*kg, V_O+16*dt))
        used = 0
        for x in fixed[g]:
            e(x); used += 4
        if g > fgap: nl += len(fixed[g])
        for x in (extra or {}).get(g, []):
            e(x)
            assert not (x.startswith("ds_") and g < 8)
            if x.startswith("ds_"): nl += 1
        nw = 4 if (n == 16 and g+1 in (8, 16)) else 0
        lastgap = g == n-1
        while q and (used + cost(q[0]) + nw <= budget or lastgap):
            x = q.pop(0)
            if x == "WAITFLAG": x = f"s_waitcnt lgkmcnt({min(nl, 15)})"
            e(x); used += cost(x)
        while misc and misc[0][0] <= g and (used + cost(misc[0][1]) + nw <= budget or lastgap):
            x = misc.pop(0)[1]
            e(x); used += cost(x)
            if x.startswith("ds_") and g >= fgap: nl += 1
    assert not q and not misc
    if first: e(f"s_or_b64 vcc, vcc, {sr(S_DK,2)}")
    e(f"s_cbranch_vccnz L_rare_{tag}")
    lab(f"L_back_{tag}")
    for x in (last_ops or []): e(x)
    rare_sites.append((tag, par, foff - (2*G if tag.startswith("B") else 0), first, 16))

def blockmax(S, t0, t1, R=16):
    if R == 16:
        e(f"v_max3_f32 v{t0}, v{S}, v{S+1}, v{S+2}")
        e(f"v_max3_f32 v{t1}, v{S+3}, v{S+4}, v{S+5}")
        e(f"v_max3_f32 v{t0}, v{t0}, v{S+6}, v{S+7}")
        e(f"v_max3_f32 v{t1}, v{t1}, v{S+8}, v{S+9}")
        e(f"v_max3_f32 v{t0}, v{t0}, v{S+10}, v{S+11}")
        e(f"v_max3_f32 v{t1}, v{t1}, v{S+12}, v{S+13}")
        e(f"v_max3_f32 v{t0}, v{t0}, v{S+14}, v{S+15}")
        e(f"v_max_f32 v{t0}, v{t0}, v{t1}")
    else:
        e(f"v_max3_f32 v{t0}, v{S}, v{S+1}, v{S+2}")
        e(f"v_max_f32 v{t0}, v{t0}, v{S+3}")
    e(f"v_mov_b32 v{t1}, v{t0}")
    e("s_nop 1")
    e(f"v_permlane32_swap_b32 v{t0}, v{t1}")
    e("s_nop 1")
    e(f"v_max_f32 v{t0}, v{t0}, v{t1}")

def bound():
    e(f"s_cselect_b32 s{T_SOFF}, 1, 0")
    e(f"s_sub_u32 s{T_P1L}, s{T_P1L}, 1")
    e("s_cbranch_scc1 L_end")
    e(f"s_cmp_lg_u32 s{T_SOFF}, 0")

def spin(label, foff, sleep=0):
    lab(label)
    bound()
    if sleep: e(f"s_sleep {sleep}")
    e(f"ds_read_b32 v{V_FL}, v{V_FA} offset:{foff}")
    e("s_waitcnt lgkmcnt(0)")
    e(f"v_cmp_gt_f32 vcc, 0, v{V_FL}")
    e(f"s_cbranch_vccnz {label}")

def rare(tag, par, foff, first, R, pprev=False):
    S, Sn = V_S[par], V_S[1-par]
    lab(f"L_rare_{tag}")
    if foff is not None:
        e(f"v_cmp_lt_f32 vcc, s{S_THR}, v{V_PS}")
        if first:
            e("s_nop 1")
            e(f"s_or_b64 vcc, vcc, {sr(S_DK,2)}")
        e(f"s_cbranch_vccz L_spin_{tag}")
    e("s_nop 15")
    e("s_nop 7")
    blockmax(S, V_E, V_E+1, R)
    if first:
        e(f"v_mov_b32 v{V_T0}, v{V_E}")
    else:
        e(f"v_max_f32 v{V_T0}, 0, v{V_E}")
        e(f"v_sub_f32 v{V_E+1}, 0, v{V_T0}")
        e(f"v_exp_f32 v{V_E+1}, v{V_E+1}")
    for r in range(16):
        e(f"v_sub_f32 v{S+r}, v{S+r}, v{V_T0}")
        if foff is not None: e(f"v_sub_f32 v{Sn+r}, v{Sn+r}, v{V_T0}")
        e(f"v_sub_f32 v{V_NEGM+r}, v{V_NEGM+r}, v{V_T0}")
    if not first:
        for r in range(64):
            e(f"v_mul_f32 v{V_O+r}, v{V_O+r}, v{V_E+1}")
        e(f"v_mul_f32 v{V_L}, v{V_L}, v{V_E+1}")
    for x in softmax_list(par, R): e(x)
    e("s_nop 1")
    if foff is not None: spin(f"L_spin_{tag}", foff)
    e(f"s_branch L_back_{tag}")

def finish():
    if opt.stamps == 4: stamp(2)
    e("s_branch L_stamps" if opt.stamps else "s_endpgm")

stage_spins = []
V_WB = V_NEGM + 8
def norm_ops(dt, pk=False):
    o = V_O+16*dt; ops = []
    for rq in range(4):
        ops += [f"v_mul_f32 v{o+4*rq+r}, v{o+4*rq+r}, v{V_L}" for r in range(4)]
        t = V_E + 2*rq
        ops.append(f"v_cvt_pk_bf16_f32 v{t}, v{o+4*rq}, v{o+4*rq+1}")
        ops.append(f"v_cvt_pk_bf16_f32 v{t+1}, v{o+4*rq+2}, v{o+4*rq+3}")
        ops.append(f"ds_write_b64 v{(V_WB if dt & 1 else V_WA)+rq}, {vr(t,2)}")
    return ops
def rd_ops(p):
    return [f"ds_read_b128 {vr(V_Q+16*p+4*i,4)}, v{V_RA} offset:{i*1024}" for i in range(4)]
ST_SOFF = [T_QOFF, S_T1, S_T0, S_DK]
def st_op(p, i):
    fl = opt.stflag.replace('+', ' ')
    return f"buffer_store_dwordx4 {vr(V_Q+16*p+4*i,4)}, v{V_SA}, {sr(S_O,4)}, s{ST_SOFF[i]} offen offset:{128*p} {fl}".rstrip()
def store_prep():
    return [f"s_add_u32 s{ST_SOFF[i]}, s{T_QOFF}, {i*0x8000:#x}" for i in (1, 2, 3)] + \
           [f"v_xor_b32 v{V_WB+rq}, 64, v{V_WA+rq}" for rq in range(4)]
def store_stream(pk):
    s = norm_ops(0) + norm_ops(1) + rd_ops(0)
    n2, n3 = norm_ops(2), norm_ops(3)
    s += n2[:14] + ["s_waitcnt lgkmcnt(2)", st_op(0, 0)] + n2[14:21] + [st_op(0, 1)] + n2[21:] + [st_op(0, 2)] + n3[:7] + [st_op(0, 3)] + n3[7:]
    s += rd_ops(1)
    for i in range(4):
        s += [f"s_waitcnt lgkmcnt({3-i})", st_op(1, i)]
    return s

def tail(kind, par):
    tag = f"T{kind}{par}"
    lab(f"L_tail_{kind}_{par}")
    if opt.stamps == 4: stamp(1)
    itstamp()
    if kind == 0 and opt.ftail:
        return tail_short(par, tag)
    voff = VSLOT if par else 2*VSLOT
    R = 4 if kind == 0 else 16
    nkg = 1 if kind == 0 else 2
    a = lambda i: mfma(V_O+16*(i & 3), V_V+4*i, V_P[1-par]+4*(i >> 2), V_O+16*(i & 3))
    f = lambda i: mfma(V_O+16*(i & 3), V_K+4*i, V_P[par]+4*(i >> 2), V_O+16*(i & 3))
    reads = [vread(i, jj, voff, V_K) for i in range(4*nkg) for jj in range(2)]
    q = [f"v_add_f32 v{V_L}, v{V_L}, v{V_PS}"] + softmax_list(par, R, mask=True)
    if kind == 0: q += [f"v_mov_b64 {vr(V_P[par]+2,2)}, 0"]
    q += [f"v_cmp_lt_f32 vcc, s{S_THR}, v{V_PS}"]
    per = (sum(cost(x) for x in q) + 4*len(reads) + 7)//8 + 4
    per = max(per, 24)
    e("s_waitcnt lgkmcnt(12)")
    nrd = 0
    for g in range(8):
        if g == 4:
            e(f"s_waitcnt lgkmcnt({nrd})")
        e(a(g)); used = 0
        if g == 4:
            e(f"ds_write_b32 v{V_PA}, v{V_FA}")
            e(f"ds_read_b32 v{V_FL}, v{V_CK}")
            used += 8
        for _ in range(2):
            if reads:
                e(reads.pop(0)); used += 4; nrd += 1
        while q and (used + cost(q[0]) <= per or g == 7):
            x = q.pop(0); e(x); used += cost(x)
    e(f"s_cbranch_vccnz L_rare_{tag}")
    lab(f"L_back_{tag}")
    rare_sites.append((tag, par, None, False, R))
    e(f"v_add_f32 v{V_L}, v{V_L}, v{V_PS}")
    e("s_waitcnt lgkmcnt(0)")
    e(f"v_cmp_gt_i32 vcc, s{S_T2}, v{V_FL}")
    fin = [i + 4*k for i in range(4) for k in range(nkg)]
    if kind == 2:
        for i in fin: e(f(i))
        e(f"s_cbranch_vccnz L_stg_{tag}")
        lab(f"L_stgback_{tag}")
        stage_spins.append(tag)
        e("s_branch L_merge")
        return
    e(f"v_mov_b32 v{V_T0}, v{V_L}")
    for _ in range(nkg): e(f(fin.pop(0)))
    e("s_nop 0")
    e(f"v_permlane32_swap_b32 v{V_L}, v{V_T0}")
    e(f"s_cbranch_vccnz L_stg_{tag}")
    lab(f"L_stgback_{tag}")
    stage_spins.append(tag)
    e(f(fin.pop(0)))
    e(f"v_add_f32 v{V_L}, v{V_L}, v{V_T0}")
    e(f"v_rcp_f32 v{V_L}, v{V_L}")
    e(f(fin.pop(0)))
    for x in store_prep(): e(x)
    cnt = 6
    for x in store_stream(False):
        if x.startswith("NEED"): continue
        if fin and cnt >= 6:
            e(f(fin.pop(0))); cnt = 0
        e(x); cnt += 1
    itstamp()
    finish()

short_rares = []
def tail_short(par, tag):
    voff = VSLOT if par else 2*VSLOT
    a = lambda i: mfma(V_O+16*(i & 3), V_V+4*i, V_P[1-par]+4*(i >> 2), V_O+16*(i & 3))
    f = lambda i: mfma(V_O+16*i, V_K+4*i, V_P[par], V_O+16*i)
    rd = [vread(i, jj, voff, V_K) for i in range(4) for jj in range(2)]
    sm = softmax_list(par, 4, mask=True)
    e("s_waitcnt lgkmcnt(12)")
    e(a(0))
    for x in rd[:4]: e(x)
    e(f"v_add_f32 v{V_L}, v{V_L}, v{V_PS}")
    for x in sm[:5]: e(x)
    e("s_waitcnt lgkmcnt(4)")
    e(a(4))
    e(f"ds_write_b32 v{V_PA}, v{V_FA}")
    e(f"ds_read_b32 v{V_FL}, v{V_CK}")
    for x in rd[4:]: e(x)
    for x in sm[5:9]: e(x)
    e(a(1))
    for x in sm[9:]: e(x)
    e(f"v_mov_b64 {vr(V_P[par]+2,2)}, 0")
    e(f"v_cmp_lt_f32 vcc, s{S_THR}, v{V_PS}")
    e(a(5))
    e(f"v_add_f32 v{V_T0}, v{V_L}, v{V_PS}")
    e(f"v_add_f32 v{V_X}, v{V_L}, v{V_PS}")
    e(f"s_cbranch_vccnz L_rare_{tag}")
    short_rares.append((tag, par))
    e("s_waitcnt lgkmcnt(4)")
    e(f(0))
    e(f"v_permlane32_swap_b32 v{V_T0}, v{V_X}")
    e(f"v_cmp_gt_i32 vcc, s{S_T2}, v{V_FL}")
    e(f(1))
    e(f"v_add_f32 v{V_L}, v{V_T0}, v{V_X}")
    e(f"v_rcp_f32 v{V_L}, v{V_L}")
    e(f"s_cbranch_vccnz L_stg_{tag}")
    lab(f"L_stgback_{tag}")
    stage_spins.append(tag)
    e(a(2))
    for x in store_prep(): e(x)
    e("s_waitcnt lgkmcnt(0)")
    rest = [a(6), f(2), a(3), a(7), f(3)]
    cnt = 5
    for x in store_stream(False):
        if x.startswith("NEED"): continue
        if rest and cnt >= 5:
            e(rest.pop(0)); cnt = 0
        e(x); cnt += 1
    itstamp()
    finish()
def short_rare(tag, par):
    a = lambda i: mfma(V_O+16*(i & 3), V_V+4*i, V_P[1-par]+4*(i >> 2), V_O+16*(i & 3))
    f = lambda i: mfma(V_O+16*i, V_K+4*i, V_P[par], V_O+16*i)
    lab(f"L_rare_{tag}")
    for i in (2, 6, 3, 7): e(a(i))
    rare(tag + "x", par, None, False, 4)
    lab(f"L_back_{tag}x")
    e("s_waitcnt lgkmcnt(0)")
    for i in range(4): e(f(i))
    e(f"v_add_f32 v{V_L}, v{V_L}, v{V_PS}")
    e(f"v_mov_b32 v{V_T0}, v{V_L}")
    lab(f"L_stg_{tag}x")
    bound()
    e(f"ds_read_b32 v{V_FL}, v{V_CK}")
    e("s_waitcnt lgkmcnt(0)")
    e(f"v_cmp_gt_i32 vcc, s{S_T2}, v{V_FL}")
    e(f"s_cbranch_vccnz L_stg_{tag}x")
    e(f"v_permlane32_swap_b32 v{V_L}, v{V_T0}")
    e("s_nop 1")
    e(f"v_add_f32 v{V_L}, v{V_L}, v{V_T0}")
    e("s_branch L_store")

def merge_code():
    lab("L_merge")
    MA, ML = V_KA, V_KA+1
    if opt.mprio:
        e(f"s_cmp_eq_u32 s{T_MOUT}, 0")
        e("s_cbranch_scc1 L_merge_keep")
        e("s_setprio 0")
        lab("L_merge_keep")
    e(f"v_mov_b32 v{V_T1}, v{V_L}")
    e(f"v_mbcnt_lo_u32_b32 v{V_T0}, -1, 0")
    e(f"v_mbcnt_hi_u32_b32 v{V_T0}, -1, v{V_T0}")
    e(f"s_and_b32 s{T_MB}, s{T_MB}, 0xffffff")
    e(f"v_permlane32_swap_b32 v{V_L}, v{V_T1}")
    e(f"v_lshl_add_u32 v{MA}, v{V_T0}, 4, s{T_MB}")
    e(f"s_cmp_eq_u32 s{T_MB}, {KBASE}")
    e(f"s_cselect_b32 s{S_T0}, {ent(48)}, {ent(16)}") if False else None
    e(f"s_cselect_b32 s{S_T0}, {32*G}, 0")
    e(f"v_add_f32 v{V_L}, v{V_L}, v{V_T1}")
    e(f"s_add_u32 s{S_T0}, s{S_T0}, {ent(16)}")
    e(f"v_bfe_u32 v{ML}, v{V_T0}, 1, 4")
    e(f"v_mul_u32_u24 v{ML}, {G}, v{ML}")
    e(f"v_and_b32 v{V_T0}, 1, v{V_T0}")
    e(f"v_lshl_add_u32 v{ML}, v{V_T0}, 3, v{ML}")
    e(f"v_add_u32 v{ML}, s{S_T0}, v{ML}")
    e(f"s_cmp_eq_u32 s{T_MIN}, 0")
    e("s_cbranch_scc1 L_merge_out")
    e(f"v_mov_b32 v{V_FA}, s{T_MIN}")
    spin("L_merge_wait", 0, sleep=1)
    e(f"ds_read_b64 {vr(V_E,2)}, v{ML}")
    for i in range(12):
        e(f"ds_read_b128 {vr(V_K+4*i,4)}, v{MA} offset:{i*G}")
    e("s_waitcnt lgkmcnt(12)")
    e(f"v_cmp_neq_f32 vcc, v{V_NEGM}, v{V_E}")
    for i in range(12, 16):
        e(f"ds_read_b128 {vr(V_K+4*i,4)}, v{MA} offset:{i*G}")
    e("s_cbranch_vccnz L_merge_slow")
    lab("L_merge_add")
    e(f"v_add_f32 v{V_L}, v{V_L}, v{V_E+1}")
    e(f"s_cmp_lg_u32 s{T_MOUT}, 0")
    for i in range(4):
        e(f"s_waitcnt lgkmcnt({12-4*i})")
        for r in range(16*i, 16*i+16):
            e(f"v_add_f32 v{V_O+r}, v{V_O+r}, v{V_K+r}")
    e("s_cbranch_scc1 L_merge_out")
    lab("L_store")
    e(f"v_rcp_f32 v{V_L}, v{V_L}")
    for x in store_prep(): e(x)
    for x in store_stream(False):
        if not x.startswith("NEED"): e(x)
    itstamp()
    finish()
    lab("L_merge_slow")
    e(f"v_min_f32 v{V_E+2}, v{V_NEGM}, v{V_E}")
    e(f"v_sub_f32 v{V_E+4}, v{V_E+2}, v{V_NEGM}")
    e(f"v_sub_f32 v{V_E+6}, v{V_E+2}, v{V_E}")
    e(f"v_exp_f32 v{V_E+4}, v{V_E+4}")
    e(f"v_exp_f32 v{V_E+6}, v{V_E+6}")
    e(f"v_mov_b32 v{V_NEGM}, v{V_E+2}")
    e(f"v_mul_f32 v{V_L}, v{V_L}, v{V_E+4}")
    e(f"v_mul_f32 v{V_E+1}, v{V_E+1}, v{V_E+6}")
    e("s_waitcnt lgkmcnt(0)")
    for r in range(64):
        e(f"v_mul_f32 v{V_O+r}, v{V_O+r}, v{V_E+4}")
        e(f"v_mul_f32 v{V_K+r}, v{V_K+r}, v{V_E+6}")
    e("s_branch L_merge_add")
    lab("L_merge_out")
    e(f"v_mov_b32 v{V_E}, v{V_NEGM}")
    e(f"v_mov_b32 v{V_E+1}, v{V_L}")
    e(f"v_mov_b32 v{V_FA}, s{T_MOUT}")
    e(f"v_mov_b32 v{V_T0}, 1.0")
    e(f"ds_write_b64 v{ML}, {vr(V_E,2)}")
    for i in range(16):
        e(f"ds_write_b128 v{MA}, {vr(V_O+4*i,4)} offset:{i*G}")
    e(f"ds_write_b32 v{V_FA}, v{V_T0}")
    e("s_waitcnt lgkmcnt(0)")
    itstamp()
    finish()

def setup_compute():
    e(f"s_mov_b32 s{S_O+2}, s{T_NREC}")
    e(f"s_mov_b32 s{S_O+3}, 0x20000")
    e(f"s_add_u32 s{S_O}, s12, s{S_BASE}")
    e(f"s_addc_u32 s{S_O+1}, s13, 0")
    e(f"v_and_b32 v{V_T0}, 3, v{V_LANE}")
    e(f"v_lshl_add_u32 v{V_FA}, v{V_T0}, 2, s{T_FB}")
    e(f"v_bfe_u32 v{V_T1}, v{V_LANE}, 2, 3")
    e(f"v_mul_u32_u24 v{V_T1}, {G}, v{V_T1}")
    e(f"v_lshl_add_u32 v{V_T1}, v{V_T0}, 8, v{V_T1}")
    e(f"v_lshrrev_b32 v{V_L}, 5, v{V_LANE}")
    e(f"v_lshl_add_u32 v{V_T1}, v{V_L}, 4, v{V_T1}")
    for t in range(4):
        e(f"v_xor_b32 v{V_KA+t}, {t}, v{V_T0}")
        e(f"v_lshl_add_u32 v{V_KA+t}, v{V_KA+t}, 6, v{V_T1}")
        e(f"v_add_u32 v{V_E+t}, s{T_QST}, v{V_KA+t}")
        e(f"v_add_u32 v{V_KA+t}, s{T_KB}, v{V_KA+t}")
    e(f"v_lshrrev_b32 v{V_T1}, 3, v{V_LANE}")
    e(f"v_and_b32 v{V_T0}, 7, v{V_LANE}")
    e(f"v_lshlrev_b32 v{V_PS}, 4, v{V_T0}")
    e(f"v_lshl_add_u32 v{V_SA}, v{V_T1}, 12, v{V_PS}")
    e(f"v_xor_b32 v{V_T1}, v{V_T1}, v{V_LANE}")
    e(f"v_lshl_add_u32 v{V_RA}, v{V_T1}, 4, s{T_OST}")
    e(f"v_and_b32 v{V_T1}, 31, v{V_LANE}")
    e(f"v_lshl_add_u32 v{V_T1}, v{V_T1}, 7, s{T_OST}")
    e(f"v_lshl_add_u32 v{V_T1}, v{V_L}, 3, v{V_T1}")
    for rq in range(4):
        e(f"v_xor_b32 v{V_WA+rq}, {rq}, v{V_T0}")
        e(f"v_lshl_add_u32 v{V_WA+rq}, v{V_WA+rq}, 4, v{V_T1}")
    e(f"v_bfe_u32 v{V_T0}, v{V_LANE}, 2, 2")
    e(f"v_lshl_add_u32 v{V_T1}, v{V_L}, 2, v{V_T0}")
    e(f"v_lshl_add_u32 v{V_T1}, v{V_T1}, 8, s{T_VB}")
    e(f"v_bfe_u32 v{V_PS}, v{V_LANE}, 4, 1")
    e(f"v_lshl_add_u32 v{V_T1}, v{V_PS}, 5, v{V_T1}")
    e(f"v_and_b32 v{V_PS}, 3, v{V_LANE}")
    e(f"v_lshl_add_u32 v{V_T1}, v{V_PS}, 3, v{V_T1}")
    for dt in range(4):
        e(f"v_xor_b32 v{V_VA+dt}, {dt}, v{V_T0}")
        e(f"v_lshl_add_u32 v{V_VA+dt}, v{V_VA+dt}, 6, v{V_T1}")
    e(f"s_bfe_u32 s{S_T0}, s{T_PK}, {8 | 3 << 16:#x}")
    e(f"s_bfe_u32 s{S_T1}, s{T_PK}, {11 | 3 << 16:#x}")
    e(f"v_and_b32 v{V_CK}, 7, v{V_LANE}")
    e(f"v_max_u32 v{V_CK}, s{S_T0}, v{V_CK}")
    e(f"v_min_u32 v{V_CK}, s{S_T1}, v{V_CK}")
    e(f"v_mul_u32_u24 v{V_CK}, {G}, v{V_CK}")
    e(f"v_add_u32 v{V_CK}, {ent(PROG0)}, v{V_CK}")
    e(f"v_lshlrev_b32 v{V_T0}, 2, v{V_L}")
    e(f"v_sub_u32 v{V_T0}, s{T_NV}, v{V_T0}")
    for r in range(16):
        e(f"v_cmp_lt_i32 {sr(S_MASK+2*r,2)}, {(r & 3) + 8*(r >> 2)}, v{V_T0}")
    for r in range(0, 64, 2): e(f"v_mov_b64 {vr(V_O+r,2)}, 0")
    for r in range(0, 16, 2): e(f"v_mov_b64 {vr(V_NEGM+r,2)}, 0")
    e(f"v_mov_b32 v{V_L}, 0")
    e(f"v_mov_b32 v{V_T1}, 0xff800000")
    e(f"v_mov_b32 v{V_X}, 1")
    e(f"s_mov_b32 s{S_LO}, {f32bits(1.0/THR):#x}")
    e(f"s_mov_b32 s{S_THR}, {f32bits(THR):#x}")
    e(f"s_bitcmp1_b32 s{T_PK}, 7")
    e(f"s_cselect_b32 s{S_KWRAP}, 6, 0")
    e(f"s_cselect_b32 s{S_VWRAP}, 8, 0")
    e(f"s_mov_b32 s{S_2K}, {2*KSLOT}")
    e(f"s_mov_b32 s{S_2V}, {2*VSLOT}")
    e(f"s_mov_b32 s{S_J}, 2")
    e(f"s_sub_u32 s{S_NM1}, s{T_N}, 1")
    e(f"s_mov_b32 s{S_T2}, s{T_P1S}")

def prog_addr():
    e(f"s_mul_i32 s{S_T0}, s{S_U}, {G}")
    e(f"s_add_u32 s{S_T0}, s{S_T0}, {ent(PROG0)}")
    e(f"v_mov_b32 v{V_PA}, s{S_T0}")

def q_read():
    for ks in range(8):
        e(f"ds_read_b128 {vr(V_Q+4*ks,4)}, v{V_E+(ks>>1)} offset:{(ks&1)*32}")

CSCALE = math.log2(math.e) / math.sqrt(128.0)
def qscale(ks, pk=True):
    tb = V_S[1] + 8*(ks & 1)
    for k in range(4):
        r = V_Q+4*ks+k
        e(f"v_lshlrev_b32 v{tb+2*k}, 16, v{r}")
        e(f"v_and_b32 v{tb+2*k+1}, {f's{S_T0}' if pk else '0xffff0000'}, v{r}")
    for k in range(4):
        if pk:
            e(f"v_pk_mul_f32 {vr(tb+2*k,2)}, {vr(tb+2*k,2)}, {sr(S_DK,2)}")
        else:
            e(f"v_mul_f32 v{tb+2*k}, {f32bits(CSCALE):#x}, v{tb+2*k}")
            e(f"v_mul_f32 v{tb+2*k+1}, {f32bits(CSCALE):#x}, v{tb+2*k+1}")
    for k in range(4):
        e(f"v_cvt_pk_bf16_f32 v{V_Q+4*ks+k}, v{tb+2*k}, v{tb+2*k+1}")

def flag_init():
    e(f"v_mul_u32_u24 v{V_T0}, {G}, v{V_LANE}")
    e(f"v_add_u32 v{V_T0}, {FBASE}, v{V_T0}")
    for k in range(4): e(f"v_mov_b32 v{V_V+k}, -1.0")
    e(f"ds_write_b128 v{V_T0}, {vr(V_V,4)}")

def init_signal_regs(f0):
    e(f"s_and_b32 s{S_T0}, s{S_U}, 3")
    e(f"s_lshl_b32 s{S_T0}, s{S_T0}, 2")
    if f0 is None:
        e(f"s_cmp_lt_u32 s{S_U}, 4")
        e(f"s_cselect_b32 s{S_T1}, {16*G}, 0")
        e(f"s_add_u32 s{S_T0}, s{S_T0}, s{S_T1}")
    e(f"s_add_u32 s{S_T0}, s{S_T0}, {FBASE}")
    e(f"v_mov_b32 v{V_SIG}, s{S_T0}")
    e(f"v_mov_b32 v{V_THRV}, {f32bits(THR):#x}")

def kv_srds(sk, sv, base_s, nrec):
    for srd, p in ((sk, 6), (sv, 8)):
        e(f"s_add_u32 s{srd}, s{p}, s{base_s}")
        e(f"s_addc_u32 s{srd+1}, s{p+1}, 0")
        e(f"s_mov_b32 s{srd+2}, {nrec}")
        e(f"s_mov_b32 s{srd+3}, 0x20000")

class Loader:
    def __init__(self, name, quarter):
        self.pace = 0
        self.name = name; self.quarter = quarter; self.issued = []; self.npoll = 0; self.seen = {}
    def poll(self, lo, hi, thr, word=0):
        key = (lo, hi, word)
        if self.seen.get(key, -1) >= thr: return
        self.seen[key] = thr
        l_ = f"L_pw_{self.name}_{self.npoll}"; self.npoll += 1
        e(f"v_and_b32 v{V_POLL}, 7, v{V_LANE}")
        e(f"v_max_u32 v{V_POLL}, {lo}, v{V_POLL}")
        e(f"v_min_u32 v{V_POLL}, {hi}, v{V_POLL}")
        e(f"v_mul_u32_u24 v{V_POLL}, {G}, v{V_POLL}")
        e(f"v_add_u32 v{V_POLL}, {ent(PROG0)}, v{V_POLL}")
        e(f"s_mov_b32 s{S_T0}, {thr}")
        lab(l_)
        e(f"ds_read_b32 v{V_PV}, v{V_POLL} offset:{4*word}")
        e("s_waitcnt lgkmcnt(0)")
        e(f"v_cmp_gt_i32 vcc, s{S_T0}, v{V_PV}")
        e(f"s_cbranch_vccz {l_}_ok")
        e("s_sleep 1")
        bound()
        e(f"s_branch {l_}")
        lab(f"{l_}_ok")
    def block(self, tag, srd, b, lds, stride):
        if self.quarter:
            wreg = S_DK if stride == G else S_DV
            e(f"s_add_u32 m0, s{wreg}, {lds}")
            e(f"s_mov_b32 s{S_T1}, {b*0x20000:#x}")
            e(f"buffer_load_dwordx4 v{V_DMA}, {sr(srd,4)}, s{S_T1} offen lds")
            e(f"s_add_u32 m0, s{wreg}, {lds+4*stride}")
            e(f"s_sleep {self.pace}" if self.pace else "s_nop 0")
            e(f"buffer_load_dwordx4 v{V_DMA2}, {sr(srd,4)}, s{S_T1} offen lds")
            if self.pace: e(f"s_sleep {self.pace}")
            self.issued += [tag]*2
        else:
            for g in range(8):
                e(f"s_mov_b32 m0, {lds+g*stride}")
                e(f"s_mov_b32 s{S_T1}, {b*0x20000+g*0x4000:#x}")
                e(f"buffer_load_dwordx4 v{V_DMA}, {sr(srd,4)}, s{S_T1} offen lds")
            self.issued += [tag]*8
    def wait(self, tag):
        last = max(i for i, t in enumerate(self.issued) if t == tag)
        n = len(self.issued)-1-last
        assert n <= 63
        e(f"s_waitcnt vmcnt({n})")

def loader_single_stream(desc, pid):
    kind, nk = desc[0], desc[1]
    quarter = kind == "L4"
    late = desc[2]
    D = desc[4]
    ld = Loader(f"{kind}_{nk}_{pid}", quarter)
    lab(f"L_prog_{pid}")
    if opt.lprio: e(f"s_setprio {opt.lprio}")
    ld.issued += ["i1"]*4 + ["i2"]*4
    qsrc = desc[3] if late else None
    if not quarter: e(f"v_mov_b32 v{V_DMA}, v{V_DL}")
    ring = nk > 10
    ks = lambda b: b & 7 if ring else b
    vs = lambda b: (((b-1) & 7) + 1) if (ring and b > 8) else b
    hi = (7 if late else 3) if quarter else 6
    vq = {10: 8, 9: 7, 8: 5}.get(nk, 99) if (late or not quarter) else 99
    def req(p):
        lv = []
        b = p+2
        def level(j):
            if j <= 0: return (0, 3, 1, 0, 0)
            if j & 1: return (0, 3, FBASE+(j-1)*G, j+opt.slack, 1)
            return (0, 3, FBASE+(j-2)*G, j+opt.slack, 0)
        if b < nk:
            if ks(b) != b: lv.append(level(b-9))
            elif b >= 5 and not (ring and opt.q4v): lv.append((0, 3, 0, QSIG, 0))
        if vs(p) != p: lv.append(level(p-7))
        elif p >= vq: lv.append((4, hi, 0, 2, 0))
        elif p >= 5 and ring and opt.q4v: lv.append((0, 3, 0, QSIG, 0))
        return lv
    nxt = [1]
    def pairs_upto(p, sig):
        while nxt[0] <= min(p, nk-1):
            r = req(nxt[0])
            if any(x[3] > sig for x in r): break
            for x in r: ld.poll(x[0], x[1], x[2], x[4])
            p_ = nxt[0]
            if p_+2 < nk: ld.block(p_, S_K, p_+2, kslot(ks(p_+2)), G)
            ld.block(p_, S_V, p_, vslot(vs(p_)), 1024)
            nxt[0] += 1
    chunks = []
    side = opt.side == 1 or (opt.side == 2 and quarter)
    if late:
        k0 = len(out); setup_compute(); prog_addr(); body = out[k0:]; del out[k0:]
        cut = next(i for i, x in enumerate(body) if "s_bfe_u32" in x)
        chunks = [body[:cut], body[cut:]]
        if side:
            cut = max(i for i, x in enumerate(body) if f"s{T_KB}," in x) + 1
            chunks = [body[:cut] + body[-3:] + [f"    v_mov_b32 v{V_X}, 0"], body[cut:-3]]
    pairs_upto(opt.npre4 if quarter else opt.npre1, -1)
    ld.wait("i2")
    e(f"ds_write_b32 v{V_SIG}, v{V_THRV} offset:{G}")
    stamp(3)
    if not quarter:
        e(f"v_and_b32 v{V_SIG}, 3, v{V_LANE}")
        e(f"v_lshlrev_b32 v{V_SIG}, 2, v{V_SIG}")
        e(f"v_add_u32 v{V_SIG}, {FBASE}, v{V_SIG}")
    if late and qsrc is None:
        e(f"s_mov_b32 s{S_T0}, s{T_QOFF}")
        e(f"s_mov_b32 m0, s{T_QST}")
        dma_pass(S_T0)
        ld.issued += ["q"]*8
    pairs_upto(D, 0)
    if late: out.extend(chunks[0])
    ld.pace = opt.pace
    for j in range(1, nk):
        assert nxt[0] > j
        ld.wait(j)
        e(f"ds_write_b32 v{V_SIG}, v{V_THRV} offset:{(j+1)*G}")
        if late and j == 2:
            if qsrc is None: ld.wait("q")
            else: ld.poll(qsrc, qsrc, 0)
            q_read()
            e("s_waitcnt lgkmcnt(0)")
            e(f"ds_write_b32 v{V_PA}, v{V_X if side else V_L}")
        pairs_upto(j+D, j)
        if late and j == 1 and not side: out.extend(chunks[1])
        if late and 2 <= j <= 5 and not side:
            qscale(2*j-4, False); qscale(2*j-3, False)
    if late and side:
        e("s_setprio 0")
        out.extend(chunks[1])
        e("s_branch L_scale_h")
    elif late:
        e("s_branch L_spin_h" if quarter else "s_branch L_helper_go")
    else:
        e("s_waitcnt lgkmcnt(0)")
        stamp(4)
        finish()

def loader_two_streams(desc, pid):
    _, sa, sb = desc
    nka, nkb = seqnk(sa), seqnk(sb)
    ld = Loader("L2", False)
    lab(f"L_prog_{pid}")
    if opt.lprio: e(f"s_setprio {opt.lprio}")
    ld.issued += ["i1"]*4 + ["i2"]*4
    e(f"v_mov_b32 v{V_DMA}, v{V_DL}")
    for k in range(8): e(f"s_mov_b32 s{S_K2+k}, s{S_K+k}") if k % 4 != 3 else e(f"s_mov_b32 s{S_K2+k}, 0x20000")
    kv_srds(S_K, S_V, S_BASE, f"s{T_NREC}")
    def pa(p):
        if p+2 < nka: ld.block(("a", p), S_K2, p+2, kslot(6+p+2), G)
        ld.block(("a", p), S_V2, p, vslot(6+p), 1024)
    def pb(p):
        if p+2 >= 6 and p+2 < nkb: ld.poll(0, 3, ent(16))
        if p == 8: ld.poll(0, 3, ent(16)+2*G)
        if p+2 < nkb: ld.block(("b", p), S_K, p+2, kslot(p+2), G)
        ld.block(("b", p), S_V, p, vslot(p), 1024)
    def sig(t, p):
        ld.wait((t, p))
        e(f"ds_write_b32 v{V_SIG}, v{V_THRV} offset:{(p + 1 + (16 if t == 'a' else 0))*G}")
    pa(1)
    ld.wait("i2")
    e(f"ds_write_b32 v{V_SIG}, v{V_THRV} offset:{G}")
    stamp(3)
    e(f"v_and_b32 v{V_SIG}, 3, v{V_LANE}")
    e(f"v_lshlrev_b32 v{V_SIG}, 2, v{V_SIG}")
    e(f"v_add_u32 v{V_SIG}, {FBASE}, v{V_SIG}")
    pa(2); pa(3)
    ld.block(("b", -1), S_K, 0, kslot(0), G)
    sig("a", 1)
    ld.block(("b", -1), S_K, 1, kslot(1), G)
    sig("a", 2)
    ld.poll(0, 6, 0)
    pb(0); sig("a", 3)
    pb(1); sig("b", -1)
    pb(2); sig("b", 0)
    pb(3); sig("b", 1)
    pb(4); sig("b", 2)
    pb(5); sig("b", 3)
    pb(6); sig("b", 4)
    pb(7); sig("b", 5)
    pb(8); sig("b", 6); sig("b", 7); sig("b", 8)
    e("s_waitcnt lgkmcnt(0)")
    stamp(4)
    finish()

def md_program(desc, pid):
    nk = desc[1]
    ld = Loader(f"MD_{pid}", True)
    lab(f"L_prog_{pid}")
    e("s_setprio 1")
    ld.issued += (["i1"]*4 + ["q"]*8 + ["i2"]*4) if opt.mdq else (["i1"]*4 + ["i2"]*4 + ["q"]*8)
    def pair(p):
        if p+2 < nk: ld.block(p, S_K, p+2, kslot(p+2), G)
        ld.block(p, S_V, p, vslot(p), 1024)
    def sig(p):
        ld.wait(p)
        e(f"ds_write_b32 v{V_SIG}, v{V_THRV} offset:{(p+1)*G}")
    pair(1)
    setup_compute(); prog_addr()
    if not opt.mdq:
        ld.wait("i2"); e(f"ds_write_b32 v{V_SIG}, v{V_THRV} offset:{G}")
    ld.wait("q")
    stamp(3)
    q_read()
    e("s_waitcnt lgkmcnt(0)")
    e(f"ds_write_b32 v{V_PA}, v{V_L}")
    pair(2)
    for ks in range(4): qscale(ks, False)
    if opt.mdq:
        ld.wait("i2"); e(f"ds_write_b32 v{V_SIG}, v{V_THRV} offset:{G}")
    for ks in range(4, 8): qscale(ks, False)
    if QSIG: sig(1)
    ld.poll(0, 7, 0)
    pair(3)
    if not QSIG: sig(1)
    e(f"v_mov_b32 v{V_T1}, v{V_DMA}")
    e(f"v_readfirstlane_b32 s{T_QST}, v{V_SIG}")
    e(f"s_mov_b32 s{T_KB}, s{S_DK}")
    e(f"s_mov_b32 s{T_VB}, s{S_DV}")
    e("s_branch L_spin_h")
    lab(f"L_md_loop")
    kv_srds(S_K, S_V, S_BASE, f"s{T_NREC}")
    e(f"v_mov_b32 v{V_X}, {f32bits(THR):#x}")
    for j in range(1, nk-1):
        ex = {}
        p = j+3
        if j+1 < nk:
            last = max(i for i, t in enumerate(ld.issued) if t == j+1)
            e(f"s_waitcnt vmcnt({len(ld.issued)-1-last})")
            e(f"v_mov_b32 v{V_T0}, s{T_QST}")
            e(f"ds_write_b32 v{V_T0}, v{V_X} offset:{(j+2)*G}")
        if p < nk:
            items = []
            if p+2 < nk: items += [(S_K, T_KB, kslot(p+2), (p+2)*0x20000), (S_K, T_KB, kslot(p+2)+4*G, (p+2)*0x20000+0x10000)]
            items += [(S_V, T_VB, vslot(p), p*0x20000), (S_V, T_VB, vslot(p)+4096, p*0x20000+0x10000)]
            for k, (srd, wreg, lds, so) in enumerate(items):
                ops = [f"s_add_u32 m0, s{wreg}, {lds}", f"s_mov_b32 s{S_T1}, {so:#x}", f"buffer_load_dwordx4 v{V_T1}, {sr(srd,4)}, s{S_T1} offen lds"]
                if opt.stamps == 2: ops = [f"s_mov_b32 s{S_T0}, m0"] + ops + [f"s_mov_b32 m0, s{S_T0}"]
                ex[1+3*k] = ops
                ld.issued.append(p)
        if j & 1:
            ma = [(2+4*t, [f"v_add_u32 v{V_KA+t}, s{S_2K}, v{V_KA+t}"]) for t in range(4)]
            iteration(1, True, 3*KSLOT, VSLOT, 3*G, f"Amd{j}", misc=ma, extra=ex)
        else:
            mb = [(8, [f"ds_write_b32 v{V_PA}, v{V_FA}", f"v_add_u32 v{V_FA}, {2*G}, v{V_FA}"])]
            mb += [(9+2*t, [f"v_add_u32 v{V_VA+t}, s{S_2V}, v{V_VA+t}"]) for t in range(4)]
            iteration(0, True, 2*KSLOT, 2*VSLOT, 4*G, f"Bmd{j}", misc=mb, extra=ex)
    e(f"v_mov_b32 v{V_T1}, 0xff800000")
    e("s_branch L_tail_odd" if (nk-1) & 1 else "s_branch L_tail_even")

hdr = open("cdna_kernels/" + NAME + ".s.ref").read().split("\n")
for line in hdr:
    if line.startswith("; @launch"): break
    out.append(line)
out.append(f"; @launch grid=({NWG},1,1) block=(512,1,1) lds={LDS_BYTES}")
out.append('.amdgcn_target "amdgcn-amd-amdhsa--gfx950"')
out.append(".text")
out.append(f".globl {NAME}_kernel")
out.append(".p2align 8")
out.append(f".type {NAME}_kernel,@function")
lab(f"{NAME}_kernel")
S_W, S_HOFF = S_KWRAP, S_VWRAP
e("s_load_dwordx4 s[4:7], s[0:1], 0")
e("s_load_dwordx2 s[8:9], s[0:1], 16")
e("s_load_dwordx2 s[12:13], s[0:1], 32")
e(f"s_getpc_b64 {sr(S_DK,2)}")
lab("L_pc")
if opt.skew:
    e(f"s_bfe_u32 s{S_T0}, s2, {5 | 3 << 16:#x}")
    e(f"s_bfe_u32 s{S_J}, s2, {2 | 1 << 16:#x}")
    e(f"s_mul_i32 s{S_T1}, s{S_J}, 7")
    e(f"s_bfe_u32 s{S_HOFF}, s2, {3 | 1 << 16:#x}")
    e(f"s_add_u32 s{S_T2}, s{S_HOFF}, 7")
    e(f"s_cmp_eq_u32 s{S_T0}, 7")
    e(f"s_cselect_b32 s{S_T1}, s{S_T2}, s{S_T1}")
    e(f"s_cselect_b32 s{S_HOFF}, s{S_J}, s{S_HOFF}")
    e(f"s_add_u32 s{S_T0}, s{S_T0}, s{S_T1}")
    e(f"s_lshl_b32 s{S_T0}, s{S_T0}, 2")
else:
    e(f"s_lshr_b32 s{S_T0}, s2, 2")
    e(f"s_and_b32 s{S_T0}, s{S_T0}, 60")
e(f"s_add_u32 s{S_T1}, s{S_T0}, L_small-L_pc")
e(f"s_load_dword s{S_W}, {sr(S_DK,2)}, s{S_T1}")
e(f"v_lshrrev_b32 v{V_T0}, 6, v0")
e("s_branch L_go")
out.append(".type L_small,@object")
lab("L_small")
out.append("    .long " + ", ".join(f"{x:#x}" for x in stab))
out.append(".size L_small, .-L_small")
lab("L_go")
e(f"s_cmp_ge_u32 s2, {NWG}")
e("s_cbranch_scc1 L_end")
e(f"v_readfirstlane_b32 s{S_U}, v{V_T0}")
if opt.stamps:
    e("s_memrealtime s[100:101]")
stamp(0)
if opt.pf:
    e(f"s_lshr_b32 s{S_T1}, s2, 3")
    e(f"s_lshl_b32 s{S_T1}, s{S_T1}, 11")
    e(f"v_lshrrev_b32 v{V_T0}, 5, v0")
    e(f"v_lshl_add_u32 v{V_T0}, v{V_T0}, 7, s{S_T1}")
    e(f"global_load_dword v{V_S[0]}, v{V_T0}, {sr(S_DK,2)}")
e(f"v_and_b32 v{V_LANE}, 63, v0")
e(f"s_lshl_b32 s{S_T0}, s{S_T0}, 1")
e(f"s_add_u32 s{S_T0}, s{S_T0}, s{S_U}")
e(f"s_lshl_b32 s{S_T0}, s{S_T0}, 6")
e(f"s_add_u32 s{S_T2}, s{S_T0}, L_table-L_pc")
e(f"v_mov_b32 v{V_T0}, s{S_T2}")
e(f"global_load_dword v{V_S[0]+1}, v{V_T0}, {sr(S_DK,2)}")
if opt.skew and opt.str4:
    e(f"s_bfe_u32 s{S_T1}, s2, {4 | 1 << 16:#x}")
    e(f"s_lshl_b32 s{S_T1}, s{S_T1}, 1")
    e(f"s_add_u32 s{S_HOFF}, s{S_HOFF}, s{S_T1}")
    e(f"s_lshl_b32 s{S_HOFF}, s{S_HOFF}, 2")
    e(f"s_and_b32 s{S_T0}, s2, 3")
    e(f"s_add_u32 s{S_HOFF}, s{S_HOFF}, s{S_T0}")
    e(f"s_lshl_b32 s{S_HOFF}, s{S_HOFF}, 8")
elif opt.skew:
    e(f"s_and_b32 s{S_T0}, s2, 3")
    e(f"s_lshl_b32 s{S_T0}, s{S_T0}, 2")
    e(f"s_add_u32 s{S_HOFF}, s{S_HOFF}, s{S_T0}")
    e(f"s_bfe_u32 s{S_T1}, s2, {4 | 1 << 16:#x}")
    e(f"s_lshl_b32 s{S_T1}, s{S_T1}, 1")
    e(f"s_add_u32 s{S_HOFF}, s{S_HOFF}, s{S_T1}")
    e(f"s_lshl_b32 s{S_HOFF}, s{S_HOFF}, 8")
else:
    e(f"s_and_b32 s{S_T0}, s2, 7")
    e(f"s_lshl_b32 s{S_T0}, s{S_T0}, 9")
    e(f"s_bfe_u32 s{S_T1}, s2, {3 | 1 << 16:#x}")
    e(f"s_lshl_b32 s{S_T1}, s{S_T1}, 8")
    e(f"s_add_u32 s{S_HOFF}, s{S_T0}, s{S_T1}")
e(f"v_lshrrev_b32 v{V_T0}, 4, v{V_LANE}")
e(f"v_lshlrev_b32 v{V_T1}, 2, v{V_T0}")
e(f"v_and_b32 v{V_DL}, 15, v{V_LANE}")
e(f"v_xor_b32 v{V_DL}, v{V_DL}, v{V_T1}")
e(f"v_lshlrev_b32 v{V_DL}, 4, v{V_DL}")
e(f"v_lshl_add_u32 v{V_DL}, v{V_T0}, 12, v{V_DL}")
e(f"s_mov_b32 s{S_P1+3}, 0x20000")
e(f"s_mov_b32 s{S_K+3}, 0x20000")
e(f"s_and_b32 s{S_J}, s{S_U}, 3")
e(f"s_lshl_b32 s{S_T0}, s{S_J}, 14")
e(f"v_add_u32 v{V_DMA}, s{S_T0}, v{V_DL}")
e(f"v_add_u32 v{V_DMA2}, 0x10000, v{V_DMA}")
flag_init()
e("s_waitcnt lgkmcnt(0)")
e(f"s_load_dwordx16 {sr(T,16)}, {sr(S_DK,2)}, s{S_T2}")
stamp(1)
e(f"s_and_b32 s{S_BASE}, s{S_W}, 0xfff")
e(f"s_lshl_b32 s{S_BASE}, s{S_BASE}, 12")
e(f"s_add_u32 s{S_BASE}, s{S_BASE}, s{S_HOFF}")
e(f"s_and_b32 s{S_T0}, s{S_W}, 0x1ff000")
e(f"s_sub_u32 s{S_P1+2}, s{S_T0}, {4096-256}")
e(f"s_bitcmp1_b32 s{S_W}, 28")
e(f"s_cselect_b32 s{S_T2}, 1, 0")
e(f"s_cmp_ge_u32 s{S_U}, 4")
e("s_cbranch_scc1 L_first_kv")
def dma_pass(soff):
    e(f"s_add_u32 s{S_P1}, s4, s{S_BASE}")
    e(f"s_addc_u32 s{S_P1+1}, s5, 0")
    for i in range(8):
        e(f"buffer_load_dwordx4 v{V_DL}, {sr(S_P1,4)}, s{soff} offen lds")
        if i < 7:
            e(f"s_add_u32 m0, m0, {G}")
            e(f"s_addk_i32 s{soff}, 0x4000")
if opt.kfirst == 2: e("s_barrier")
e(f"s_bfe_u32 s{S_T0}, s{S_W}, {25 | 3 << 16:#x}")
e(f"s_cmp_ge_u32 s{S_U}, s{S_T0}")
e("s_cbranch_scc1 L_idle")
if opt.cls != "000000" or opt.hcls or opt.hl != "0000":
    assert opt.kfirst == 2
    if opt.hl != "0000":
        e(f"s_lshr_b32 s{S_T0}, s{S_HOFF}, 6")
        e(f"s_and_b32 s{S_T0}, s{S_T0}, 12")
        e(f"s_lshr_b32 s{S_T0}, {sum(int(c) << (4*i) for i, c in enumerate(opt.hl)):#x}, s{S_T0}")
        e(f"s_and_b32 s{S_T0}, s{S_T0}, 15")
    elif opt.hcls == 1: e(f"s_bfe_u32 s{S_T0}, s2, {4 | 1 << 16:#x}")
    elif opt.hcls == 2:
        e(f"s_lshr_b32 s{S_T0}, s2, 3"); e(f"s_and_b32 s{S_T0}, s{S_T0}, 2")
    elif opt.hcls == 3:
        e(f"s_bfe_u32 s{S_T0}, s2, {3 | 2 << 16:#x}"); e(f"s_max_u32 s{S_T0}, s{S_T0}, 1"); e(f"s_sub_u32 s{S_T0}, s{S_T0}, 1"); e(f"s_cmp_lg_u32 s{S_T0}, 0")
    else: e(f"s_bfe_u32 s{S_T0}, s{S_W}, {29 | 2 << 16:#x}")
    e(f"s_cbranch_scc0 L_nohold")
    e(f"s_lshl_b32 s{S_T1}, s{S_T2}, 4")
    e(f"s_add_u32 s{S_T0}, s{S_T0}, s{S_T1}")
    e(f"s_mul_i32 s{S_T0}, s{S_T0}, {G}")
    e(f"s_add_u32 s{S_T0}, s{S_T0}, {FBASE-G}")
    e(f"v_and_b32 v{V_T0}, 3, v{V_LANE}")
    e(f"v_lshl_add_u32 v{V_FA}, v{V_T0}, 2, s{S_T0}")
    e("s_waitcnt lgkmcnt(0)")
    spin("L_hold", 0, sleep=1)
    lab("L_nohold")
e(f"s_mul_i32 s{S_T0}, s{S_T2}, {-3*KSLOT}")
if opt.q4v:
    e(f"s_cmp_gt_u32 s{S_P1+2}, {320*4096}")
    e(f"s_cselect_b32 s{S_T0}, {(-9*KSLOT) & 0xffffffff:#x}, s{S_T0}")
e(f"s_mul_i32 s{S_T1}, s{S_U}, {KSLOT}")
e(f"s_add_u32 s{S_T0}, s{S_T0}, s{S_T1}")
e(f"s_add_u32 m0, s{S_T0}, {kslot(5)}")
e(f"s_bfe_u32 s{S_T0}, s{S_W}, {21 | 4 << 16:#x}")
e(f"s_add_u32 s{S_T0}, s{S_T0}, s{S_U}")
e(f"s_lshl_b32 s{S_T0}, s{S_T0}, 17")
dma_pass(S_T0)
if opt.kfirst != 2: e("s_barrier")
e("s_waitcnt lgkmcnt(0)")
e(f"s_mov_b32 s{S_J}, {R_MAIN}")
stamp(2)
e("s_branch L_compute")
lab("L_first_kv")
if opt.kfirst == 1: e("s_setprio 3")
e(f"s_add_u32 s{S_K}, s6, s{S_BASE}")
e(f"s_addc_u32 s{S_K+1}, s7, 0")
e(f"s_mov_b32 s{S_K+2}, s{S_P1+2}")
e(f"s_mul_i32 s{S_DK}, s{S_J}, {G}")
e(f"s_mul_i32 s{S_T0}, s{S_T2}, {6*KSLOT}")
e(f"s_add_u32 s{S_T0}, s{S_T0}, s{S_DK}")
e(f"s_add_u32 m0, s{S_T0}, {KBASE}")
e(f"s_mov_b32 s{S_T1}, 0x20000")
e(f"buffer_load_dwordx4 v{V_DMA}, {sr(S_K,4)}, 0 offen lds")
e(f"s_add_u32 m0, m0, {4*G}")
e(f"s_add_u32 s{S_V}, s8, s{S_BASE}")
e(f"buffer_load_dwordx4 v{V_DMA2}, {sr(S_K,4)}, 0 offen lds")
e(f"s_addc_u32 s{S_V+1}, s9, 0")
e(f"s_add_u32 m0, m0, {4*G}")
e(f"s_mov_b32 s{S_V+2}, s{S_P1+2}")
e(f"buffer_load_dwordx4 v{V_DMA}, {sr(S_K,4)}, s{S_T1} offen lds")
e(f"s_add_u32 m0, m0, {4*G}")
e(f"s_mov_b32 s{S_V+3}, 0x20000")
e(f"buffer_load_dwordx4 v{V_DMA2}, {sr(S_K,4)}, s{S_T1} offen lds")
e(f"s_add_u32 m0, m0, {4*G}")
e(f"s_mov_b32 s{S_T1}, 0x40000")
e(f"s_mul_i32 s{S_T0}, s{S_T2}, {16*G}")
e(f"s_lshl_b32 s{S_DV}, s{S_J}, 2")
e(f"s_add_u32 s{S_T0}, s{S_T0}, s{S_DV}")
e(f"s_add_u32 s{S_T0}, s{S_T0}, {FBASE}")
e(f"v_mov_b32 v{V_SIG}, s{S_T0}")
e(f"v_mov_b32 v{V_THRV}, {f32bits(THR):#x}")
e(f"s_lshl_b32 s{S_DV}, s{S_J}, 10")
e(f"s_mul_i32 s{S_T0}, s{S_T2}, {6*VSLOT}")
e("s_barrier")
if opt.kfirst == 1: e("s_setprio 0")
if opt.md and opt.mdq:
    e(f"s_bitcmp1_b32 s{S_W}, 31")
    e("s_cbranch_scc1 L_md_first")
if opt.hold:
    e("s_waitcnt vmcnt(0)")
    lab("L_md_back")
    e(f"ds_write_b32 v{V_SIG}, v{V_THRV}")
    stamp(2)
e(f"buffer_load_dwordx4 v{V_DMA}, {sr(S_K,4)}, s{S_T1} offen lds")
e(f"s_add_u32 m0, m0, {4*G}")
e("s_nop 0")
e(f"buffer_load_dwordx4 v{V_DMA2}, {sr(S_K,4)}, s{S_T1} offen lds")
e(f"s_add_u32 m0, s{S_T0}, s{S_DV}")
e("s_nop 0")
e(f"buffer_load_dwordx4 v{V_DMA}, {sr(S_V,4)}, 0 offen lds")
e(f"s_add_u32 m0, m0, 4096")
e("s_nop 0")
e(f"buffer_load_dwordx4 v{V_DMA2}, {sr(S_V,4)}, 0 offen lds")
if not opt.hold:
    e("s_waitcnt vmcnt(4)")
    e(f"ds_write_b32 v{V_SIG}, v{V_THRV}")
    stamp(2)
e("s_waitcnt lgkmcnt(0)")
e(f"s_add_u32 s{S_BASE}, s{S_HOFF}, s{T_SOFF}")
e(f"s_and_b32 s{S_J}, s{T_PK}, 15")
e(f"s_bitcmp1_b32 s{T_PK}, 6")
e("s_cbranch_scc0 L_pass_done")
e(f"s_mov_b32 s{S_P1+2}, s{T_NREC}")
e(f"s_mov_b32 s{S_T0}, s{T_QOFF}")
e(f"s_mov_b32 m0, s{T_QST}")
dma_pass(S_T0)
lab("L_pass_done")
e(f"s_cmp_ge_u32 s{S_J}, 3")
e("s_cbranch_scc1 L_loaders")
lab("L_compute")
e(f"s_mov_b32 s{S_DK}, s{S_J}")
setup_compute()
prog_addr()
e(f"s_cmp_lg_u32 s{S_DK}, {R_MAIN}")
e("s_cbranch_scc1 L_init")
lab("L_noinit")
e("s_waitcnt vmcnt(0)")
stamp(3)
q_read()
e("s_waitcnt lgkmcnt(0)")
e(f"ds_write_b32 v{V_PA}, v{V_L}")
e(f"s_cmp_lg_u32 s{S_DK}, {R_MAIN}")
e("s_cbranch_scc1 L_scale_h")
e(f"s_mov_b32 s{S_DK}, {f32bits(CSCALE):#x}")
e(f"s_mov_b32 s{S_DV}, {f32bits(CSCALE):#x}")
e(f"s_mov_b32 s{S_T0}, 0xffff0000")
for ks in range(5):
    if ks == 4: e(f"ds_read_b32 v{V_FL}, v{V_FA}")
    qscale(ks)
e("s_waitcnt lgkmcnt(0)")
e(f"v_cmp_gt_f32 vcc, 0, v{V_FL}")
qscale(5)
e("s_cbranch_vccz L_back_pre")
spin("L_spin_pre", 0)
lab("L_back_pre")
def start_stamp():
    stamp(4)
    if opt.stamps == 2:
        e("s_mov_b32 m0, 0")
        e("s_memtime s[100:101]")
start_stamp()
for ks in range(8): e(kread(ks, 0))
qscale(6)
qscale(7)
lab("L_qk0")
for ks in range(8):
    if ks == 0: e("s_waitcnt lgkmcnt(0)")
    if ks == 7: e(f"v_cmp_gt_f32 vcc, 0, v{V_FL}")
    e(mfma(V_S[0], V_K+4*ks, V_Q+4*ks, None if ks == 0 else V_S[0]))
    e(kread(ks, 1*KSLOT))
    if ks == 3: e(f"ds_read_b32 v{V_FL}, v{V_FA} offset:{G}")
    if ks == 6: e("s_waitcnt lgkmcnt(3)")
e("s_cbranch_vccz L_back_pre2")
spin("L_spin_pre2", G)
lab("L_back_pre2")
e("s_nop 7")
iteration(0, False, 2*KSLOT, 0, 2*G, "i0", first=True, misc=[(4, [f"ds_write_b32 v{V_PA}, v{V_X}"])],
          last_ops=[f"s_bitcmp1_b32 s{T_PK}, 20", "s_cbranch_scc1 L_leave"])
lab("L_loop")
ma = [(0, [f"s_cmp_eq_u32 s{S_J}, s{S_KWRAP}", f"s_cselect_b32 s{S_DK}, {(-6*KSLOT)&0xffffffff:#x}, s{S_2K}"])]
ma += [(2+4*t, [f"v_add_u32 v{V_KA+t}, s{S_DK}, v{V_KA+t}"]) for t in range(4)]
ma.insert(4, (10, [f"s_cmp_eq_u32 s{S_J}, s{S_NM1}"]))
ma.insert(3, (8, [f"ds_write_b32 v{V_PA}, v{V_FA} offset:4"]))
iteration(1, True, 3*KSLOT, VSLOT, 3*G, "A", misc=ma, last_ops=["s_cbranch_scc1 L_tail_even"])
mb = [(0, [f"s_cmp_eq_u32 s{S_J}, s{S_VWRAP}", f"s_cselect_b32 s{S_DV}, {(-6*VSLOT)&0xffffffff:#x}, s{S_2V}"]),
      (0, [f"s_add_u32 s{S_J}, s{S_J}, 2", f"s_cmp_eq_u32 s{S_J}, s{T_N}"]),
      (8, [f"ds_write_b32 v{V_PA}, v{V_FA}", f"v_add_u32 v{V_FA}, {2*G}, v{V_FA}"])]
mb += [(9+2*t, [f"v_add_u32 v{V_VA+t}, s{S_DV}, v{V_VA+t}"]) for t in range(4)]
iteration(0, True, 2*KSLOT, 2*VSLOT, 4*G, "B", misc=mb, last_ops=["s_cbranch_scc0 L_loop"])
for par, nm in ((1, "odd"), (0, "even")):
    lab(f"L_tail_{nm}")
    kinds = [k for k in (0, 1, 2) if (k, par) in tails_used]
    for k in kinds[1:]:
        e(f"s_bitcmp1_b32 s{T_PK}, {14 + (k-1)}")
        e(f"s_cbranch_scc1 L_tail_{k}_{par}")
    assert kinds[0] == 0 or len(kinds) == 1 or True
    for k in kinds:
        tail(k, par)
merge_code()
lab("L_idle")
prog_addr()
e(f"v_mov_b32 v{V_T0}, 0x7fffffff")
if opt.kfirst != 2: e("s_barrier")
e(f"ds_write_b32 v{V_PA}, v{V_T0}")
e(f"ds_write_b32 v{V_PA}, v{V_T0} offset:4")
e("s_waitcnt lgkmcnt(0)")
if touches:
    e(f"s_add_u32 s{S_BASE}, s{S_HOFF}, s{T_SOFF}")
    kv_srds(S_K, S_V, S_BASE, f"s{T_NREC}")
    e(f"s_add_u32 s{S_P1}, s4, s{S_BASE}")
    e(f"s_addc_u32 s{S_P1+1}, s5, 0")
    e(f"s_mov_b32 s{S_P1+2}, s{T_NREC}")
    e(f"v_lshrrev_b32 v{V_T0}, 1, v{V_LANE}")
    e(f"v_and_b32 v{V_T1}, 1, v{V_LANE}")
    e(f"v_lshlrev_b32 v{V_T1}, 7, v{V_T1}")
    e(f"v_lshl_add_u32 v{V_T0}, v{V_T0}, 12, v{V_T1}")
    if opt.tstart >= 0:
        e(f"v_and_b32 v{V_FA}, 3, v{V_LANE}")
        e(f"v_lshlrev_b32 v{V_FA}, 2, v{V_FA}")
        e(f"v_add_u32 v{V_FA}, {ent(opt.tstart)}, v{V_FA}")
        spin("L_tstart", 0, sleep=1)
    for i in range(len(touches)):
        e(f"s_cmp_eq_u32 s{T_N}, {i+1}")
        e(f"s_cbranch_scc1 L_touch_{i}")
    finish()
    for i, lst in enumerate(touches):
        lab(f"L_touch_{i}")
        for k, it in enumerate(lst):
            srd = {"Q": S_P1, "K": S_K, "V": S_V}[it[0]]
            e(f"s_mov_b32 s{S_T0}, {int(it[1:])*0x20000:#x}")
            if k >= opt.tw: e(f"s_waitcnt vmcnt({opt.tw-1})")
            e(f"buffer_load_dword v{V_Q+k}, v{V_T0}, {sr(srd,4)}, s{S_T0} offen")
        finish()
else:
    finish()
lab("L_loaders")
for i in range(1, len(programs)):
    e(f"s_cmp_eq_u32 s{S_J}, {3+i}")
    e(f"s_cbranch_scc1 L_prog_{3+i}")
for i, d in enumerate(programs):
    if d[0] == "L2": loader_two_streams(d, 3+i)
    elif d[0] == "MD": md_program(d, 3+i)
    else: loader_single_stream(d, 3+i)
lab("L_leave")
e(f"s_cmp_eq_u32 s{T_N}, 2")
e("s_cbranch_scc1 L_tail_odd")
e("s_branch L_md_loop" if opt.md else "s_branch L_tail_odd")
if opt.md and opt.mdq:
    lab("L_md_first")
    e(f"s_mov_b32 s{S_LO}, m0")
    e(f"s_mul_i32 s{S_2K}, s{S_J}, {KSLOT}")
    e(f"s_add_u32 m0, s{S_2K}, {QH[0]}")
    e(f"s_lshl_b32 s{S_2K}, s{S_U}, 17")
    dma_pass(S_2K)
    e(f"s_mov_b32 m0, s{S_LO}")
    e("s_waitcnt vmcnt(8)")
    e("s_branch L_md_back")
lab("L_scale_h")
for ks in range(8): qscale(ks, False)
spin("L_spin_h", 0, sleep=1)
e(f"s_bitcmp1_b32 s{T_PK}, 18")
e("s_cbranch_scc0 L_helper_go")
e(f"v_and_b32 v{V_T0}, 3, v{V_LANE}")
e(f"v_mul_u32_u24 v{V_T0}, {G}, v{V_T0}")
e(f"v_add_u32 v{V_T0}, {ent(PROG0)}, v{V_T0}")
lab("L_helper_wait")
bound()
e("s_sleep 1")
e(f"ds_read_b32 v{V_FL}, v{V_T0}")
e("s_waitcnt lgkmcnt(0)")
e(f"v_cmp_gt_i32 vcc, 1, v{V_FL}")
e("s_cbranch_vccnz L_helper_wait")
lab("L_helper_go")
e("s_setprio 0")
e(f"s_bitcmp1_b32 s{T_PK}, 16")
e("s_cbranch_scc0 L_helper_go2")
e(f"s_setprio {max(opt.hprio, 0)}")
lab("L_helper_go2")
start_stamp()
for ks in range(8): e(kread(ks, 0))
e("s_branch L_qk0")
lab("L_init")
e(f"s_bitcmp1_b32 s{T_PK}, 19")
e("s_cbranch_scc1 L_init_shared")
e("s_waitcnt vmcnt(8)")
e(f"ds_write_b32 v{V_SIG}, v{V_THRV} offset:{G}")
e("s_branch L_noinit")
lab("L_init_shared")
e("s_waitcnt vmcnt(0)")
e(f"ds_write_b32 v{V_SIG}, v{V_THRV} offset:{G}")
e(f"s_lshr_b32 s{S_T0}, s{T_MB}, 24")
e(f"s_mul_i32 s{S_T0}, s{S_T0}, {G}")
e(f"s_add_u32 s{S_T0}, s{S_T0}, {ent(PROG0)}")
e(f"v_mov_b32 v{V_T0}, s{S_T0}")
lab("L_init_wait")
bound()
e("s_sleep 1")
e(f"ds_read_b32 v{V_FL}, v{V_T0}")
e("s_waitcnt lgkmcnt(0)")
e(f"v_cmp_gt_i32 vcc, 0, v{V_FL}")
e("s_cbranch_vccnz L_init_wait")
e("s_branch L_noinit")
for tag in stage_spins:
    lab(f"L_stg_{tag}")
    bound()
    e("s_sleep 1")
    e(f"ds_read_b32 v{V_FL}, v{V_CK}")
    e("s_waitcnt lgkmcnt(0)")
    e(f"v_cmp_gt_i32 vcc, s{S_T2}, v{V_FL}")
    e(f"s_cbranch_vccnz L_stg_{tag}")
    e(f"s_branch L_stgback_{tag}")
for site in rare_sites:
    rare(*site)
for site in short_rares:
    short_rare(*site)
if opt.stamps:
    lab("L_stamps")
    e(f"s_load_dwordx2 {sr(S_MASK+6,2)}, s[0:1], 48")
    e("s_waitcnt vmcnt(0)")
    e(f"s_memtime {sr(S_MASK, 2)}")
    e(f"s_getreg_b32 s{S_MASK+2}, hwreg(HW_REG_HW_ID)")
    e(f"s_getreg_b32 s{S_MASK+3}, hwreg(HW_REG_XCC_ID)")
    e(f"s_memrealtime {sr(S_MASK+4, 2)}")
    e("s_waitcnt lgkmcnt(0)")
    e(f"s_lshl_b32 s{S_T0}, s2, 3")
    e(f"s_add_u32 s{S_T0}, s{S_T0}, s{S_U}")
    e(f"s_lshl_b32 s{S_T0}, s{S_T0}, 7")
    if opt.stamps == 2:
        e(f"v_writelane_b32 v{V_LANE}, s100, m0")
        e(f"s_lshl_b32 s{S_T1}, s{S_T0}, 1")
        e(f"s_add_u32 s{S_T1}, s{S_T1}, 0x100000")
        e(f"v_mbcnt_lo_u32_b32 v2, -1, 0")
        e(f"v_mbcnt_hi_u32_b32 v2, -1, v2")
        e(f"v_lshl_add_u32 v0, v2, 2, s{S_T1}")
        e(f"global_store_dword v0, v{V_LANE}, {sr(S_MASK+6,2)}")
    e(f"v_mov_b32 v0, s{S_T0}")
    e("s_mov_b64 exec, 1")
    regs = [S_STAMP+i for i in range(10)] + [S_MASK+i for i in range(6)] + [100, 101]
    for i, r_ in enumerate(regs):
        e(f"v_mov_b32 v2, s{r_}")
        e(f"global_store_dword v0, v2, {sr(S_MASK+6,2)} offset:{4*i}")
lab("L_end")
e("s_endpgm")
out.append(".p2align 6")
out.append(".type L_table,@object")
lab("L_table")
for row in table:
    out.append("    .long " + ", ".join(f"{x & 0xffffffff:#x}" for x in row))
out.append(".size L_table, .-L_table")
if opt.pf:
    out.append(".type L_padding,@object")
    lab("L_padding")
    out.append("    .fill 8192, 4, 0")
    out.append(".size L_padding, .-L_padding")
out.append('.section .rodata,"a"')
out.append(".p2align 6")
out.append(f".amdhsa_kernel {NAME}_kernel")
for x in ("next_free_vgpr 256", "next_free_sgpr 102", "accum_offset 256", "group_segment_fixed_size 0", "kernarg_size 56",
          "user_sgpr_count 2", "user_sgpr_kernarg_segment_ptr 1", "system_sgpr_workgroup_id_x 1"):
    out.append("  .amdhsa_" + x)
out.append(".end_amdhsa_kernel")
for i_, o_ in enumerate(out):
    if o_ and o_.rstrip().endswith("offen lds"):
        isq = f"s[{S_P1}:{S_P1+3}]" in o_
        if (isq and opt.ntq) or (not isq and opt.ntkv):
            out[i_] = o_.replace("offen lds", "offen nt lds")
open(sys.argv[1], "w").write("\n".join(o for o in out if o is not None) + "\n")
```

```python
import sys, struct, math

CU = [0, 289, 520, 939, 1289, 1402, 1666, 1973, 2275]
NAME = "standalone__varlen_attn_packed__ragged"
def f32bits(x):
    return struct.unpack("<I", struct.pack("<f", x))[0]

class Opt:
    stamps = 0
    D4 = 5
    D1 = 2
    slack = 3
    npre4 = 2
    hold = 1
    npre1 = 1
    stflag = "sc1"
    hprio = 1
    lprio = 1
    pf = 1
    budget = 24
    ntq = 0
    skew = 1
    p64 = "000"
    c4 = 2
    t6a10 = 5
    t6b10 = 7
    order = 2
    mdsync = 0
    tq = 1
    pace = 0
    tstart = -1
    tp0 = 3
    hl = "0000"
    hcls = 0
    q4v = 1
    md = 1
    mdq = 1
    side = 0
    tw = 0
    t3 = 1
    str4 = 1
    t5 = "433"
    t6b = 6
    D3 = 4
    D5 = 2
    D6 = 3
    D8 = 3
    cls = "000001"
    mprio = 1
    ftail = 1
    kfirst = 2
    ntkv = 0
opt = Opt()
for a in sys.argv[2:]:
    k, v = a.split("=")
    setattr(opt, k, int(v) if v.lstrip("-").isdigit() and k not in ("cls", "t5", "hl", "p64") else v)

G = 1040
QSIG = max(0, max([int(c) for c in opt.hl + opt.cls] + [opt.c4 if '1' in opt.p64 else 0]) - 2)
assert QSIG <= 1
KSLOT = 8 * G
VSLOT = 8192
KBASE = 10 * VSLOT
LDS_BYTES = 163840
FBASE = KBASE + 1024
PROG0 = 32
MRG0 = 40
THR = 16384.0
NWG = 256
def kslot(s): return KBASE + s*KSLOT
def vslot(s): return s*VSLOT
def ent(n): return FBASE + n*G

V_FA, V_LANE, V_PA, V_FL = 0, 1, 2, 3
V_KA = 4
V_VA = 8
V_L, V_PS, V_T0, V_T1 = 12, 13, 14, 15
V_NEGM = 16
V_Q = 32
V_K = 64
V_V = 96
V_S = [128, 144]
V_P = [160, 168]
V_E = 176
V_WA = 184
V_RA, V_SA, V_CK, V_X = 188, 189, 190, 191
V_O = 192
V_DMA, V_DMA2, V_SIG, V_THRV, V_POLL, V_PV, V_DL = 64, 65, 66, 67, 68, 69, 70

S_P1, S_K, S_V, S_O = 16, 20, 24, 28
S_MASK = 32
S_K2, S_V2 = 32, 36
T = 64
(T_SOFF, T_NREC, T_P1S, T_P1L, T_PK, T_QOFF, T_QST, T_KB, T_VB, T_FB, T_N, T_NV, T_OST, T_MB, T_MIN, T_MOUT) = range(T, T+16)
S_U, S_J, S_T0, S_T1, S_DK, S_DV = 80, 81, 82, 83, 84, 85
S_KWRAP, S_VWRAP, S_NM1, S_T2, S_THR, S_LO = 86, 87, 14, 15, 3, 98
S_2K, S_2V = 99, 10
S_BASE = 11
S_STAMP = 88

out = []
def e(s): out.append("    " + s)
def lab(s): out.append(s + ":")
def vr(b, n): return f"v[{b}:{b+n-1}]"
def sr(b, n): return f"s[{b}:{b+n-1}]"
def stamp(i):
    if opt.stamps: e(f"{'s_memrealtime' if opt.stamps >= 3 else 's_memtime'} {sr(S_STAMP + 2*i, 2)}")

R_MAIN, R_INIT, R_IDLE, R_L4, R_L1 = 0, 1, 2, 3, 4
def seqL(s): return CU[s+1]-CU[s]
def seqnk(s): return (seqL(s)+31)//32
programs = []
def prog_id(desc):
    if desc not in programs: programs.append(desc)
    return 3 + programs.index(desc)
tails_used = set()
def entry(role, seq, tile=None, b0=0, n=None, slot0=0, f0=0, qst=0, ost=0, lo=0, hi=0, mb=0, ml=0, mi=None, mo=None,
          init=None, prio=0, ownq=True, qsrc=None, lvl1=0, swait=0, thr=None):
    L = seqL(seq); nk = seqnk(seq)
    n = nk - b0 if n is None else n
    nv = L - 32*(b0+n-1)
    second = 1 if (init is not None and tile is not None and qsrc is None and ownq) else 0
    if mi is not None or mo is not None: tail = 2
    elif nv <= 8: tail = 0
    else: tail = 1
    if tile is not None: tails_used.add((tail, (n-1) & 1))
    ring = 1 if nk > 10 else 0
    leave = 1 if n == 2 else 0
    pk = role | leave << 20 | second << 6 | ring << 7 | lo << 8 | hi << 11 | tail << 14 | (1 if prio else 0) << 16 | lvl1 << 17 | swait << 18 | (0 if qsrc is None else 1) << 19
    return [CU[seq]*4096, (L-1)*4096+256, (1 if lvl1 else FBASE) if thr is None else thr, 400000, pk, (tile or 0)*0x20000, qst,
            kslot(slot0+b0), vslot(slot0+b0), ent(f0+b0), n, min(nv, 64), ost, mb | (qsrc or 0) << 24,
            0 if mi is None else ent(MRG0+mi), 0 if mo is None else ent(MRG0+mo)]
MLOFF = vslot(1)
QH = [KBASE - (4-k)*KSLOT for k in range(4)]
table = []
touches = []
def T4(seq, t0, nt, touch=None):
    rows = []
    for w in range(4):
        if w < nt:
            if seqnk(seq) > 10:
                rows.append(entry(R_MAIN, seq, tile=t0+w, qst=(QH[w] if opt.q4v else kslot(5+w)), ost=(vslot(9) if w < 2 else kslot(8))+4096*(w & 1), lo=w, hi=w))
            else:
                rows.append(entry(R_MAIN, seq, tile=t0+w, qst=kslot(5+w), ost=vslot(0)+4096*w, lo=0, hi=3))
        else:
            if touch and opt.tw:
                touches.append(touch[1]); r_ = entry(R_IDLE, touch[0]); r_[10] = len(touches); rows.append(r_)
            else:
                r_ = entry(R_IDLE, seq); r_[10] = 0; rows.append(r_)
    pid = prog_id(("L4", seqnk(seq), False, None, opt.D4 if seqnk(seq) > 11 else opt.D3))
    for w in range(4):
        rows.append(entry(pid, seq, init=w))
    return rows
def T5(seq, t0):
    rows = [entry(R_MAIN, seq, tile=t0+w, qst=kslot(5+w), ost=vslot(0)+4096*w, lo=0, hi=4) for w in range(4)]
    cnt = [int(c) for c in opt.t5]; nh = len(cnt)
    assert sum(cnt) == seqnk(seq) and cnt[0] >= 3
    pid = prog_id(("L1", seqnk(seq), nh == 4, 4, opt.D5))
    for h in range(nh):
        rows.append(entry(R_INIT if h < 3 else pid, seq, tile=t0+4, b0=sum(cnt[:h]), n=cnt[h], qst=QH[3], ost=kslot(2),
                          lo=0, hi=(3 if h < nh-1 else 4), mb=kslot(0), mi=(h-1 if h else None), mo=(h if h < nh-1 else None), init=h,
                          prio=opt.hprio, qsrc=(4 if h else None), lvl1=(1 if h < nh-1 else 0), swait=(1 if h == 0 else 0)))
    if nh == 3: rows.append(entry(pid, seq, init=3))
    return rows
def T8(seq):
    pid = prog_id(("MD", seqnk(seq))) if opt.md else prog_id(("L4", seqnk(seq), True, None, opt.D8))
    if opt.md:
        rows = [entry(R_MAIN, seq, tile=w, qst=kslot(5+w), ost=(kslot(8)+4096*w if w < 3 else vslot(0)), lo=(w if w < 3 else 0), hi=(w if w < 3 else 7)) for w in range(4)]
    else:
        rows = [entry(R_MAIN, seq, tile=w, qst=kslot(5+w), ost=vslot(8)+4096*w, lo=w, hi=w) for w in range(4)]
    for h in range(4):
        r_ = entry(pid, seq, tile=4+h, qst=QH[h], ost=(vslot(8)+4096*h if opt.md else (kslot(8)+4096*h if h < 3 else vslot(0))),
                   lo=(4+h if h < 3 or opt.md else 0), hi=4+h, init=h,
                   ownq=bool(opt.md and not opt.mdq), prio=opt.md)
        if opt.md: r_[4] |= 1 << 20
        rows.append(r_)
    return rows
def T6(seq):
    nk = seqnk(seq)
    pid = prog_id(("L1", nk, True, 5, opt.D6))
    rows = [entry(R_MAIN, seq, tile=w, qst=kslot(5+w), ost=vslot(0)+4096*w, lo=0, hi=5) for w in range(4)]
    na, nb = (5, opt.t6b) if nk == 9 else (opt.t6a10, opt.t6b10)
    spec = [(4, 0, na, None, 0, 0), (5, 0, nb, None, 1, 1), (4, na, nk-na, 0, None, 0), (5, nb, nk-nb, 1, None, 1)]
    for h, (tile, b0, n, mi, mo, buf) in enumerate(spec):
        rows.append(entry(R_INIT if h < 3 else pid, seq, tile=tile, b0=b0, n=n, qst=QH[2+buf], ost=vslot(9 if nk == 9 else 2)+4096*buf,
                          lo=0, hi=5, mb=kslot(2*buf), mi=mi, mo=mo, init=h, prio=opt.hprio, qsrc=(h+2 if h >= 2 else None),
                          lvl1=(1 if buf == 0 else 0), swait=(1 if h < 2 else 0), thr=(FBASE+2*G if (h >= 2 and nk > 9) else None)))
    return rows
def T34(seqA, seqB, tB0):
    qa = [vslot(1) + k*KSLOT for k in range(4)]
    rows = [entry(R_MAIN, seqA, tile=w, slot0=6, f0=16, qst=kslot(2+w), ost=vslot(0)+4096*w, lo=4, hi=6) for w in range(4)]
    pid = prog_id(("L2", seqA, seqB))
    for h in range(3):
        rows.append(entry(R_INIT, seqB, tile=tB0+h, qst=vslot(2)+h*KSLOT, ost=vslot(2)+4096*h, lo=4, hi=6, init=h, thr=FBASE+2*G))
    rows.append(entry(pid, seqB, init=3))
    return rows
def small(seq, t0, nt, two=0):
    return CU[seq] | seqL(seq) << 12 | t0 << 21 | nt << 25 | two << 28
TL8 = "K2 V0 K3 V1 Q4 Q5 Q6 Q7 K4 V2 K5 V3 K6 V4 K7 V5 V6 V7".split()
TL5 = "Q4 Q5 K3 V1 Q6 Q7 K4 V2 K5 V3 K6 V4 K7 V5 K8 V6 V7".split()
def own_touch(nk, par, mod=2):
    o = []
    for p_ in range(opt.tp0, nk):
        if p_ % mod == par:
            if p_+2 < nk: o.append(f"K{p_+2}")
            o.append(f"V{p_}")
    return o
jobs = {"s2a": (lambda: T4(2,0,4), small(2,0,4)), "s2b": (lambda: T4(2,4,4), small(2,4,4)), "s2c": (lambda: T4(2,8,3,(2,own_touch(14,0))), small(2,8,3)),
        "s2d": (lambda: T4(2,11,3,(2,own_touch(14,1))), small(2,11,3)), "T8": (lambda: T8(1), small(1,0,4) | (1 << 31 if opt.md and opt.mdq else 0)),
        "s6a": (lambda: T5(6,0), small(6,0,4)), "s6b": (lambda: T5(6,5), small(6,5,4)), "s7a": (lambda: T5(7,0), small(7,0,4)),
        "s7b": (lambda: T5(7,5), small(7,5,4)), "s0a": (lambda: T5(0,0), small(0,0,4)), "s0b": (lambda: T5(0,5), small(0,5,4)),
        "T6": (lambda: T6(5), small(5,0,4)), "T34": (lambda: T34(4,5,6), small(4,0,4,1)),
        "s3a": (lambda: T4(3,0,4), small(3,0,4)), "s3b": (lambda: T4(3,4,4), small(3,4,4)), "s3c": (lambda: T4(3,8,3,(3,own_touch(11,1)) if opt.t3 else None), small(3,8,3))}
for i_, sq in enumerate((6, 7, 0)):
    if opt.p64[i_] == "1":
        jobs[f"s{sq}a"] = ((lambda sq=sq: T6(sq)), small(sq,0,4))
        jobs[f"s{sq}b"] = ((lambda sq=sq: T4(sq,6,4)), small(sq,6,4) | opt.c4 << 29)
JOBORDER = ["s2a", "s2b", "s2c", "s2d", "T8", "s6a", "s6b",  "s0a", "s0b", "T6", "T34", "s3a", "s3b", "s3c",  "s7a", "s7b"]
if opt.order == 1: JOBORDER = ["T8", "s2a", "s2b", "s6a", "s6b", "s2c", "s2d",  "T6", "T34", "s0a", "s0b", "s3a", "s3b", "s3c",  "s7a", "s7b"]
if opt.order == 2: JOBORDER = ["T8", "s2a", "s2b", "s2c", "s2d", "s6a", "s6b",  "T6", "s0a", "s0b", "T34", "s3a", "s3b", "s3c",  "s7a", "s7b"]
stab = []
for j in JOBORDER:
    k_ = {"s2": 0, "T8": 1, "s6": 2, "s7": 2, "s0": 2, "T6": 3, "T3": 4, "s3": 5}[j[:2]]
    table += jobs[j][0](); stab.append(jobs[j][1] | int(opt.cls[k_]) << 29)
assert len(table) == 128

def mfma(d, a, b, c):
    cs = "0" if c is None else vr(c, 16)
    return f"v_mfma_f32_32x32x16_bf16 {vr(d,16)}, {vr(a,4)}, {vr(b,4)}, {cs}"
def kread(ks, off):
    return f"ds_read_b128 {vr(V_K+4*ks,4)}, v{V_KA+(ks>>1)} offset:{off+(ks&1)*32}"
def vread(i, jj, off, base=V_V):
    kg, dt = i >> 2, i & 3
    return f"ds_read_b64_tr_b16 {vr(base+4*i+2*jj,2)}, v{V_VA+dt} offset:{off+jj*2048+kg*4096}"
def E(r): return V_E + (r & 7)

def softmax_list(par, R=16, mask=False):
    S, P = V_S[par], V_P[par]
    def ex(r):
        o = []
        if mask:
            if r == 0: o.append(f"v_cndmask_b32 v{S}, v{V_T1}, v{S}, {sr(S_MASK,2)}")
            if r+1 < R: o.append(f"v_cndmask_b32 v{S+r+1}, v{V_T1}, v{S+r+1}, {sr(S_MASK+2*r+2,2)}")
        o.append(f"v_exp_f32 v{E(r)}, v{S+r}")
        return o
    ops = ex(0) + ex(1)
    for r in range(2, R+1):
        if r < R: ops += ex(r)
        q = r - 1
        if q == 1: ops.append(f"v_add_f32 v{V_PS}, v{E(0)}, v{E(1)}")
        else: ops.append(f"v_add_f32 v{V_PS}, v{V_PS}, v{E(q)}")
        if q & 1: ops.append(f"v_cvt_pk_bf16_f32 v{P+(q>>1)}, v{E(q-1)}, v{E(q)}")
    return ops

def cost(x):
    if x.startswith("v_exp") or x.startswith("v_rcp") or x.startswith("v_permlane"): return 8
    if x.startswith("s_cbranch"): return 12
    return 4

rare_sites = []
def itstamp():
    if opt.stamps == 2:
        e(f"v_writelane_b32 v{V_LANE}, s100, m0")
        e("s_add_u32 m0, m0, 1")
        e("s_memtime s[100:101]")

def iteration(par, do_pv, koff, voff, foff, tag, first=False, misc=None, last_ops=None, extra=None, prog=None):
    itstamp()
    mf = []
    for i in range(8):
        mf.append(("qk", i))
        if do_pv: mf.append(("pv", i))
    n = len(mf)
    fixed = [[] for _ in range(n)]
    for g, (kind, i) in enumerate(mf):
        if kind == "qk":
            fixed[g].append(kread(i, koff))
            if not do_pv: fixed[g] += [vread(i, 0, voff), vread(i, 1, voff)]
        else:
            fixed[g] += [vread(i, 0, voff), vread(i, 1, voff)]
    fgap = 4 if n == 16 else 3
    fixed[fgap].append(f"ds_read_b32 v{V_FL}, v{V_FA} offset:{foff}")
    if prog: fixed[8 if n == 16 else 4].append(prog)
    q = []
    if not first: q.append(f"v_add_f32 v{V_L}, v{V_L}, v{V_PS}")
    q += softmax_list(par)
    if n != 16: q.append("WAITFLAG")
    q.append(f"v_cmp_lt_f32 vcc, v{V_FL}, v{V_PS}")
    if first: q.append(f"v_cmp_gt_f32 {sr(S_DK,2)}, s{S_LO}, v{V_PS}")
    misc = [(g_, x) for g_, ops in (misc or []) for x in ops]
    budget = opt.budget if n == 16 else (sum(cost(x) for x in q) + sum(4*len(f) for f in fixed) + n - 1)//n + 4
    nl = 0
    for g, (kind, i) in enumerate(mf):
        if n == 16:
            if g == 0: e("s_waitcnt lgkmcnt(12)")
            if g == 8: e("s_waitcnt lgkmcnt(5)")
        else:
            if g == 0: e("s_waitcnt lgkmcnt(4)")
            if g == 2: e("s_waitcnt lgkmcnt(6)")
        if kind == "qk":
            e(mfma(V_S[1-par], V_K+4*i, V_Q+4*i, V_NEGM if i == 0 else V_S[1-par]))
        else:
            kg, dt = i >> 2, i & 3
            e(mfma(V_O+16*dt, V_V+4*i, V_P[1-par]+4*kg, V_O+16*dt))
        used = 0
        for x in fixed[g]:
            e(x); used += 4
        if g > fgap: nl += len(fixed[g])
        for x in (extra or {}).get(g, []):
            e(x)
            assert not x.startswith("ds_")
        nw = 4 if (n == 16 and g+1 in (8, 16)) else 0
        lastgap = g == n-1
        while q and (used + cost(q[0]) + nw <= budget or lastgap):
            x = q.pop(0)
            if x == "WAITFLAG": x = f"s_waitcnt lgkmcnt({min(nl, 15)})"
            e(x); used += cost(x)
        while misc and misc[0][0] <= g and (used + cost(misc[0][1]) + nw <= budget or lastgap):
            x = misc.pop(0)[1]
            assert not x.startswith("ds_")
            e(x); used += cost(x)
    assert not q and not misc
    if first: e(f"s_or_b64 vcc, vcc, {sr(S_DK,2)}")
    e(f"s_cbranch_vccnz L_rare_{tag}")
    lab(f"L_back_{tag}")
    for x in (last_ops or []): e(x)
    rare_sites.append((tag, par, foff - (2*G if tag.startswith("B") else 0), first, 16))

def blockmax(S, t0, t1, R=16):
    if R == 16:
        e(f"v_max3_f32 v{t0}, v{S}, v{S+1}, v{S+2}")
        e(f"v_max3_f32 v{t1}, v{S+3}, v{S+4}, v{S+5}")
        e(f"v_max3_f32 v{t0}, v{t0}, v{S+6}, v{S+7}")
        e(f"v_max3_f32 v{t1}, v{t1}, v{S+8}, v{S+9}")
        e(f"v_max3_f32 v{t0}, v{t0}, v{S+10}, v{S+11}")
        e(f"v_max3_f32 v{t1}, v{t1}, v{S+12}, v{S+13}")
        e(f"v_max3_f32 v{t0}, v{t0}, v{S+14}, v{S+15}")
        e(f"v_max_f32 v{t0}, v{t0}, v{t1}")
    else:
        e(f"v_max3_f32 v{t0}, v{S}, v{S+1}, v{S+2}")
        e(f"v_max_f32 v{t0}, v{t0}, v{S+3}")
    e(f"v_mov_b32 v{t1}, v{t0}")
    e("s_nop 1")
    e(f"v_permlane32_swap_b32 v{t0}, v{t1}")
    e("s_nop 1")
    e(f"v_max_f32 v{t0}, v{t0}, v{t1}")

def bound():
    e(f"s_cselect_b32 s{T_SOFF}, 1, 0")
    e(f"s_sub_u32 s{T_P1L}, s{T_P1L}, 1")
    e("s_cbranch_scc1 L_end")
    e(f"s_cmp_lg_u32 s{T_SOFF}, 0")

def spin(label, foff, sleep=0):
    lab(label)
    bound()
    if sleep: e(f"s_sleep {sleep}")
    e(f"ds_read_b32 v{V_FL}, v{V_FA} offset:{foff}")
    e("s_waitcnt lgkmcnt(0)")
    e(f"v_cmp_gt_f32 vcc, 0, v{V_FL}")
    e(f"s_cbranch_vccnz {label}")

def rare(tag, par, foff, first, R, pprev=False):
    S, Sn = V_S[par], V_S[1-par]
    lab(f"L_rare_{tag}")
    if foff is not None:
        e(f"v_cmp_lt_f32 vcc, s{S_THR}, v{V_PS}")
        if first:
            e("s_nop 1")
            e(f"s_or_b64 vcc, vcc, {sr(S_DK,2)}")
        e(f"s_cbranch_vccz L_spin_{tag}")
    e("s_nop 15")
    e("s_nop 7")
    blockmax(S, V_E, V_E+1, R)
    if first:
        e(f"v_mov_b32 v{V_T0}, v{V_E}")
    else:
        e(f"v_max_f32 v{V_T0}, 0, v{V_E}")
        e(f"v_sub_f32 v{V_E+1}, 0, v{V_T0}")
        e(f"v_exp_f32 v{V_E+1}, v{V_E+1}")
    for r in range(16):
        e(f"v_sub_f32 v{S+r}, v{S+r}, v{V_T0}")
        if foff is not None: e(f"v_sub_f32 v{Sn+r}, v{Sn+r}, v{V_T0}")
        e(f"v_sub_f32 v{V_NEGM+r}, v{V_NEGM+r}, v{V_T0}")
    if not first:
        for r in range(64):
            e(f"v_mul_f32 v{V_O+r}, v{V_O+r}, v{V_E+1}")
        e(f"v_mul_f32 v{V_L}, v{V_L}, v{V_E+1}")
    for x in softmax_list(par, R): e(x)
    e("s_nop 1")
    if foff is not None: spin(f"L_spin_{tag}", foff)
    e(f"s_branch L_back_{tag}")

def finish():
    if opt.stamps == 4: stamp(2)
    e("s_branch L_stamps" if opt.stamps else "s_endpgm")

stage_spins = []
V_WB = V_NEGM + 8
def norm_ops(dt, pk=False):
    o = V_O+16*dt; ops = []
    for rq in range(4):
        ops += [f"v_mul_f32 v{o+4*rq+r}, v{o+4*rq+r}, v{V_L}" for r in range(4)]
        t = V_E + 2*rq
        ops.append(f"v_cvt_pk_bf16_f32 v{t}, v{o+4*rq}, v{o+4*rq+1}")
        ops.append(f"v_cvt_pk_bf16_f32 v{t+1}, v{o+4*rq+2}, v{o+4*rq+3}")
        ops.append(f"ds_write_b64 v{(V_WB if dt & 1 else V_WA)+rq}, {vr(t,2)}")
    return ops
def rd_ops(p):
    return [f"ds_read_b128 {vr(V_Q+16*p+4*i,4)}, v{V_RA} offset:{i*1024}" for i in range(4)]
ST_SOFF = [T_QOFF, S_T1, S_T0, S_DK]
def st_op(p, i):
    fl = opt.stflag.replace('+', ' ')
    return f"buffer_store_dwordx4 {vr(V_Q+16*p+4*i,4)}, v{V_SA}, {sr(S_O,4)}, s{ST_SOFF[i]} offen offset:{128*p} {fl}".rstrip()
def store_prep():
    return [f"s_add_u32 s{ST_SOFF[i]}, s{T_QOFF}, {i*0x8000:#x}" for i in (1, 2, 3)] + \
           [f"v_xor_b32 v{V_WB+rq}, 64, v{V_WA+rq}" for rq in range(4)]
def store_stream(pk):
    s = norm_ops(0) + norm_ops(1) + rd_ops(0)
    n2, n3 = norm_ops(2), norm_ops(3)
    s += n2[:14] + ["s_waitcnt lgkmcnt(2)", st_op(0, 0)] + n2[14:21] + [st_op(0, 1)] + n2[21:] + [st_op(0, 2)] + n3[:7] + [st_op(0, 3)] + n3[7:]
    s += rd_ops(1)
    for i in range(4):
        s += [f"s_waitcnt lgkmcnt({3-i})", st_op(1, i)]
    return s

def tail(kind, par):
    tag = f"T{kind}{par}"
    lab(f"L_tail_{kind}_{par}")
    if opt.stamps == 4: stamp(1)
    itstamp()
    if kind == 0 and opt.ftail:
        return tail_short(par, tag)
    voff = VSLOT if par else 2*VSLOT
    R = 4 if kind == 0 else 16
    nkg = 1 if kind == 0 else 2
    a = lambda i: mfma(V_O+16*(i & 3), V_V+4*i, V_P[1-par]+4*(i >> 2), V_O+16*(i & 3))
    f = lambda i: mfma(V_O+16*(i & 3), V_K+4*i, V_P[par]+4*(i >> 2), V_O+16*(i & 3))
    reads = [vread(i, jj, voff, V_K) for i in range(4*nkg) for jj in range(2)]
    q = [f"v_add_f32 v{V_L}, v{V_L}, v{V_PS}"] + softmax_list(par, R, mask=True)
    if kind == 0: q += [f"v_mov_b64 {vr(V_P[par]+2,2)}, 0"]
    q += [f"v_cmp_lt_f32 vcc, s{S_THR}, v{V_PS}"]
    per = (sum(cost(x) for x in q) + 4*len(reads) + 7)//8 + 4
    per = max(per, 24)
    e("s_waitcnt lgkmcnt(12)")
    nrd = 0
    for g in range(8):
        if g == 4:
            e(f"s_waitcnt lgkmcnt({nrd})")
        e(a(g)); used = 0
        if g == 4:
            e(f"ds_write_b32 v{V_PA}, v{V_FA}")
            e(f"ds_read_b32 v{V_FL}, v{V_CK}")
            used += 8
        for _ in range(2):
            if reads:
                e(reads.pop(0)); used += 4; nrd += 1
        while q and (used + cost(q[0]) <= per or g == 7):
            x = q.pop(0); e(x); used += cost(x)
    e(f"s_cbranch_vccnz L_rare_{tag}")
    lab(f"L_back_{tag}")
    rare_sites.append((tag, par, None, False, R))
    e(f"v_add_f32 v{V_L}, v{V_L}, v{V_PS}")
    e("s_waitcnt lgkmcnt(0)")
    e(f"v_cmp_gt_i32 vcc, s{S_T2}, v{V_FL}")
    fin = [i + 4*k for i in range(4) for k in range(nkg)]
    if kind == 2:
        for i in fin: e(f(i))
        e(f"s_cbranch_vccnz L_stg_{tag}")
        lab(f"L_stgback_{tag}")
        stage_spins.append(tag)
        e("s_branch L_merge")
        return
    e(f"v_mov_b32 v{V_T0}, v{V_L}")
    for _ in range(nkg): e(f(fin.pop(0)))
    e("s_nop 0")
    e(f"v_permlane32_swap_b32 v{V_L}, v{V_T0}")
    e(f"s_cbranch_vccnz L_stg_{tag}")
    lab(f"L_stgback_{tag}")
    stage_spins.append(tag)
    e(f(fin.pop(0)))
    e(f"v_add_f32 v{V_L}, v{V_L}, v{V_T0}")
    e(f"v_rcp_f32 v{V_L}, v{V_L}")
    e(f(fin.pop(0)))
    for x in store_prep(): e(x)
    cnt = 6
    for x in store_stream(False):
        if x.startswith("NEED"): continue
        if fin and cnt >= 6:
            e(f(fin.pop(0))); cnt = 0
        e(x); cnt += 1
    itstamp()
    finish()

short_rares = []
def tail_short(par, tag):
    voff = VSLOT if par else 2*VSLOT
    a = lambda i: mfma(V_O+16*(i & 3), V_V+4*i, V_P[1-par]+4*(i >> 2), V_O+16*(i & 3))
    f = lambda i: mfma(V_O+16*i, V_K+4*i, V_P[par], V_O+16*i)
    rd = [vread(i, jj, voff, V_K) for i in range(4) for jj in range(2)]
    sm = softmax_list(par, 4, mask=True)
    e("s_waitcnt lgkmcnt(12)")
    e(a(0))
    for x in rd[:4]: e(x)
    e(f"v_add_f32 v{V_L}, v{V_L}, v{V_PS}")
    for x in sm[:5]: e(x)
    e("s_waitcnt lgkmcnt(4)")
    e(a(4))
    e(f"ds_write_b32 v{V_PA}, v{V_FA}")
    e(f"ds_read_b32 v{V_FL}, v{V_CK}")
    for x in rd[4:]: e(x)
    for x in sm[5:9]: e(x)
    e(a(1))
    for x in sm[9:]: e(x)
    e(f"v_mov_b64 {vr(V_P[par]+2,2)}, 0")
    e(f"v_cmp_lt_f32 vcc, s{S_THR}, v{V_PS}")
    e(a(5))
    e(f"v_add_f32 v{V_T0}, v{V_L}, v{V_PS}")
    e(f"v_add_f32 v{V_X}, v{V_L}, v{V_PS}")
    e(f"s_cbranch_vccnz L_rare_{tag}")
    short_rares.append((tag, par))
    e("s_waitcnt lgkmcnt(4)")
    e(f(0))
    e(f"v_permlane32_swap_b32 v{V_T0}, v{V_X}")
    e(f"v_cmp_gt_i32 vcc, s{S_T2}, v{V_FL}")
    e(f(1))
    e(f"v_add_f32 v{V_L}, v{V_T0}, v{V_X}")
    e(f"v_rcp_f32 v{V_L}, v{V_L}")
    e(f"s_cbranch_vccnz L_stg_{tag}")
    lab(f"L_stgback_{tag}")
    stage_spins.append(tag)
    e(a(2))
    for x in store_prep(): e(x)
    e("s_waitcnt lgkmcnt(0)")
    rest = [a(6), f(2), a(3), a(7), f(3)]
    cnt = 5
    for x in store_stream(False):
        if x.startswith("NEED"): continue
        if rest and cnt >= 5:
            e(rest.pop(0)); cnt = 0
        e(x); cnt += 1
    itstamp()
    finish()
def short_rare(tag, par):
    a = lambda i: mfma(V_O+16*(i & 3), V_V+4*i, V_P[1-par]+4*(i >> 2), V_O+16*(i & 3))
    f = lambda i: mfma(V_O+16*i, V_K+4*i, V_P[par], V_O+16*i)
    lab(f"L_rare_{tag}")
    for i in (2, 6, 3, 7): e(a(i))
    rare(tag + "x", par, None, False, 4)
    lab(f"L_back_{tag}x")
    e("s_waitcnt lgkmcnt(0)")
    for i in range(4): e(f(i))
    e(f"v_add_f32 v{V_L}, v{V_L}, v{V_PS}")
    e(f"v_mov_b32 v{V_T0}, v{V_L}")
    lab(f"L_stg_{tag}x")
    bound()
    e(f"ds_read_b32 v{V_FL}, v{V_CK}")
    e("s_waitcnt lgkmcnt(0)")
    e(f"v_cmp_gt_i32 vcc, s{S_T2}, v{V_FL}")
    e(f"s_cbranch_vccnz L_stg_{tag}x")
    e(f"v_permlane32_swap_b32 v{V_L}, v{V_T0}")
    e("s_nop 1")
    e(f"v_add_f32 v{V_L}, v{V_L}, v{V_T0}")
    e("s_branch L_store")

def merge_code():
    lab("L_merge")
    MA, ML = V_KA, V_KA+1
    if opt.mprio:
        e(f"s_cmp_eq_u32 s{T_MOUT}, 0")
        e("s_cbranch_scc1 L_merge_keep")
        e("s_setprio 0")
        lab("L_merge_keep")
    e(f"v_mov_b32 v{V_T1}, v{V_L}")
    e(f"v_mbcnt_lo_u32_b32 v{V_T0}, -1, 0")
    e(f"v_mbcnt_hi_u32_b32 v{V_T0}, -1, v{V_T0}")
    e(f"s_and_b32 s{T_MB}, s{T_MB}, 0xffffff")
    e(f"v_permlane32_swap_b32 v{V_L}, v{V_T1}")
    e(f"v_lshl_add_u32 v{MA}, v{V_T0}, 4, s{T_MB}")
    e(f"s_cmp_eq_u32 s{T_MB}, {KBASE}")
    e(f"s_cselect_b32 s{S_T0}, {ent(48)}, {ent(16)}") if False else None
    e(f"s_cselect_b32 s{S_T0}, {32*G}, 0")
    e(f"v_add_f32 v{V_L}, v{V_L}, v{V_T1}")
    e(f"s_add_u32 s{S_T0}, s{S_T0}, {ent(16)}")
    e(f"v_bfe_u32 v{ML}, v{V_T0}, 1, 4")
    e(f"v_mul_u32_u24 v{ML}, {G}, v{ML}")
    e(f"v_and_b32 v{V_T0}, 1, v{V_T0}")
    e(f"v_lshl_add_u32 v{ML}, v{V_T0}, 3, v{ML}")
    e(f"v_add_u32 v{ML}, s{S_T0}, v{ML}")
    e(f"s_cmp_eq_u32 s{T_MIN}, 0")
    e("s_cbranch_scc1 L_merge_out")
    e(f"v_mov_b32 v{V_FA}, s{T_MIN}")
    spin("L_merge_wait", 0, sleep=1)
    e(f"ds_read_b64 {vr(V_E,2)}, v{ML}")
    for i in range(12):
        e(f"ds_read_b128 {vr(V_K+4*i,4)}, v{MA} offset:{i*G}")
    e("s_waitcnt lgkmcnt(12)")
    e(f"v_cmp_neq_f32 vcc, v{V_NEGM}, v{V_E}")
    for i in range(12, 16):
        e(f"ds_read_b128 {vr(V_K+4*i,4)}, v{MA} offset:{i*G}")
    e("s_cbranch_vccnz L_merge_slow")
    lab("L_merge_add")
    e(f"v_add_f32 v{V_L}, v{V_L}, v{V_E+1}")
    e(f"s_cmp_lg_u32 s{T_MOUT}, 0")
    for i in range(4):
        e(f"s_waitcnt lgkmcnt({12-4*i})")
        for r in range(16*i, 16*i+16):
            e(f"v_add_f32 v{V_O+r}, v{V_O+r}, v{V_K+r}")
    e("s_cbranch_scc1 L_merge_out")
    lab("L_store")
    e(f"v_rcp_f32 v{V_L}, v{V_L}")
    for x in store_prep(): e(x)
    for x in store_stream(False):
        if not x.startswith("NEED"): e(x)
    itstamp()
    finish()
    lab("L_merge_slow")
    e(f"v_min_f32 v{V_E+2}, v{V_NEGM}, v{V_E}")
    e(f"v_sub_f32 v{V_E+4}, v{V_E+2}, v{V_NEGM}")
    e(f"v_sub_f32 v{V_E+6}, v{V_E+2}, v{V_E}")
    e(f"v_exp_f32 v{V_E+4}, v{V_E+4}")
    e(f"v_exp_f32 v{V_E+6}, v{V_E+6}")
    e(f"v_mov_b32 v{V_NEGM}, v{V_E+2}")
    e(f"v_mul_f32 v{V_L}, v{V_L}, v{V_E+4}")
    e(f"v_mul_f32 v{V_E+1}, v{V_E+1}, v{V_E+6}")
    e("s_waitcnt lgkmcnt(0)")
    for r in range(64):
        e(f"v_mul_f32 v{V_O+r}, v{V_O+r}, v{V_E+4}")
        e(f"v_mul_f32 v{V_K+r}, v{V_K+r}, v{V_E+6}")
    e("s_branch L_merge_add")
    lab("L_merge_out")
    e(f"v_mov_b32 v{V_E}, v{V_NEGM}")
    e(f"v_mov_b32 v{V_E+1}, v{V_L}")
    e(f"v_mov_b32 v{V_FA}, s{T_MOUT}")
    e(f"v_mov_b32 v{V_T0}, 1.0")
    e(f"ds_write_b64 v{ML}, {vr(V_E,2)}")
    for i in range(16):
        e(f"ds_write_b128 v{MA}, {vr(V_O+4*i,4)} offset:{i*G}")
    e(f"ds_write_b32 v{V_FA}, v{V_T0}")
    e("s_waitcnt lgkmcnt(0)")
    itstamp()
    finish()

def setup_compute():
    e(f"s_mov_b32 s{S_O+2}, s{T_NREC}")
    e(f"s_mov_b32 s{S_O+3}, 0x20000")
    e(f"s_add_u32 s{S_O}, s12, s{S_BASE}")
    e(f"s_addc_u32 s{S_O+1}, s13, 0")
    e(f"v_and_b32 v{V_T0}, 3, v{V_LANE}")
    e(f"v_lshl_add_u32 v{V_FA}, v{V_T0}, 2, s{T_FB}")
    e(f"v_bfe_u32 v{V_T1}, v{V_LANE}, 2, 3")
    e(f"v_mul_u32_u24 v{V_T1}, {G}, v{V_T1}")
    e(f"v_lshl_add_u32 v{V_T1}, v{V_T0}, 8, v{V_T1}")
    e(f"v_lshrrev_b32 v{V_L}, 5, v{V_LANE}")
    e(f"v_lshl_add_u32 v{V_T1}, v{V_L}, 4, v{V_T1}")
    for t in range(4):
        e(f"v_xor_b32 v{V_KA+t}, {t}, v{V_T0}")
        e(f"v_lshl_add_u32 v{V_KA+t}, v{V_KA+t}, 6, v{V_T1}")
        e(f"v_add_u32 v{V_E+t}, s{T_QST}, v{V_KA+t}")
        e(f"v_add_u32 v{V_KA+t}, s{T_KB}, v{V_KA+t}")
    e(f"v_lshrrev_b32 v{V_T1}, 3, v{V_LANE}")
    e(f"v_and_b32 v{V_T0}, 7, v{V_LANE}")
    e(f"v_lshlrev_b32 v{V_PS}, 4, v{V_T0}")
    e(f"v_lshl_add_u32 v{V_SA}, v{V_T1}, 12, v{V_PS}")
    e(f"v_xor_b32 v{V_T1}, v{V_T1}, v{V_LANE}")
    e(f"v_lshl_add_u32 v{V_RA}, v{V_T1}, 4, s{T_OST}")
    e(f"v_and_b32 v{V_T1}, 31, v{V_LANE}")
    e(f"v_lshl_add_u32 v{V_T1}, v{V_T1}, 7, s{T_OST}")
    e(f"v_lshl_add_u32 v{V_T1}, v{V_L}, 3, v{V_T1}")
    for rq in range(4):
        e(f"v_xor_b32 v{V_WA+rq}, {rq}, v{V_T0}")
        e(f"v_lshl_add_u32 v{V_WA+rq}, v{V_WA+rq}, 4, v{V_T1}")
    e(f"v_bfe_u32 v{V_T0}, v{V_LANE}, 2, 2")
    e(f"v_lshl_add_u32 v{V_T1}, v{V_L}, 2, v{V_T0}")
    e(f"v_lshl_add_u32 v{V_T1}, v{V_T1}, 8, s{T_VB}")
    e(f"v_bfe_u32 v{V_PS}, v{V_LANE}, 4, 1")
    e(f"v_lshl_add_u32 v{V_T1}, v{V_PS}, 5, v{V_T1}")
    e(f"v_and_b32 v{V_PS}, 3, v{V_LANE}")
    e(f"v_lshl_add_u32 v{V_T1}, v{V_PS}, 3, v{V_T1}")
    for dt in range(4):
        e(f"v_xor_b32 v{V_VA+dt}, {dt}, v{V_T0}")
        e(f"v_lshl_add_u32 v{V_VA+dt}, v{V_VA+dt}, 6, v{V_T1}")
    e(f"s_bfe_u32 s{S_T0}, s{T_PK}, {8 | 3 << 16:#x}")
    e(f"s_bfe_u32 s{S_T1}, s{T_PK}, {11 | 3 << 16:#x}")
    e(f"v_and_b32 v{V_CK}, 7, v{V_LANE}")
    e(f"v_max_u32 v{V_CK}, s{S_T0}, v{V_CK}")
    e(f"v_min_u32 v{V_CK}, s{S_T1}, v{V_CK}")
    e(f"v_mul_u32_u24 v{V_CK}, {G}, v{V_CK}")
    e(f"v_add_u32 v{V_CK}, {ent(PROG0)}, v{V_CK}")
    e(f"v_lshlrev_b32 v{V_T0}, 2, v{V_L}")
    e(f"v_sub_u32 v{V_T0}, s{T_NV}, v{V_T0}")
    for r in range(16):
        e(f"v_cmp_lt_i32 {sr(S_MASK+2*r,2)}, {(r & 3) + 8*(r >> 2)}, v{V_T0}")
    for r in range(0, 64, 2): e(f"v_mov_b64 {vr(V_O+r,2)}, 0")
    for r in range(0, 16, 2): e(f"v_mov_b64 {vr(V_NEGM+r,2)}, 0")
    e(f"v_mov_b32 v{V_L}, 0")
    e(f"v_mov_b32 v{V_T1}, 0xff800000")
    e(f"v_mov_b32 v{V_X}, 1")
    e(f"s_mov_b32 s{S_LO}, {f32bits(1.0/THR):#x}")
    e(f"s_mov_b32 s{S_THR}, {f32bits(THR):#x}")
    e(f"s_bitcmp1_b32 s{T_PK}, 7")
    e(f"s_cselect_b32 s{S_KWRAP}, 6, 0")
    e(f"s_cselect_b32 s{S_VWRAP}, 8, 0")
    e(f"s_mov_b32 s{S_2K}, {2*KSLOT}")
    e(f"s_mov_b32 s{S_2V}, {2*VSLOT}")
    e(f"s_mov_b32 s{S_J}, 2")
    e(f"s_sub_u32 s{S_NM1}, s{T_N}, 1")
    e(f"s_mov_b32 s{S_T2}, s{T_P1S}")

def prog_addr():
    e(f"s_mul_i32 s{S_T0}, s{S_U}, {G}")
    e(f"s_add_u32 s{S_T0}, s{S_T0}, {ent(PROG0)}")
    e(f"v_mov_b32 v{V_PA}, s{S_T0}")

def q_read():
    for ks in range(8):
        e(f"ds_read_b128 {vr(V_Q+4*ks,4)}, v{V_E+(ks>>1)} offset:{(ks&1)*32}")

CSCALE = math.log2(math.e) / math.sqrt(128.0)
def qscale(ks, pk=True):
    tb = V_S[1] + 8*(ks & 1)
    for k in range(4):
        r = V_Q+4*ks+k
        e(f"v_lshlrev_b32 v{tb+2*k}, 16, v{r}")
        e(f"v_and_b32 v{tb+2*k+1}, {f's{S_T0}' if pk else '0xffff0000'}, v{r}")
    for k in range(4):
        if pk:
            e(f"v_pk_mul_f32 {vr(tb+2*k,2)}, {vr(tb+2*k,2)}, {sr(S_DK,2)}")
        else:
            e(f"v_mul_f32 v{tb+2*k}, {f32bits(CSCALE):#x}, v{tb+2*k}")
            e(f"v_mul_f32 v{tb+2*k+1}, {f32bits(CSCALE):#x}, v{tb+2*k+1}")
    for k in range(4):
        e(f"v_cvt_pk_bf16_f32 v{V_Q+4*ks+k}, v{tb+2*k}, v{tb+2*k+1}")

def flag_init():
    e(f"v_mul_u32_u24 v{V_T0}, {G}, v{V_LANE}")
    e(f"v_add_u32 v{V_T0}, {FBASE}, v{V_T0}")
    for k in range(4): e(f"v_mov_b32 v{V_V+k}, -1.0")
    e(f"ds_write_b128 v{V_T0}, {vr(V_V,4)}")

def init_signal_regs(f0):
    e(f"s_and_b32 s{S_T0}, s{S_U}, 3")
    e(f"s_lshl_b32 s{S_T0}, s{S_T0}, 2")
    if f0 is None:
        e(f"s_cmp_lt_u32 s{S_U}, 4")
        e(f"s_cselect_b32 s{S_T1}, {16*G}, 0")
        e(f"s_add_u32 s{S_T0}, s{S_T0}, s{S_T1}")
    e(f"s_add_u32 s{S_T0}, s{S_T0}, {FBASE}")
    e(f"v_mov_b32 v{V_SIG}, s{S_T0}")
    e(f"v_mov_b32 v{V_THRV}, {f32bits(THR):#x}")

def kv_srds(sk, sv, base_s, nrec):
    for srd, p in ((sk, 6), (sv, 8)):
        e(f"s_add_u32 s{srd}, s{p}, s{base_s}")
        e(f"s_addc_u32 s{srd+1}, s{p+1}, 0")
        e(f"s_mov_b32 s{srd+2}, {nrec}")
        e(f"s_mov_b32 s{srd+3}, 0x20000")

class Loader:
    def __init__(self, name, quarter):
        self.pace = 0
        self.name = name; self.quarter = quarter; self.issued = []; self.npoll = 0; self.seen = {}
    def poll(self, lo, hi, thr, word=0):
        key = (lo, hi, word)
        if self.seen.get(key, -1) >= thr: return
        self.seen[key] = thr
        l_ = f"L_pw_{self.name}_{self.npoll}"; self.npoll += 1
        e(f"v_and_b32 v{V_POLL}, 7, v{V_LANE}")
        e(f"v_max_u32 v{V_POLL}, {lo}, v{V_POLL}")
        e(f"v_min_u32 v{V_POLL}, {hi}, v{V_POLL}")
        e(f"v_mul_u32_u24 v{V_POLL}, {G}, v{V_POLL}")
        e(f"v_add_u32 v{V_POLL}, {ent(PROG0)}, v{V_POLL}")
        e(f"s_mov_b32 s{S_T0}, {thr}")
        lab(l_)
        e(f"ds_read_b32 v{V_PV}, v{V_POLL} offset:{4*word}")
        e("s_waitcnt lgkmcnt(0)")
        e(f"v_cmp_gt_i32 vcc, s{S_T0}, v{V_PV}")
        e(f"s_cbranch_vccz {l_}_ok")
        e("s_sleep 1")
        bound()
        e(f"s_branch {l_}")
        lab(f"{l_}_ok")
    def block(self, tag, srd, b, lds, stride):
        if self.quarter:
            wreg = S_DK if stride == G else S_DV
            e(f"s_add_u32 m0, s{wreg}, {lds}")
            e(f"s_mov_b32 s{S_T1}, {b*0x20000:#x}")
            e(f"buffer_load_dwordx4 v{V_DMA}, {sr(srd,4)}, s{S_T1} offen lds")
            e(f"s_add_u32 m0, s{wreg}, {lds+4*stride}")
            e(f"s_sleep {self.pace}" if self.pace else "s_nop 0")
            e(f"buffer_load_dwordx4 v{V_DMA2}, {sr(srd,4)}, s{S_T1} offen lds")
            if self.pace: e(f"s_sleep {self.pace}")
            self.issued += [tag]*2
        else:
            for g in range(8):
                e(f"s_mov_b32 m0, {lds+g*stride}")
                e(f"s_mov_b32 s{S_T1}, {b*0x20000+g*0x4000:#x}")
                e(f"buffer_load_dwordx4 v{V_DMA}, {sr(srd,4)}, s{S_T1} offen lds")
            self.issued += [tag]*8
    def wait(self, tag):
        last = max(i for i, t in enumerate(self.issued) if t == tag)
        n = len(self.issued)-1-last
        assert n <= 63
        e(f"s_waitcnt vmcnt({n})")

def loader_single_stream(desc, pid):
    kind, nk = desc[0], desc[1]
    quarter = kind == "L4"
    late = desc[2]
    D = desc[4]
    ld = Loader(f"{kind}_{nk}_{pid}", quarter)
    lab(f"L_prog_{pid}")
    if opt.lprio: e(f"s_setprio {opt.lprio}")
    ld.issued += ["i1"]*4 + ["i2"]*4
    qsrc = desc[3] if late else None
    if not quarter: e(f"v_mov_b32 v{V_DMA}, v{V_DL}")
    ring = nk > 10
    ks = lambda b: b & 7 if ring else b
    vs = lambda b: (((b-1) & 7) + 1) if (ring and b > 8) else b
    hi = (7 if late else 3) if quarter else 6
    vq = (7 if desc[3] == 5 else {10: 8, 8: 5}.get(nk, 99)) if (late or not quarter) else 99
    def req(p):
        lv = []
        b = p+2
        def level(j):
            if j <= 0: return (0, 3, 1, 0, 0)
            if j & 1: return (0, 3, FBASE+(j-1)*G, j+opt.slack, 1)
            return (0, 3, FBASE+(j-2)*G, j+opt.slack, 0)
        if b < nk:
            if ks(b) != b: lv.append(level(b-9))
            elif b >= 5 and not (ring and opt.q4v): lv.append((0, 3, 0, QSIG, 0))
        if vs(p) != p: lv.append(level(p-7))
        elif p >= vq: lv.append((4, hi, 0, 2, 0))
        elif p >= 5 and ring and opt.q4v: lv.append((0, 3, 0, QSIG, 0))
        return lv
    nxt = [1]
    def pairs_upto(p, sig):
        while nxt[0] <= min(p, nk-1):
            r = req(nxt[0])
            if any(x[3] > sig for x in r): break
            for x in r: ld.poll(x[0], x[1], x[2], x[4])
            p_ = nxt[0]
            if p_+2 < nk: ld.block(p_, S_K, p_+2, kslot(ks(p_+2)), G)
            ld.block(p_, S_V, p_, vslot(vs(p_)), 1024)
            nxt[0] += 1
    chunks = []
    side = opt.side == 1 or (opt.side == 2 and quarter)
    if late:
        k0 = len(out); setup_compute(); prog_addr(); body = out[k0:]; del out[k0:]
        cut = next(i for i, x in enumerate(body) if "s_bfe_u32" in x)
        chunks = [body[:cut], body[cut:]]
        if side:
            cut = max(i for i, x in enumerate(body) if f"s{T_KB}," in x) + 1
            chunks = [body[:cut] + body[-3:] + [f"    v_mov_b32 v{V_X}, 0"], body[cut:-3]]
    pairs_upto(opt.npre4 if quarter else opt.npre1, -1)
    ld.wait("i2")
    e(f"ds_write_b32 v{V_SIG}, v{V_THRV} offset:{G}")
    stamp(3)
    if not quarter:
        e(f"v_and_b32 v{V_SIG}, 3, v{V_LANE}")
        e(f"v_lshlrev_b32 v{V_SIG}, 2, v{V_SIG}")
        e(f"v_add_u32 v{V_SIG}, {FBASE}, v{V_SIG}")
    if late and qsrc is None:
        e(f"s_mov_b32 s{S_T0}, s{T_QOFF}")
        e(f"s_mov_b32 m0, s{T_QST}")
        dma_pass(S_T0)
        ld.issued += ["q"]*8
    pairs_upto(D, 0)
    if late: out.extend(chunks[0])
    ld.pace = opt.pace
    for j in range(1, nk):
        assert nxt[0] > j
        ld.wait(j)
        e(f"ds_write_b32 v{V_SIG}, v{V_THRV} offset:{(j+1)*G}")
        if late and j == 2:
            if qsrc is None: ld.wait("q")
            else: ld.poll(qsrc, qsrc, 0)
            q_read()
            e("s_waitcnt lgkmcnt(0)")
            e(f"ds_write_b32 v{V_PA}, v{V_X if side else V_L}")
        pairs_upto(j+D, j)
        if late and j == 1 and not side: out.extend(chunks[1])
        if late and 2 <= j <= 5 and not side:
            qscale(2*j-4, False); qscale(2*j-3, False)
    if late and side:
        e("s_setprio 0")
        out.extend(chunks[1])
        e("s_branch L_scale_h")
    elif late:
        e("s_branch L_spin_h" if quarter else "s_branch L_helper_go")
    else:
        e("s_waitcnt lgkmcnt(0)")
        stamp(4)
        finish()

def loader_two_streams(desc, pid):
    _, sa, sb = desc
    nka, nkb = seqnk(sa), seqnk(sb)
    ld = Loader("L2", False)
    lab(f"L_prog_{pid}")
    if opt.lprio: e(f"s_setprio {opt.lprio}")
    ld.issued += ["i1"]*4 + ["i2"]*4
    e(f"v_mov_b32 v{V_DMA}, v{V_DL}")
    for k in range(8): e(f"s_mov_b32 s{S_K2+k}, s{S_K+k}") if k % 4 != 3 else e(f"s_mov_b32 s{S_K2+k}, 0x20000")
    kv_srds(S_K, S_V, S_BASE, f"s{T_NREC}")
    def pa(p):
        if p+2 < nka: ld.block(("a", p), S_K2, p+2, kslot(6+p+2), G)
        ld.block(("a", p), S_V2, p, vslot(6+p), 1024)
    def pb(p):
        if p+2 >= 6 and p+2 < nkb: ld.poll(0, 3, ent(16))
        if p == 8: ld.poll(0, 3, ent(16)+2*G)
        if p+2 < nkb: ld.block(("b", p), S_K, p+2, kslot(p+2), G)
        ld.block(("b", p), S_V, p, vslot(p), 1024)
    def sig(t, p):
        ld.wait((t, p))
        e(f"ds_write_b32 v{V_SIG}, v{V_THRV} offset:{(p + 1 + (16 if t == 'a' else 0))*G}")
    pa(1)
    ld.wait("i2")
    e(f"ds_write_b32 v{V_SIG}, v{V_THRV} offset:{G}")
    stamp(3)
    e(f"v_and_b32 v{V_SIG}, 3, v{V_LANE}")
    e(f"v_lshlrev_b32 v{V_SIG}, 2, v{V_SIG}")
    e(f"v_add_u32 v{V_SIG}, {FBASE}, v{V_SIG}")
    pa(2); pa(3)
    ld.block(("b", -1), S_K, 0, kslot(0), G)
    sig("a", 1)
    ld.block(("b", -1), S_K, 1, kslot(1), G)
    sig("a", 2)
    ld.poll(0, 6, 0)
    pb(0); sig("a", 3)
    pb(1); sig("b", -1)
    pb(2); sig("b", 0)
    pb(3); sig("b", 1)
    pb(4); sig("b", 2)
    pb(5); sig("b", 3)
    pb(6); sig("b", 4)
    pb(7); sig("b", 5)
    pb(8); sig("b", 6); sig("b", 7); sig("b", 8)
    e("s_waitcnt lgkmcnt(0)")
    stamp(4)
    finish()

def md_program(desc, pid):
    nk = desc[1]
    ld = Loader(f"MD_{pid}", True)
    lab(f"L_prog_{pid}")
    if not opt.mdsync: e("s_setprio 1")
    ld.issued += (["i1"]*4 + ["q"]*8 + ["i2"]*4) if opt.mdq else (["i1"]*4 + ["i2"]*4 + ["q"]*8)
    def pair(p):
        if p+2 < nk: ld.block(p, S_K, p+2, kslot(p+2), G)
        ld.block(p, S_V, p, vslot(p), 1024)
    def sig(p):
        ld.wait(p)
        e(f"ds_write_b32 v{V_SIG}, v{V_THRV} offset:{(p+1)*G}")
    pair(1)
    setup_compute(); prog_addr()
    if not opt.mdq:
        ld.wait("i2"); e(f"ds_write_b32 v{V_SIG}, v{V_THRV} offset:{G}")
    ld.wait("q")
    stamp(3)
    q_read()
    e("s_waitcnt lgkmcnt(0)")
    e(f"ds_write_b32 v{V_PA}, v{V_L}")
    pair(2)
    if opt.mdsync:
        e(f"s_mov_b32 s{T_KB}, s{S_DK}")
        e(f"s_mov_b32 s{T_VB}, s{S_DV}")
        e(f"s_mov_b32 s{S_DK}, {f32bits(CSCALE):#x}")
        e(f"s_mov_b32 s{S_DV}, {f32bits(CSCALE):#x}")
        e(f"s_mov_b32 s{S_T0}, 0xffff0000")
        for ks in range(7): qscale(ks)
        e(f"ds_write_b32 v{V_SIG}, v{V_THRV}")
        qscale(7)
        e(f"s_mov_b32 s{S_DK}, s{T_KB}")
        e(f"s_mov_b32 s{S_DV}, s{T_VB}")
        e("s_setprio 1")
        ld.wait("i2"); e(f"ds_write_b32 v{V_SIG}, v{V_THRV} offset:{G}")
    else:
        for ks in range(4): qscale(ks, False)
        if opt.mdq:
            ld.wait("i2"); e(f"ds_write_b32 v{V_SIG}, v{V_THRV} offset:{G}")
        for ks in range(4, 8): qscale(ks, False)
    if QSIG: sig(1)
    ld.poll(0, 7, 0)
    pair(3)
    if not QSIG: sig(1)
    e(f"v_mov_b32 v{V_T1}, v{V_DMA}")
    e(f"v_readfirstlane_b32 s{T_QST}, v{V_SIG}")
    e(f"s_mov_b32 s{T_KB}, s{S_DK}")
    e(f"s_mov_b32 s{T_VB}, s{S_DV}")
    e("s_branch L_spin_h")
    lab(f"L_md_loop")
    kv_srds(S_K, S_V, S_BASE, f"s{T_NREC}")
    e(f"v_mov_b32 v{V_X}, {f32bits(THR):#x}")
    for j in range(1, nk-1):
        ex = {}
        p = j+3
        if j+1 < nk:
            last = max(i for i, t in enumerate(ld.issued) if t == j+1)
            e(f"s_waitcnt vmcnt({len(ld.issued)-1-last})")
            e(f"v_mov_b32 v{V_T0}, s{T_QST}")
            e(f"ds_write_b32 v{V_T0}, v{V_X} offset:{(j+2)*G}")
        if p < nk:
            items = []
            if p+2 < nk: items += [(S_K, T_KB, kslot(p+2), (p+2)*0x20000), (S_K, T_KB, kslot(p+2)+4*G, (p+2)*0x20000+0x10000)]
            items += [(S_V, T_VB, vslot(p), p*0x20000), (S_V, T_VB, vslot(p)+4096, p*0x20000+0x10000)]
            for k, (srd, wreg, lds, so) in enumerate(items):
                ops = [f"s_add_u32 m0, s{wreg}, {lds}", f"s_mov_b32 s{S_T1}, {so:#x}", f"buffer_load_dwordx4 v{V_T1}, {sr(srd,4)}, s{S_T1} offen lds"]
                if opt.stamps == 2: ops = [f"s_mov_b32 s{S_T0}, m0"] + ops + [f"s_mov_b32 m0, s{S_T0}"]
                ex[1+3*k] = ops
                ld.issued.append(p)
        if j & 1:
            ma = [(2+4*t, [f"v_add_u32 v{V_KA+t}, s{S_2K}, v{V_KA+t}"]) for t in range(4)]
            iteration(1, True, 3*KSLOT, VSLOT, 3*G, f"Amd{j}", misc=ma, extra=ex)
        else:
            mb = [(8, [f"v_add_u32 v{V_FA}, {2*G}, v{V_FA}"])]
            mb += [(9+2*t, [f"v_add_u32 v{V_VA+t}, s{S_2V}, v{V_VA+t}"]) for t in range(4)]
            iteration(0, True, 2*KSLOT, 2*VSLOT, 4*G, f"Bmd{j}", misc=mb, extra=ex, prog=f"ds_write_b32 v{V_PA}, v{V_FA}")
    e(f"v_mov_b32 v{V_T1}, 0xff800000")
    e("s_branch L_tail_odd" if (nk-1) & 1 else "s_branch L_tail_even")

hdr = open("cdna_kernels/" + NAME + ".s.ref").read().split("\n")
for line in hdr:
    if line.startswith("; @launch"): break
    out.append(line)
out.append(f"; @launch grid=({NWG},1,1) block=(512,1,1) lds={LDS_BYTES}")
out.append("; job order: " + " ".join(JOBORDER))
out.append('.amdgcn_target "amdgcn-amd-amdhsa--gfx950"')
out.append(".text")
out.append(f".globl {NAME}_kernel")
out.append(".p2align 8")
out.append(f".type {NAME}_kernel,@function")
lab(f"{NAME}_kernel")
S_W, S_HOFF = S_KWRAP, S_VWRAP
e("s_load_dwordx4 s[4:7], s[0:1], 0")
e("s_load_dwordx2 s[8:9], s[0:1], 16")
e("s_load_dwordx2 s[12:13], s[0:1], 32")
e(f"s_getpc_b64 {sr(S_DK,2)}")
lab("L_pc")
if opt.skew:
    e(f"s_bfe_u32 s{S_T0}, s2, {5 | 3 << 16:#x}")
    e(f"s_bfe_u32 s{S_J}, s2, {2 | 1 << 16:#x}")
    e(f"s_mul_i32 s{S_T1}, s{S_J}, 7")
    e(f"s_bfe_u32 s{S_HOFF}, s2, {3 | 1 << 16:#x}")
    e(f"s_add_u32 s{S_T2}, s{S_HOFF}, 7")
    e(f"s_cmp_eq_u32 s{S_T0}, 7")
    e(f"s_cselect_b32 s{S_T1}, s{S_T2}, s{S_T1}")
    e(f"s_cselect_b32 s{S_HOFF}, s{S_J}, s{S_HOFF}")
    e(f"s_add_u32 s{S_T0}, s{S_T0}, s{S_T1}")
    e(f"s_lshl_b32 s{S_T0}, s{S_T0}, 2")
else:
    e(f"s_lshr_b32 s{S_T0}, s2, 2")
    e(f"s_and_b32 s{S_T0}, s{S_T0}, 60")
e(f"s_add_u32 s{S_T1}, s{S_T0}, L_small-L_pc")
e(f"s_load_dword s{S_W}, {sr(S_DK,2)}, s{S_T1}")
e(f"v_lshrrev_b32 v{V_T0}, 6, v0")
e("s_branch L_go")
out.append(".type L_small,@object")
lab("L_small")
out.append("    .long " + ", ".join(f"{x:#x}" for x in stab))
out.append(".size L_small, .-L_small")
lab("L_go")
e(f"s_cmp_ge_u32 s2, {NWG}")
e("s_cbranch_scc1 L_end")
e(f"v_readfirstlane_b32 s{S_U}, v{V_T0}")
if opt.stamps:
    e("s_memrealtime s[100:101]")
stamp(0)
if opt.pf:
    e(f"s_lshr_b32 s{S_T1}, s2, 3")
    e(f"s_lshl_b32 s{S_T1}, s{S_T1}, 11")
    e(f"v_lshrrev_b32 v{V_T0}, 5, v0")
    e(f"v_lshl_add_u32 v{V_T0}, v{V_T0}, 7, s{S_T1}")
    e(f"global_load_dword v{V_S[0]}, v{V_T0}, {sr(S_DK,2)}")
e(f"v_and_b32 v{V_LANE}, 63, v0")
e(f"s_lshl_b32 s{S_T0}, s{S_T0}, 1")
e(f"s_add_u32 s{S_T0}, s{S_T0}, s{S_U}")
e(f"s_lshl_b32 s{S_T0}, s{S_T0}, 6")
e(f"s_add_u32 s{S_T2}, s{S_T0}, L_table-L_pc")
e(f"v_mov_b32 v{V_T0}, s{S_T2}")
e(f"global_load_dword v{V_S[0]+1}, v{V_T0}, {sr(S_DK,2)}")
if opt.skew and opt.str4:
    e(f"s_bfe_u32 s{S_T1}, s2, {4 | 1 << 16:#x}")
    e(f"s_lshl_b32 s{S_T1}, s{S_T1}, 1")
    e(f"s_add_u32 s{S_HOFF}, s{S_HOFF}, s{S_T1}")
    e(f"s_lshl_b32 s{S_HOFF}, s{S_HOFF}, 2")
    e(f"s_and_b32 s{S_T0}, s2, 3")
    e(f"s_add_u32 s{S_HOFF}, s{S_HOFF}, s{S_T0}")
    e(f"s_lshl_b32 s{S_HOFF}, s{S_HOFF}, 8")
elif opt.skew:
    e(f"s_and_b32 s{S_T0}, s2, 3")
    e(f"s_lshl_b32 s{S_T0}, s{S_T0}, 2")
    e(f"s_add_u32 s{S_HOFF}, s{S_HOFF}, s{S_T0}")
    e(f"s_bfe_u32 s{S_T1}, s2, {4 | 1 << 16:#x}")
    e(f"s_lshl_b32 s{S_T1}, s{S_T1}, 1")
    e(f"s_add_u32 s{S_HOFF}, s{S_HOFF}, s{S_T1}")
    e(f"s_lshl_b32 s{S_HOFF}, s{S_HOFF}, 8")
else:
    e(f"s_and_b32 s{S_T0}, s2, 7")
    e(f"s_lshl_b32 s{S_T0}, s{S_T0}, 9")
    e(f"s_bfe_u32 s{S_T1}, s2, {3 | 1 << 16:#x}")
    e(f"s_lshl_b32 s{S_T1}, s{S_T1}, 8")
    e(f"s_add_u32 s{S_HOFF}, s{S_T0}, s{S_T1}")
e(f"v_lshrrev_b32 v{V_T0}, 4, v{V_LANE}")
e(f"v_lshlrev_b32 v{V_T1}, 2, v{V_T0}")
e(f"v_and_b32 v{V_DL}, 15, v{V_LANE}")
e(f"v_xor_b32 v{V_DL}, v{V_DL}, v{V_T1}")
e(f"v_lshlrev_b32 v{V_DL}, 4, v{V_DL}")
e(f"v_lshl_add_u32 v{V_DL}, v{V_T0}, 12, v{V_DL}")
e(f"s_mov_b32 s{S_P1+3}, 0x20000")
e(f"s_mov_b32 s{S_K+3}, 0x20000")
e(f"s_and_b32 s{S_J}, s{S_U}, 3")
e(f"s_lshl_b32 s{S_T0}, s{S_J}, 14")
e(f"v_add_u32 v{V_DMA}, s{S_T0}, v{V_DL}")
e(f"v_add_u32 v{V_DMA2}, 0x10000, v{V_DMA}")
flag_init()
e("s_waitcnt lgkmcnt(0)")
e(f"s_load_dwordx16 {sr(T,16)}, {sr(S_DK,2)}, s{S_T2}")
stamp(1)
e(f"s_and_b32 s{S_BASE}, s{S_W}, 0xfff")
e(f"s_lshl_b32 s{S_BASE}, s{S_BASE}, 12")
e(f"s_add_u32 s{S_BASE}, s{S_BASE}, s{S_HOFF}")
e(f"s_and_b32 s{S_T0}, s{S_W}, 0x1ff000")
e(f"s_sub_u32 s{S_P1+2}, s{S_T0}, {4096-256}")
e(f"s_bitcmp1_b32 s{S_W}, 28")
e(f"s_cselect_b32 s{S_T2}, 1, 0")
e(f"s_cmp_ge_u32 s{S_U}, 4")
e("s_cbranch_scc1 L_first_kv")
def dma_pass(soff):
    e(f"s_add_u32 s{S_P1}, s4, s{S_BASE}")
    e(f"s_addc_u32 s{S_P1+1}, s5, 0")
    for i in range(8):
        e(f"buffer_load_dwordx4 v{V_DL}, {sr(S_P1,4)}, s{soff} offen lds")
        if i < 7:
            e(f"s_add_u32 m0, m0, {G}")
            e(f"s_addk_i32 s{soff}, 0x4000")
if opt.kfirst == 2: e("s_barrier")
e(f"s_bfe_u32 s{S_T0}, s{S_W}, {25 | 3 << 16:#x}")
e(f"s_cmp_ge_u32 s{S_U}, s{S_T0}")
e("s_cbranch_scc1 L_idle")
if opt.cls != "000000" or opt.hcls or opt.hl != "0000" or "1" in opt.p64:
    assert opt.kfirst == 2
    if opt.hl != "0000":
        e(f"s_lshr_b32 s{S_T0}, s{S_HOFF}, 6")
        e(f"s_and_b32 s{S_T0}, s{S_T0}, 12")
        e(f"s_lshr_b32 s{S_T0}, {sum(int(c) << (4*i) for i, c in enumerate(opt.hl)):#x}, s{S_T0}")
        e(f"s_and_b32 s{S_T0}, s{S_T0}, 15")
    elif opt.hcls == 1: e(f"s_bfe_u32 s{S_T0}, s2, {4 | 1 << 16:#x}")
    elif opt.hcls == 2:
        e(f"s_lshr_b32 s{S_T0}, s2, 3"); e(f"s_and_b32 s{S_T0}, s{S_T0}, 2")
    elif opt.hcls == 3:
        e(f"s_bfe_u32 s{S_T0}, s2, {3 | 2 << 16:#x}"); e(f"s_max_u32 s{S_T0}, s{S_T0}, 1"); e(f"s_sub_u32 s{S_T0}, s{S_T0}, 1"); e(f"s_cmp_lg_u32 s{S_T0}, 0")
    else: e(f"s_bfe_u32 s{S_T0}, s{S_W}, {29 | 2 << 16:#x}")
    e(f"s_cbranch_scc0 L_nohold")
    e(f"s_lshl_b32 s{S_T1}, s{S_T2}, 4")
    e(f"s_add_u32 s{S_T0}, s{S_T0}, s{S_T1}")
    e(f"s_mul_i32 s{S_T0}, s{S_T0}, {G}")
    e(f"s_add_u32 s{S_T0}, s{S_T0}, {FBASE-G}")
    e(f"v_and_b32 v{V_T0}, 3, v{V_LANE}")
    e(f"v_lshl_add_u32 v{V_FA}, v{V_T0}, 2, s{S_T0}")
    e("s_waitcnt lgkmcnt(0)")
    spin("L_hold", 0, sleep=1)
    lab("L_nohold")
e(f"s_mul_i32 s{S_T0}, s{S_T2}, {-3*KSLOT}")
if opt.q4v:
    e(f"s_cmp_gt_u32 s{S_P1+2}, {320*4096}")
    e(f"s_cselect_b32 s{S_T0}, {(-9*KSLOT) & 0xffffffff:#x}, s{S_T0}")
e(f"s_mul_i32 s{S_T1}, s{S_U}, {KSLOT}")
e(f"s_add_u32 s{S_T0}, s{S_T0}, s{S_T1}")
e(f"s_add_u32 m0, s{S_T0}, {kslot(5)}")
e(f"s_bfe_u32 s{S_T0}, s{S_W}, {21 | 4 << 16:#x}")
e(f"s_add_u32 s{S_T0}, s{S_T0}, s{S_U}")
e(f"s_lshl_b32 s{S_T0}, s{S_T0}, 17")
dma_pass(S_T0)
if opt.kfirst != 2: e("s_barrier")
e("s_waitcnt lgkmcnt(0)")
e(f"s_mov_b32 s{S_J}, {R_MAIN}")
stamp(2)
e("s_branch L_compute")
lab("L_first_kv")
if opt.kfirst == 1: e("s_setprio 3")
e(f"s_add_u32 s{S_K}, s6, s{S_BASE}")
e(f"s_addc_u32 s{S_K+1}, s7, 0")
e(f"s_mov_b32 s{S_K+2}, s{S_P1+2}")
e(f"s_mul_i32 s{S_DK}, s{S_J}, {G}")
e(f"s_mul_i32 s{S_T0}, s{S_T2}, {6*KSLOT}")
e(f"s_add_u32 s{S_T0}, s{S_T0}, s{S_DK}")
e(f"s_add_u32 m0, s{S_T0}, {KBASE}")
e(f"s_mov_b32 s{S_T1}, 0x20000")
e(f"buffer_load_dwordx4 v{V_DMA}, {sr(S_K,4)}, 0 offen lds")
e(f"s_add_u32 m0, m0, {4*G}")
e(f"s_add_u32 s{S_V}, s8, s{S_BASE}")
e(f"buffer_load_dwordx4 v{V_DMA2}, {sr(S_K,4)}, 0 offen lds")
e(f"s_addc_u32 s{S_V+1}, s9, 0")
e(f"s_add_u32 m0, m0, {4*G}")
e(f"s_mov_b32 s{S_V+2}, s{S_P1+2}")
e(f"buffer_load_dwordx4 v{V_DMA}, {sr(S_K,4)}, s{S_T1} offen lds")
e(f"s_add_u32 m0, m0, {4*G}")
e(f"s_mov_b32 s{S_V+3}, 0x20000")
e(f"buffer_load_dwordx4 v{V_DMA2}, {sr(S_K,4)}, s{S_T1} offen lds")
e(f"s_add_u32 m0, m0, {4*G}")
e(f"s_mov_b32 s{S_T1}, 0x40000")
e(f"s_mul_i32 s{S_T0}, s{S_T2}, {16*G}")
e(f"s_lshl_b32 s{S_DV}, s{S_J}, 2")
e(f"s_add_u32 s{S_T0}, s{S_T0}, s{S_DV}")
e(f"s_add_u32 s{S_T0}, s{S_T0}, {FBASE}")
e(f"v_mov_b32 v{V_SIG}, s{S_T0}")
e(f"v_mov_b32 v{V_THRV}, {f32bits(THR):#x}")
e(f"s_lshl_b32 s{S_DV}, s{S_J}, 10")
e(f"s_mul_i32 s{S_T0}, s{S_T2}, {6*VSLOT}")
e("s_barrier")
if opt.kfirst == 1: e("s_setprio 0")
if opt.md and opt.mdq:
    e(f"s_bitcmp1_b32 s{S_W}, 31")
    e("s_cbranch_scc1 L_md_first")
if opt.hold:
    e("s_waitcnt vmcnt(0)")
    if not opt.mdsync: lab("L_md_back")
    e(f"ds_write_b32 v{V_SIG}, v{V_THRV}")
    if opt.mdsync: lab("L_md_back")
    stamp(2)
e(f"buffer_load_dwordx4 v{V_DMA}, {sr(S_K,4)}, s{S_T1} offen lds")
e(f"s_add_u32 m0, m0, {4*G}")
e("s_nop 0")
e(f"buffer_load_dwordx4 v{V_DMA2}, {sr(S_K,4)}, s{S_T1} offen lds")
e(f"s_add_u32 m0, s{S_T0}, s{S_DV}")
e("s_nop 0")
e(f"buffer_load_dwordx4 v{V_DMA}, {sr(S_V,4)}, 0 offen lds")
e(f"s_add_u32 m0, m0, 4096")
e("s_nop 0")
e(f"buffer_load_dwordx4 v{V_DMA2}, {sr(S_V,4)}, 0 offen lds")
if not opt.hold:
    e("s_waitcnt vmcnt(4)")
    e(f"ds_write_b32 v{V_SIG}, v{V_THRV}")
    stamp(2)
e("s_waitcnt lgkmcnt(0)")
e(f"s_add_u32 s{S_BASE}, s{S_HOFF}, s{T_SOFF}")
e(f"s_and_b32 s{S_J}, s{T_PK}, 15")
e(f"s_bitcmp1_b32 s{T_PK}, 6")
e("s_cbranch_scc0 L_pass_done")
e(f"s_mov_b32 s{S_P1+2}, s{T_NREC}")
e(f"s_mov_b32 s{S_T0}, s{T_QOFF}")
e(f"s_mov_b32 m0, s{T_QST}")
dma_pass(S_T0)
lab("L_pass_done")
e(f"s_cmp_ge_u32 s{S_J}, 3")
e("s_cbranch_scc1 L_loaders")
lab("L_compute")
e(f"s_mov_b32 s{S_DK}, s{S_J}")
setup_compute()
prog_addr()
e(f"s_cmp_lg_u32 s{S_DK}, {R_MAIN}")
e("s_cbranch_scc1 L_init")
lab("L_noinit")
e("s_waitcnt vmcnt(0)")
stamp(3)
q_read()
e("s_waitcnt lgkmcnt(0)")
e(f"ds_write_b32 v{V_PA}, v{V_L}")
e(f"s_cmp_lg_u32 s{S_DK}, {R_MAIN}")
e("s_cbranch_scc1 L_scale_h")
e(f"s_mov_b32 s{S_DK}, {f32bits(CSCALE):#x}")
e(f"s_mov_b32 s{S_DV}, {f32bits(CSCALE):#x}")
e(f"s_mov_b32 s{S_T0}, 0xffff0000")
for ks in range(5):
    if ks == 4: e(f"ds_read_b32 v{V_FL}, v{V_FA}")
    qscale(ks)
e("s_waitcnt lgkmcnt(0)")
e(f"v_cmp_gt_f32 vcc, 0, v{V_FL}")
qscale(5)
e("s_cbranch_vccz L_back_pre")
spin("L_spin_pre", 0)
lab("L_back_pre")
def start_stamp():
    stamp(4)
    if opt.stamps == 2:
        e("s_mov_b32 m0, 0")
        e("s_memtime s[100:101]")
start_stamp()
for ks in range(8): e(kread(ks, 0))
qscale(6)
qscale(7)
lab("L_qk0")
for ks in range(8):
    if ks == 0: e("s_waitcnt lgkmcnt(0)")
    if ks == 7: e(f"v_cmp_gt_f32 vcc, 0, v{V_FL}")
    e(mfma(V_S[0], V_K+4*ks, V_Q+4*ks, None if ks == 0 else V_S[0]))
    e(kread(ks, 1*KSLOT))
    if ks == 3: e(f"ds_read_b32 v{V_FL}, v{V_FA} offset:{G}")
    if ks == 6: e("s_waitcnt lgkmcnt(3)")
e("s_cbranch_vccz L_back_pre2")
spin("L_spin_pre2", G)
lab("L_back_pre2")
e("s_nop 7")
iteration(0, False, 2*KSLOT, 0, 2*G, "i0", first=True, prog=f"ds_write_b32 v{V_PA}, v{V_X}",
          last_ops=[f"s_bitcmp1_b32 s{T_PK}, 20", "s_cbranch_scc1 L_leave"])
lab("L_loop")
ma = [(0, [f"s_cmp_eq_u32 s{S_J}, s{S_KWRAP}", f"s_cselect_b32 s{S_DK}, {(-6*KSLOT)&0xffffffff:#x}, s{S_2K}"])]
ma += [(2+4*t, [f"v_add_u32 v{V_KA+t}, s{S_DK}, v{V_KA+t}"]) for t in range(4)]
ma.insert(4, (10, [f"s_cmp_eq_u32 s{S_J}, s{S_NM1}"]))
iteration(1, True, 3*KSLOT, VSLOT, 3*G, "A", misc=ma, last_ops=["s_cbranch_scc1 L_tail_even"], prog=f"ds_write_b32 v{V_PA}, v{V_FA} offset:4")
mb = [(0, [f"s_cmp_eq_u32 s{S_J}, s{S_VWRAP}", f"s_cselect_b32 s{S_DV}, {(-6*VSLOT)&0xffffffff:#x}, s{S_2V}"]),
      (0, [f"s_add_u32 s{S_J}, s{S_J}, 2", f"s_cmp_eq_u32 s{S_J}, s{T_N}"]),
      (8, [f"v_add_u32 v{V_FA}, {2*G}, v{V_FA}"])]
mb += [(9+2*t, [f"v_add_u32 v{V_VA+t}, s{S_DV}, v{V_VA+t}"]) for t in range(4)]
iteration(0, True, 2*KSLOT, 2*VSLOT, 4*G, "B", misc=mb, last_ops=["s_cbranch_scc0 L_loop"], prog=f"ds_write_b32 v{V_PA}, v{V_FA}")
for par, nm in ((1, "odd"), (0, "even")):
    lab(f"L_tail_{nm}")
    kinds = [k for k in (0, 1, 2) if (k, par) in tails_used]
    for k in kinds[1:]:
        e(f"s_bitcmp1_b32 s{T_PK}, {14 + (k-1)}")
        e(f"s_cbranch_scc1 L_tail_{k}_{par}")
    assert kinds[0] == 0 or len(kinds) == 1 or True
    for k in kinds:
        tail(k, par)
merge_code()
lab("L_idle")
if opt.tq and opt.skew:
    e(f"s_cmp_lt_u32 s{S_P1+2}, {400*4096}")
    e("s_cbranch_scc1 L_idle2")
    e(f"s_add_u32 s{S_T0}, s{S_HOFF}, {CU[1]*4096}")
    e(f"s_add_u32 s{S_P1}, s4, s{S_T0}")
    e(f"s_addc_u32 s{S_P1+1}, s5, 0")
    e(f"s_mov_b32 s{S_P1+2}, {(seqL(1)-1)*4096+256}")
    e(f"s_bfe_u32 s{S_T0}, s{S_W}, {21 | 1 << 16:#x}")
    e(f"s_lshl_b32 s{S_T0}, s{S_T0}, 18")
    e(f"s_add_u32 s{S_T0}, s{S_T0}, {4*0x20000:#x}")
    e(f"s_add_u32 s{S_T1}, s{S_T0}, 0x20000")
    e(f"v_lshrrev_b32 v{V_T0}, 1, v{V_LANE}")
    e(f"v_and_b32 v{V_T1}, 1, v{V_LANE}")
    e(f"v_lshlrev_b32 v{V_T1}, 7, v{V_T1}")
    e(f"v_lshl_add_u32 v{V_T0}, v{V_T0}, 12, v{V_T1}")
    e(f"buffer_load_dword v{V_Q}, v{V_T0}, {sr(S_P1,4)}, s{S_T0} offen")
    e(f"buffer_load_dword v{V_Q+1}, v{V_T0}, {sr(S_P1,4)}, s{S_T1} offen")
    lab("L_idle2")
prog_addr()
e(f"v_mov_b32 v{V_T0}, 0x7fffffff")
if opt.kfirst != 2: e("s_barrier")
e(f"ds_write_b32 v{V_PA}, v{V_T0}")
e(f"ds_write_b32 v{V_PA}, v{V_T0} offset:4")
e("s_waitcnt lgkmcnt(0)")
if touches:
    e(f"s_add_u32 s{S_BASE}, s{S_HOFF}, s{T_SOFF}")
    kv_srds(S_K, S_V, S_BASE, f"s{T_NREC}")
    e(f"s_add_u32 s{S_P1}, s4, s{S_BASE}")
    e(f"s_addc_u32 s{S_P1+1}, s5, 0")
    e(f"s_mov_b32 s{S_P1+2}, s{T_NREC}")
    e(f"v_lshrrev_b32 v{V_T0}, 1, v{V_LANE}")
    e(f"v_and_b32 v{V_T1}, 1, v{V_LANE}")
    e(f"v_lshlrev_b32 v{V_T1}, 7, v{V_T1}")
    e(f"v_lshl_add_u32 v{V_T0}, v{V_T0}, 12, v{V_T1}")
    if opt.tstart >= 0:
        e(f"v_and_b32 v{V_FA}, 3, v{V_LANE}")
        e(f"v_lshlrev_b32 v{V_FA}, 2, v{V_FA}")
        e(f"v_add_u32 v{V_FA}, {ent(opt.tstart)}, v{V_FA}")
        spin("L_tstart", 0, sleep=1)
    for i in range(len(touches)):
        e(f"s_cmp_eq_u32 s{T_N}, {i+1}")
        e(f"s_cbranch_scc1 L_touch_{i}")
    finish()
    for i, lst in enumerate(touches):
        lab(f"L_touch_{i}")
        for k, it in enumerate(lst):
            srd = {"Q": S_P1, "K": S_K, "V": S_V}[it[0]]
            e(f"s_mov_b32 s{S_T0}, {int(it[1:])*0x20000:#x}")
            if k >= opt.tw: e(f"s_waitcnt vmcnt({opt.tw-1})")
            e(f"buffer_load_dword v{V_Q+k}, v{V_T0}, {sr(srd,4)}, s{S_T0} offen")
        finish()
else:
    finish()
lab("L_loaders")
for i in range(1, len(programs)):
    e(f"s_cmp_eq_u32 s{S_J}, {3+i}")
    e(f"s_cbranch_scc1 L_prog_{3+i}")
for i, d in enumerate(programs):
    if d[0] == "L2": loader_two_streams(d, 3+i)
    elif d[0] == "MD": md_program(d, 3+i)
    else: loader_single_stream(d, 3+i)
lab("L_leave")
e(f"s_cmp_eq_u32 s{T_N}, 2")
e("s_cbranch_scc1 L_tail_odd")
e("s_branch L_md_loop" if opt.md else "s_branch L_tail_odd")
if opt.md and opt.mdq:
    lab("L_md_first")
    e(f"s_mov_b32 s{S_LO}, m0")
    e(f"s_mul_i32 s{S_2K}, s{S_J}, {KSLOT}")
    e(f"s_add_u32 m0, s{S_2K}, {QH[0]}")
    e(f"s_lshl_b32 s{S_2K}, s{S_U}, 17")
    dma_pass(S_2K)
    e(f"s_mov_b32 m0, s{S_LO}")
    e("s_nop 0" if opt.mdsync == 2 else "s_waitcnt vmcnt(8)")
    e("s_branch L_md_back")
lab("L_scale_h")
for ks in range(8): qscale(ks, False)
spin("L_spin_h", 0, sleep=1)
e(f"s_bitcmp1_b32 s{T_PK}, 18")
e("s_cbranch_scc0 L_helper_go")
e(f"v_and_b32 v{V_T0}, 3, v{V_LANE}")
e(f"v_mul_u32_u24 v{V_T0}, {G}, v{V_T0}")
e(f"v_add_u32 v{V_T0}, {ent(PROG0)}, v{V_T0}")
lab("L_helper_wait")
bound()
e("s_sleep 1")
e(f"ds_read_b32 v{V_FL}, v{V_T0}")
e("s_waitcnt lgkmcnt(0)")
e(f"v_cmp_gt_i32 vcc, 1, v{V_FL}")
e("s_cbranch_vccnz L_helper_wait")
lab("L_helper_go")
e("s_setprio 0")
e(f"s_bitcmp1_b32 s{T_PK}, 16")
e("s_cbranch_scc0 L_helper_go2")
e(f"s_setprio {max(opt.hprio, 0)}")
lab("L_helper_go2")
start_stamp()
for ks in range(8): e(kread(ks, 0))
e("s_branch L_qk0")
lab("L_init")
e(f"s_bitcmp1_b32 s{T_PK}, 19")
e("s_cbranch_scc1 L_init_shared")
e("s_waitcnt vmcnt(8)")
e(f"ds_write_b32 v{V_SIG}, v{V_THRV} offset:{G}")
e("s_branch L_noinit")
lab("L_init_shared")
e("s_waitcnt vmcnt(0)")
e(f"ds_write_b32 v{V_SIG}, v{V_THRV} offset:{G}")
e(f"s_lshr_b32 s{S_T0}, s{T_MB}, 24")
e(f"s_mul_i32 s{S_T0}, s{S_T0}, {G}")
e(f"s_add_u32 s{S_T0}, s{S_T0}, {ent(PROG0)}")
e(f"v_mov_b32 v{V_T0}, s{S_T0}")
lab("L_init_wait")
bound()
e("s_sleep 1")
e(f"ds_read_b32 v{V_FL}, v{V_T0}")
e("s_waitcnt lgkmcnt(0)")
e(f"v_cmp_gt_i32 vcc, 0, v{V_FL}")
e("s_cbranch_vccnz L_init_wait")
e("s_branch L_noinit")
for tag in stage_spins:
    lab(f"L_stg_{tag}")
    bound()
    e("s_sleep 1")
    e(f"ds_read_b32 v{V_FL}, v{V_CK}")
    e("s_waitcnt lgkmcnt(0)")
    e(f"v_cmp_gt_i32 vcc, s{S_T2}, v{V_FL}")
    e(f"s_cbranch_vccnz L_stg_{tag}")
    e(f"s_branch L_stgback_{tag}")
for site in rare_sites:
    rare(*site)
for site in short_rares:
    short_rare(*site)
if opt.stamps:
    lab("L_stamps")
    e(f"s_load_dwordx2 {sr(S_MASK+6,2)}, s[0:1], 48")
    e("s_waitcnt vmcnt(0)")
    e(f"s_memtime {sr(S_MASK, 2)}")
    e(f"s_getreg_b32 s{S_MASK+2}, hwreg(HW_REG_HW_ID)")
    e(f"s_getreg_b32 s{S_MASK+3}, hwreg(HW_REG_XCC_ID)")
    e(f"s_memrealtime {sr(S_MASK+4, 2)}")
    e("s_waitcnt lgkmcnt(0)")
    e(f"s_lshl_b32 s{S_T0}, s2, 3")
    e(f"s_add_u32 s{S_T0}, s{S_T0}, s{S_U}")
    e(f"s_lshl_b32 s{S_T0}, s{S_T0}, 7")
    if opt.stamps == 2:
        e(f"v_writelane_b32 v{V_LANE}, s100, m0")
        e(f"s_lshl_b32 s{S_T1}, s{S_T0}, 1")
        e(f"s_add_u32 s{S_T1}, s{S_T1}, 0x100000")
        e(f"v_mbcnt_lo_u32_b32 v2, -1, 0")
        e(f"v_mbcnt_hi_u32_b32 v2, -1, v2")
        e(f"v_lshl_add_u32 v0, v2, 2, s{S_T1}")
        e(f"global_store_dword v0, v{V_LANE}, {sr(S_MASK+6,2)}")
    e(f"v_mov_b32 v0, s{S_T0}")
    e("s_mov_b64 exec, 1")
    regs = [S_STAMP+i for i in range(10)] + [S_MASK+i for i in range(6)] + [100, 101]
    for i, r_ in enumerate(regs):
        e(f"v_mov_b32 v2, s{r_}")
        e(f"global_store_dword v0, v2, {sr(S_MASK+6,2)} offset:{4*i}")
lab("L_end")
e("s_endpgm")
out.append(".p2align 6")
out.append(".type L_table,@object")
lab("L_table")
for row in table:
    out.append("    .long " + ", ".join(f"{x & 0xffffffff:#x}" for x in row))
out.append(".size L_table, .-L_table")
if opt.pf:
    out.append(".type L_padding,@object")
    lab("L_padding")
    out.append("    .fill 8192, 4, 0")
    out.append(".size L_padding, .-L_padding")
out.append('.section .rodata,"a"')
out.append(".p2align 6")
out.append(f".amdhsa_kernel {NAME}_kernel")
for x in ("next_free_vgpr 256", "next_free_sgpr 102", "accum_offset 256", "group_segment_fixed_size 0", "kernarg_size 56",
          "user_sgpr_count 2", "user_sgpr_kernarg_segment_ptr 1", "system_sgpr_workgroup_id_x 1"):
    out.append("  .amdhsa_" + x)
out.append(".end_amdhsa_kernel")
for i_, o_ in enumerate(out):
    if o_ and o_.rstrip().endswith("offen lds"):
        isq = f"s[{S_P1}:{S_P1+3}]" in o_
        if (isq and opt.ntq) or (not isq and opt.ntkv):
            out[i_] = o_.replace("offen lds", "offen nt lds")
open(sys.argv[1], "w").write("\n".join(o for o in out if o is not None) + "\n")
```

```python
import sys, struct, math

CU = [0, 289, 520, 939, 1289, 1402, 1666, 1973, 2275]
NAME = "standalone__varlen_attn_packed__ragged"
def f32bits(x):
    return struct.unpack("<I", struct.pack("<f", x))[0]

class Opt:
    stamps = 0
    D4 = 5
    D1 = 2
    slack = 3
    npre4 = 2
    hold = 1
    npre1 = 1
    stflag = "sc1"
    hprio = 1
    lprio = 1
    pf = 1
    budget = 24
    ntq = 0
    skew = 1
    qprio = 0
    fake = 0
    p64 = "000"
    c4 = 2
    t6a10 = 5
    t6b10 = 7
    order = 2
    mdsync = 0
    tq = 1
    pace = 0
    tstart = -1
    tp0 = 3
    hl = "0000"
    hcls = 0
    q4v = 1
    md = 1
    mdq = 1
    side = 0
    tw = 0
    t3 = 1
    str4 = 1
    t5 = "433"
    t6b = 6
    D3 = 4
    D5 = 2
    D6 = 3
    D8 = 3
    cls = "000001"
    mprio = 1
    ftail = 1
    kfirst = 2
    ntkv = 0
opt = Opt()
for a in sys.argv[2:]:
    k, v = a.split("=")
    setattr(opt, k, int(v) if v.lstrip("-").isdigit() and k not in ("cls", "t5", "hl", "p64") else v)

G = 1040
QSIG = max(0, max([int(c) for c in opt.hl + opt.cls] + [opt.c4 if '1' in opt.p64 else 0]) - 2)
assert QSIG <= 1
KSLOT = 8 * G
VSLOT = 8192
KBASE = 10 * VSLOT
LDS_BYTES = 163840
FBASE = KBASE + 1024
PROG0 = 32
MRG0 = 40
THR = 16384.0
NWG = 256
def kslot(s): return KBASE + s*KSLOT
def vslot(s): return s*VSLOT
def ent(n): return FBASE + n*G

V_FA, V_LANE, V_PA, V_FL = 0, 1, 2, 3
V_KA = 4
V_VA = 8
V_L, V_PS, V_T0, V_T1 = 12, 13, 14, 15
V_NEGM = 16
V_Q = 32
V_K = 64
V_V = 96
V_S = [128, 144]
V_P = [160, 168]
V_E = 176
V_WA = 184
V_RA, V_SA, V_CK, V_X = 188, 189, 190, 191
V_O = 192
V_DMA, V_DMA2, V_SIG, V_THRV, V_POLL, V_PV, V_DL = 64, 65, 66, 67, 68, 69, 70

S_P1, S_K, S_V, S_O = 16, 20, 24, 28
S_MASK = 32
S_K2, S_V2 = 32, 36
T = 64
(T_SOFF, T_NREC, T_P1S, T_P1L, T_PK, T_QOFF, T_QST, T_KB, T_VB, T_FB, T_N, T_NV, T_OST, T_MB, T_MIN, T_MOUT) = range(T, T+16)
S_U, S_J, S_T0, S_T1, S_DK, S_DV = 80, 81, 82, 83, 84, 85
S_KWRAP, S_VWRAP, S_NM1, S_T2, S_THR, S_LO = 86, 87, 14, 15, 3, 98
S_2K, S_2V = 99, 10
S_BASE = 11
S_STAMP = 88

out = []
def e(s): out.append("    " + s)
def lab(s): out.append(s + ":")
def vr(b, n): return f"v[{b}:{b+n-1}]"
def sr(b, n): return f"s[{b}:{b+n-1}]"
def stamp(i):
    if opt.stamps: e(f"{'s_memrealtime' if opt.stamps >= 3 else 's_memtime'} {sr(S_STAMP + 2*i, 2)}")

R_MAIN, R_INIT, R_IDLE, R_L4, R_L1 = 0, 1, 2, 3, 4
def seqL(s): return CU[s+1]-CU[s]
def seqnk(s): return (seqL(s)+31)//32
programs = []
def prog_id(desc):
    if desc not in programs: programs.append(desc)
    return 3 + programs.index(desc)
tails_used = set()
def entry(role, seq, tile=None, b0=0, n=None, slot0=0, f0=0, qst=0, ost=0, lo=0, hi=0, mb=0, ml=0, mi=None, mo=None,
          init=None, prio=0, ownq=True, qsrc=None, lvl1=0, swait=0, thr=None):
    L = seqL(seq); nk = seqnk(seq)
    n = nk - b0 if n is None else n
    nv = L - 32*(b0+n-1)
    if opt.fake & 8 and seq == 2: n -= 2
    second = 1 if (init is not None and tile is not None and qsrc is None and ownq) else 0
    if mi is not None or mo is not None: tail = 2
    elif nv <= 8: tail = 0
    else: tail = 1
    if tile is not None: tails_used.add((tail, (n-1) & 1))
    ring = 1 if nk > 10 else 0
    leave = 1 if n == 2 else 0
    pk = role | leave << 20 | second << 6 | ring << 7 | lo << 8 | hi << 11 | tail << 14 | (1 if prio else 0) << 16 | lvl1 << 17 | swait << 18 | (0 if qsrc is None else 1) << 19
    return [CU[seq]*4096, (L-1)*4096+256, (1 if lvl1 else FBASE) if thr is None else thr, 400000, pk, (tile or 0)*0x20000, qst,
            kslot(slot0+b0), vslot(slot0+b0), ent(f0+b0), n, min(nv, 64), ost, mb | (qsrc or 0) << 24,
            0 if mi is None else ent(MRG0+mi), 0 if mo is None else ent(MRG0+mo)]
MLOFF = vslot(1)
QH = [KBASE - (4-k)*KSLOT for k in range(4)]
table = []
touches = []
def T4(seq, t0, nt, touch=None):
    rows = []
    for w in range(4):
        if w < nt:
            if seqnk(seq) > 10:
                rows.append(entry(R_MAIN, seq, tile=t0+w, qst=(QH[w] if opt.q4v else kslot(5+w)), ost=(vslot(9) if w < 2 else kslot(8))+4096*(w & 1), lo=w, hi=w))
            else:
                rows.append(entry(R_MAIN, seq, tile=t0+w, qst=kslot(5+w), ost=vslot(0)+4096*w, lo=0, hi=3))
        else:
            if touch and opt.tw:
                touches.append(touch[1]); r_ = entry(R_IDLE, touch[0]); r_[10] = len(touches); rows.append(r_)
            else:
                r_ = entry(R_IDLE, seq); r_[10] = 0; rows.append(r_)
    pid = prog_id(("L4", seqnk(seq), False, None, opt.D4 if seqnk(seq) > 11 else opt.D3))
    for w in range(4):
        rows.append(entry(pid, seq, init=w))
    return rows
def T5(seq, t0):
    rows = [entry(R_MAIN, seq, tile=t0+w, qst=kslot(5+w), ost=vslot(0)+4096*w, lo=0, hi=4) for w in range(4)]
    cnt = [int(c) for c in opt.t5]; nh = len(cnt)
    assert sum(cnt) == seqnk(seq) and cnt[0] >= 3
    pid = prog_id(("L1", seqnk(seq), nh == 4, 4, opt.D5))
    for h in range(nh):
        rows.append(entry(R_INIT if h < 3 else pid, seq, tile=t0+4, b0=sum(cnt[:h]), n=cnt[h], qst=QH[3], ost=kslot(2),
                          lo=0, hi=(3 if h < nh-1 else 4), mb=kslot(0), mi=(h-1 if h else None), mo=(h if h < nh-1 else None), init=h,
                          prio=opt.hprio, qsrc=(4 if h else None), lvl1=(1 if h < nh-1 else 0), swait=(1 if h == 0 else 0)))
    if nh == 3: rows.append(entry(pid, seq, init=3))
    return rows
def T8(seq):
    pid = prog_id(("MD", seqnk(seq))) if opt.md else prog_id(("L4", seqnk(seq), True, None, opt.D8))
    if opt.md:
        rows = [entry(R_MAIN, seq, tile=w, qst=kslot(5+w), ost=(kslot(8)+4096*w if w < 3 else vslot(0)), lo=(w if w < 3 else 0), hi=(w if w < 3 else 7)) for w in range(4)]
    else:
        rows = [entry(R_MAIN, seq, tile=w, qst=kslot(5+w), ost=vslot(8)+4096*w, lo=w, hi=w) for w in range(4)]
    for h in range(4):
        r_ = entry(pid, seq, tile=4+h, qst=QH[h], ost=(vslot(8)+4096*h if opt.md else (kslot(8)+4096*h if h < 3 else vslot(0))),
                   lo=(4+h if h < 3 or opt.md else 0), hi=4+h, init=h,
                   ownq=bool(opt.md and not opt.mdq), prio=opt.md)
        if opt.md: r_[4] |= 1 << 20
        rows.append(r_)
    return rows
def T6(seq):
    nk = seqnk(seq)
    pid = prog_id(("L1", nk, True, 5, opt.D6))
    rows = [entry(R_MAIN, seq, tile=w, qst=kslot(5+w), ost=vslot(0)+4096*w, lo=0, hi=5) for w in range(4)]
    na, nb = (5, opt.t6b) if nk == 9 else ((opt.t6a10, opt.t6b10) if nk == 10 else (4, 5))
    spec = [(4, 0, na, None, 0, 0), (5, 0, nb, None, 1, 1), (4, na, nk-na, 0, None, 0), (5, nb, nk-nb, 1, None, 1)]
    for h, (tile, b0, n, mi, mo, buf) in enumerate(spec):
        rows.append(entry(R_INIT if h < 3 else pid, seq, tile=tile, b0=b0, n=n, qst=QH[2+buf], ost=vslot(9 if nk <= 9 else 2)+4096*buf,
                          lo=0, hi=5, mb=kslot(2*buf), mi=mi, mo=mo, init=h, prio=opt.hprio, qsrc=(h+2 if h >= 2 else None),
                          lvl1=(1 if buf == 0 else 0), swait=(1 if h < 2 else 0), thr=(FBASE+2*G if (h >= 2 and nk > 9) else None)))
    return rows
def T34(seqA, seqB, tB0):
    qa = [vslot(1) + k*KSLOT for k in range(4)]
    rows = [entry(R_MAIN, seqA, tile=w, slot0=6, f0=16, qst=kslot(2+w), ost=vslot(0)+4096*w, lo=4, hi=6) for w in range(4)]
    pid = prog_id(("L2", seqA, seqB))
    for h in range(3):
        rows.append(entry(R_INIT, seqB, tile=tB0+h, qst=vslot(2)+h*KSLOT, ost=vslot(2)+4096*h, lo=4, hi=6, init=h, thr=FBASE+2*G))
    rows.append(entry(pid, seqB, init=3))
    return rows
def small(seq, t0, nt, two=0):
    return CU[seq] | seqL(seq) << 12 | t0 << 21 | nt << 25 | two << 28
TL8 = "K2 V0 K3 V1 Q4 Q5 Q6 Q7 K4 V2 K5 V3 K6 V4 K7 V5 V6 V7".split()
TL5 = "Q4 Q5 K3 V1 Q6 Q7 K4 V2 K5 V3 K6 V4 K7 V5 K8 V6 V7".split()
def own_touch(nk, par, mod=2):
    o = []
    for p_ in range(opt.tp0, nk):
        if p_ % mod == par:
            if p_+2 < nk: o.append(f"K{p_+2}")
            o.append(f"V{p_}")
    return o
jobs = {"s2a": (lambda: T4(2,0,4), small(2,0,4)), "s2b": (lambda: T4(2,4,4), small(2,4,4)), "s2c": (lambda: T4(2,8,3,(2,own_touch(14,0))), small(2,8,3)),
        "s2d": (lambda: T4(2,11,3,(2,own_touch(14,1))), small(2,11,3)), "T8": (lambda: T8(1), small(1,0,4) | (1 << 31 if opt.md and opt.mdq else 0)),
        "s6a": (lambda: T5(6,0), small(6,0,4)), "s6b": (lambda: T5(6,5), small(6,5,4)), "s7a": (lambda: T5(7,0), small(7,0,4)),
        "s7b": (lambda: T5(7,5), small(7,5,4)), "s0a": (lambda: T5(0,0), small(0,0,4)), "s0b": (lambda: T5(0,5), small(0,5,4)),
        "T6": (lambda: T6(5), small(5,0,4)), "T34": (lambda: T34(4,5,6), small(4,0,4,1)),
        "s3a": (lambda: T4(3,0,4), small(3,0,4)), "s3b": (lambda: T4(3,4,4), small(3,4,4)), "s3c": (lambda: T4(3,8,3,(3,own_touch(11,1)) if opt.t3 else None), small(3,8,3))}
if opt.fake & 1: jobs["T8"] = ((lambda: T6(1)), small(1,0,4))
if opt.fake & 2: jobs["T6"] = ((lambda: T4(5,0,4)), small(5,0,4))
for i_, sq in enumerate((6, 7, 0)):
    if opt.fake & 4:
        jobs[f"s{sq}a"] = ((lambda sq=sq: T4(sq,0,4)), small(sq,0,4))
        jobs[f"s{sq}b"] = ((lambda sq=sq: T4(sq,5,4)), small(sq,5,4))
    if opt.p64[i_] == "1":
        jobs[f"s{sq}a"] = ((lambda sq=sq: T6(sq)), small(sq,0,4))
        jobs[f"s{sq}b"] = ((lambda sq=sq: T4(sq,6,4)), small(sq,6,4) | opt.c4 << 29)
JOBORDER = ["s2a", "s2b", "s2c", "s2d", "T8", "s6a", "s6b",  "s0a", "s0b", "T6", "T34", "s3a", "s3b", "s3c",  "s7a", "s7b"]
if opt.order == 1: JOBORDER = ["T8", "s2a", "s2b", "s6a", "s6b", "s2c", "s2d",  "T6", "T34", "s0a", "s0b", "s3a", "s3b", "s3c",  "s7a", "s7b"]
if opt.order == 2: JOBORDER = ["T8", "s2a", "s2b", "s2c", "s2d", "s6a", "s6b",  "T6", "s0a", "s0b", "T34", "s3a", "s3b", "s3c",  "s7a", "s7b"]
stab = []
for j in JOBORDER:
    k_ = {"s2": 0, "T8": 1, "s6": 2, "s7": 2, "s0": 2, "T6": 3, "T3": 4, "s3": 5}[j[:2]]
    table += jobs[j][0](); stab.append(jobs[j][1] | int(opt.cls[k_]) << 29)
assert len(table) == 128

def mfma(d, a, b, c):
    cs = "0" if c is None else vr(c, 16)
    return f"v_mfma_f32_32x32x16_bf16 {vr(d,16)}, {vr(a,4)}, {vr(b,4)}, {cs}"
def kread(ks, off):
    return f"ds_read_b128 {vr(V_K+4*ks,4)}, v{V_KA+(ks>>1)} offset:{off+(ks&1)*32}"
def vread(i, jj, off, base=V_V):
    kg, dt = i >> 2, i & 3
    return f"ds_read_b64_tr_b16 {vr(base+4*i+2*jj,2)}, v{V_VA+dt} offset:{off+jj*2048+kg*4096}"
def E(r): return V_E + (r & 7)

def softmax_list(par, R=16, mask=False):
    S, P = V_S[par], V_P[par]
    def ex(r):
        o = []
        if mask:
            if r == 0: o.append(f"v_cndmask_b32 v{S}, v{V_T1}, v{S}, {sr(S_MASK,2)}")
            if r+1 < R: o.append(f"v_cndmask_b32 v{S+r+1}, v{V_T1}, v{S+r+1}, {sr(S_MASK+2*r+2,2)}")
        o.append(f"v_exp_f32 v{E(r)}, v{S+r}")
        return o
    ops = ex(0) + ex(1)
    for r in range(2, R+1):
        if r < R: ops += ex(r)
        q = r - 1
        if q == 1: ops.append(f"v_add_f32 v{V_PS}, v{E(0)}, v{E(1)}")
        else: ops.append(f"v_add_f32 v{V_PS}, v{V_PS}, v{E(q)}")
        if q & 1: ops.append(f"v_cvt_pk_bf16_f32 v{P+(q>>1)}, v{E(q-1)}, v{E(q)}")
    return ops

def cost(x):
    if x.startswith("v_exp") or x.startswith("v_rcp") or x.startswith("v_permlane"): return 8
    if x.startswith("s_cbranch"): return 12
    return 4

rare_sites = []
def itstamp():
    if opt.stamps == 2:
        e(f"v_writelane_b32 v{V_LANE}, s100, m0")
        e("s_add_u32 m0, m0, 1")
        e("s_memtime s[100:101]")

def iteration(par, do_pv, koff, voff, foff, tag, first=False, misc=None, last_ops=None, extra=None, prog=None):
    itstamp()
    mf = []
    for i in range(8):
        mf.append(("qk", i))
        if do_pv: mf.append(("pv", i))
    n = len(mf)
    fixed = [[] for _ in range(n)]
    for g, (kind, i) in enumerate(mf):
        if kind == "qk":
            fixed[g].append(kread(i, koff))
            if not do_pv: fixed[g] += [vread(i, 0, voff), vread(i, 1, voff)]
        else:
            fixed[g] += [vread(i, 0, voff), vread(i, 1, voff)]
    fgap = 4 if n == 16 else 3
    fixed[fgap].append(f"ds_read_b32 v{V_FL}, v{V_FA} offset:{foff}")
    if prog: fixed[8 if n == 16 else 4].append(prog)
    q = []
    if not first: q.append(f"v_add_f32 v{V_L}, v{V_L}, v{V_PS}")
    q += softmax_list(par)
    if n != 16: q.append("WAITFLAG")
    q.append(f"v_cmp_lt_f32 vcc, v{V_FL}, v{V_PS}")
    if first: q.append(f"v_cmp_gt_f32 {sr(S_DK,2)}, s{S_LO}, v{V_PS}")
    misc = [(g_, x) for g_, ops in (misc or []) for x in ops]
    budget = opt.budget if n == 16 else (sum(cost(x) for x in q) + sum(4*len(f) for f in fixed) + n - 1)//n + 4
    nl = 0
    for g, (kind, i) in enumerate(mf):
        if n == 16:
            if g == 0: e("s_waitcnt lgkmcnt(12)")
            if g == 8: e("s_waitcnt lgkmcnt(5)")
        else:
            if g == 0: e("s_waitcnt lgkmcnt(4)")
            if g == 2: e("s_waitcnt lgkmcnt(6)")
        if kind == "qk":
            e(mfma(V_S[1-par], V_K+4*i, V_Q+4*i, V_NEGM if i == 0 else V_S[1-par]))
        else:
            kg, dt = i >> 2, i & 3
            e(mfma(V_O+16*dt, V_V+4*i, V_P[1-par]+4*kg, V_O+16*dt))
        used = 0
        for x in fixed[g]:
            e(x); used += 4
        if g > fgap: nl += len(fixed[g])
        for x in (extra or {}).get(g, []):
            e(x)
            assert not x.startswith("ds_")
        nw = 4 if (n == 16 and g+1 in (8, 16)) else 0
        lastgap = g == n-1
        while q and (used + cost(q[0]) + nw <= budget or lastgap):
            x = q.pop(0)
            if x == "WAITFLAG": x = f"s_waitcnt lgkmcnt({min(nl, 15)})"
            e(x); used += cost(x)
        while misc and misc[0][0] <= g and (used + cost(misc[0][1]) + nw <= budget or lastgap):
            x = misc.pop(0)[1]
            assert not x.startswith("ds_")
            e(x); used += cost(x)
    assert not q and not misc
    if first: e(f"s_or_b64 vcc, vcc, {sr(S_DK,2)}")
    e(f"s_cbranch_vccnz L_rare_{tag}")
    lab(f"L_back_{tag}")
    for x in (last_ops or []): e(x)
    rare_sites.append((tag, par, foff - (2*G if tag.startswith("B") else 0), first, 16))

def blockmax(S, t0, t1, R=16):
    if R == 16:
        e(f"v_max3_f32 v{t0}, v{S}, v{S+1}, v{S+2}")
        e(f"v_max3_f32 v{t1}, v{S+3}, v{S+4}, v{S+5}")
        e(f"v_max3_f32 v{t0}, v{t0}, v{S+6}, v{S+7}")
        e(f"v_max3_f32 v{t1}, v{t1}, v{S+8}, v{S+9}")
        e(f"v_max3_f32 v{t0}, v{t0}, v{S+10}, v{S+11}")
        e(f"v_max3_f32 v{t1}, v{t1}, v{S+12}, v{S+13}")
        e(f"v_max3_f32 v{t0}, v{t0}, v{S+14}, v{S+15}")
        e(f"v_max_f32 v{t0}, v{t0}, v{t1}")
    else:
        e(f"v_max3_f32 v{t0}, v{S}, v{S+1}, v{S+2}")
        e(f"v_max_f32 v{t0}, v{t0}, v{S+3}")
    e(f"v_mov_b32 v{t1}, v{t0}")
    e("s_nop 1")
    e(f"v_permlane32_swap_b32 v{t0}, v{t1}")
    e("s_nop 1")
    e(f"v_max_f32 v{t0}, v{t0}, v{t1}")

def bound():
    e(f"s_cselect_b32 s{T_SOFF}, 1, 0")
    e(f"s_sub_u32 s{T_P1L}, s{T_P1L}, 1")
    e("s_cbranch_scc1 L_end")
    e(f"s_cmp_lg_u32 s{T_SOFF}, 0")

def spin(label, foff, sleep=0):
    lab(label)
    bound()
    if sleep: e(f"s_sleep {sleep}")
    e(f"ds_read_b32 v{V_FL}, v{V_FA} offset:{foff}")
    e("s_waitcnt lgkmcnt(0)")
    e(f"v_cmp_gt_f32 vcc, 0, v{V_FL}")
    e(f"s_cbranch_vccnz {label}")

def rare(tag, par, foff, first, R, pprev=False):
    S, Sn = V_S[par], V_S[1-par]
    lab(f"L_rare_{tag}")
    if foff is not None:
        e(f"v_cmp_lt_f32 vcc, s{S_THR}, v{V_PS}")
        if first:
            e("s_nop 1")
            e(f"s_or_b64 vcc, vcc, {sr(S_DK,2)}")
        e(f"s_cbranch_vccz L_spin_{tag}")
    e("s_nop 15")
    e("s_nop 7")
    blockmax(S, V_E, V_E+1, R)
    if first:
        e(f"v_mov_b32 v{V_T0}, v{V_E}")
    else:
        e(f"v_max_f32 v{V_T0}, 0, v{V_E}")
        e(f"v_sub_f32 v{V_E+1}, 0, v{V_T0}")
        e(f"v_exp_f32 v{V_E+1}, v{V_E+1}")
    for r in range(16):
        e(f"v_sub_f32 v{S+r}, v{S+r}, v{V_T0}")
        if foff is not None: e(f"v_sub_f32 v{Sn+r}, v{Sn+r}, v{V_T0}")
        e(f"v_sub_f32 v{V_NEGM+r}, v{V_NEGM+r}, v{V_T0}")
    if not first:
        for r in range(64):
            e(f"v_mul_f32 v{V_O+r}, v{V_O+r}, v{V_E+1}")
        e(f"v_mul_f32 v{V_L}, v{V_L}, v{V_E+1}")
    for x in softmax_list(par, R): e(x)
    e("s_nop 1")
    if foff is not None: spin(f"L_spin_{tag}", foff)
    e(f"s_branch L_back_{tag}")

def finish():
    if opt.stamps == 4: stamp(2)
    e("s_branch L_stamps" if opt.stamps else "s_endpgm")

stage_spins = []
V_WB = V_NEGM + 8
def norm_ops(dt, pk=False):
    o = V_O+16*dt; ops = []
    for rq in range(4):
        ops += [f"v_mul_f32 v{o+4*rq+r}, v{o+4*rq+r}, v{V_L}" for r in range(4)]
        t = V_E + 2*rq
        ops.append(f"v_cvt_pk_bf16_f32 v{t}, v{o+4*rq}, v{o+4*rq+1}")
        ops.append(f"v_cvt_pk_bf16_f32 v{t+1}, v{o+4*rq+2}, v{o+4*rq+3}")
        ops.append(f"ds_write_b64 v{(V_WB if dt & 1 else V_WA)+rq}, {vr(t,2)}")
    return ops
def rd_ops(p):
    return [f"ds_read_b128 {vr(V_Q+16*p+4*i,4)}, v{V_RA} offset:{i*1024}" for i in range(4)]
ST_SOFF = [T_QOFF, S_T1, S_T0, S_DK]
def st_op(p, i):
    fl = opt.stflag.replace('+', ' ')
    return f"buffer_store_dwordx4 {vr(V_Q+16*p+4*i,4)}, v{V_SA}, {sr(S_O,4)}, s{ST_SOFF[i]} offen offset:{128*p} {fl}".rstrip()
def store_prep():
    return [f"s_add_u32 s{ST_SOFF[i]}, s{T_QOFF}, {i*0x8000:#x}" for i in (1, 2, 3)] + \
           [f"v_xor_b32 v{V_WB+rq}, 64, v{V_WA+rq}" for rq in range(4)]
def store_stream(pk):
    s = norm_ops(0) + norm_ops(1) + rd_ops(0)
    n2, n3 = norm_ops(2), norm_ops(3)
    s += n2[:14] + ["s_waitcnt lgkmcnt(2)", st_op(0, 0)] + n2[14:21] + [st_op(0, 1)] + n2[21:] + [st_op(0, 2)] + n3[:7] + [st_op(0, 3)] + n3[7:]
    s += rd_ops(1)
    for i in range(4):
        s += [f"s_waitcnt lgkmcnt({3-i})", st_op(1, i)]
    return s

def tail(kind, par):
    tag = f"T{kind}{par}"
    lab(f"L_tail_{kind}_{par}")
    if opt.stamps == 4: stamp(1)
    itstamp()
    if kind == 0 and opt.ftail:
        return tail_short(par, tag)
    voff = VSLOT if par else 2*VSLOT
    R = 4 if kind == 0 else 16
    nkg = 1 if kind == 0 else 2
    a = lambda i: mfma(V_O+16*(i & 3), V_V+4*i, V_P[1-par]+4*(i >> 2), V_O+16*(i & 3))
    f = lambda i: mfma(V_O+16*(i & 3), V_K+4*i, V_P[par]+4*(i >> 2), V_O+16*(i & 3))
    reads = [vread(i, jj, voff, V_K) for i in range(4*nkg) for jj in range(2)]
    q = [f"v_add_f32 v{V_L}, v{V_L}, v{V_PS}"] + softmax_list(par, R, mask=True)
    if kind == 0: q += [f"v_mov_b64 {vr(V_P[par]+2,2)}, 0"]
    q += [f"v_cmp_lt_f32 vcc, s{S_THR}, v{V_PS}"]
    per = (sum(cost(x) for x in q) + 4*len(reads) + 7)//8 + 4
    per = max(per, 24)
    e("s_waitcnt lgkmcnt(12)")
    nrd = 0
    for g in range(8):
        if g == 4:
            e(f"s_waitcnt lgkmcnt({nrd})")
        e(a(g)); used = 0
        if g == 4:
            e(f"ds_write_b32 v{V_PA}, v{V_FA}")
            e(f"ds_read_b32 v{V_FL}, v{V_CK}")
            used += 8
        for _ in range(2):
            if reads:
                e(reads.pop(0)); used += 4; nrd += 1
        while q and (used + cost(q[0]) <= per or g == 7):
            x = q.pop(0); e(x); used += cost(x)
    e(f"s_cbranch_vccnz L_rare_{tag}")
    lab(f"L_back_{tag}")
    rare_sites.append((tag, par, None, False, R))
    e(f"v_add_f32 v{V_L}, v{V_L}, v{V_PS}")
    e("s_waitcnt lgkmcnt(0)")
    e(f"v_cmp_gt_i32 vcc, s{S_T2}, v{V_FL}")
    fin = [i + 4*k for i in range(4) for k in range(nkg)]
    if kind == 2:
        for i in fin: e(f(i))
        e(f"s_cbranch_vccnz L_stg_{tag}")
        lab(f"L_stgback_{tag}")
        stage_spins.append(tag)
        e("s_branch L_merge")
        return
    e(f"v_mov_b32 v{V_T0}, v{V_L}")
    for _ in range(nkg): e(f(fin.pop(0)))
    e("s_nop 0")
    e(f"v_permlane32_swap_b32 v{V_L}, v{V_T0}")
    e(f"s_cbranch_vccnz L_stg_{tag}")
    lab(f"L_stgback_{tag}")
    stage_spins.append(tag)
    e(f(fin.pop(0)))
    e(f"v_add_f32 v{V_L}, v{V_L}, v{V_T0}")
    e(f"v_rcp_f32 v{V_L}, v{V_L}")
    e(f(fin.pop(0)))
    for x in store_prep(): e(x)
    cnt = 6
    for x in store_stream(False):
        if x.startswith("NEED"): continue
        if fin and cnt >= 6:
            e(f(fin.pop(0))); cnt = 0
        e(x); cnt += 1
    itstamp()
    finish()

short_rares = []
def tail_short(par, tag):
    voff = VSLOT if par else 2*VSLOT
    a = lambda i: mfma(V_O+16*(i & 3), V_V+4*i, V_P[1-par]+4*(i >> 2), V_O+16*(i & 3))
    f = lambda i: mfma(V_O+16*i, V_K+4*i, V_P[par], V_O+16*i)
    rd = [vread(i, jj, voff, V_K) for i in range(4) for jj in range(2)]
    sm = softmax_list(par, 4, mask=True)
    e("s_waitcnt lgkmcnt(12)")
    e(a(0))
    for x in rd[:4]: e(x)
    e(f"v_add_f32 v{V_L}, v{V_L}, v{V_PS}")
    for x in sm[:5]: e(x)
    e("s_waitcnt lgkmcnt(4)")
    e(a(4))
    e(f"ds_write_b32 v{V_PA}, v{V_FA}")
    e(f"ds_read_b32 v{V_FL}, v{V_CK}")
    for x in rd[4:]: e(x)
    for x in sm[5:9]: e(x)
    e(a(1))
    for x in sm[9:]: e(x)
    e(f"v_mov_b64 {vr(V_P[par]+2,2)}, 0")
    e(f"v_cmp_lt_f32 vcc, s{S_THR}, v{V_PS}")
    e(a(5))
    e(f"v_add_f32 v{V_T0}, v{V_L}, v{V_PS}")
    e(f"v_add_f32 v{V_X}, v{V_L}, v{V_PS}")
    e(f"s_cbranch_vccnz L_rare_{tag}")
    short_rares.append((tag, par))
    e("s_waitcnt lgkmcnt(4)")
    e(f(0))
    e(f"v_permlane32_swap_b32 v{V_T0}, v{V_X}")
    e(f"v_cmp_gt_i32 vcc, s{S_T2}, v{V_FL}")
    e(f(1))
    e(f"v_add_f32 v{V_L}, v{V_T0}, v{V_X}")
    e(f"v_rcp_f32 v{V_L}, v{V_L}")
    e(f"s_cbranch_vccnz L_stg_{tag}")
    lab(f"L_stgback_{tag}")
    stage_spins.append(tag)
    e(a(2))
    for x in store_prep(): e(x)
    e("s_waitcnt lgkmcnt(0)")
    rest = [a(6), f(2), a(3), a(7), f(3)]
    cnt = 5
    for x in store_stream(False):
        if x.startswith("NEED"): continue
        if rest and cnt >= 5:
            e(rest.pop(0)); cnt = 0
        e(x); cnt += 1
    itstamp()
    finish()
def short_rare(tag, par):
    a = lambda i: mfma(V_O+16*(i & 3), V_V+4*i, V_P[1-par]+4*(i >> 2), V_O+16*(i & 3))
    f = lambda i: mfma(V_O+16*i, V_K+4*i, V_P[par], V_O+16*i)
    lab(f"L_rare_{tag}")
    for i in (2, 6, 3, 7): e(a(i))
    rare(tag + "x", par, None, False, 4)
    lab(f"L_back_{tag}x")
    e("s_waitcnt lgkmcnt(0)")
    for i in range(4): e(f(i))
    e(f"v_add_f32 v{V_L}, v{V_L}, v{V_PS}")
    e(f"v_mov_b32 v{V_T0}, v{V_L}")
    lab(f"L_stg_{tag}x")
    bound()
    e(f"ds_read_b32 v{V_FL}, v{V_CK}")
    e("s_waitcnt lgkmcnt(0)")
    e(f"v_cmp_gt_i32 vcc, s{S_T2}, v{V_FL}")
    e(f"s_cbranch_vccnz L_stg_{tag}x")
    e(f"v_permlane32_swap_b32 v{V_L}, v{V_T0}")
    e("s_nop 1")
    e(f"v_add_f32 v{V_L}, v{V_L}, v{V_T0}")
    e("s_branch L_store")

def merge_code():
    lab("L_merge")
    MA, ML = V_KA, V_KA+1
    if opt.mprio:
        e(f"s_cmp_eq_u32 s{T_MOUT}, 0")
        e("s_cbranch_scc1 L_merge_keep")
        e("s_setprio 0")
        lab("L_merge_keep")
    e(f"v_mov_b32 v{V_T1}, v{V_L}")
    e(f"v_mbcnt_lo_u32_b32 v{V_T0}, -1, 0")
    e(f"v_mbcnt_hi_u32_b32 v{V_T0}, -1, v{V_T0}")
    e(f"s_and_b32 s{T_MB}, s{T_MB}, 0xffffff")
    e(f"v_permlane32_swap_b32 v{V_L}, v{V_T1}")
    e(f"v_lshl_add_u32 v{MA}, v{V_T0}, 4, s{T_MB}")
    e(f"s_cmp_eq_u32 s{T_MB}, {KBASE}")
    e(f"s_cselect_b32 s{S_T0}, {ent(48)}, {ent(16)}") if False else None
    e(f"s_cselect_b32 s{S_T0}, {32*G}, 0")
    e(f"v_add_f32 v{V_L}, v{V_L}, v{V_T1}")
    e(f"s_add_u32 s{S_T0}, s{S_T0}, {ent(16)}")
    e(f"v_bfe_u32 v{ML}, v{V_T0}, 1, 4")
    e(f"v_mul_u32_u24 v{ML}, {G}, v{ML}")
    e(f"v_and_b32 v{V_T0}, 1, v{V_T0}")
    e(f"v_lshl_add_u32 v{ML}, v{V_T0}, 3, v{ML}")
    e(f"v_add_u32 v{ML}, s{S_T0}, v{ML}")
    e(f"s_cmp_eq_u32 s{T_MIN}, 0")
    e("s_cbranch_scc1 L_merge_out")
    e(f"v_mov_b32 v{V_FA}, s{T_MIN}")
    spin("L_merge_wait", 0, sleep=1)
    e(f"ds_read_b64 {vr(V_E,2)}, v{ML}")
    for i in range(12):
        e(f"ds_read_b128 {vr(V_K+4*i,4)}, v{MA} offset:{i*G}")
    e("s_waitcnt lgkmcnt(12)")
    e(f"v_cmp_neq_f32 vcc, v{V_NEGM}, v{V_E}")
    for i in range(12, 16):
        e(f"ds_read_b128 {vr(V_K+4*i,4)}, v{MA} offset:{i*G}")
    e("s_cbranch_vccnz L_merge_slow")
    lab("L_merge_add")
    e(f"v_add_f32 v{V_L}, v{V_L}, v{V_E+1}")
    e(f"s_cmp_lg_u32 s{T_MOUT}, 0")
    for i in range(4):
        e(f"s_waitcnt lgkmcnt({12-4*i})")
        for r in range(16*i, 16*i+16):
            e(f"v_add_f32 v{V_O+r}, v{V_O+r}, v{V_K+r}")
    e("s_cbranch_scc1 L_merge_out")
    lab("L_store")
    e(f"v_rcp_f32 v{V_L}, v{V_L}")
    for x in store_prep(): e(x)
    for x in store_stream(False):
        if not x.startswith("NEED"): e(x)
    itstamp()
    finish()
    lab("L_merge_slow")
    e(f"v_min_f32 v{V_E+2}, v{V_NEGM}, v{V_E}")
    e(f"v_sub_f32 v{V_E+4}, v{V_E+2}, v{V_NEGM}")
    e(f"v_sub_f32 v{V_E+6}, v{V_E+2}, v{V_E}")
    e(f"v_exp_f32 v{V_E+4}, v{V_E+4}")
    e(f"v_exp_f32 v{V_E+6}, v{V_E+6}")
    e(f"v_mov_b32 v{V_NEGM}, v{V_E+2}")
    e(f"v_mul_f32 v{V_L}, v{V_L}, v{V_E+4}")
    e(f"v_mul_f32 v{V_E+1}, v{V_E+1}, v{V_E+6}")
    e("s_waitcnt lgkmcnt(0)")
    for r in range(64):
        e(f"v_mul_f32 v{V_O+r}, v{V_O+r}, v{V_E+4}")
        e(f"v_mul_f32 v{V_K+r}, v{V_K+r}, v{V_E+6}")
    e("s_branch L_merge_add")
    lab("L_merge_out")
    e(f"v_mov_b32 v{V_E}, v{V_NEGM}")
    e(f"v_mov_b32 v{V_E+1}, v{V_L}")
    e(f"v_mov_b32 v{V_FA}, s{T_MOUT}")
    e(f"v_mov_b32 v{V_T0}, 1.0")
    e(f"ds_write_b64 v{ML}, {vr(V_E,2)}")
    for i in range(16):
        e(f"ds_write_b128 v{MA}, {vr(V_O+4*i,4)} offset:{i*G}")
    e(f"ds_write_b32 v{V_FA}, v{V_T0}")
    e("s_waitcnt lgkmcnt(0)")
    itstamp()
    finish()

def setup_compute():
    e(f"s_mov_b32 s{S_O+2}, s{T_NREC}" if not opt.fake & 16 else f"s_mov_b32 s{S_O+2}, 0")
    e(f"s_mov_b32 s{S_O+3}, 0x20000")
    e(f"s_add_u32 s{S_O}, s12, s{S_BASE}")
    e(f"s_addc_u32 s{S_O+1}, s13, 0")
    e(f"v_and_b32 v{V_T0}, 3, v{V_LANE}")
    e(f"v_lshl_add_u32 v{V_FA}, v{V_T0}, 2, s{T_FB}")
    e(f"v_bfe_u32 v{V_T1}, v{V_LANE}, 2, 3")
    e(f"v_mul_u32_u24 v{V_T1}, {G}, v{V_T1}")
    e(f"v_lshl_add_u32 v{V_T1}, v{V_T0}, 8, v{V_T1}")
    e(f"v_lshrrev_b32 v{V_L}, 5, v{V_LANE}")
    e(f"v_lshl_add_u32 v{V_T1}, v{V_L}, 4, v{V_T1}")
    for t in range(4):
        e(f"v_xor_b32 v{V_KA+t}, {t}, v{V_T0}")
        e(f"v_lshl_add_u32 v{V_KA+t}, v{V_KA+t}, 6, v{V_T1}")
        e(f"v_add_u32 v{V_E+t}, s{T_QST}, v{V_KA+t}")
        e(f"v_add_u32 v{V_KA+t}, s{T_KB}, v{V_KA+t}")
    e(f"v_lshrrev_b32 v{V_T1}, 3, v{V_LANE}")
    e(f"v_and_b32 v{V_T0}, 7, v{V_LANE}")
    e(f"v_lshlrev_b32 v{V_PS}, 4, v{V_T0}")
    e(f"v_lshl_add_u32 v{V_SA}, v{V_T1}, 12, v{V_PS}")
    e(f"v_xor_b32 v{V_T1}, v{V_T1}, v{V_LANE}")
    e(f"v_lshl_add_u32 v{V_RA}, v{V_T1}, 4, s{T_OST}")
    e(f"v_and_b32 v{V_T1}, 31, v{V_LANE}")
    e(f"v_lshl_add_u32 v{V_T1}, v{V_T1}, 7, s{T_OST}")
    e(f"v_lshl_add_u32 v{V_T1}, v{V_L}, 3, v{V_T1}")
    for rq in range(4):
        e(f"v_xor_b32 v{V_WA+rq}, {rq}, v{V_T0}")
        e(f"v_lshl_add_u32 v{V_WA+rq}, v{V_WA+rq}, 4, v{V_T1}")
    e(f"v_bfe_u32 v{V_T0}, v{V_LANE}, 2, 2")
    e(f"v_lshl_add_u32 v{V_T1}, v{V_L}, 2, v{V_T0}")
    e(f"v_lshl_add_u32 v{V_T1}, v{V_T1}, 8, s{T_VB}")
    e(f"v_bfe_u32 v{V_PS}, v{V_LANE}, 4, 1")
    e(f"v_lshl_add_u32 v{V_T1}, v{V_PS}, 5, v{V_T1}")
    e(f"v_and_b32 v{V_PS}, 3, v{V_LANE}")
    e(f"v_lshl_add_u32 v{V_T1}, v{V_PS}, 3, v{V_T1}")
    for dt in range(4):
        e(f"v_xor_b32 v{V_VA+dt}, {dt}, v{V_T0}")
        e(f"v_lshl_add_u32 v{V_VA+dt}, v{V_VA+dt}, 6, v{V_T1}")
    e(f"s_bfe_u32 s{S_T0}, s{T_PK}, {8 | 3 << 16:#x}")
    e(f"s_bfe_u32 s{S_T1}, s{T_PK}, {11 | 3 << 16:#x}")
    e(f"v_and_b32 v{V_CK}, 7, v{V_LANE}")
    e(f"v_max_u32 v{V_CK}, s{S_T0}, v{V_CK}")
    e(f"v_min_u32 v{V_CK}, s{S_T1}, v{V_CK}")
    e(f"v_mul_u32_u24 v{V_CK}, {G}, v{V_CK}")
    e(f"v_add_u32 v{V_CK}, {ent(PROG0)}, v{V_CK}")
    e(f"v_lshlrev_b32 v{V_T0}, 2, v{V_L}")
    e(f"v_sub_u32 v{V_T0}, s{T_NV}, v{V_T0}")
    for r in range(16):
        e(f"v_cmp_lt_i32 {sr(S_MASK+2*r,2)}, {(r & 3) + 8*(r >> 2)}, v{V_T0}")
    for r in range(0, 64, 2): e(f"v_mov_b64 {vr(V_O+r,2)}, 0")
    for r in range(0, 16, 2): e(f"v_mov_b64 {vr(V_NEGM+r,2)}, 0")
    e(f"v_mov_b32 v{V_L}, 0")
    e(f"v_mov_b32 v{V_T1}, 0xff800000")
    e(f"v_mov_b32 v{V_X}, 1")
    e(f"s_mov_b32 s{S_LO}, {f32bits(1.0/THR):#x}")
    e(f"s_mov_b32 s{S_THR}, {f32bits(THR):#x}")
    e(f"s_bitcmp1_b32 s{T_PK}, 7")
    e(f"s_cselect_b32 s{S_KWRAP}, 6, 0")
    e(f"s_cselect_b32 s{S_VWRAP}, 8, 0")
    e(f"s_mov_b32 s{S_2K}, {2*KSLOT}")
    e(f"s_mov_b32 s{S_2V}, {2*VSLOT}")
    e(f"s_mov_b32 s{S_J}, 2")
    e(f"s_sub_u32 s{S_NM1}, s{T_N}, 1")
    e(f"s_mov_b32 s{S_T2}, s{T_P1S}")

def prog_addr():
    e(f"s_mul_i32 s{S_T0}, s{S_U}, {G}")
    e(f"s_add_u32 s{S_T0}, s{S_T0}, {ent(PROG0)}")
    e(f"v_mov_b32 v{V_PA}, s{S_T0}")

def q_read():
    for ks in range(8):
        e(f"ds_read_b128 {vr(V_Q+4*ks,4)}, v{V_E+(ks>>1)} offset:{(ks&1)*32}")

CSCALE = math.log2(math.e) / math.sqrt(128.0)
def qscale(ks, pk=True):
    tb = V_S[1] + 8*(ks & 1)
    for k in range(4):
        r = V_Q+4*ks+k
        e(f"v_lshlrev_b32 v{tb+2*k}, 16, v{r}")
        e(f"v_and_b32 v{tb+2*k+1}, {f's{S_T0}' if pk else '0xffff0000'}, v{r}")
    for k in range(4):
        if pk:
            e(f"v_pk_mul_f32 {vr(tb+2*k,2)}, {vr(tb+2*k,2)}, {sr(S_DK,2)}")
        else:
            e(f"v_mul_f32 v{tb+2*k}, {f32bits(CSCALE):#x}, v{tb+2*k}")
            e(f"v_mul_f32 v{tb+2*k+1}, {f32bits(CSCALE):#x}, v{tb+2*k+1}")
    for k in range(4):
        e(f"v_cvt_pk_bf16_f32 v{V_Q+4*ks+k}, v{tb+2*k}, v{tb+2*k+1}")

def flag_init():
    e(f"v_mul_u32_u24 v{V_T0}, {G}, v{V_LANE}")
    e(f"v_add_u32 v{V_T0}, {FBASE}, v{V_T0}")
    for k in range(4): e(f"v_mov_b32 v{V_V+k}, -1.0")
    e(f"ds_write_b128 v{V_T0}, {vr(V_V,4)}")

def init_signal_regs(f0):
    e(f"s_and_b32 s{S_T0}, s{S_U}, 3")
    e(f"s_lshl_b32 s{S_T0}, s{S_T0}, 2")
    if f0 is None:
        e(f"s_cmp_lt_u32 s{S_U}, 4")
        e(f"s_cselect_b32 s{S_T1}, {16*G}, 0")
        e(f"s_add_u32 s{S_T0}, s{S_T0}, s{S_T1}")
    e(f"s_add_u32 s{S_T0}, s{S_T0}, {FBASE}")
    e(f"v_mov_b32 v{V_SIG}, s{S_T0}")
    e(f"v_mov_b32 v{V_THRV}, {f32bits(THR):#x}")

def kv_srds(sk, sv, base_s, nrec):
    for srd, p in ((sk, 6), (sv, 8)):
        e(f"s_add_u32 s{srd}, s{p}, s{base_s}")
        e(f"s_addc_u32 s{srd+1}, s{p+1}, 0")
        e(f"s_mov_b32 s{srd+2}, {nrec}")
        e(f"s_mov_b32 s{srd+3}, 0x20000")

class Loader:
    def __init__(self, name, quarter):
        self.pace = 0
        self.name = name; self.quarter = quarter; self.issued = []; self.npoll = 0; self.seen = {}
    def poll(self, lo, hi, thr, word=0):
        key = (lo, hi, word)
        if self.seen.get(key, -1) >= thr: return
        self.seen[key] = thr
        l_ = f"L_pw_{self.name}_{self.npoll}"; self.npoll += 1
        e(f"v_and_b32 v{V_POLL}, 7, v{V_LANE}")
        e(f"v_max_u32 v{V_POLL}, {lo}, v{V_POLL}")
        e(f"v_min_u32 v{V_POLL}, {hi}, v{V_POLL}")
        e(f"v_mul_u32_u24 v{V_POLL}, {G}, v{V_POLL}")
        e(f"v_add_u32 v{V_POLL}, {ent(PROG0)}, v{V_POLL}")
        e(f"s_mov_b32 s{S_T0}, {thr}")
        lab(l_)
        e(f"ds_read_b32 v{V_PV}, v{V_POLL} offset:{4*word}")
        e("s_waitcnt lgkmcnt(0)")
        e(f"v_cmp_gt_i32 vcc, s{S_T0}, v{V_PV}")
        e(f"s_cbranch_vccz {l_}_ok")
        e("s_sleep 1")
        bound()
        e(f"s_branch {l_}")
        lab(f"{l_}_ok")
    def block(self, tag, srd, b, lds, stride):
        if self.quarter:
            wreg = S_DK if stride == G else S_DV
            e(f"s_add_u32 m0, s{wreg}, {lds}")
            e(f"s_mov_b32 s{S_T1}, {b*0x20000:#x}")
            e(f"buffer_load_dwordx4 v{V_DMA}, {sr(srd,4)}, s{S_T1} offen lds")
            e(f"s_add_u32 m0, s{wreg}, {lds+4*stride}")
            e(f"s_sleep {self.pace}" if self.pace else "s_nop 0")
            e(f"buffer_load_dwordx4 v{V_DMA2}, {sr(srd,4)}, s{S_T1} offen lds")
            if self.pace: e(f"s_sleep {self.pace}")
            self.issued += [tag]*2
        else:
            for g in range(8):
                e(f"s_mov_b32 m0, {lds+g*stride}")
                e(f"s_mov_b32 s{S_T1}, {b*0x20000+g*0x4000:#x}")
                e(f"buffer_load_dwordx4 v{V_DMA}, {sr(srd,4)}, s{S_T1} offen lds")
            self.issued += [tag]*8
    def wait(self, tag):
        last = max(i for i, t in enumerate(self.issued) if t == tag)
        n = len(self.issued)-1-last
        assert n <= 63
        e(f"s_waitcnt vmcnt({n})")

def loader_single_stream(desc, pid):
    kind, nk = desc[0], desc[1]
    quarter = kind == "L4"
    late = desc[2]
    D = desc[4]
    ld = Loader(f"{kind}_{nk}_{pid}", quarter)
    lab(f"L_prog_{pid}")
    if opt.lprio: e(f"s_setprio {opt.lprio}")
    ld.issued += ["i1"]*4 + ["i2"]*4
    qsrc = desc[3] if late else None
    if not quarter: e(f"v_mov_b32 v{V_DMA}, v{V_DL}")
    ring = nk > 10
    ks = lambda b: b & 7 if ring else b
    vs = lambda b: (((b-1) & 7) + 1) if (ring and b > 8) else b
    hi = (7 if late else 3) if quarter else 6
    vq = (7 if desc[3] == 5 else {10: 8, 8: 5}.get(nk, 99)) if (late or not quarter) else 99
    def req(p):
        lv = []
        b = p+2
        def level(j):
            if j <= 0: return (0, 3, 1, 0, 0)
            if j & 1: return (0, 3, FBASE+(j-1)*G, j+opt.slack, 1)
            return (0, 3, FBASE+(j-2)*G, j+opt.slack, 0)
        if b < nk:
            if ks(b) != b: lv.append(level(b-9))
            elif b >= 5 and not (ring and opt.q4v): lv.append((0, 3, 0, QSIG, 0))
        if vs(p) != p: lv.append(level(p-7))
        elif p >= vq: lv.append((4, hi, 0, 2, 0))
        elif p >= 5 and ring and opt.q4v: lv.append((0, 3, 0, QSIG, 0))
        return lv
    nxt = [1]
    def pairs_upto(p, sig):
        while nxt[0] <= min(p, nk-1):
            r = req(nxt[0])
            if any(x[3] > sig for x in r): break
            for x in r: ld.poll(x[0], x[1], x[2], x[4])
            p_ = nxt[0]
            if p_+2 < nk: ld.block(p_, S_K, p_+2, kslot(ks(p_+2)), G)
            ld.block(p_, S_V, p_, vslot(vs(p_)), 1024)
            nxt[0] += 1
    chunks = []
    side = opt.side == 1 or (opt.side == 2 and quarter)
    if late:
        k0 = len(out); setup_compute(); prog_addr(); body = out[k0:]; del out[k0:]
        cut = next(i for i, x in enumerate(body) if "s_bfe_u32" in x)
        chunks = [body[:cut], body[cut:]]
        if side:
            cut = max(i for i, x in enumerate(body) if f"s{T_KB}," in x) + 1
            chunks = [body[:cut] + body[-3:] + [f"    v_mov_b32 v{V_X}, 0"], body[cut:-3]]
    pairs_upto(opt.npre4 if quarter else opt.npre1, -1)
    ld.wait("i2")
    e(f"ds_write_b32 v{V_SIG}, v{V_THRV} offset:{G}")
    stamp(3)
    if not quarter:
        e(f"v_and_b32 v{V_SIG}, 3, v{V_LANE}")
        e(f"v_lshlrev_b32 v{V_SIG}, 2, v{V_SIG}")
        e(f"v_add_u32 v{V_SIG}, {FBASE}, v{V_SIG}")
    if late and qsrc is None:
        e(f"s_mov_b32 s{S_T0}, s{T_QOFF}")
        e(f"s_mov_b32 m0, s{T_QST}")
        dma_pass(S_T0)
        ld.issued += ["q"]*8
    pairs_upto(D, 0)
    if late: out.extend(chunks[0])
    ld.pace = opt.pace
    for j in range(1, nk):
        assert nxt[0] > j
        ld.wait(j)
        e(f"ds_write_b32 v{V_SIG}, v{V_THRV} offset:{(j+1)*G}")
        if late and j == 2:
            if qsrc is None: ld.wait("q")
            else: ld.poll(qsrc, qsrc, 0)
            q_read()
            e("s_waitcnt lgkmcnt(0)")
            e(f"ds_write_b32 v{V_PA}, v{V_X if side else V_L}")
        pairs_upto(j+D, j)
        if late and j == 1 and not side: out.extend(chunks[1])
        if late and 2 <= j <= 5 and not side:
            qscale(2*j-4, False); qscale(2*j-3, False)
    if late and side:
        e("s_setprio 0")
        out.extend(chunks[1])
        e("s_branch L_scale_h")
    elif late:
        e("s_branch L_spin_h" if quarter else "s_branch L_helper_go")
    else:
        e("s_waitcnt lgkmcnt(0)")
        stamp(4)
        finish()

def loader_two_streams(desc, pid):
    _, sa, sb = desc
    nka, nkb = seqnk(sa), seqnk(sb)
    ld = Loader("L2", False)
    lab(f"L_prog_{pid}")
    if opt.lprio: e(f"s_setprio {opt.lprio}")
    ld.issued += ["i1"]*4 + ["i2"]*4
    e(f"v_mov_b32 v{V_DMA}, v{V_DL}")
    for k in range(8): e(f"s_mov_b32 s{S_K2+k}, s{S_K+k}") if k % 4 != 3 else e(f"s_mov_b32 s{S_K2+k}, 0x20000")
    kv_srds(S_K, S_V, S_BASE, f"s{T_NREC}")
    def pa(p):
        if p+2 < nka: ld.block(("a", p), S_K2, p+2, kslot(6+p+2), G)
        ld.block(("a", p), S_V2, p, vslot(6+p), 1024)
    def pb(p):
        if p+2 >= 6 and p+2 < nkb: ld.poll(0, 3, ent(16))
        if p == 8: ld.poll(0, 3, ent(16)+2*G)
        if p+2 < nkb: ld.block(("b", p), S_K, p+2, kslot(p+2), G)
        ld.block(("b", p), S_V, p, vslot(p), 1024)
    def sig(t, p):
        ld.wait((t, p))
        e(f"ds_write_b32 v{V_SIG}, v{V_THRV} offset:{(p + 1 + (16 if t == 'a' else 0))*G}")
    pa(1)
    ld.wait("i2")
    e(f"ds_write_b32 v{V_SIG}, v{V_THRV} offset:{G}")
    stamp(3)
    e(f"v_and_b32 v{V_SIG}, 3, v{V_LANE}")
    e(f"v_lshlrev_b32 v{V_SIG}, 2, v{V_SIG}")
    e(f"v_add_u32 v{V_SIG}, {FBASE}, v{V_SIG}")
    pa(2); pa(3)
    ld.block(("b", -1), S_K, 0, kslot(0), G)
    sig("a", 1)
    ld.block(("b", -1), S_K, 1, kslot(1), G)
    sig("a", 2)
    ld.poll(0, 6, 0)
    pb(0); sig("a", 3)
    pb(1); sig("b", -1)
    pb(2); sig("b", 0)
    pb(3); sig("b", 1)
    pb(4); sig("b", 2)
    pb(5); sig("b", 3)
    pb(6); sig("b", 4)
    pb(7); sig("b", 5)
    pb(8); sig("b", 6); sig("b", 7); sig("b", 8)
    e("s_waitcnt lgkmcnt(0)")
    stamp(4)
    finish()

def md_program(desc, pid):
    nk = desc[1]
    ld = Loader(f"MD_{pid}", True)
    lab(f"L_prog_{pid}")
    if not opt.mdsync: e("s_setprio 1")
    ld.issued += (["i1"]*4 + ["q"]*8 + ["i2"]*4) if opt.mdq else (["i1"]*4 + ["i2"]*4 + ["q"]*8)
    def pair(p):
        if p+2 < nk: ld.block(p, S_K, p+2, kslot(p+2), G)
        ld.block(p, S_V, p, vslot(p), 1024)
    def sig(p):
        ld.wait(p)
        e(f"ds_write_b32 v{V_SIG}, v{V_THRV} offset:{(p+1)*G}")
    pair(1)
    setup_compute(); prog_addr()
    if not opt.mdq:
        ld.wait("i2"); e(f"ds_write_b32 v{V_SIG}, v{V_THRV} offset:{G}")
    ld.wait("q")
    stamp(3)
    q_read()
    e("s_waitcnt lgkmcnt(0)")
    e(f"ds_write_b32 v{V_PA}, v{V_L}")
    pair(2)
    if opt.mdsync:
        e(f"s_mov_b32 s{T_KB}, s{S_DK}")
        e(f"s_mov_b32 s{T_VB}, s{S_DV}")
        e(f"s_mov_b32 s{S_DK}, {f32bits(CSCALE):#x}")
        e(f"s_mov_b32 s{S_DV}, {f32bits(CSCALE):#x}")
        e(f"s_mov_b32 s{S_T0}, 0xffff0000")
        for ks in range(7): qscale(ks)
        e(f"ds_write_b32 v{V_SIG}, v{V_THRV}")
        qscale(7)
        e(f"s_mov_b32 s{S_DK}, s{T_KB}")
        e(f"s_mov_b32 s{S_DV}, s{T_VB}")
        e("s_setprio 1")
        ld.wait("i2"); e(f"ds_write_b32 v{V_SIG}, v{V_THRV} offset:{G}")
    else:
        for ks in range(4): qscale(ks, False)
        if opt.mdq:
            ld.wait("i2"); e(f"ds_write_b32 v{V_SIG}, v{V_THRV} offset:{G}")
        for ks in range(4, 8): qscale(ks, False)
    if QSIG: sig(1)
    ld.poll(0, 7, 0)
    pair(3)
    if not QSIG: sig(1)
    e(f"v_mov_b32 v{V_T1}, v{V_DMA}")
    e(f"v_readfirstlane_b32 s{T_QST}, v{V_SIG}")
    e(f"s_mov_b32 s{T_KB}, s{S_DK}")
    e(f"s_mov_b32 s{T_VB}, s{S_DV}")
    e("s_branch L_spin_h")
    lab(f"L_md_loop")
    kv_srds(S_K, S_V, S_BASE, f"s{T_NREC}")
    e(f"v_mov_b32 v{V_X}, {f32bits(THR):#x}")
    for j in range(1, nk-1):
        ex = {}
        p = j+3
        if j+1 < nk:
            last = max(i for i, t in enumerate(ld.issued) if t == j+1)
            e(f"s_waitcnt vmcnt({len(ld.issued)-1-last})")
            e(f"v_mov_b32 v{V_T0}, s{T_QST}")
            e(f"ds_write_b32 v{V_T0}, v{V_X} offset:{(j+2)*G}")
        if p < nk:
            items = []
            if p+2 < nk: items += [(S_K, T_KB, kslot(p+2), (p+2)*0x20000), (S_K, T_KB, kslot(p+2)+4*G, (p+2)*0x20000+0x10000)]
            items += [(S_V, T_VB, vslot(p), p*0x20000), (S_V, T_VB, vslot(p)+4096, p*0x20000+0x10000)]
            for k, (srd, wreg, lds, so) in enumerate(items):
                ops = [f"s_add_u32 m0, s{wreg}, {lds}", f"s_mov_b32 s{S_T1}, {so:#x}", f"buffer_load_dwordx4 v{V_T1}, {sr(srd,4)}, s{S_T1} offen lds"]
                if opt.stamps == 2: ops = [f"s_mov_b32 s{S_T0}, m0"] + ops + [f"s_mov_b32 m0, s{S_T0}"]
                ex[1+3*k] = ops
                ld.issued.append(p)
        if j & 1:
            ma = [(2+4*t, [f"v_add_u32 v{V_KA+t}, s{S_2K}, v{V_KA+t}"]) for t in range(4)]
            iteration(1, True, 3*KSLOT, VSLOT, 3*G, f"Amd{j}", misc=ma, extra=ex)
        else:
            mb = [(8, [f"v_add_u32 v{V_FA}, {2*G}, v{V_FA}"])]
            mb += [(9+2*t, [f"v_add_u32 v{V_VA+t}, s{S_2V}, v{V_VA+t}"]) for t in range(4)]
            iteration(0, True, 2*KSLOT, 2*VSLOT, 4*G, f"Bmd{j}", misc=mb, extra=ex, prog=f"ds_write_b32 v{V_PA}, v{V_FA}")
    e(f"v_mov_b32 v{V_T1}, 0xff800000")
    e("s_branch L_tail_odd" if (nk-1) & 1 else "s_branch L_tail_even")

hdr = open("cdna_kernels/" + NAME + ".s.ref").read().split("\n")
for line in hdr:
    if line.startswith("; @launch"): break
    out.append(line)
out.append(f"; @launch grid=({NWG},1,1) block=(512,1,1) lds={LDS_BYTES}")
out.append("; job order: " + " ".join(JOBORDER))
out.append('.amdgcn_target "amdgcn-amd-amdhsa--gfx950"')
out.append(".text")
out.append(f".globl {NAME}_kernel")
out.append(".p2align 8")
out.append(f".type {NAME}_kernel,@function")
lab(f"{NAME}_kernel")
S_W, S_HOFF = S_KWRAP, S_VWRAP
e("s_load_dwordx4 s[4:7], s[0:1], 0")
e("s_load_dwordx2 s[8:9], s[0:1], 16")
e("s_load_dwordx2 s[12:13], s[0:1], 32")
e(f"s_getpc_b64 {sr(S_DK,2)}")
lab("L_pc")
if opt.skew:
    e(f"s_bfe_u32 s{S_T0}, s2, {5 | 3 << 16:#x}")
    e(f"s_bfe_u32 s{S_J}, s2, {2 | 1 << 16:#x}")
    e(f"s_mul_i32 s{S_T1}, s{S_J}, 7")
    e(f"s_bfe_u32 s{S_HOFF}, s2, {3 | 1 << 16:#x}")
    e(f"s_add_u32 s{S_T2}, s{S_HOFF}, 7")
    e(f"s_cmp_eq_u32 s{S_T0}, 7")
    e(f"s_cselect_b32 s{S_T1}, s{S_T2}, s{S_T1}")
    e(f"s_cselect_b32 s{S_HOFF}, s{S_J}, s{S_HOFF}")
    e(f"s_add_u32 s{S_T0}, s{S_T0}, s{S_T1}")
    e(f"s_lshl_b32 s{S_T0}, s{S_T0}, 2")
else:
    e(f"s_lshr_b32 s{S_T0}, s2, 2")
    e(f"s_and_b32 s{S_T0}, s{S_T0}, 60")
e(f"s_add_u32 s{S_T1}, s{S_T0}, L_small-L_pc")
e(f"s_load_dword s{S_W}, {sr(S_DK,2)}, s{S_T1}")
e(f"v_lshrrev_b32 v{V_T0}, 6, v0")
e("s_branch L_go")
out.append(".type L_small,@object")
lab("L_small")
out.append("    .long " + ", ".join(f"{x:#x}" for x in stab))
out.append(".size L_small, .-L_small")
lab("L_go")
e(f"s_cmp_ge_u32 s2, {NWG}")
e("s_cbranch_scc1 L_end")
e(f"v_readfirstlane_b32 s{S_U}, v{V_T0}")
if opt.stamps:
    e("s_memrealtime s[100:101]")
stamp(0)
if opt.pf:
    e(f"s_lshr_b32 s{S_T1}, s2, 3")
    e(f"s_lshl_b32 s{S_T1}, s{S_T1}, 11")
    e(f"v_lshrrev_b32 v{V_T0}, 5, v0")
    e(f"v_lshl_add_u32 v{V_T0}, v{V_T0}, 7, s{S_T1}")
    e(f"global_load_dword v{V_S[0]}, v{V_T0}, {sr(S_DK,2)}")
e(f"v_and_b32 v{V_LANE}, 63, v0")
e(f"s_lshl_b32 s{S_T0}, s{S_T0}, 1")
e(f"s_add_u32 s{S_T0}, s{S_T0}, s{S_U}")
e(f"s_lshl_b32 s{S_T0}, s{S_T0}, 6")
e(f"s_add_u32 s{S_T2}, s{S_T0}, L_table-L_pc")
e(f"v_mov_b32 v{V_T0}, s{S_T2}")
e(f"global_load_dword v{V_S[0]+1}, v{V_T0}, {sr(S_DK,2)}")
if opt.skew and opt.str4:
    e(f"s_bfe_u32 s{S_T1}, s2, {4 | 1 << 16:#x}")
    e(f"s_lshl_b32 s{S_T1}, s{S_T1}, 1")
    e(f"s_add_u32 s{S_HOFF}, s{S_HOFF}, s{S_T1}")
    e(f"s_lshl_b32 s{S_HOFF}, s{S_HOFF}, 2")
    e(f"s_and_b32 s{S_T0}, s2, 3")
    e(f"s_add_u32 s{S_HOFF}, s{S_HOFF}, s{S_T0}")
    e(f"s_lshl_b32 s{S_HOFF}, s{S_HOFF}, 8")
elif opt.skew:
    e(f"s_and_b32 s{S_T0}, s2, 3")
    e(f"s_lshl_b32 s{S_T0}, s{S_T0}, 2")
    e(f"s_add_u32 s{S_HOFF}, s{S_HOFF}, s{S_T0}")
    e(f"s_bfe_u32 s{S_T1}, s2, {4 | 1 << 16:#x}")
    e(f"s_lshl_b32 s{S_T1}, s{S_T1}, 1")
    e(f"s_add_u32 s{S_HOFF}, s{S_HOFF}, s{S_T1}")
    e(f"s_lshl_b32 s{S_HOFF}, s{S_HOFF}, 8")
else:
    e(f"s_and_b32 s{S_T0}, s2, 7")
    e(f"s_lshl_b32 s{S_T0}, s{S_T0}, 9")
    e(f"s_bfe_u32 s{S_T1}, s2, {3 | 1 << 16:#x}")
    e(f"s_lshl_b32 s{S_T1}, s{S_T1}, 8")
    e(f"s_add_u32 s{S_HOFF}, s{S_T0}, s{S_T1}")
e(f"v_lshrrev_b32 v{V_T0}, 4, v{V_LANE}")
e(f"v_lshlrev_b32 v{V_T1}, 2, v{V_T0}")
e(f"v_and_b32 v{V_DL}, 15, v{V_LANE}")
e(f"v_xor_b32 v{V_DL}, v{V_DL}, v{V_T1}")
e(f"v_lshlrev_b32 v{V_DL}, 4, v{V_DL}")
e(f"v_lshl_add_u32 v{V_DL}, v{V_T0}, 12, v{V_DL}")
e(f"s_mov_b32 s{S_P1+3}, 0x20000")
e(f"s_mov_b32 s{S_K+3}, 0x20000")
e(f"s_and_b32 s{S_J}, s{S_U}, 3")
e(f"s_lshl_b32 s{S_T0}, s{S_J}, 14")
e(f"v_add_u32 v{V_DMA}, s{S_T0}, v{V_DL}")
e(f"v_add_u32 v{V_DMA2}, 0x10000, v{V_DMA}")
flag_init()
e("s_waitcnt lgkmcnt(0)")
e(f"s_load_dwordx16 {sr(T,16)}, {sr(S_DK,2)}, s{S_T2}")
stamp(1)
e(f"s_and_b32 s{S_BASE}, s{S_W}, 0xfff")
e(f"s_lshl_b32 s{S_BASE}, s{S_BASE}, 12")
e(f"s_add_u32 s{S_BASE}, s{S_BASE}, s{S_HOFF}")
e(f"s_and_b32 s{S_T0}, s{S_W}, 0x1ff000")
e(f"s_sub_u32 s{S_P1+2}, s{S_T0}, {4096-256}")
e(f"s_bitcmp1_b32 s{S_W}, 28")
e(f"s_cselect_b32 s{S_T2}, 1, 0")
e(f"s_cmp_ge_u32 s{S_U}, 4")
e("s_cbranch_scc1 L_first_kv")
def dma_pass(soff):
    e(f"s_add_u32 s{S_P1}, s4, s{S_BASE}")
    e(f"s_addc_u32 s{S_P1+1}, s5, 0")
    for i in range(8):
        e(f"buffer_load_dwordx4 v{V_DL}, {sr(S_P1,4)}, s{soff} offen lds")
        if i < 7:
            e(f"s_add_u32 m0, m0, {G}")
            e(f"s_addk_i32 s{soff}, 0x4000")
if opt.qprio:
    for w_ in range(3):
        e(f"s_cmp_gt_u32 s{S_U}, {2-w_}")
        e(f"s_cbranch_scc1 L_qp")
        e(f"s_setprio {w_+1}")
    lab("L_qp")
if opt.kfirst == 2: e("s_barrier")
e(f"s_bfe_u32 s{S_T0}, s{S_W}, {25 | 3 << 16:#x}")
e(f"s_cmp_ge_u32 s{S_U}, s{S_T0}")
e("s_cbranch_scc1 L_idle")
if opt.cls != "000000" or opt.hcls or opt.hl != "0000" or "1" in opt.p64:
    assert opt.kfirst == 2
    if opt.hl != "0000":
        e(f"s_lshr_b32 s{S_T0}, s{S_HOFF}, 6")
        e(f"s_and_b32 s{S_T0}, s{S_T0}, 12")
        e(f"s_lshr_b32 s{S_T0}, {sum(int(c) << (4*i) for i, c in enumerate(opt.hl)):#x}, s{S_T0}")
        e(f"s_and_b32 s{S_T0}, s{S_T0}, 15")
    elif opt.hcls == 1: e(f"s_bfe_u32 s{S_T0}, s2, {4 | 1 << 16:#x}")
    elif opt.hcls == 2:
        e(f"s_lshr_b32 s{S_T0}, s2, 3"); e(f"s_and_b32 s{S_T0}, s{S_T0}, 2")
    elif opt.hcls == 3:
        e(f"s_bfe_u32 s{S_T0}, s2, {3 | 2 << 16:#x}"); e(f"s_max_u32 s{S_T0}, s{S_T0}, 1"); e(f"s_sub_u32 s{S_T0}, s{S_T0}, 1"); e(f"s_cmp_lg_u32 s{S_T0}, 0")
    else: e(f"s_bfe_u32 s{S_T0}, s{S_W}, {29 | 2 << 16:#x}")
    e(f"s_cbranch_scc0 L_nohold")
    e(f"s_lshl_b32 s{S_T1}, s{S_T2}, 4")
    e(f"s_add_u32 s{S_T0}, s{S_T0}, s{S_T1}")
    e(f"s_mul_i32 s{S_T0}, s{S_T0}, {G}")
    e(f"s_add_u32 s{S_T0}, s{S_T0}, {FBASE-G}")
    e(f"v_and_b32 v{V_T0}, 3, v{V_LANE}")
    e(f"v_lshl_add_u32 v{V_FA}, v{V_T0}, 2, s{S_T0}")
    e("s_waitcnt lgkmcnt(0)")
    spin("L_hold", 0, sleep=1)
    lab("L_nohold")
e(f"s_mul_i32 s{S_T0}, s{S_T2}, {-3*KSLOT}")
if opt.q4v:
    e(f"s_cmp_gt_u32 s{S_P1+2}, {320*4096}")
    e(f"s_cselect_b32 s{S_T0}, {(-9*KSLOT) & 0xffffffff:#x}, s{S_T0}")
e(f"s_mul_i32 s{S_T1}, s{S_U}, {KSLOT}")
e(f"s_add_u32 s{S_T0}, s{S_T0}, s{S_T1}")
e(f"s_add_u32 m0, s{S_T0}, {kslot(5)}")
e(f"s_bfe_u32 s{S_T0}, s{S_W}, {21 | 4 << 16:#x}")
e(f"s_add_u32 s{S_T0}, s{S_T0}, s{S_U}")
e(f"s_lshl_b32 s{S_T0}, s{S_T0}, 17")
dma_pass(S_T0)
if opt.qprio: e("s_setprio 0")
if opt.kfirst != 2: e("s_barrier")
e("s_waitcnt lgkmcnt(0)")
e(f"s_mov_b32 s{S_J}, {R_MAIN}")
stamp(2)
e("s_branch L_compute")
lab("L_first_kv")
if opt.kfirst == 1: e("s_setprio 3")
e(f"s_add_u32 s{S_K}, s6, s{S_BASE}")
e(f"s_addc_u32 s{S_K+1}, s7, 0")
e(f"s_mov_b32 s{S_K+2}, s{S_P1+2}")
e(f"s_mul_i32 s{S_DK}, s{S_J}, {G}")
e(f"s_mul_i32 s{S_T0}, s{S_T2}, {6*KSLOT}")
e(f"s_add_u32 s{S_T0}, s{S_T0}, s{S_DK}")
e(f"s_add_u32 m0, s{S_T0}, {KBASE}")
e(f"s_mov_b32 s{S_T1}, 0x20000")
e(f"buffer_load_dwordx4 v{V_DMA}, {sr(S_K,4)}, 0 offen lds")
e(f"s_add_u32 m0, m0, {4*G}")
e(f"s_add_u32 s{S_V}, s8, s{S_BASE}")
e(f"buffer_load_dwordx4 v{V_DMA2}, {sr(S_K,4)}, 0 offen lds")
e(f"s_addc_u32 s{S_V+1}, s9, 0")
e(f"s_add_u32 m0, m0, {4*G}")
e(f"s_mov_b32 s{S_V+2}, s{S_P1+2}")
e(f"buffer_load_dwordx4 v{V_DMA}, {sr(S_K,4)}, s{S_T1} offen lds")
e(f"s_add_u32 m0, m0, {4*G}")
e(f"s_mov_b32 s{S_V+3}, 0x20000")
e(f"buffer_load_dwordx4 v{V_DMA2}, {sr(S_K,4)}, s{S_T1} offen lds")
e(f"s_add_u32 m0, m0, {4*G}")
e(f"s_mov_b32 s{S_T1}, 0x40000")
e(f"s_mul_i32 s{S_T0}, s{S_T2}, {16*G}")
e(f"s_lshl_b32 s{S_DV}, s{S_J}, 2")
e(f"s_add_u32 s{S_T0}, s{S_T0}, s{S_DV}")
e(f"s_add_u32 s{S_T0}, s{S_T0}, {FBASE}")
e(f"v_mov_b32 v{V_SIG}, s{S_T0}")
e(f"v_mov_b32 v{V_THRV}, {f32bits(THR):#x}")
e(f"s_lshl_b32 s{S_DV}, s{S_J}, 10")
e(f"s_mul_i32 s{S_T0}, s{S_T2}, {6*VSLOT}")
e("s_barrier")
if opt.kfirst == 1: e("s_setprio 0")
if opt.md and opt.mdq:
    e(f"s_bitcmp1_b32 s{S_W}, 31")
    e("s_cbranch_scc1 L_md_first")
if opt.hold:
    e("s_waitcnt vmcnt(0)")
    if not opt.mdsync: lab("L_md_back")
    e(f"ds_write_b32 v{V_SIG}, v{V_THRV}")
    if opt.mdsync: lab("L_md_back")
    stamp(2)
e(f"buffer_load_dwordx4 v{V_DMA}, {sr(S_K,4)}, s{S_T1} offen lds")
e(f"s_add_u32 m0, m0, {4*G}")
e("s_nop 0")
e(f"buffer_load_dwordx4 v{V_DMA2}, {sr(S_K,4)}, s{S_T1} offen lds")
e(f"s_add_u32 m0, s{S_T0}, s{S_DV}")
e("s_nop 0")
e(f"buffer_load_dwordx4 v{V_DMA}, {sr(S_V,4)}, 0 offen lds")
e(f"s_add_u32 m0, m0, 4096")
e("s_nop 0")
e(f"buffer_load_dwordx4 v{V_DMA2}, {sr(S_V,4)}, 0 offen lds")
if not opt.hold:
    e("s_waitcnt vmcnt(4)")
    e(f"ds_write_b32 v{V_SIG}, v{V_THRV}")
    stamp(2)
e("s_waitcnt lgkmcnt(0)")
e(f"s_add_u32 s{S_BASE}, s{S_HOFF}, s{T_SOFF}")
e(f"s_and_b32 s{S_J}, s{T_PK}, 15")
e(f"s_bitcmp1_b32 s{T_PK}, 6")
e("s_cbranch_scc0 L_pass_done")
e(f"s_mov_b32 s{S_P1+2}, s{T_NREC}")
e(f"s_mov_b32 s{S_T0}, s{T_QOFF}")
e(f"s_mov_b32 m0, s{T_QST}")
dma_pass(S_T0)
lab("L_pass_done")
e(f"s_cmp_ge_u32 s{S_J}, 3")
e("s_cbranch_scc1 L_loaders")
lab("L_compute")
e(f"s_mov_b32 s{S_DK}, s{S_J}")
setup_compute()
prog_addr()
e(f"s_cmp_lg_u32 s{S_DK}, {R_MAIN}")
e("s_cbranch_scc1 L_init")
lab("L_noinit")
e("s_waitcnt vmcnt(0)")
stamp(3)
q_read()
e("s_waitcnt lgkmcnt(0)")
e(f"ds_write_b32 v{V_PA}, v{V_L}")
e(f"s_cmp_lg_u32 s{S_DK}, {R_MAIN}")
e("s_cbranch_scc1 L_scale_h")
e(f"s_mov_b32 s{S_DK}, {f32bits(CSCALE):#x}")
e(f"s_mov_b32 s{S_DV}, {f32bits(CSCALE):#x}")
e(f"s_mov_b32 s{S_T0}, 0xffff0000")
for ks in range(5):
    if ks == 4: e(f"ds_read_b32 v{V_FL}, v{V_FA}")
    qscale(ks)
e("s_waitcnt lgkmcnt(0)")
e(f"v_cmp_gt_f32 vcc, 0, v{V_FL}")
qscale(5)
e("s_cbranch_vccz L_back_pre")
spin("L_spin_pre", 0)
lab("L_back_pre")
def start_stamp():
    stamp(4)
    if opt.stamps == 2:
        e("s_mov_b32 m0, 0")
        e("s_memtime s[100:101]")
start_stamp()
for ks in range(8): e(kread(ks, 0))
qscale(6)
qscale(7)
lab("L_qk0")
for ks in range(8):
    if ks == 0: e("s_waitcnt lgkmcnt(0)")
    if ks == 7: e(f"v_cmp_gt_f32 vcc, 0, v{V_FL}")
    e(mfma(V_S[0], V_K+4*ks, V_Q+4*ks, None if ks == 0 else V_S[0]))
    e(kread(ks, 1*KSLOT))
    if ks == 3: e(f"ds_read_b32 v{V_FL}, v{V_FA} offset:{G}")
    if ks == 6: e("s_waitcnt lgkmcnt(3)")
e("s_cbranch_vccz L_back_pre2")
spin("L_spin_pre2", G)
lab("L_back_pre2")
e("s_nop 7")
iteration(0, False, 2*KSLOT, 0, 2*G, "i0", first=True, prog=f"ds_write_b32 v{V_PA}, v{V_X}",
          last_ops=[f"s_bitcmp1_b32 s{T_PK}, 20", "s_cbranch_scc1 L_leave"])
lab("L_loop")
ma = [(0, [f"s_cmp_eq_u32 s{S_J}, s{S_KWRAP}", f"s_cselect_b32 s{S_DK}, {(-6*KSLOT)&0xffffffff:#x}, s{S_2K}"])]
ma += [(2+4*t, [f"v_add_u32 v{V_KA+t}, s{S_DK}, v{V_KA+t}"]) for t in range(4)]
ma.insert(4, (10, [f"s_cmp_eq_u32 s{S_J}, s{S_NM1}"]))
iteration(1, True, 3*KSLOT, VSLOT, 3*G, "A", misc=ma, last_ops=["s_cbranch_scc1 L_tail_even"], prog=f"ds_write_b32 v{V_PA}, v{V_FA} offset:4")
mb = [(0, [f"s_cmp_eq_u32 s{S_J}, s{S_VWRAP}", f"s_cselect_b32 s{S_DV}, {(-6*VSLOT)&0xffffffff:#x}, s{S_2V}"]),
      (0, [f"s_add_u32 s{S_J}, s{S_J}, 2", f"s_cmp_eq_u32 s{S_J}, s{T_N}"]),
      (8, [f"v_add_u32 v{V_FA}, {2*G}, v{V_FA}"])]
mb += [(9+2*t, [f"v_add_u32 v{V_VA+t}, s{S_DV}, v{V_VA+t}"]) for t in range(4)]
iteration(0, True, 2*KSLOT, 2*VSLOT, 4*G, "B", misc=mb, last_ops=["s_cbranch_scc0 L_loop"], prog=f"ds_write_b32 v{V_PA}, v{V_FA}")
for par, nm in ((1, "odd"), (0, "even")):
    lab(f"L_tail_{nm}")
    kinds = [k for k in (0, 1, 2) if (k, par) in tails_used]
    for k in kinds[1:]:
        e(f"s_bitcmp1_b32 s{T_PK}, {14 + (k-1)}")
        e(f"s_cbranch_scc1 L_tail_{k}_{par}")
    assert kinds[0] == 0 or len(kinds) == 1 or True
    for k in kinds:
        tail(k, par)
merge_code()
lab("L_idle")
if opt.tq and opt.skew:
    e(f"s_cmp_lt_u32 s{S_P1+2}, {400*4096}")
    e("s_cbranch_scc1 L_idle2")
    e(f"s_add_u32 s{S_T0}, s{S_HOFF}, {CU[1]*4096}")
    e(f"s_add_u32 s{S_P1}, s4, s{S_T0}")
    e(f"s_addc_u32 s{S_P1+1}, s5, 0")
    e(f"s_mov_b32 s{S_P1+2}, {(seqL(1)-1)*4096+256}")
    e(f"s_bfe_u32 s{S_T0}, s{S_W}, {21 | 1 << 16:#x}")
    e(f"s_lshl_b32 s{S_T0}, s{S_T0}, 18")
    e(f"s_add_u32 s{S_T0}, s{S_T0}, {4*0x20000:#x}")
    e(f"s_add_u32 s{S_T1}, s{S_T0}, 0x20000")
    e(f"v_lshrrev_b32 v{V_T0}, 1, v{V_LANE}")
    e(f"v_and_b32 v{V_T1}, 1, v{V_LANE}")
    e(f"v_lshlrev_b32 v{V_T1}, 7, v{V_T1}")
    e(f"v_lshl_add_u32 v{V_T0}, v{V_T0}, 12, v{V_T1}")
    e(f"buffer_load_dword v{V_Q}, v{V_T0}, {sr(S_P1,4)}, s{S_T0} offen")
    e(f"buffer_load_dword v{V_Q+1}, v{V_T0}, {sr(S_P1,4)}, s{S_T1} offen")
    lab("L_idle2")
prog_addr()
e(f"v_mov_b32 v{V_T0}, 0x7fffffff")
if opt.kfirst != 2: e("s_barrier")
e(f"ds_write_b32 v{V_PA}, v{V_T0}")
e(f"ds_write_b32 v{V_PA}, v{V_T0} offset:4")
e("s_waitcnt lgkmcnt(0)")
if touches:
    e(f"s_add_u32 s{S_BASE}, s{S_HOFF}, s{T_SOFF}")
    kv_srds(S_K, S_V, S_BASE, f"s{T_NREC}")
    e(f"s_add_u32 s{S_P1}, s4, s{S_BASE}")
    e(f"s_addc_u32 s{S_P1+1}, s5, 0")
    e(f"s_mov_b32 s{S_P1+2}, s{T_NREC}")
    e(f"v_lshrrev_b32 v{V_T0}, 1, v{V_LANE}")
    e(f"v_and_b32 v{V_T1}, 1, v{V_LANE}")
    e(f"v_lshlrev_b32 v{V_T1}, 7, v{V_T1}")
    e(f"v_lshl_add_u32 v{V_T0}, v{V_T0}, 12, v{V_T1}")
    if opt.tstart >= 0:
        e(f"v_and_b32 v{V_FA}, 3, v{V_LANE}")
        e(f"v_lshlrev_b32 v{V_FA}, 2, v{V_FA}")
        e(f"v_add_u32 v{V_FA}, {ent(opt.tstart)}, v{V_FA}")
        spin("L_tstart", 0, sleep=1)
    for i in range(len(touches)):
        e(f"s_cmp_eq_u32 s{T_N}, {i+1}")
        e(f"s_cbranch_scc1 L_touch_{i}")
    finish()
    for i, lst in enumerate(touches):
        lab(f"L_touch_{i}")
        for k, it in enumerate(lst):
            srd = {"Q": S_P1, "K": S_K, "V": S_V}[it[0]]
            e(f"s_mov_b32 s{S_T0}, {int(it[1:])*0x20000:#x}")
            if k >= opt.tw: e(f"s_waitcnt vmcnt({opt.tw-1})")
            e(f"buffer_load_dword v{V_Q+k}, v{V_T0}, {sr(srd,4)}, s{S_T0} offen")
        finish()
else:
    finish()
lab("L_loaders")
for i in range(1, len(programs)):
    e(f"s_cmp_eq_u32 s{S_J}, {3+i}")
    e(f"s_cbranch_scc1 L_prog_{3+i}")
for i, d in enumerate(programs):
    if d[0] == "L2": loader_two_streams(d, 3+i)
    elif d[0] == "MD": md_program(d, 3+i)
    else: loader_single_stream(d, 3+i)
lab("L_leave")
e(f"s_cmp_eq_u32 s{T_N}, 2")
e("s_cbranch_scc1 L_tail_odd")
e("s_branch L_md_loop" if (opt.md and not opt.fake & 1) else "s_branch L_tail_odd")
if opt.md and opt.mdq:
    lab("L_md_first")
    e(f"s_mov_b32 s{S_LO}, m0")
    e(f"s_mul_i32 s{S_2K}, s{S_J}, {KSLOT}")
    e(f"s_add_u32 m0, s{S_2K}, {QH[0]}")
    e(f"s_lshl_b32 s{S_2K}, s{S_U}, 17")
    dma_pass(S_2K)
    e(f"s_mov_b32 m0, s{S_LO}")
    e("s_nop 0" if opt.mdsync == 2 else "s_waitcnt vmcnt(8)")
    e("s_branch L_md_back")
lab("L_scale_h")
for ks in range(8): qscale(ks, False)
spin("L_spin_h", 0, sleep=1)
e(f"s_bitcmp1_b32 s{T_PK}, 18")
e("s_cbranch_scc0 L_helper_go")
e(f"v_and_b32 v{V_T0}, 3, v{V_LANE}")
e(f"v_mul_u32_u24 v{V_T0}, {G}, v{V_T0}")
e(f"v_add_u32 v{V_T0}, {ent(PROG0)}, v{V_T0}")
lab("L_helper_wait")
bound()
e("s_sleep 1")
e(f"ds_read_b32 v{V_FL}, v{V_T0}")
e("s_waitcnt lgkmcnt(0)")
e(f"v_cmp_gt_i32 vcc, 1, v{V_FL}")
e("s_cbranch_vccnz L_helper_wait")
lab("L_helper_go")
e("s_setprio 0")
e(f"s_bitcmp1_b32 s{T_PK}, 16")
e("s_cbranch_scc0 L_helper_go2")
e(f"s_setprio {max(opt.hprio, 0)}")
lab("L_helper_go2")
start_stamp()
for ks in range(8): e(kread(ks, 0))
e("s_branch L_qk0")
lab("L_init")
e(f"s_bitcmp1_b32 s{T_PK}, 19")
e("s_cbranch_scc1 L_init_shared")
e("s_waitcnt vmcnt(8)")
e(f"ds_write_b32 v{V_SIG}, v{V_THRV} offset:{G}")
e("s_branch L_noinit")
lab("L_init_shared")
e("s_waitcnt vmcnt(0)")
e(f"ds_write_b32 v{V_SIG}, v{V_THRV} offset:{G}")
e(f"s_lshr_b32 s{S_T0}, s{T_MB}, 24")
e(f"s_mul_i32 s{S_T0}, s{S_T0}, {G}")
e(f"s_add_u32 s{S_T0}, s{S_T0}, {ent(PROG0)}")
e(f"v_mov_b32 v{V_T0}, s{S_T0}")
lab("L_init_wait")
bound()
e("s_sleep 1")
e(f"ds_read_b32 v{V_FL}, v{V_T0}")
e("s_waitcnt lgkmcnt(0)")
e(f"v_cmp_gt_i32 vcc, 0, v{V_FL}")
e("s_cbranch_vccnz L_init_wait")
e("s_branch L_noinit")
for tag in stage_spins:
    lab(f"L_stg_{tag}")
    bound()
    e("s_sleep 1")
    e(f"ds_read_b32 v{V_FL}, v{V_CK}")
    e("s_waitcnt lgkmcnt(0)")
    e(f"v_cmp_gt_i32 vcc, s{S_T2}, v{V_FL}")
    e(f"s_cbranch_vccnz L_stg_{tag}")
    e(f"s_branch L_stgback_{tag}")
for site in rare_sites:
    rare(*site)
for site in short_rares:
    short_rare(*site)
if opt.stamps:
    lab("L_stamps")
    e(f"s_load_dwordx2 {sr(S_MASK+6,2)}, s[0:1], 48")
    e("s_waitcnt vmcnt(0)")
    e(f"s_memtime {sr(S_MASK, 2)}")
    e(f"s_getreg_b32 s{S_MASK+2}, hwreg(HW_REG_HW_ID)")
    e(f"s_getreg_b32 s{S_MASK+3}, hwreg(HW_REG_XCC_ID)")
    e(f"s_memrealtime {sr(S_MASK+4, 2)}")
    e("s_waitcnt lgkmcnt(0)")
    e(f"s_lshl_b32 s{S_T0}, s2, 3")
    e(f"s_add_u32 s{S_T0}, s{S_T0}, s{S_U}")
    e(f"s_lshl_b32 s{S_T0}, s{S_T0}, 7")
    if opt.stamps == 2:
        e(f"v_writelane_b32 v{V_LANE}, s100, m0")
        e(f"s_lshl_b32 s{S_T1}, s{S_T0}, 1")
        e(f"s_add_u32 s{S_T1}, s{S_T1}, 0x100000")
        e(f"v_mbcnt_lo_u32_b32 v2, -1, 0")
        e(f"v_mbcnt_hi_u32_b32 v2, -1, v2")
        e(f"v_lshl_add_u32 v0, v2, 2, s{S_T1}")
        e(f"global_store_dword v0, v{V_LANE}, {sr(S_MASK+6,2)}")
    e(f"v_mov_b32 v0, s{S_T0}")
    e("s_mov_b64 exec, 1")
    regs = [S_STAMP+i for i in range(10)] + [S_MASK+i for i in range(6)] + [100, 101]
    for i, r_ in enumerate(regs):
        e(f"v_mov_b32 v2, s{r_}")
        e(f"global_store_dword v0, v2, {sr(S_MASK+6,2)} offset:{4*i}")
lab("L_end")
e("s_endpgm")
out.append(".p2align 6")
out.append(".type L_table,@object")
lab("L_table")
for row in table:
    out.append("    .long " + ", ".join(f"{x & 0xffffffff:#x}" for x in row))
out.append(".size L_table, .-L_table")
if opt.pf:
    out.append(".type L_padding,@object")
    lab("L_padding")
    out.append("    .fill 8192, 4, 0")
    out.append(".size L_padding, .-L_padding")
out.append('.section .rodata,"a"')
out.append(".p2align 6")
out.append(f".amdhsa_kernel {NAME}_kernel")
for x in ("next_free_vgpr 256", "next_free_sgpr 102", "accum_offset 256", "group_segment_fixed_size 0", "kernarg_size 56",
          "user_sgpr_count 2", "user_sgpr_kernarg_segment_ptr 1", "system_sgpr_workgroup_id_x 1"):
    out.append("  .amdhsa_" + x)
out.append(".end_amdhsa_kernel")
for i_, o_ in enumerate(out):
    if o_ and o_.rstrip().endswith("offen lds"):
        isq = f"s[{S_P1}:{S_P1+3}]" in o_
        if (isq and opt.ntq) or (not isq and opt.ntkv):
            out[i_] = o_.replace("offen lds", "offen nt lds")
open(sys.argv[1], "w").write("\n".join(o for o in out if o is not None) + "\n")
```

```python
import sys, struct, math

CU = [0, 289, 520, 939, 1289, 1402, 1666, 1973, 2275]
NAME = "standalone__varlen_attn_packed__ragged"
def f32bits(x):
    return struct.unpack("<I", struct.pack("<f", x))[0]

class Opt:
    stamps = 0
    D4 = 5
    D1 = 2
    slack = 3
    npre4 = 2
    hold = 1
    npre1 = 1
    stflag = "sc1"
    hprio = 1
    lprio = 1
    pf = 1
    budget = 24
    ntq = 0
    skew = 1
    w3 = 0
    tlb = 0
    pkt = 0
    npre3 = 2
    qprio = 0
    fake = 0
    p64 = "000"
    c4 = 2
    t6a10 = 5
    t6b10 = 7
    order = 2
    mdsync = 0
    tq = 1
    pace = 0
    tstart = -1
    tp0 = 3
    hl = "0000"
    hcls = 0
    q4v = 1
    md = 1
    mdq = 1
    side = 0
    tw = 0
    t3 = 1
    str4 = 1
    t5 = "433"
    t6b = 6
    D3 = 4
    D5 = 2
    D6 = 3
    D8 = 3
    cls = "000001"
    mprio = 1
    ftail = 1
    kfirst = 2
    ntkv = 0
opt = Opt()
for a in sys.argv[2:]:
    k, v = a.split("=")
    setattr(opt, k, int(v) if v.lstrip("-").isdigit() and k not in ("cls", "t5", "hl", "p64") else v)

G = 1040
QSIG = max(0, max([int(c) for c in opt.hl + opt.cls] + [opt.c4 if '1' in opt.p64 else 0]) - 2)
assert QSIG <= 1
KSLOT = 8 * G
VSLOT = 8192
KBASE = 10 * VSLOT
LDS_BYTES = 163840
FBASE = KBASE + 1024
PROG0 = 32
MRG0 = 40
THR = 16384.0
NWG = 256
def kslot(s): return KBASE + s*KSLOT
def vslot(s): return s*VSLOT
def ent(n): return FBASE + n*G

V_FA, V_LANE, V_PA, V_FL = 0, 1, 2, 3
V_KA = 4
V_VA = 8
V_L, V_PS, V_T0, V_T1 = 12, 13, 14, 15
V_NEGM = 16
V_Q = 32
V_K = 64
V_V = 96
V_S = [128, 144]
V_P = [160, 168]
V_E = 176
V_WA = 184
V_RA, V_SA, V_CK, V_X = 188, 189, 190, 191
V_O = 192
V_DMA, V_DMA2, V_SIG, V_THRV, V_POLL, V_PV, V_DL = 64, 65, 66, 67, 68, 69, 70

S_P1, S_K, S_V, S_O = 16, 20, 24, 28
S_MASK = 32
S_K2, S_V2 = 32, 36
T = 64
(T_SOFF, T_NREC, T_P1S, T_P1L, T_PK, T_QOFF, T_QST, T_KB, T_VB, T_FB, T_N, T_NV, T_OST, T_MB, T_MIN, T_MOUT) = range(T, T+16)
S_U, S_J, S_T0, S_T1, S_DK, S_DV = 80, 81, 82, 83, 84, 85
S_KWRAP, S_VWRAP, S_NM1, S_T2, S_THR, S_LO = 86, 87, 14, 15, 3, 98
S_2K, S_2V = 99, 10
S_BASE = 11
S_STAMP = 88

out = []
def e(s): out.append("    " + s)
def lab(s): out.append(s + ":")
def vr(b, n): return f"v[{b}:{b+n-1}]"
def sr(b, n): return f"s[{b}:{b+n-1}]"
def stamp(i):
    if opt.stamps: e(f"{'s_memrealtime' if opt.stamps >= 3 else 's_memtime'} {sr(S_STAMP + 2*i, 2)}")

R_MAIN, R_INIT, R_IDLE, R_L4, R_L1 = 0, 1, 2, 3, 4
def seqL(s): return CU[s+1]-CU[s]
def seqnk(s): return (seqL(s)+31)//32
programs = []
def prog_id(desc):
    if desc not in programs: programs.append(desc)
    return 3 + programs.index(desc)
tails_used = set()
def entry(role, seq, tile=None, b0=0, n=None, slot0=0, f0=0, qst=0, ost=0, lo=0, hi=0, mb=0, ml=0, mi=None, mo=None,
          init=None, prio=0, ownq=True, qsrc=None, lvl1=0, swait=0, thr=None, alone=False):
    L = seqL(seq); nk = seqnk(seq)
    n = nk - b0 if n is None else n
    nv = L - 32*(b0+n-1)
    if opt.fake & 8 and seq == 2: n -= 2
    second = 1 if (init is not None and tile is not None and qsrc is None and ownq) else 0
    if mi is not None or mo is not None: tail = 2
    elif nv <= 8: tail = 0
    else: tail = 1
    if alone and opt.pkt and tail < 2: tail += 3
    if tile is not None: tails_used.add((tail, (n-1) & 1))
    ring = 1 if nk > 10 else 0
    leave = 1 if n == 2 else 0
    pk = role | leave << 20 | second << 6 | ring << 7 | lo << 8 | hi << 11 | (1 << (21 + tail)) | (1 if prio else 0) << 16 | lvl1 << 17 | swait << 18 | (0 if qsrc is None else 1) << 19
    return [CU[seq]*4096, (L-1)*4096+256, (1 if lvl1 else FBASE) if thr is None else thr, 400000, pk, (tile or 0)*0x20000, qst,
            kslot(slot0+b0), vslot(slot0+b0), ent(f0+b0), n, min(nv, 64), ost, mb | (qsrc or 0) << 24,
            0 if mi is None else ent(MRG0+mi), 0 if mo is None else ent(MRG0+mo)]
MLOFF = vslot(1)
QH = [KBASE - (4-k)*KSLOT for k in range(4)]
table = []
touches = []
def T4(seq, t0, nt, touch=None):
    rows = []
    for w in range(4):
        if w < nt:
            if seqnk(seq) > 10:
                rows.append(entry(R_MAIN, seq, tile=t0+w, qst=(QH[w] if opt.q4v else kslot(5+w)), ost=(vslot(9) if w < 2 else kslot(8))+4096*(w & 1), lo=w, hi=w, alone=True))
            else:
                rows.append(entry(R_MAIN, seq, tile=t0+w, qst=kslot(5+w), ost=vslot(0)+4096*w, lo=0, hi=3))
        else:
            if touch and opt.tw:
                touches.append(touch[1]); r_ = entry(R_IDLE, touch[0]); r_[10] = len(touches); rows.append(r_)
            else:
                r_ = entry(R_IDLE, seq); r_[10] = 0; rows.append(r_)
    pid = prog_id(("L4", seqnk(seq), False, None, opt.D4 if seqnk(seq) > 11 else opt.D3))
    for w in range(4):
        rows.append(entry(pid, seq, init=w))
    return rows
def T5(seq, t0):
    rows = [entry(R_MAIN, seq, tile=t0+w, qst=kslot(5+w), ost=vslot(0)+4096*w, lo=0, hi=4) for w in range(4)]
    cnt = [int(c) for c in opt.t5]; nh = len(cnt)
    assert sum(cnt) == seqnk(seq) and cnt[0] >= 3
    pid = prog_id(("L1", seqnk(seq), nh == 4, 4, opt.D5))
    for h in range(nh):
        rows.append(entry(R_INIT if h < 3 else pid, seq, tile=t0+4, b0=sum(cnt[:h]), n=cnt[h], qst=QH[3], ost=kslot(2),
                          lo=0, hi=(3 if h < nh-1 else 4), mb=kslot(0), mi=(h-1 if h else None), mo=(h if h < nh-1 else None), init=h,
                          prio=opt.hprio, qsrc=(4 if h else None), lvl1=(1 if h < nh-1 else 0), swait=(1 if h == 0 else 0)))
    if nh == 3: rows.append(entry(pid, seq, init=3))
    return rows
def T8(seq):
    pid = prog_id(("MD", seqnk(seq))) if opt.md else prog_id(("L4", seqnk(seq), True, None, opt.D8))
    if opt.md:
        rows = [entry(R_MAIN, seq, tile=w, qst=kslot(5+w), ost=(kslot(8)+4096*w if w < 3 else vslot(0)), lo=(w if w < 3 else 0), hi=(w if w < 3 else 7), alone=True) for w in range(4)]
    else:
        rows = [entry(R_MAIN, seq, tile=w, qst=kslot(5+w), ost=vslot(8)+4096*w, lo=w, hi=w) for w in range(4)]
    for h in range(4):
        r_ = entry(pid, seq, tile=4+h, qst=QH[h], ost=(vslot(8)+4096*h if opt.md else (kslot(8)+4096*h if h < 3 else vslot(0))),
                   lo=(4+h if h < 3 or opt.md else 0), hi=4+h, init=h,
                   ownq=bool(opt.md and not opt.mdq), prio=opt.md)
        if opt.md: r_[4] |= 1 << 20
        rows.append(r_)
    return rows
def T6(seq):
    nk = seqnk(seq)
    pid = prog_id(("L1", nk, True, 5, opt.D6))
    rows = [entry(R_MAIN, seq, tile=w, qst=kslot(5+w), ost=vslot(0)+4096*w, lo=0, hi=5) for w in range(4)]
    na, nb = (5, opt.t6b) if nk == 9 else ((opt.t6a10, opt.t6b10) if nk == 10 else (4, 5))
    spec = [(4, 0, na, None, 0, 0), (5, 0, nb, None, 1, 1), (4, na, nk-na, 0, None, 0), (5, nb, nk-nb, 1, None, 1)]
    for h, (tile, b0, n, mi, mo, buf) in enumerate(spec):
        rows.append(entry(R_INIT if h < 3 else pid, seq, tile=tile, b0=b0, n=n, qst=QH[2+buf], ost=vslot(9 if nk <= 9 else 2)+4096*buf,
                          lo=0, hi=5, mb=kslot(2*buf), mi=mi, mo=mo, init=h, prio=opt.hprio, qsrc=(h+2 if h >= 2 else None),
                          lvl1=(1 if buf == 0 else 0), swait=(1 if h < 2 else 0), thr=(FBASE+2*G if (h >= 2 and nk > 9) else None)))
    return rows
def T34(seqA, seqB, tB0):
    qa = [vslot(1) + k*KSLOT for k in range(4)]
    rows = [entry(R_MAIN, seqA, tile=w, slot0=6, f0=16, qst=kslot(2+w), ost=vslot(0)+4096*w, lo=4, hi=6) for w in range(4)]
    pid = prog_id(("L2", seqA, seqB))
    for h in range(3):
        rows.append(entry(R_INIT, seqB, tile=tB0+h, qst=vslot(2)+h*KSLOT, ost=vslot(2)+4096*h, lo=4, hi=6, init=h, thr=FBASE+2*G, alone=True))
    rows.append(entry(pid, seqB, init=3))
    return rows
def small(seq, t0, nt, two=0):
    return CU[seq] | seqL(seq) << 12 | t0 << 21 | nt << 25 | two << 28
TL8 = "K2 V0 K3 V1 Q4 Q5 Q6 Q7 K4 V2 K5 V3 K6 V4 K7 V5 V6 V7".split()
TL5 = "Q4 Q5 K3 V1 Q6 Q7 K4 V2 K5 V3 K6 V4 K7 V5 K8 V6 V7".split()
def own_touch(nk, par, mod=2):
    o = []
    for p_ in range(opt.tp0, nk):
        if p_ % mod == par:
            if p_+2 < nk: o.append(f"K{p_+2}")
            o.append(f"V{p_}")
    return o
jobs = {"s2a": (lambda: T4(2,0,4), small(2,0,4)), "s2b": (lambda: T4(2,4,4), small(2,4,4)), "s2c": (lambda: T4(2,8,3,(2,own_touch(14,0))), small(2,8,3)),
        "s2d": (lambda: T4(2,11,3,(2,own_touch(14,1))), small(2,11,3)), "T8": (lambda: T8(1), small(1,0,4) | (1 << 31 if opt.md and opt.mdq else 0)),
        "s6a": (lambda: T5(6,0), small(6,0,4)), "s6b": (lambda: T5(6,5), small(6,5,4)), "s7a": (lambda: T5(7,0), small(7,0,4)),
        "s7b": (lambda: T5(7,5), small(7,5,4)), "s0a": (lambda: T5(0,0), small(0,0,4)), "s0b": (lambda: T5(0,5), small(0,5,4)),
        "T6": (lambda: T6(5), small(5,0,4)), "T34": (lambda: T34(4,5,6), small(4,0,4,1)),
        "s3a": (lambda: T4(3,0,4), small(3,0,4)), "s3b": (lambda: T4(3,4,4), small(3,4,4)), "s3c": (lambda: T4(3,8,3,(3,own_touch(11,1)) if opt.t3 else None), small(3,8,3))}
if opt.fake & 1: jobs["T8"] = ((lambda: T6(1)), small(1,0,4))
if opt.fake & 2: jobs["T6"] = ((lambda: T4(5,0,4)), small(5,0,4))
for i_, sq in enumerate((6, 7, 0)):
    if opt.fake & 4:
        jobs[f"s{sq}a"] = ((lambda sq=sq: T4(sq,0,4)), small(sq,0,4))
        jobs[f"s{sq}b"] = ((lambda sq=sq: T4(sq,5,4)), small(sq,5,4))
    if opt.p64[i_] == "1":
        jobs[f"s{sq}a"] = ((lambda sq=sq: T6(sq)), small(sq,0,4))
        jobs[f"s{sq}b"] = ((lambda sq=sq: T4(sq,6,4)), small(sq,6,4) | opt.c4 << 29)
JOBORDER = ["s2a", "s2b", "s2c", "s2d", "T8", "s6a", "s6b",  "s0a", "s0b", "T6", "T34", "s3a", "s3b", "s3c",  "s7a", "s7b"]
if opt.order == 1: JOBORDER = ["T8", "s2a", "s2b", "s6a", "s6b", "s2c", "s2d",  "T6", "T34", "s0a", "s0b", "s3a", "s3b", "s3c",  "s7a", "s7b"]
if opt.order == 2: JOBORDER = ["T8", "s2a", "s2b", "s2c", "s2d", "s6a", "s6b",  "T6", "s0a", "s0b", "T34", "s3a", "s3b", "s3c",  "s7a", "s7b"]
GP = ["T8", "s2a", "s2b", "s2c", "s2d", "s3a", "s3b", "s3c"]
GQ = ["T6", "s6a", "s6b", "s7a", "s7b", "s0a", "s0b", "T34"]
if opt.skew == 2: JOBORDER = GP + GQ
if opt.skew == 3: JOBORDER = GQ + GP
stab = []
for j in JOBORDER:
    k_ = {"s2": 0, "T8": 1, "s6": 2, "s7": 2, "s0": 2, "T6": 3, "T3": 4, "s3": 5}[j[:2]]
    w_ = jobs[j][1] | int(opt.cls[k_]) << 29
    if k_ == 2 and opt.w3: w_ = jobs[j][1] | 1 << 25 | opt.w3 << 29
    table += jobs[j][0](); stab.append(w_)
assert len(table) == 128

def mfma(d, a, b, c):
    cs = "0" if c is None else vr(c, 16)
    return f"v_mfma_f32_32x32x16_bf16 {vr(d,16)}, {vr(a,4)}, {vr(b,4)}, {cs}"
def kread(ks, off):
    return f"ds_read_b128 {vr(V_K+4*ks,4)}, v{V_KA+(ks>>1)} offset:{off+(ks&1)*32}"
def vread(i, jj, off, base=V_V):
    kg, dt = i >> 2, i & 3
    return f"ds_read_b64_tr_b16 {vr(base+4*i+2*jj,2)}, v{V_VA+dt} offset:{off+jj*2048+kg*4096}"
def E(r): return V_E + (r & 7)

def softmax_list(par, R=16, mask=False):
    S, P = V_S[par], V_P[par]
    def ex(r):
        o = []
        if mask:
            if r == 0: o.append(f"v_cndmask_b32 v{S}, v{V_T1}, v{S}, {sr(S_MASK,2)}")
            if r+1 < R: o.append(f"v_cndmask_b32 v{S+r+1}, v{V_T1}, v{S+r+1}, {sr(S_MASK+2*r+2,2)}")
        o.append(f"v_exp_f32 v{E(r)}, v{S+r}")
        return o
    ops = ex(0) + ex(1)
    for r in range(2, R+1):
        if r < R: ops += ex(r)
        q = r - 1
        if q == 1: ops.append(f"v_add_f32 v{V_PS}, v{E(0)}, v{E(1)}")
        else: ops.append(f"v_add_f32 v{V_PS}, v{V_PS}, v{E(q)}")
        if q & 1: ops.append(f"v_cvt_pk_bf16_f32 v{P+(q>>1)}, v{E(q-1)}, v{E(q)}")
    return ops

def cost(x):
    if x.startswith("v_exp") or x.startswith("v_rcp") or x.startswith("v_permlane"): return 8
    if x.startswith("s_cbranch"): return 12
    return 4

rare_sites = []
def itstamp():
    if opt.stamps == 2:
        e(f"v_writelane_b32 v{V_LANE}, s100, m0")
        e("s_add_u32 m0, m0, 1")
        e("s_memtime s[100:101]")

def iteration(par, do_pv, koff, voff, foff, tag, first=False, misc=None, last_ops=None, extra=None, prog=None):
    itstamp()
    mf = []
    for i in range(8):
        mf.append(("qk", i))
        if do_pv: mf.append(("pv", i))
    n = len(mf)
    fixed = [[] for _ in range(n)]
    for g, (kind, i) in enumerate(mf):
        if kind == "qk":
            fixed[g].append(kread(i, koff))
            if not do_pv: fixed[g] += [vread(i, 0, voff), vread(i, 1, voff)]
        else:
            fixed[g] += [vread(i, 0, voff), vread(i, 1, voff)]
    fgap = 4 if n == 16 else 3
    fixed[fgap].append(f"ds_read_b32 v{V_FL}, v{V_FA} offset:{foff}")
    if prog: fixed[8 if n == 16 else 4].append(prog)
    q = []
    if not first: q.append(f"v_add_f32 v{V_L}, v{V_L}, v{V_PS}")
    q += softmax_list(par)
    if n != 16: q.append("WAITFLAG")
    q.append(f"v_cmp_lt_f32 vcc, v{V_FL}, v{V_PS}")
    if first: q.append(f"v_cmp_gt_f32 {sr(S_DK,2)}, s{S_LO}, v{V_PS}")
    misc = [(g_, x) for g_, ops in (misc or []) for x in ops]
    budget = opt.budget if n == 16 else (sum(cost(x) for x in q) + sum(4*len(f) for f in fixed) + n - 1)//n + 4
    nl = 0
    for g, (kind, i) in enumerate(mf):
        if n == 16:
            if g == 0: e("s_waitcnt lgkmcnt(12)")
            if g == 8: e("s_waitcnt lgkmcnt(5)")
        else:
            if g == 0: e("s_waitcnt lgkmcnt(4)")
            if g == 2: e("s_waitcnt lgkmcnt(6)")
        if kind == "qk":
            e(mfma(V_S[1-par], V_K+4*i, V_Q+4*i, V_NEGM if i == 0 else V_S[1-par]))
        else:
            kg, dt = i >> 2, i & 3
            e(mfma(V_O+16*dt, V_V+4*i, V_P[1-par]+4*kg, V_O+16*dt))
        used = 0
        for x in fixed[g]:
            e(x); used += 4
        if g > fgap: nl += len(fixed[g])
        for x in (extra or {}).get(g, []):
            e(x)
            assert not x.startswith("ds_")
        nw = 4 if (n == 16 and g+1 in (8, 16)) else 0
        lastgap = g == n-1
        while q and (used + cost(q[0]) + nw <= budget or lastgap):
            x = q.pop(0)
            if x == "WAITFLAG": x = f"s_waitcnt lgkmcnt({min(nl, 15)})"
            e(x); used += cost(x)
        while misc and misc[0][0] <= g and (used + cost(misc[0][1]) + nw <= budget or lastgap):
            x = misc.pop(0)[1]
            assert not x.startswith("ds_")
            e(x); used += cost(x)
    assert not q and not misc
    if first: e(f"s_or_b64 vcc, vcc, {sr(S_DK,2)}")
    e(f"s_cbranch_vccnz L_rare_{tag}")
    lab(f"L_back_{tag}")
    for x in (last_ops or []): e(x)
    rare_sites.append((tag, par, foff - (2*G if tag.startswith("B") else 0), first, 16))

def blockmax(S, t0, t1, R=16):
    if R == 16:
        e(f"v_max3_f32 v{t0}, v{S}, v{S+1}, v{S+2}")
        e(f"v_max3_f32 v{t1}, v{S+3}, v{S+4}, v{S+5}")
        e(f"v_max3_f32 v{t0}, v{t0}, v{S+6}, v{S+7}")
        e(f"v_max3_f32 v{t1}, v{t1}, v{S+8}, v{S+9}")
        e(f"v_max3_f32 v{t0}, v{t0}, v{S+10}, v{S+11}")
        e(f"v_max3_f32 v{t1}, v{t1}, v{S+12}, v{S+13}")
        e(f"v_max3_f32 v{t0}, v{t0}, v{S+14}, v{S+15}")
        e(f"v_max_f32 v{t0}, v{t0}, v{t1}")
    else:
        e(f"v_max3_f32 v{t0}, v{S}, v{S+1}, v{S+2}")
        e(f"v_max_f32 v{t0}, v{t0}, v{S+3}")
    e(f"v_mov_b32 v{t1}, v{t0}")
    e("s_nop 1")
    e(f"v_permlane32_swap_b32 v{t0}, v{t1}")
    e("s_nop 1")
    e(f"v_max_f32 v{t0}, v{t0}, v{t1}")

def bound():
    e(f"s_cselect_b32 s{T_SOFF}, 1, 0")
    e(f"s_sub_u32 s{T_P1L}, s{T_P1L}, 1")
    e("s_cbranch_scc1 L_end")
    e(f"s_cmp_lg_u32 s{T_SOFF}, 0")

def spin(label, foff, sleep=0):
    lab(label)
    bound()
    if sleep: e(f"s_sleep {sleep}")
    e(f"ds_read_b32 v{V_FL}, v{V_FA} offset:{foff}")
    e("s_waitcnt lgkmcnt(0)")
    e(f"v_cmp_gt_f32 vcc, 0, v{V_FL}")
    e(f"s_cbranch_vccnz {label}")

def rare(tag, par, foff, first, R, pprev=False):
    S, Sn = V_S[par], V_S[1-par]
    lab(f"L_rare_{tag}")
    if foff is not None:
        e(f"v_cmp_lt_f32 vcc, s{S_THR}, v{V_PS}")
        if first:
            e("s_nop 1")
            e(f"s_or_b64 vcc, vcc, {sr(S_DK,2)}")
        e(f"s_cbranch_vccz L_spin_{tag}")
    e("s_nop 15")
    e("s_nop 7")
    blockmax(S, V_E, V_E+1, R)
    if first:
        e(f"v_mov_b32 v{V_T0}, v{V_E}")
    else:
        e(f"v_max_f32 v{V_T0}, 0, v{V_E}")
        e(f"v_sub_f32 v{V_E+1}, 0, v{V_T0}")
        e(f"v_exp_f32 v{V_E+1}, v{V_E+1}")
    for r in range(16):
        e(f"v_sub_f32 v{S+r}, v{S+r}, v{V_T0}")
        if foff is not None: e(f"v_sub_f32 v{Sn+r}, v{Sn+r}, v{V_T0}")
        e(f"v_sub_f32 v{V_NEGM+r}, v{V_NEGM+r}, v{V_T0}")
    if not first:
        for r in range(64):
            e(f"v_mul_f32 v{V_O+r}, v{V_O+r}, v{V_E+1}")
        e(f"v_mul_f32 v{V_L}, v{V_L}, v{V_E+1}")
    for x in softmax_list(par, R): e(x)
    e("s_nop 1")
    if foff is not None: spin(f"L_spin_{tag}", foff)
    e(f"s_branch L_back_{tag}")

def finish():
    if opt.stamps == 4: stamp(2)
    e("s_branch L_stamps" if opt.stamps else "s_endpgm")

stage_spins = []
V_WB = V_NEGM + 8
def norm_ops(dt, pk=False):
    o = V_O+16*dt; ops = []
    for rq in range(4):
        if pk: ops += [f"v_pk_mul_f32 {vr(o+4*rq+2*k,2)}, {vr(o+4*rq+2*k,2)}, {vr(V_L,2)} op_sel_hi:[1,0]" for k in range(2)]
        else: ops += [f"v_mul_f32 v{o+4*rq+r}, v{o+4*rq+r}, v{V_L}" for r in range(4)]
        t = V_E + 2*rq
        ops.append(f"v_cvt_pk_bf16_f32 v{t}, v{o+4*rq}, v{o+4*rq+1}")
        ops.append(f"v_cvt_pk_bf16_f32 v{t+1}, v{o+4*rq+2}, v{o+4*rq+3}")
        ops.append(f"ds_write_b64 v{(V_WB if dt & 1 else V_WA)+rq}, {vr(t,2)}")
    return ops
def rd_ops(p):
    return [f"ds_read_b128 {vr(V_Q+16*p+4*i,4)}, v{V_RA} offset:{i*1024}" for i in range(4)]
ST_SOFF = [T_QOFF, S_T1, S_T0, S_DK]
def st_op(p, i):
    fl = opt.stflag.replace('+', ' ')
    return f"buffer_store_dwordx4 {vr(V_Q+16*p+4*i,4)}, v{V_SA}, {sr(S_O,4)}, s{ST_SOFF[i]} offen offset:{128*p} {fl}".rstrip()
def store_prep():
    return [f"s_add_u32 s{ST_SOFF[i]}, s{T_QOFF}, {i*0x8000:#x}" for i in (1, 2, 3)] + \
           [f"v_xor_b32 v{V_WB+rq}, 64, v{V_WA+rq}" for rq in range(4)]
def store_stream(pk):
    n1 = norm_ops(1)[:7] + norm_ops(1, pk)[(5 if pk else 7):]
    s = norm_ops(0) + n1 + rd_ops(0)
    n2, n3 = norm_ops(2, pk), norm_ops(3, pk)
    u = 5 if pk else 7
    if pk: s += n2[:3*u] + ["s_waitcnt lgkmcnt(3)", st_op(0, 0)] + n2[3*u:] + [st_op(0, 1)] + n3[:u] + [st_op(0, 2)] + n3[u:2*u] + [st_op(0, 3)] + n3[2*u:]
    else: s += n2[:14] + ["s_waitcnt lgkmcnt(2)", st_op(0, 0)] + n2[14:21] + [st_op(0, 1)] + n2[21:] + [st_op(0, 2)] + n3[:7] + [st_op(0, 3)] + n3[7:]
    s += rd_ops(1)
    for i in range(4):
        s += [f"s_waitcnt lgkmcnt({3-i})", st_op(1, i)]
    return s

def tail(kind, par):
    tag = f"T{kind}{par}"
    lab(f"L_tail_{kind}_{par}")
    if opt.stamps == 4: stamp(1)
    itstamp()
    pk = kind >= 3
    if pk: kind -= 3
    if kind == 0 and opt.ftail:
        return tail_short(par, tag, pk)
    voff = VSLOT if par else 2*VSLOT
    R = 4 if kind == 0 else 16
    nkg = 1 if kind == 0 else 2
    a = lambda i: mfma(V_O+16*(i & 3), V_V+4*i, V_P[1-par]+4*(i >> 2), V_O+16*(i & 3))
    f = lambda i: mfma(V_O+16*(i & 3), V_K+4*i, V_P[par]+4*(i >> 2), V_O+16*(i & 3))
    reads = [vread(i, jj, voff, V_K) for i in range(4*nkg) for jj in range(2)]
    q = [f"v_add_f32 v{V_L}, v{V_L}, v{V_PS}"] + softmax_list(par, R, mask=True)
    if kind == 0: q += [f"v_mov_b64 {vr(V_P[par]+2,2)}, 0"]
    q += [f"v_cmp_lt_f32 vcc, s{S_THR}, v{V_PS}"]
    per = (sum(cost(x) for x in q) + 4*len(reads) + 7)//8 + 4
    per = max(per, 24)
    e("s_waitcnt lgkmcnt(12)")
    nrd = 0
    for g in range(8):
        if g == 4:
            e(f"s_waitcnt lgkmcnt({nrd})")
        e(a(g)); used = 0
        if g == 4:
            e(f"ds_write_b32 v{V_PA}, v{V_FA}")
            e(f"ds_read_b32 v{V_FL}, v{V_CK}")
            used += 8
        for _ in range(2):
            if reads:
                e(reads.pop(0)); used += 4; nrd += 1
        while q and (used + cost(q[0]) <= per or g == 7):
            x = q.pop(0); e(x); used += cost(x)
    e(f"s_cbranch_vccnz L_rare_{tag}")
    lab(f"L_back_{tag}")
    rare_sites.append((tag, par, None, False, R))
    e(f"v_add_f32 v{V_L}, v{V_L}, v{V_PS}")
    e("s_waitcnt lgkmcnt(0)")
    e(f"v_cmp_gt_i32 vcc, s{S_T2}, v{V_FL}")
    fin = [i + 4*k for i in range(4) for k in range(nkg)]
    if kind == 2:
        for i in fin: e(f(i))
        e(f"s_cbranch_vccnz L_stg_{tag}")
        lab(f"L_stgback_{tag}")
        stage_spins.append(tag)
        e("s_branch L_merge")
        return
    e(f"v_mov_b32 v{V_T0}, v{V_L}")
    for _ in range(nkg): e(f(fin.pop(0)))
    e("s_nop 0")
    e(f"v_permlane32_swap_b32 v{V_L}, v{V_T0}")
    e(f"s_cbranch_vccnz L_stg_{tag}")
    lab(f"L_stgback_{tag}")
    stage_spins.append(tag)
    e(f(fin.pop(0)))
    e(f"v_add_f32 v{V_L}, v{V_L}, v{V_T0}")
    e(f"v_rcp_f32 v{V_L}, v{V_L}")
    e(f(fin.pop(0)))
    for x in store_prep(): e(x)
    cnt = 6
    for x in store_stream(pk):
        if x.startswith("NEED"): continue
        if fin and cnt >= 6:
            e(f(fin.pop(0))); cnt = 0
        e(x); cnt += 1
    itstamp()
    finish()

short_rares = []
def tail_short(par, tag, pk):
    voff = VSLOT if par else 2*VSLOT
    a = lambda i: mfma(V_O+16*(i & 3), V_V+4*i, V_P[1-par]+4*(i >> 2), V_O+16*(i & 3))
    f = lambda i: mfma(V_O+16*i, V_K+4*i, V_P[par], V_O+16*i)
    rd = [vread(i, jj, voff, V_K) for i in range(4) for jj in range(2)]
    sm = softmax_list(par, 4, mask=True)
    e("s_waitcnt lgkmcnt(12)")
    e(a(0))
    for x in rd[:4]: e(x)
    e(f"v_add_f32 v{V_L}, v{V_L}, v{V_PS}")
    for x in sm[:5]: e(x)
    e("s_waitcnt lgkmcnt(4)")
    e(a(4))
    e(f"ds_write_b32 v{V_PA}, v{V_FA}")
    e(f"ds_read_b32 v{V_FL}, v{V_CK}")
    for x in rd[4:]: e(x)
    for x in sm[5:9]: e(x)
    e(a(1))
    for x in sm[9:]: e(x)
    e(f"v_mov_b64 {vr(V_P[par]+2,2)}, 0")
    e(f"v_cmp_lt_f32 vcc, s{S_THR}, v{V_PS}")
    e(a(5))
    e(f"v_add_f32 v{V_T0}, v{V_L}, v{V_PS}")
    e(f"v_add_f32 v{V_X}, v{V_L}, v{V_PS}")
    e(f"s_cbranch_vccnz L_rare_{tag}")
    short_rares.append((tag, par))
    e("s_waitcnt lgkmcnt(4)")
    e(f(0))
    e(f"v_permlane32_swap_b32 v{V_T0}, v{V_X}")
    e(f"v_cmp_gt_i32 vcc, s{S_T2}, v{V_FL}")
    e(f(1))
    e(f"v_add_f32 v{V_L}, v{V_T0}, v{V_X}")
    e(f"v_rcp_f32 v{V_L}, v{V_L}")
    e(f"s_cbranch_vccnz L_stg_{tag}")
    lab(f"L_stgback_{tag}")
    stage_spins.append(tag)
    e(a(2))
    for x in store_prep(): e(x)
    e("s_waitcnt lgkmcnt(0)")
    rest = [a(6), f(2), a(3), a(7), f(3)]
    cnt = 5
    for x in store_stream(pk):
        if x.startswith("NEED"): continue
        if rest and cnt >= 5:
            e(rest.pop(0)); cnt = 0
        e(x); cnt += 1
    itstamp()
    finish()
def short_rare(tag, par):
    a = lambda i: mfma(V_O+16*(i & 3), V_V+4*i, V_P[1-par]+4*(i >> 2), V_O+16*(i & 3))
    f = lambda i: mfma(V_O+16*i, V_K+4*i, V_P[par], V_O+16*i)
    lab(f"L_rare_{tag}")
    for i in (2, 6, 3, 7): e(a(i))
    rare(tag + "x", par, None, False, 4)
    lab(f"L_back_{tag}x")
    e("s_waitcnt lgkmcnt(0)")
    for i in range(4): e(f(i))
    e(f"v_add_f32 v{V_L}, v{V_L}, v{V_PS}")
    e(f"v_mov_b32 v{V_T0}, v{V_L}")
    lab(f"L_stg_{tag}x")
    bound()
    e(f"ds_read_b32 v{V_FL}, v{V_CK}")
    e("s_waitcnt lgkmcnt(0)")
    e(f"v_cmp_gt_i32 vcc, s{S_T2}, v{V_FL}")
    e(f"s_cbranch_vccnz L_stg_{tag}x")
    e(f"v_permlane32_swap_b32 v{V_L}, v{V_T0}")
    e("s_nop 1")
    e(f"v_add_f32 v{V_L}, v{V_L}, v{V_T0}")
    e("s_branch L_store")

def merge_code():
    lab("L_merge")
    MA, ML = V_KA, V_KA+1
    if opt.mprio:
        e(f"s_cmp_eq_u32 s{T_MOUT}, 0")
        e("s_cbranch_scc1 L_merge_keep")
        e("s_setprio 0")
        lab("L_merge_keep")
    e(f"v_mov_b32 v{V_T1}, v{V_L}")
    e(f"v_mbcnt_lo_u32_b32 v{V_T0}, -1, 0")
    e(f"v_mbcnt_hi_u32_b32 v{V_T0}, -1, v{V_T0}")
    e(f"s_and_b32 s{T_MB}, s{T_MB}, 0xffffff")
    e(f"v_permlane32_swap_b32 v{V_L}, v{V_T1}")
    e(f"v_lshl_add_u32 v{MA}, v{V_T0}, 4, s{T_MB}")
    e(f"s_cmp_eq_u32 s{T_MB}, {KBASE}")
    e(f"s_cselect_b32 s{S_T0}, {ent(48)}, {ent(16)}") if False else None
    e(f"s_cselect_b32 s{S_T0}, {32*G}, 0")
    e(f"v_add_f32 v{V_L}, v{V_L}, v{V_T1}")
    e(f"s_add_u32 s{S_T0}, s{S_T0}, {ent(16)}")
    e(f"v_bfe_u32 v{ML}, v{V_T0}, 1, 4")
    e(f"v_mul_u32_u24 v{ML}, {G}, v{ML}")
    e(f"v_and_b32 v{V_T0}, 1, v{V_T0}")
    e(f"v_lshl_add_u32 v{ML}, v{V_T0}, 3, v{ML}")
    e(f"v_add_u32 v{ML}, s{S_T0}, v{ML}")
    e(f"s_cmp_eq_u32 s{T_MIN}, 0")
    e("s_cbranch_scc1 L_merge_out")
    e(f"v_mov_b32 v{V_FA}, s{T_MIN}")
    spin("L_merge_wait", 0, sleep=1)
    e(f"ds_read_b64 {vr(V_E,2)}, v{ML}")
    for i in range(12):
        e(f"ds_read_b128 {vr(V_K+4*i,4)}, v{MA} offset:{i*G}")
    e("s_waitcnt lgkmcnt(12)")
    e(f"v_cmp_neq_f32 vcc, v{V_NEGM}, v{V_E}")
    for i in range(12, 16):
        e(f"ds_read_b128 {vr(V_K+4*i,4)}, v{MA} offset:{i*G}")
    e("s_cbranch_vccnz L_merge_slow")
    lab("L_merge_add")
    e(f"v_add_f32 v{V_L}, v{V_L}, v{V_E+1}")
    e(f"s_cmp_lg_u32 s{T_MOUT}, 0")
    for i in range(4):
        e(f"s_waitcnt lgkmcnt({12-4*i})")
        for r in range(16*i, 16*i+16):
            e(f"v_add_f32 v{V_O+r}, v{V_O+r}, v{V_K+r}")
    e("s_cbranch_scc1 L_merge_out")
    lab("L_store")
    e(f"v_rcp_f32 v{V_L}, v{V_L}")
    for x in store_prep(): e(x)
    for x in store_stream(False):
        if not x.startswith("NEED"): e(x)
    itstamp()
    finish()
    lab("L_merge_slow")
    e(f"v_min_f32 v{V_E+2}, v{V_NEGM}, v{V_E}")
    e(f"v_sub_f32 v{V_E+4}, v{V_E+2}, v{V_NEGM}")
    e(f"v_sub_f32 v{V_E+6}, v{V_E+2}, v{V_E}")
    e(f"v_exp_f32 v{V_E+4}, v{V_E+4}")
    e(f"v_exp_f32 v{V_E+6}, v{V_E+6}")
    e(f"v_mov_b32 v{V_NEGM}, v{V_E+2}")
    e(f"v_mul_f32 v{V_L}, v{V_L}, v{V_E+4}")
    e(f"v_mul_f32 v{V_E+1}, v{V_E+1}, v{V_E+6}")
    e("s_waitcnt lgkmcnt(0)")
    for r in range(64):
        e(f"v_mul_f32 v{V_O+r}, v{V_O+r}, v{V_E+4}")
        e(f"v_mul_f32 v{V_K+r}, v{V_K+r}, v{V_E+6}")
    e("s_branch L_merge_add")
    lab("L_merge_out")
    e(f"v_mov_b32 v{V_E}, v{V_NEGM}")
    e(f"v_mov_b32 v{V_E+1}, v{V_L}")
    e(f"v_mov_b32 v{V_FA}, s{T_MOUT}")
    e(f"v_mov_b32 v{V_T0}, 1.0")
    e(f"ds_write_b64 v{ML}, {vr(V_E,2)}")
    for i in range(16):
        e(f"ds_write_b128 v{MA}, {vr(V_O+4*i,4)} offset:{i*G}")
    e(f"ds_write_b32 v{V_FA}, v{V_T0}")
    e("s_waitcnt lgkmcnt(0)")
    itstamp()
    finish()

def setup_compute():
    e(f"s_mov_b32 s{S_O+2}, s{T_NREC}" if not opt.fake & 16 else f"s_mov_b32 s{S_O+2}, 0")
    e(f"s_mov_b32 s{S_O+3}, 0x20000")
    e(f"s_add_u32 s{S_O}, s12, s{S_BASE}")
    e(f"s_addc_u32 s{S_O+1}, s13, 0")
    e(f"v_and_b32 v{V_T0}, 3, v{V_LANE}")
    e(f"v_lshl_add_u32 v{V_FA}, v{V_T0}, 2, s{T_FB}")
    e(f"v_bfe_u32 v{V_T1}, v{V_LANE}, 2, 3")
    e(f"v_mul_u32_u24 v{V_T1}, {G}, v{V_T1}")
    e(f"v_lshl_add_u32 v{V_T1}, v{V_T0}, 8, v{V_T1}")
    e(f"v_lshrrev_b32 v{V_L}, 5, v{V_LANE}")
    e(f"v_lshl_add_u32 v{V_T1}, v{V_L}, 4, v{V_T1}")
    for t in range(4):
        e(f"v_xor_b32 v{V_KA+t}, {t}, v{V_T0}")
        e(f"v_lshl_add_u32 v{V_KA+t}, v{V_KA+t}, 6, v{V_T1}")
        e(f"v_add_u32 v{V_E+t}, s{T_QST}, v{V_KA+t}")
        e(f"v_add_u32 v{V_KA+t}, s{T_KB}, v{V_KA+t}")
    e(f"v_lshrrev_b32 v{V_T1}, 3, v{V_LANE}")
    e(f"v_and_b32 v{V_T0}, 7, v{V_LANE}")
    e(f"v_lshlrev_b32 v{V_PS}, 4, v{V_T0}")
    e(f"v_lshl_add_u32 v{V_SA}, v{V_T1}, 12, v{V_PS}")
    e(f"v_xor_b32 v{V_T1}, v{V_T1}, v{V_LANE}")
    e(f"v_lshl_add_u32 v{V_RA}, v{V_T1}, 4, s{T_OST}")
    e(f"v_and_b32 v{V_T1}, 31, v{V_LANE}")
    e(f"v_lshl_add_u32 v{V_T1}, v{V_T1}, 7, s{T_OST}")
    e(f"v_lshl_add_u32 v{V_T1}, v{V_L}, 3, v{V_T1}")
    for rq in range(4):
        e(f"v_xor_b32 v{V_WA+rq}, {rq}, v{V_T0}")
        e(f"v_lshl_add_u32 v{V_WA+rq}, v{V_WA+rq}, 4, v{V_T1}")
    e(f"v_bfe_u32 v{V_T0}, v{V_LANE}, 2, 2")
    e(f"v_lshl_add_u32 v{V_T1}, v{V_L}, 2, v{V_T0}")
    e(f"v_lshl_add_u32 v{V_T1}, v{V_T1}, 8, s{T_VB}")
    e(f"v_bfe_u32 v{V_PS}, v{V_LANE}, 4, 1")
    e(f"v_lshl_add_u32 v{V_T1}, v{V_PS}, 5, v{V_T1}")
    e(f"v_and_b32 v{V_PS}, 3, v{V_LANE}")
    e(f"v_lshl_add_u32 v{V_T1}, v{V_PS}, 3, v{V_T1}")
    for dt in range(4):
        e(f"v_xor_b32 v{V_VA+dt}, {dt}, v{V_T0}")
        e(f"v_lshl_add_u32 v{V_VA+dt}, v{V_VA+dt}, 6, v{V_T1}")
    e(f"s_bfe_u32 s{S_T0}, s{T_PK}, {8 | 3 << 16:#x}")
    e(f"s_bfe_u32 s{S_T1}, s{T_PK}, {11 | 3 << 16:#x}")
    e(f"v_and_b32 v{V_CK}, 7, v{V_LANE}")
    e(f"v_max_u32 v{V_CK}, s{S_T0}, v{V_CK}")
    e(f"v_min_u32 v{V_CK}, s{S_T1}, v{V_CK}")
    e(f"v_mul_u32_u24 v{V_CK}, {G}, v{V_CK}")
    e(f"v_add_u32 v{V_CK}, {ent(PROG0)}, v{V_CK}")
    e(f"v_lshlrev_b32 v{V_T0}, 2, v{V_L}")
    e(f"v_sub_u32 v{V_T0}, s{T_NV}, v{V_T0}")
    for r in range(16):
        e(f"v_cmp_lt_i32 {sr(S_MASK+2*r,2)}, {(r & 3) + 8*(r >> 2)}, v{V_T0}")
    for r in range(0, 64, 2): e(f"v_mov_b64 {vr(V_O+r,2)}, 0")
    for r in range(0, 16, 2): e(f"v_mov_b64 {vr(V_NEGM+r,2)}, 0")
    e(f"v_mov_b32 v{V_L}, 0")
    e(f"v_mov_b32 v{V_T1}, 0xff800000")
    e(f"v_mov_b32 v{V_X}, 1")
    e(f"s_mov_b32 s{S_LO}, {f32bits(1.0/THR):#x}")
    e(f"s_mov_b32 s{S_THR}, {f32bits(THR):#x}")
    e(f"s_bitcmp1_b32 s{T_PK}, 7")
    e(f"s_cselect_b32 s{S_KWRAP}, 6, 0")
    e(f"s_cselect_b32 s{S_VWRAP}, 8, 0")
    e(f"s_mov_b32 s{S_2K}, {2*KSLOT}")
    e(f"s_mov_b32 s{S_2V}, {2*VSLOT}")
    e(f"s_mov_b32 s{S_J}, 2")
    e(f"s_sub_u32 s{S_NM1}, s{T_N}, 1")
    e(f"s_mov_b32 s{S_T2}, s{T_P1S}")

def prog_addr():
    e(f"s_mul_i32 s{S_T0}, s{S_U}, {G}")
    e(f"s_add_u32 s{S_T0}, s{S_T0}, {ent(PROG0)}")
    e(f"v_mov_b32 v{V_PA}, s{S_T0}")

def q_read():
    for ks in range(8):
        e(f"ds_read_b128 {vr(V_Q+4*ks,4)}, v{V_E+(ks>>1)} offset:{(ks&1)*32}")

CSCALE = math.log2(math.e) / math.sqrt(128.0)
def qscale(ks, pk=True):
    tb = V_S[1] + 8*(ks & 1)
    for k in range(4):
        r = V_Q+4*ks+k
        e(f"v_lshlrev_b32 v{tb+2*k}, 16, v{r}")
        e(f"v_and_b32 v{tb+2*k+1}, {f's{S_T0}' if pk else '0xffff0000'}, v{r}")
    for k in range(4):
        if pk:
            e(f"v_pk_mul_f32 {vr(tb+2*k,2)}, {vr(tb+2*k,2)}, {sr(S_DK,2)}")
        else:
            e(f"v_mul_f32 v{tb+2*k}, {f32bits(CSCALE):#x}, v{tb+2*k}")
            e(f"v_mul_f32 v{tb+2*k+1}, {f32bits(CSCALE):#x}, v{tb+2*k+1}")
    for k in range(4):
        e(f"v_cvt_pk_bf16_f32 v{V_Q+4*ks+k}, v{tb+2*k}, v{tb+2*k+1}")

def flag_init():
    e(f"v_mul_u32_u24 v{V_T0}, {G}, v{V_LANE}")
    e(f"v_add_u32 v{V_T0}, {FBASE}, v{V_T0}")
    for k in range(4): e(f"v_mov_b32 v{V_V+k}, -1.0")
    e(f"ds_write_b128 v{V_T0}, {vr(V_V,4)}")

def init_signal_regs(f0):
    e(f"s_and_b32 s{S_T0}, s{S_U}, 3")
    e(f"s_lshl_b32 s{S_T0}, s{S_T0}, 2")
    if f0 is None:
        e(f"s_cmp_lt_u32 s{S_U}, 4")
        e(f"s_cselect_b32 s{S_T1}, {16*G}, 0")
        e(f"s_add_u32 s{S_T0}, s{S_T0}, s{S_T1}")
    e(f"s_add_u32 s{S_T0}, s{S_T0}, {FBASE}")
    e(f"v_mov_b32 v{V_SIG}, s{S_T0}")
    e(f"v_mov_b32 v{V_THRV}, {f32bits(THR):#x}")

def kv_srds(sk, sv, base_s, nrec):
    for srd, p in ((sk, 6), (sv, 8)):
        e(f"s_add_u32 s{srd}, s{p}, s{base_s}")
        e(f"s_addc_u32 s{srd+1}, s{p+1}, 0")
        e(f"s_mov_b32 s{srd+2}, {nrec}")
        e(f"s_mov_b32 s{srd+3}, 0x20000")

class Loader:
    def __init__(self, name, quarter):
        self.pace = 0
        self.name = name; self.quarter = quarter; self.issued = []; self.npoll = 0; self.seen = {}
    def poll(self, lo, hi, thr, word=0):
        key = (lo, hi, word)
        if self.seen.get(key, -1) >= thr: return
        self.seen[key] = thr
        l_ = f"L_pw_{self.name}_{self.npoll}"; self.npoll += 1
        e(f"v_and_b32 v{V_POLL}, 7, v{V_LANE}")
        e(f"v_max_u32 v{V_POLL}, {lo}, v{V_POLL}")
        e(f"v_min_u32 v{V_POLL}, {hi}, v{V_POLL}")
        e(f"v_mul_u32_u24 v{V_POLL}, {G}, v{V_POLL}")
        e(f"v_add_u32 v{V_POLL}, {ent(PROG0)}, v{V_POLL}")
        e(f"s_mov_b32 s{S_T0}, {thr}")
        lab(l_)
        e(f"ds_read_b32 v{V_PV}, v{V_POLL} offset:{4*word}")
        e("s_waitcnt lgkmcnt(0)")
        e(f"v_cmp_gt_i32 vcc, s{S_T0}, v{V_PV}")
        e(f"s_cbranch_vccz {l_}_ok")
        e("s_sleep 1")
        bound()
        e(f"s_branch {l_}")
        lab(f"{l_}_ok")
    def block(self, tag, srd, b, lds, stride):
        if self.quarter:
            wreg = S_DK if stride == G else S_DV
            e(f"s_add_u32 m0, s{wreg}, {lds}")
            e(f"s_mov_b32 s{S_T1}, {b*0x20000:#x}")
            e(f"buffer_load_dwordx4 v{V_DMA}, {sr(srd,4)}, s{S_T1} offen lds")
            e(f"s_add_u32 m0, s{wreg}, {lds+4*stride}")
            e(f"s_sleep {self.pace}" if self.pace else "s_nop 0")
            e(f"buffer_load_dwordx4 v{V_DMA2}, {sr(srd,4)}, s{S_T1} offen lds")
            if self.pace: e(f"s_sleep {self.pace}")
            self.issued += [tag]*2
        else:
            for g in range(8):
                e(f"s_mov_b32 m0, {lds+g*stride}")
                e(f"s_mov_b32 s{S_T1}, {b*0x20000+g*0x4000:#x}")
                e(f"buffer_load_dwordx4 v{V_DMA}, {sr(srd,4)}, s{S_T1} offen lds")
            self.issued += [tag]*8
    def wait(self, tag):
        last = max(i for i, t in enumerate(self.issued) if t == tag)
        n = len(self.issued)-1-last
        assert n <= 63
        e(f"s_waitcnt vmcnt({n})")

def loader_single_stream(desc, pid):
    kind, nk = desc[0], desc[1]
    quarter = kind == "L4"
    late = desc[2]
    D = desc[4]
    ld = Loader(f"{kind}_{nk}_{pid}", quarter)
    lab(f"L_prog_{pid}")
    if opt.lprio: e(f"s_setprio {opt.lprio}")
    ld.issued += ["i1"]*4 + ["i2"]*4
    qsrc = desc[3] if late else None
    if not quarter: e(f"v_mov_b32 v{V_DMA}, v{V_DL}")
    ring = nk > 10
    ks = lambda b: b & 7 if ring else b
    vs = lambda b: (((b-1) & 7) + 1) if (ring and b > 8) else b
    hi = (7 if late else 3) if quarter else 6
    vq = (7 if desc[3] == 5 else {10: 8, 8: 5}.get(nk, 99)) if (late or not quarter) else 99
    def req(p):
        lv = []
        b = p+2
        def level(j):
            if j <= 0: return (0, 3, 1, 0, 0)
            if j & 1: return (0, 3, FBASE+(j-1)*G, j+opt.slack, 1)
            return (0, 3, FBASE+(j-2)*G, j+opt.slack, 0)
        if b < nk:
            if ks(b) != b: lv.append(level(b-9))
            elif b >= 5 and not (ring and opt.q4v): lv.append((0, 2 if (b < 8 and opt.w3) else 3, 0, QSIG, 0))
        if vs(p) != p: lv.append(level(p-7))
        elif p >= vq: lv.append((4, hi, 0, 2, 0))
        elif p >= 5 and ring and opt.q4v: lv.append((0, 3, 0, QSIG, 0))
        return lv
    nxt = [1]
    def pairs_upto(p, sig):
        while nxt[0] <= min(p, nk-1):
            r = req(nxt[0])
            if any(x[3] > sig for x in r): break
            for x in r: ld.poll(x[0], x[1], x[2], x[4])
            p_ = nxt[0]
            if p_+2 < nk: ld.block(p_, S_K, p_+2, kslot(ks(p_+2)), G)
            ld.block(p_, S_V, p_, vslot(vs(p_)), 1024)
            nxt[0] += 1
    chunks = []
    side = opt.side == 1 or (opt.side == 2 and quarter)
    if late:
        k0 = len(out); setup_compute(); prog_addr(); body = out[k0:]; del out[k0:]
        cut = next(i for i, x in enumerate(body) if "s_bfe_u32" in x)
        chunks = [body[:cut], body[cut:]]
        if side:
            cut = max(i for i, x in enumerate(body) if f"s{T_KB}," in x) + 1
            chunks = [body[:cut] + body[-3:] + [f"    v_mov_b32 v{V_X}, 0"], body[cut:-3]]
    pairs_upto((opt.npre3 if nk == 11 else opt.npre4) if quarter else opt.npre1, -1)
    ld.wait("i2")
    e(f"ds_write_b32 v{V_SIG}, v{V_THRV} offset:{G}")
    stamp(3)
    if not quarter:
        e(f"v_and_b32 v{V_SIG}, 3, v{V_LANE}")
        e(f"v_lshlrev_b32 v{V_SIG}, 2, v{V_SIG}")
        e(f"v_add_u32 v{V_SIG}, {FBASE}, v{V_SIG}")
    if late and qsrc is None:
        e(f"s_mov_b32 s{S_T0}, s{T_QOFF}")
        e(f"s_mov_b32 m0, s{T_QST}")
        dma_pass(S_T0)
        ld.issued += ["q"]*8
    pairs_upto(D, 0)
    if late: out.extend(chunks[0])
    ld.pace = opt.pace
    for j in range(1, nk):
        assert nxt[0] > j
        ld.wait(j)
        e(f"ds_write_b32 v{V_SIG}, v{V_THRV} offset:{(j+1)*G}")
        if late and j == 2:
            if qsrc is None: ld.wait("q")
            else: ld.poll(qsrc, qsrc, 0)
            q_read()
            e("s_waitcnt lgkmcnt(0)")
            e(f"ds_write_b32 v{V_PA}, v{V_X if side else V_L}")
        pairs_upto(j+D, j)
        if late and j == 1 and not side: out.extend(chunks[1])
        if late and 2 <= j <= 5 and not side:
            qscale(2*j-4, False); qscale(2*j-3, False)
    if late and side:
        e("s_setprio 0")
        out.extend(chunks[1])
        e("s_branch L_scale_h")
    elif late:
        e("s_branch L_spin_h" if quarter else "s_branch L_helper_go")
    else:
        e("s_waitcnt lgkmcnt(0)")
        stamp(4)
        finish()

def loader_two_streams(desc, pid):
    _, sa, sb = desc
    nka, nkb = seqnk(sa), seqnk(sb)
    ld = Loader("L2", False)
    lab(f"L_prog_{pid}")
    if opt.lprio: e(f"s_setprio {opt.lprio}")
    ld.issued += ["i1"]*4 + ["i2"]*4
    e(f"v_mov_b32 v{V_DMA}, v{V_DL}")
    for k in range(8): e(f"s_mov_b32 s{S_K2+k}, s{S_K+k}") if k % 4 != 3 else e(f"s_mov_b32 s{S_K2+k}, 0x20000")
    kv_srds(S_K, S_V, S_BASE, f"s{T_NREC}")
    def pa(p):
        if p+2 < nka: ld.block(("a", p), S_K2, p+2, kslot(6+p+2), G)
        ld.block(("a", p), S_V2, p, vslot(6+p), 1024)
    def pb(p):
        if p+2 >= 6 and p+2 < nkb: ld.poll(0, 3, ent(16))
        if p == 8: ld.poll(0, 3, ent(16)+2*G)
        if p+2 < nkb: ld.block(("b", p), S_K, p+2, kslot(p+2), G)
        ld.block(("b", p), S_V, p, vslot(p), 1024)
    def sig(t, p):
        ld.wait((t, p))
        e(f"ds_write_b32 v{V_SIG}, v{V_THRV} offset:{(p + 1 + (16 if t == 'a' else 0))*G}")
    pa(1)
    ld.wait("i2")
    e(f"ds_write_b32 v{V_SIG}, v{V_THRV} offset:{G}")
    stamp(3)
    e(f"v_and_b32 v{V_SIG}, 3, v{V_LANE}")
    e(f"v_lshlrev_b32 v{V_SIG}, 2, v{V_SIG}")
    e(f"v_add_u32 v{V_SIG}, {FBASE}, v{V_SIG}")
    pa(2); pa(3)
    ld.block(("b", -1), S_K, 0, kslot(0), G)
    sig("a", 1)
    ld.block(("b", -1), S_K, 1, kslot(1), G)
    sig("a", 2)
    ld.poll(0, 6, 0)
    pb(0); sig("a", 3)
    pb(1); sig("b", -1)
    pb(2); sig("b", 0)
    pb(3); sig("b", 1)
    pb(4); sig("b", 2)
    pb(5); sig("b", 3)
    pb(6); sig("b", 4)
    pb(7); sig("b", 5)
    pb(8); sig("b", 6); sig("b", 7); sig("b", 8)
    e("s_waitcnt lgkmcnt(0)")
    stamp(4)
    finish()

def md_program(desc, pid):
    nk = desc[1]
    ld = Loader(f"MD_{pid}", True)
    lab(f"L_prog_{pid}")
    if not opt.mdsync: e("s_setprio 1")
    ld.issued += (["i1"]*4 + ["q"]*8 + ["i2"]*4) if opt.mdq else (["i1"]*4 + ["i2"]*4 + ["q"]*8)
    def pair(p):
        if p+2 < nk: ld.block(p, S_K, p+2, kslot(p+2), G)
        ld.block(p, S_V, p, vslot(p), 1024)
    def sig(p):
        ld.wait(p)
        e(f"ds_write_b32 v{V_SIG}, v{V_THRV} offset:{(p+1)*G}")
    pair(1)
    setup_compute(); prog_addr()
    if not opt.mdq:
        ld.wait("i2"); e(f"ds_write_b32 v{V_SIG}, v{V_THRV} offset:{G}")
    ld.wait("q")
    stamp(3)
    q_read()
    e("s_waitcnt lgkmcnt(0)")
    e(f"ds_write_b32 v{V_PA}, v{V_L}")
    pair(2)
    if opt.mdsync:
        e(f"s_mov_b32 s{T_KB}, s{S_DK}")
        e(f"s_mov_b32 s{T_VB}, s{S_DV}")
        e(f"s_mov_b32 s{S_DK}, {f32bits(CSCALE):#x}")
        e(f"s_mov_b32 s{S_DV}, {f32bits(CSCALE):#x}")
        e(f"s_mov_b32 s{S_T0}, 0xffff0000")
        for ks in range(7): qscale(ks)
        e(f"ds_write_b32 v{V_SIG}, v{V_THRV}")
        qscale(7)
        e(f"s_mov_b32 s{S_DK}, s{T_KB}")
        e(f"s_mov_b32 s{S_DV}, s{T_VB}")
        e("s_setprio 1")
        ld.wait("i2"); e(f"ds_write_b32 v{V_SIG}, v{V_THRV} offset:{G}")
    else:
        for ks in range(4): qscale(ks, False)
        if opt.mdq:
            ld.wait("i2"); e(f"ds_write_b32 v{V_SIG}, v{V_THRV} offset:{G}")
        for ks in range(4, 8): qscale(ks, False)
    if QSIG: sig(1)
    ld.poll(0, 7, 0)
    pair(3)
    if not QSIG: sig(1)
    e(f"v_mov_b32 v{V_T1}, v{V_DMA}")
    e(f"v_readfirstlane_b32 s{T_QST}, v{V_SIG}")
    e(f"s_mov_b32 s{T_KB}, s{S_DK}")
    e(f"s_mov_b32 s{T_VB}, s{S_DV}")
    e("s_branch L_spin_h")
    lab(f"L_md_loop")
    kv_srds(S_K, S_V, S_BASE, f"s{T_NREC}")
    e(f"v_mov_b32 v{V_X}, {f32bits(THR):#x}")
    for j in range(1, nk-1):
        ex = {}
        p = j+3
        if j+1 < nk:
            last = max(i for i, t in enumerate(ld.issued) if t == j+1)
            e(f"s_waitcnt vmcnt({len(ld.issued)-1-last})")
            e(f"v_mov_b32 v{V_T0}, s{T_QST}")
            e(f"ds_write_b32 v{V_T0}, v{V_X} offset:{(j+2)*G}")
        if p < nk:
            items = []
            if p+2 < nk: items += [(S_K, T_KB, kslot(p+2), (p+2)*0x20000), (S_K, T_KB, kslot(p+2)+4*G, (p+2)*0x20000+0x10000)]
            items += [(S_V, T_VB, vslot(p), p*0x20000), (S_V, T_VB, vslot(p)+4096, p*0x20000+0x10000)]
            for k, (srd, wreg, lds, so) in enumerate(items):
                ops = [f"s_add_u32 m0, s{wreg}, {lds}", f"s_mov_b32 s{S_T1}, {so:#x}", f"buffer_load_dwordx4 v{V_T1}, {sr(srd,4)}, s{S_T1} offen lds"]
                if opt.stamps == 2: ops = [f"s_mov_b32 s{S_T0}, m0"] + ops + [f"s_mov_b32 m0, s{S_T0}"]
                ex[1+3*k] = ops
                ld.issued.append(p)
        if j & 1:
            ma = [(2+4*t, [f"v_add_u32 v{V_KA+t}, s{S_2K}, v{V_KA+t}"]) for t in range(4)]
            iteration(1, True, 3*KSLOT, VSLOT, 3*G, f"Amd{j}", misc=ma, extra=ex)
        else:
            mb = [(8, [f"v_add_u32 v{V_FA}, {2*G}, v{V_FA}"])]
            mb += [(9+2*t, [f"v_add_u32 v{V_VA+t}, s{S_2V}, v{V_VA+t}"]) for t in range(4)]
            iteration(0, True, 2*KSLOT, 2*VSLOT, 4*G, f"Bmd{j}", misc=mb, extra=ex, prog=f"ds_write_b32 v{V_PA}, v{V_FA}")
    e(f"v_mov_b32 v{V_T1}, 0xff800000")
    e("s_branch L_tail_odd" if (nk-1) & 1 else "s_branch L_tail_even")

hdr = open("cdna_kernels/" + NAME + ".s.ref").read().split("\n")
for line in hdr:
    if line.startswith("; @launch"): break
    out.append(line)
out.append(f"; @launch grid=({NWG},1,1) block=(512,1,1) lds={LDS_BYTES}")
out.append("; job order: " + " ".join(JOBORDER))
out.extend("; " + x if x else ";" for x in """
Varlen attention, written by gen/gen19.py (own generator).  256 workgroups (one per CU) x 8 waves.
 * 16 job slots per head; the fixed cu[] is folded into two tables in this file (L_small, L_table).
 * A compute wave owns 32 query rows: S^T = K Q^T and O^T = V^T P^T with 32x32x16 bf16 MFMA, three-stage software
   pipeline QK(j+1) | softmax(j) | PV(j-1).  Q is pre-scaled by log2(e)/sqrt(128).
 * Softmax stabiliser: the running reference m enters as the C operand of the first QK MFMA.  Every block's row sums
   are checked at run time (upper bound always, lower bound on the first block); when a check fails the wave
   switches to the true running row maximum and rescales O, l and the pending scores (L_rare_*).
 * K/V blocks reach LDS by LDS-DMA from loader waves; producers and consumers meet through flag words kept in
   the padding of the K slots (FULL / progress / merge flags), one barrier only (after the flags are initialised).
 * Extra query tiles are split along the keys over helper waves and merged through LDS (L_merge).
""".strip("\n").split("\n"))
out.append('.amdgcn_target "amdgcn-amd-amdhsa--gfx950"')
out.append(".text")
out.append(f".globl {NAME}_kernel")
out.append(".p2align 8")
out.append(f".type {NAME}_kernel,@function")
lab(f"{NAME}_kernel")
S_W, S_HOFF = S_KWRAP, S_VWRAP
e("s_load_dwordx4 s[4:7], s[0:1], 0")
e("s_load_dwordx2 s[8:9], s[0:1], 16")
e("s_load_dwordx2 s[12:13], s[0:1], 32")
e(f"s_getpc_b64 {sr(S_DK,2)}")
lab("L_pc")
if opt.skew >= 2:
    e(f"s_bfe_u32 s{S_T0}, s2, {5 | 3 << 16:#x}")
    e(f"s_and_b32 s{S_T1}, s2, 4")
    e(f"s_lshl_b32 s{S_T1}, s{S_T1}, 1")
    e(f"s_bfe_u32 s{S_HOFF}, s2, {3 | 1 << 16:#x}")
    e(f"s_add_u32 s{S_T0}, s{S_T0}, s{S_T1}")
    e(f"s_lshl_b32 s{S_T0}, s{S_T0}, 2")
elif opt.skew:
    e(f"s_bfe_u32 s{S_T0}, s2, {5 | 3 << 16:#x}")
    e(f"s_bfe_u32 s{S_J}, s2, {2 | 1 << 16:#x}")
    e(f"s_mul_i32 s{S_T1}, s{S_J}, 7")
    e(f"s_bfe_u32 s{S_HOFF}, s2, {3 | 1 << 16:#x}")
    e(f"s_add_u32 s{S_T2}, s{S_HOFF}, 7")
    e(f"s_cmp_eq_u32 s{S_T0}, 7")
    e(f"s_cselect_b32 s{S_T1}, s{S_T2}, s{S_T1}")
    e(f"s_cselect_b32 s{S_HOFF}, s{S_J}, s{S_HOFF}")
    e(f"s_add_u32 s{S_T0}, s{S_T0}, s{S_T1}")
    e(f"s_lshl_b32 s{S_T0}, s{S_T0}, 2")
else:
    e(f"s_lshr_b32 s{S_T0}, s2, 2")
    e(f"s_and_b32 s{S_T0}, s{S_T0}, 60")
e(f"s_add_u32 s{S_T1}, s{S_T0}, L_small-L_pc")
e(f"s_load_dword s{S_W}, {sr(S_DK,2)}, s{S_T1}")
e(f"v_lshrrev_b32 v{V_T0}, 6, v0")
e("s_branch L_go")
out.append(".type L_small,@object")
lab("L_small")
out.append("    .long " + ", ".join(f"{x:#x}" for x in stab))
out.append(".size L_small, .-L_small")
lab("L_go")
e(f"s_cmp_ge_u32 s2, {NWG}")
e("s_cbranch_scc1 L_end")
e(f"v_readfirstlane_b32 s{S_U}, v{V_T0}")
if opt.stamps:
    e("s_memrealtime s[100:101]")
stamp(0)
if opt.pf:
    e(f"s_lshr_b32 s{S_T1}, s2, 3")
    e(f"s_lshl_b32 s{S_T1}, s{S_T1}, 11")
    e(f"v_lshrrev_b32 v{V_T0}, 5, v0")
    e(f"v_lshl_add_u32 v{V_T0}, v{V_T0}, 7, s{S_T1}")
    e(f"global_load_dword v{V_S[0]}, v{V_T0}, {sr(S_DK,2)}")
e(f"v_and_b32 v{V_LANE}, 63, v0")
e(f"s_lshl_b32 s{S_T0}, s{S_T0}, 1")
e(f"s_add_u32 s{S_T0}, s{S_T0}, s{S_U}")
e(f"s_lshl_b32 s{S_T0}, s{S_T0}, 6")
e(f"s_add_u32 s{S_T2}, s{S_T0}, L_table-L_pc")
e(f"v_mov_b32 v{V_T0}, s{S_T2}")
e(f"global_load_dword v{V_S[0]+1}, v{V_T0}, {sr(S_DK,2)}")
if opt.skew and opt.str4:
    e(f"s_bfe_u32 s{S_T1}, s2, {4 | 1 << 16:#x}")
    e(f"s_lshl_b32 s{S_T1}, s{S_T1}, 1")
    e(f"s_add_u32 s{S_HOFF}, s{S_HOFF}, s{S_T1}")
    e(f"s_lshl_b32 s{S_HOFF}, s{S_HOFF}, 2")
    e(f"s_and_b32 s{S_T0}, s2, 3")
    e(f"s_add_u32 s{S_HOFF}, s{S_HOFF}, s{S_T0}")
    e(f"s_lshl_b32 s{S_HOFF}, s{S_HOFF}, 8")
elif opt.skew:
    e(f"s_and_b32 s{S_T0}, s2, 3")
    e(f"s_lshl_b32 s{S_T0}, s{S_T0}, 2")
    e(f"s_add_u32 s{S_HOFF}, s{S_HOFF}, s{S_T0}")
    e(f"s_bfe_u32 s{S_T1}, s2, {4 | 1 << 16:#x}")
    e(f"s_lshl_b32 s{S_T1}, s{S_T1}, 1")
    e(f"s_add_u32 s{S_HOFF}, s{S_HOFF}, s{S_T1}")
    e(f"s_lshl_b32 s{S_HOFF}, s{S_HOFF}, 8")
else:
    e(f"s_and_b32 s{S_T0}, s2, 7")
    e(f"s_lshl_b32 s{S_T0}, s{S_T0}, 9")
    e(f"s_bfe_u32 s{S_T1}, s2, {3 | 1 << 16:#x}")
    e(f"s_lshl_b32 s{S_T1}, s{S_T1}, 8")
    e(f"s_add_u32 s{S_HOFF}, s{S_T0}, s{S_T1}")
e(f"v_lshrrev_b32 v{V_T0}, 4, v{V_LANE}")
e(f"v_lshlrev_b32 v{V_T1}, 2, v{V_T0}")
e(f"v_and_b32 v{V_DL}, 15, v{V_LANE}")
e(f"v_xor_b32 v{V_DL}, v{V_DL}, v{V_T1}")
e(f"v_lshlrev_b32 v{V_DL}, 4, v{V_DL}")
e(f"v_lshl_add_u32 v{V_DL}, v{V_T0}, 12, v{V_DL}")
e(f"s_mov_b32 s{S_P1+3}, 0x20000")
e(f"s_mov_b32 s{S_K+3}, 0x20000")
e(f"s_and_b32 s{S_J}, s{S_U}, 3")
e(f"s_lshl_b32 s{S_T0}, s{S_J}, 14")
e(f"v_add_u32 v{V_DMA}, s{S_T0}, v{V_DL}")
e(f"v_add_u32 v{V_DMA2}, 0x10000, v{V_DMA}")
flag_init()
e("s_waitcnt lgkmcnt(0)")
e(f"s_load_dwordx16 {sr(T,16)}, {sr(S_DK,2)}, s{S_T2}")
stamp(1)
e(f"s_and_b32 s{S_BASE}, s{S_W}, 0xfff")
e(f"s_lshl_b32 s{S_BASE}, s{S_BASE}, 12")
e(f"s_add_u32 s{S_BASE}, s{S_BASE}, s{S_HOFF}")
e(f"s_and_b32 s{S_T0}, s{S_W}, 0x1ff000")
e(f"s_sub_u32 s{S_P1+2}, s{S_T0}, {4096-256}")
e(f"s_bitcmp1_b32 s{S_W}, 28")
e(f"s_cselect_b32 s{S_T2}, 1, 0")
e(f"s_cmp_ge_u32 s{S_U}, 4")
e("s_cbranch_scc1 L_first_kv")
def dma_pass(soff):
    e(f"s_add_u32 s{S_P1}, s4, s{S_BASE}")
    e(f"s_addc_u32 s{S_P1+1}, s5, 0")
    for i in range(8):
        e(f"buffer_load_dwordx4 v{V_DL}, {sr(S_P1,4)}, s{soff} offen lds")
        if i < 7:
            e(f"s_add_u32 m0, m0, {G}")
            e(f"s_addk_i32 s{soff}, 0x4000")
if opt.qprio:
    for w_ in range(3):
        e(f"s_cmp_gt_u32 s{S_U}, {2-w_}")
        e(f"s_cbranch_scc1 L_qp")
        e(f"s_setprio {w_+1}")
    lab("L_qp")
if opt.kfirst == 2: e("s_barrier")
e(f"s_bfe_u32 s{S_T0}, s{S_W}, {25 | 3 << 16:#x}")
e(f"s_cmp_ge_u32 s{S_U}, s{S_T0}")
e("s_cbranch_scc1 L_idle")
if opt.cls != "000000" or opt.hcls or opt.hl != "0000" or "1" in opt.p64:
    assert opt.kfirst == 2
    if opt.hl != "0000":
        e(f"s_lshr_b32 s{S_T0}, s{S_HOFF}, 6")
        e(f"s_and_b32 s{S_T0}, s{S_T0}, 12")
        e(f"s_lshr_b32 s{S_T0}, {sum(int(c) << (4*i) for i, c in enumerate(opt.hl)):#x}, s{S_T0}")
        e(f"s_and_b32 s{S_T0}, s{S_T0}, 15")
    elif opt.hcls == 1: e(f"s_bfe_u32 s{S_T0}, s2, {4 | 1 << 16:#x}")
    elif opt.hcls == 2:
        e(f"s_lshr_b32 s{S_T0}, s2, 3"); e(f"s_and_b32 s{S_T0}, s{S_T0}, 2")
    elif opt.hcls == 3:
        e(f"s_bfe_u32 s{S_T0}, s2, {3 | 2 << 16:#x}"); e(f"s_max_u32 s{S_T0}, s{S_T0}, 1"); e(f"s_sub_u32 s{S_T0}, s{S_T0}, 1"); e(f"s_cmp_lg_u32 s{S_T0}, 0")
    else:
        if opt.w3:
            e(f"s_sub_u32 s{S_T0}, s{S_T0}, s{S_U}")
            e(f"s_bfe_u32 s{S_T1}, s{S_W}, {25 | 3 << 16:#x}")
            e(f"s_cmp_eq_u32 s{S_T1}, 5")
            e(f"s_cselect_b32 s{S_T0}, s{S_T0}, 0")
            e(f"s_cmp_gt_u32 s{S_T0}, 2")
            e(f"s_cbranch_scc1 L_nohold")
        e(f"s_bfe_u32 s{S_T0}, s{S_W}, {29 | 2 << 16:#x}")
    e(f"s_cbranch_scc0 L_nohold")
    e(f"s_lshl_b32 s{S_T1}, s{S_T2}, 4")
    e(f"s_add_u32 s{S_T0}, s{S_T0}, s{S_T1}")
    e(f"s_mul_i32 s{S_T0}, s{S_T0}, {G}")
    e(f"s_add_u32 s{S_T0}, s{S_T0}, {FBASE-G}")
    e(f"v_and_b32 v{V_T0}, 3, v{V_LANE}")
    e(f"v_lshl_add_u32 v{V_FA}, v{V_T0}, 2, s{S_T0}")
    e("s_waitcnt lgkmcnt(0)")
    spin("L_hold", 0, sleep=1)
    lab("L_nohold")
e(f"s_mul_i32 s{S_T0}, s{S_T2}, {-3*KSLOT}")
if opt.q4v:
    e(f"s_cmp_gt_u32 s{S_P1+2}, {320*4096}")
    e(f"s_cselect_b32 s{S_T0}, {(-9*KSLOT) & 0xffffffff:#x}, s{S_T0}")
e(f"s_mul_i32 s{S_T1}, s{S_U}, {KSLOT}")
e(f"s_add_u32 s{S_T0}, s{S_T0}, s{S_T1}")
e(f"s_add_u32 m0, s{S_T0}, {kslot(5)}")
e(f"s_bfe_u32 s{S_T0}, s{S_W}, {21 | 4 << 16:#x}")
e(f"s_add_u32 s{S_T0}, s{S_T0}, s{S_U}")
e(f"s_lshl_b32 s{S_T0}, s{S_T0}, 17")
dma_pass(S_T0)
if opt.qprio: e("s_setprio 0")
if opt.kfirst != 2: e("s_barrier")
e("s_waitcnt lgkmcnt(0)")
e(f"s_mov_b32 s{S_J}, {R_MAIN}")
stamp(2)
e("s_branch L_compute")
lab("L_first_kv")
if opt.kfirst == 1: e("s_setprio 3")
e(f"s_add_u32 s{S_K}, s6, s{S_BASE}")
e(f"s_addc_u32 s{S_K+1}, s7, 0")
e(f"s_mov_b32 s{S_K+2}, s{S_P1+2}")
e(f"s_mul_i32 s{S_DK}, s{S_J}, {G}")
e(f"s_mul_i32 s{S_T0}, s{S_T2}, {6*KSLOT}")
e(f"s_add_u32 s{S_T0}, s{S_T0}, s{S_DK}")
e(f"s_add_u32 m0, s{S_T0}, {KBASE}")
e(f"s_mov_b32 s{S_T1}, 0x20000")
e(f"buffer_load_dwordx4 v{V_DMA}, {sr(S_K,4)}, 0 offen lds")
e(f"s_add_u32 m0, m0, {4*G}")
e(f"s_add_u32 s{S_V}, s8, s{S_BASE}")
e(f"buffer_load_dwordx4 v{V_DMA2}, {sr(S_K,4)}, 0 offen lds")
e(f"s_addc_u32 s{S_V+1}, s9, 0")
e(f"s_add_u32 m0, m0, {4*G}")
e(f"s_mov_b32 s{S_V+2}, s{S_P1+2}")
e(f"buffer_load_dwordx4 v{V_DMA}, {sr(S_K,4)}, s{S_T1} offen lds")
e(f"s_add_u32 m0, m0, {4*G}")
e(f"s_mov_b32 s{S_V+3}, 0x20000")
e(f"buffer_load_dwordx4 v{V_DMA2}, {sr(S_K,4)}, s{S_T1} offen lds")
e(f"s_add_u32 m0, m0, {4*G}")
e(f"s_mov_b32 s{S_T1}, 0x40000")
e(f"s_mul_i32 s{S_T0}, s{S_T2}, {16*G}")
e(f"s_lshl_b32 s{S_DV}, s{S_J}, 2")
e(f"s_add_u32 s{S_T0}, s{S_T0}, s{S_DV}")
e(f"s_add_u32 s{S_T0}, s{S_T0}, {FBASE}")
e(f"v_mov_b32 v{V_SIG}, s{S_T0}")
e(f"v_mov_b32 v{V_THRV}, {f32bits(THR):#x}")
e(f"s_lshl_b32 s{S_DV}, s{S_J}, 10")
e(f"s_mul_i32 s{S_T0}, s{S_T2}, {6*VSLOT}")
e("s_barrier")
if opt.kfirst == 1: e("s_setprio 0")
if opt.md and opt.mdq:
    e(f"s_bitcmp1_b32 s{S_W}, 31")
    e("s_cbranch_scc1 L_md_first")
if opt.hold:
    e("s_waitcnt vmcnt(0)")
    if not opt.mdsync: lab("L_md_back")
    e(f"ds_write_b32 v{V_SIG}, v{V_THRV}")
    if opt.mdsync: lab("L_md_back")
    stamp(2)
e(f"buffer_load_dwordx4 v{V_DMA}, {sr(S_K,4)}, s{S_T1} offen lds")
e(f"s_add_u32 m0, m0, {4*G}")
e("s_nop 0")
e(f"buffer_load_dwordx4 v{V_DMA2}, {sr(S_K,4)}, s{S_T1} offen lds")
e(f"s_add_u32 m0, s{S_T0}, s{S_DV}")
e("s_nop 0")
e(f"buffer_load_dwordx4 v{V_DMA}, {sr(S_V,4)}, 0 offen lds")
e(f"s_add_u32 m0, m0, 4096")
e("s_nop 0")
e(f"buffer_load_dwordx4 v{V_DMA2}, {sr(S_V,4)}, 0 offen lds")
if not opt.hold:
    e("s_waitcnt vmcnt(4)")
    e(f"ds_write_b32 v{V_SIG}, v{V_THRV}")
    stamp(2)
e("s_waitcnt lgkmcnt(0)")
e(f"s_add_u32 s{S_BASE}, s{S_HOFF}, s{T_SOFF}")
e(f"s_and_b32 s{S_J}, s{T_PK}, 15")
e(f"s_bitcmp1_b32 s{T_PK}, 6")
e("s_cbranch_scc0 L_pass_done")
e(f"s_mov_b32 s{S_P1+2}, s{T_NREC}")
e(f"s_mov_b32 s{S_T0}, s{T_QOFF}")
e(f"s_mov_b32 m0, s{T_QST}")
dma_pass(S_T0)
lab("L_pass_done")
e(f"s_cmp_ge_u32 s{S_J}, 3")
e("s_cbranch_scc1 L_loaders")
lab("L_compute")
e(f"s_mov_b32 s{S_DK}, s{S_J}")
setup_compute()
prog_addr()
e(f"s_cmp_lg_u32 s{S_DK}, {R_MAIN}")
e("s_cbranch_scc1 L_init")
if opt.tlb:
    e(f"buffer_load_dword v{V_LANE}, v{V_L}, {sr(S_O,4)}, s{T_QOFF} offen")
    e("s_waitcnt vmcnt(1)")
    e("s_branch L_noinit2")
lab("L_noinit")
e("s_waitcnt vmcnt(0)")
lab("L_noinit2")
stamp(3)
q_read()
e("s_waitcnt lgkmcnt(0)")
e(f"ds_write_b32 v{V_PA}, v{V_L}")
e(f"s_cmp_lg_u32 s{S_DK}, {R_MAIN}")
e("s_cbranch_scc1 L_scale_h")
e(f"s_mov_b32 s{S_DK}, {f32bits(CSCALE):#x}")
e(f"s_mov_b32 s{S_DV}, {f32bits(CSCALE):#x}")
e(f"s_mov_b32 s{S_T0}, 0xffff0000")
for ks in range(5):
    if ks == 4: e(f"ds_read_b32 v{V_FL}, v{V_FA}")
    qscale(ks)
e("s_waitcnt lgkmcnt(0)")
e(f"v_cmp_gt_f32 vcc, 0, v{V_FL}")
qscale(5)
e("s_cbranch_vccz L_back_pre")
spin("L_spin_pre", 0)
lab("L_back_pre")
def start_stamp():
    stamp(4)
    if opt.stamps == 2:
        e("s_mov_b32 m0, 0")
        e("s_memtime s[100:101]")
start_stamp()
for ks in range(8): e(kread(ks, 0))
qscale(6)
qscale(7)
lab("L_qk0")
for ks in range(8):
    if ks == 0: e("s_waitcnt lgkmcnt(0)")
    if ks == 7: e(f"v_cmp_gt_f32 vcc, 0, v{V_FL}")
    e(mfma(V_S[0], V_K+4*ks, V_Q+4*ks, None if ks == 0 else V_S[0]))
    e(kread(ks, 1*KSLOT))
    if ks == 3: e(f"ds_read_b32 v{V_FL}, v{V_FA} offset:{G}")
    if ks == 6: e("s_waitcnt lgkmcnt(3)")
e("s_cbranch_vccz L_back_pre2")
spin("L_spin_pre2", G)
lab("L_back_pre2")
e("s_nop 7")
iteration(0, False, 2*KSLOT, 0, 2*G, "i0", first=True, prog=f"ds_write_b32 v{V_PA}, v{V_X}",
          last_ops=[f"s_bitcmp1_b32 s{T_PK}, 20", "s_cbranch_scc1 L_leave"])
lab("L_loop")
ma = [(0, [f"s_cmp_eq_u32 s{S_J}, s{S_KWRAP}", f"s_cselect_b32 s{S_DK}, {(-6*KSLOT)&0xffffffff:#x}, s{S_2K}"])]
ma += [(2+4*t, [f"v_add_u32 v{V_KA+t}, s{S_DK}, v{V_KA+t}"]) for t in range(4)]
ma.insert(4, (10, [f"s_cmp_eq_u32 s{S_J}, s{S_NM1}"]))
iteration(1, True, 3*KSLOT, VSLOT, 3*G, "A", misc=ma, last_ops=["s_cbranch_scc1 L_tail_even"], prog=f"ds_write_b32 v{V_PA}, v{V_FA} offset:4")
mb = [(0, [f"s_cmp_eq_u32 s{S_J}, s{S_VWRAP}", f"s_cselect_b32 s{S_DV}, {(-6*VSLOT)&0xffffffff:#x}, s{S_2V}"]),
      (0, [f"s_add_u32 s{S_J}, s{S_J}, 2", f"s_cmp_eq_u32 s{S_J}, s{T_N}"]),
      (8, [f"v_add_u32 v{V_FA}, {2*G}, v{V_FA}"])]
mb += [(9+2*t, [f"v_add_u32 v{V_VA+t}, s{S_DV}, v{V_VA+t}"]) for t in range(4)]
iteration(0, True, 2*KSLOT, 2*VSLOT, 4*G, "B", misc=mb, last_ops=["s_cbranch_scc0 L_loop"], prog=f"ds_write_b32 v{V_PA}, v{V_FA}")
for par, nm in ((1, "odd"), (0, "even")):
    lab(f"L_tail_{nm}")
    kinds = [k for k in (3, 4, 0, 1, 2) if (k, par) in tails_used]
    for k in kinds[1:]:
        e(f"s_bitcmp1_b32 s{T_PK}, {21 + k}")
        e(f"s_cbranch_scc1 L_tail_{k}_{par}")
    assert kinds[0] == 0 or len(kinds) == 1 or True
    for k in kinds:
        tail(k, par)
merge_code()
lab("L_idle")
if opt.tq and opt.skew:
    e(f"s_cmp_lt_u32 s{S_P1+2}, {400*4096}")
    e("s_cbranch_scc1 L_idle2")
    e(f"s_add_u32 s{S_T0}, s{S_HOFF}, {CU[1]*4096}")
    e(f"s_add_u32 s{S_P1}, s4, s{S_T0}")
    e(f"s_addc_u32 s{S_P1+1}, s5, 0")
    e(f"s_mov_b32 s{S_P1+2}, {(seqL(1)-1)*4096+256}")
    e(f"s_bfe_u32 s{S_T0}, s{S_W}, {21 | 1 << 16:#x}")
    e(f"s_lshl_b32 s{S_T0}, s{S_T0}, 18")
    e(f"s_add_u32 s{S_T0}, s{S_T0}, {4*0x20000:#x}")
    e(f"s_add_u32 s{S_T1}, s{S_T0}, 0x20000")
    e(f"v_lshrrev_b32 v{V_T0}, 1, v{V_LANE}")
    e(f"v_and_b32 v{V_T1}, 1, v{V_LANE}")
    e(f"v_lshlrev_b32 v{V_T1}, 7, v{V_T1}")
    e(f"v_lshl_add_u32 v{V_T0}, v{V_T0}, 12, v{V_T1}")
    e(f"buffer_load_dword v{V_Q}, v{V_T0}, {sr(S_P1,4)}, s{S_T0} offen")
    e(f"buffer_load_dword v{V_Q+1}, v{V_T0}, {sr(S_P1,4)}, s{S_T1} offen")
    lab("L_idle2")
prog_addr()
e(f"v_mov_b32 v{V_T0}, 0x7fffffff")
if opt.kfirst != 2: e("s_barrier")
e(f"ds_write_b32 v{V_PA}, v{V_T0}")
e(f"ds_write_b32 v{V_PA}, v{V_T0} offset:4")
e("s_waitcnt lgkmcnt(0)")
if touches:
    e(f"s_add_u32 s{S_BASE}, s{S_HOFF}, s{T_SOFF}")
    kv_srds(S_K, S_V, S_BASE, f"s{T_NREC}")
    e(f"s_add_u32 s{S_P1}, s4, s{S_BASE}")
    e(f"s_addc_u32 s{S_P1+1}, s5, 0")
    e(f"s_mov_b32 s{S_P1+2}, s{T_NREC}")
    e(f"v_lshrrev_b32 v{V_T0}, 1, v{V_LANE}")
    e(f"v_and_b32 v{V_T1}, 1, v{V_LANE}")
    e(f"v_lshlrev_b32 v{V_T1}, 7, v{V_T1}")
    e(f"v_lshl_add_u32 v{V_T0}, v{V_T0}, 12, v{V_T1}")
    if opt.tstart >= 0:
        e(f"v_and_b32 v{V_FA}, 3, v{V_LANE}")
        e(f"v_lshlrev_b32 v{V_FA}, 2, v{V_FA}")
        e(f"v_add_u32 v{V_FA}, {ent(opt.tstart)}, v{V_FA}")
        spin("L_tstart", 0, sleep=1)
    for i in range(len(touches)):
        e(f"s_cmp_eq_u32 s{T_N}, {i+1}")
        e(f"s_cbranch_scc1 L_touch_{i}")
    finish()
    for i, lst in enumerate(touches):
        lab(f"L_touch_{i}")
        for k, it in enumerate(lst):
            srd = {"Q": S_P1, "K": S_K, "V": S_V}[it[0]]
            e(f"s_mov_b32 s{S_T0}, {int(it[1:])*0x20000:#x}")
            if k >= opt.tw: e(f"s_waitcnt vmcnt({opt.tw-1})")
            e(f"buffer_load_dword v{V_Q+k}, v{V_T0}, {sr(srd,4)}, s{S_T0} offen")
        finish()
else:
    finish()
lab("L_loaders")
for i in range(1, len(programs)):
    e(f"s_cmp_eq_u32 s{S_J}, {3+i}")
    e(f"s_cbranch_scc1 L_prog_{3+i}")
for i, d in enumerate(programs):
    if d[0] == "L2": loader_two_streams(d, 3+i)
    elif d[0] == "MD": md_program(d, 3+i)
    else: loader_single_stream(d, 3+i)
lab("L_leave")
e(f"s_cmp_eq_u32 s{T_N}, 2")
e("s_cbranch_scc1 L_tail_odd")
e("s_branch L_md_loop" if (opt.md and not opt.fake & 1) else "s_branch L_tail_odd")
if opt.md and opt.mdq:
    lab("L_md_first")
    e(f"s_mov_b32 s{S_LO}, m0")
    e(f"s_mul_i32 s{S_2K}, s{S_J}, {KSLOT}")
    e(f"s_add_u32 m0, s{S_2K}, {QH[0]}")
    e(f"s_lshl_b32 s{S_2K}, s{S_U}, 17")
    dma_pass(S_2K)
    e(f"s_mov_b32 m0, s{S_LO}")
    e("s_nop 0" if opt.mdsync == 2 else "s_waitcnt vmcnt(8)")
    e("s_branch L_md_back")
lab("L_scale_h")
for ks in range(8): qscale(ks, False)
spin("L_spin_h", 0, sleep=1)
e(f"s_bitcmp1_b32 s{T_PK}, 18")
e("s_cbranch_scc0 L_helper_go")
e(f"v_and_b32 v{V_T0}, {1 if opt.w3 else 3}, v{V_LANE}")
e(f"v_mul_u32_u24 v{V_T0}, {G}, v{V_T0}")
e(f"v_add_u32 v{V_T0}, {ent(PROG0)}, v{V_T0}")
lab("L_helper_wait")
bound()
e("s_sleep 1")
e(f"ds_read_b32 v{V_FL}, v{V_T0}")
e("s_waitcnt lgkmcnt(0)")
e(f"v_cmp_gt_i32 vcc, 1, v{V_FL}")
e("s_cbranch_vccnz L_helper_wait")
lab("L_helper_go")
e("s_setprio 0")
e(f"s_bitcmp1_b32 s{T_PK}, 16")
e("s_cbranch_scc0 L_helper_go2")
e(f"s_setprio {max(opt.hprio, 0)}")
lab("L_helper_go2")
start_stamp()
for ks in range(8): e(kread(ks, 0))
e("s_branch L_qk0")
lab("L_init")
e(f"s_bitcmp1_b32 s{T_PK}, 19")
e("s_cbranch_scc1 L_init_shared")
e("s_waitcnt vmcnt(8)")
e(f"ds_write_b32 v{V_SIG}, v{V_THRV} offset:{G}")
e("s_branch L_noinit")
lab("L_init_shared")
e("s_waitcnt vmcnt(0)")
e(f"ds_write_b32 v{V_SIG}, v{V_THRV} offset:{G}")
e(f"s_lshr_b32 s{S_T0}, s{T_MB}, 24")
e(f"s_mul_i32 s{S_T0}, s{S_T0}, {G}")
e(f"s_add_u32 s{S_T0}, s{S_T0}, {ent(PROG0)}")
e(f"v_mov_b32 v{V_T0}, s{S_T0}")
lab("L_init_wait")
bound()
e("s_sleep 1")
e(f"ds_read_b32 v{V_FL}, v{V_T0}")
e("s_waitcnt lgkmcnt(0)")
e(f"v_cmp_gt_i32 vcc, 0, v{V_FL}")
e("s_cbranch_vccnz L_init_wait")
e("s_branch L_noinit")
for tag in stage_spins:
    lab(f"L_stg_{tag}")
    bound()
    e("s_sleep 1")
    e(f"ds_read_b32 v{V_FL}, v{V_CK}")
    e("s_waitcnt lgkmcnt(0)")
    e(f"v_cmp_gt_i32 vcc, s{S_T2}, v{V_FL}")
    e(f"s_cbranch_vccnz L_stg_{tag}")
    e(f"s_branch L_stgback_{tag}")
for site in rare_sites:
    rare(*site)
for site in short_rares:
    short_rare(*site)
if opt.stamps:
    lab("L_stamps")
    e(f"s_load_dwordx2 {sr(S_MASK+6,2)}, s[0:1], 48")
    e("s_waitcnt vmcnt(0)")
    e(f"s_memtime {sr(S_MASK, 2)}")
    e(f"s_getreg_b32 s{S_MASK+2}, hwreg(HW_REG_HW_ID)")
    e(f"s_getreg_b32 s{S_MASK+3}, hwreg(HW_REG_XCC_ID)")
    e(f"s_memrealtime {sr(S_MASK+4, 2)}")
    e("s_waitcnt lgkmcnt(0)")
    e(f"s_lshl_b32 s{S_T0}, s2, 3")
    e(f"s_add_u32 s{S_T0}, s{S_T0}, s{S_U}")
    e(f"s_lshl_b32 s{S_T0}, s{S_T0}, 7")
    if opt.stamps == 2:
        e(f"v_writelane_b32 v{V_LANE}, s100, m0")
        e(f"s_lshl_b32 s{S_T1}, s{S_T0}, 1")
        e(f"s_add_u32 s{S_T1}, s{S_T1}, 0x100000")
        e(f"v_mbcnt_lo_u32_b32 v2, -1, 0")
        e(f"v_mbcnt_hi_u32_b32 v2, -1, v2")
        e(f"v_lshl_add_u32 v0, v2, 2, s{S_T1}")
        e(f"global_store_dword v0, v{V_LANE}, {sr(S_MASK+6,2)}")
    e(f"v_mov_b32 v0, s{S_T0}")
    e("s_mov_b64 exec, 1")
    regs = [S_STAMP+i for i in range(10)] + [S_MASK+i for i in range(6)] + [100, 101]
    for i, r_ in enumerate(regs):
        e(f"v_mov_b32 v2, s{r_}")
        e(f"global_store_dword v0, v2, {sr(S_MASK+6,2)} offset:{4*i}")
lab("L_end")
e("s_endpgm")
out.append(".p2align 6")
out.append(".type L_table,@object")
lab("L_table")
for row in table:
    out.append("    .long " + ", ".join(f"{x & 0xffffffff:#x}" for x in row))
out.append(".size L_table, .-L_table")
if opt.pf:
    out.append(".type L_padding,@object")
    lab("L_padding")
    out.append("    .fill 8192, 4, 0")
    out.append(".size L_padding, .-L_padding")
out.append('.section .rodata,"a"')
out.append(".p2align 6")
out.append(f".amdhsa_kernel {NAME}_kernel")
for x in ("next_free_vgpr 256", "next_free_sgpr 102", "accum_offset 256", "group_segment_fixed_size 0", "kernarg_size 56",
          "user_sgpr_count 2", "user_sgpr_kernarg_segment_ptr 1", "system_sgpr_workgroup_id_x 1"):
    out.append("  .amdhsa_" + x)
out.append(".end_amdhsa_kernel")
for i_, o_ in enumerate(out):
    if o_ and o_.rstrip().endswith("offen lds"):
        isq = f"s[{S_P1}:{S_P1+3}]" in o_
        if (isq and opt.ntq) or (not isq and opt.ntkv):
            out[i_] = o_.replace("offen lds", "offen nt lds")
open(sys.argv[1], "w").write("\n".join(o for o in out if o is not None) + "\n")
```

```python
import sys, struct, math

CU = [0, 289, 520, 939, 1289, 1402, 1666, 1973, 2275]
NAME = "standalone__varlen_attn_packed__ragged"
def f32bits(x):
    return struct.unpack("<I", struct.pack("<f", x))[0]

class Opt:
    stamps = 0
    D4 = 5
    D1 = 2
    slack = 3
    npre4 = 2
    hold = 1
    npre1 = 1
    stflag = "sc1"
    hprio = 1
    lprio = 1
    pf = 1
    budget = 24
    ntq = 0
    skew = 1
    w3 = 0
    tlb = 0
    pkt = 0
    npre3 = 2
    qprio = 0
    fake = 0
    p64 = "000"
    c4 = 2
    t6a10 = 5
    t6b10 = 7
    order = 2
    mdsync = 0
    tq = 1
    pace = 0
    tstart = -1
    tp0 = 3
    hl = "0000"
    hcls = 0
    q4v = 1
    md = 1
    mdq = 1
    side = 0
    tw = 0
    t3 = 1
    str4 = 1
    t5 = "433"
    t6b = 6
    D3 = 4
    D5 = 2
    D6 = 3
    D8 = 3
    cls = "000001"
    mprio = 1
    ftail = 1
    kfirst = 2
    ntkv = 0
opt = Opt()
for a in sys.argv[2:]:
    k, v = a.split("=")
    setattr(opt, k, int(v) if v.lstrip("-").isdigit() and k not in ("cls", "t5", "hl", "p64") else v)

G = 1040
QSIG = max(0, max([int(c) for c in opt.hl + opt.cls] + [opt.c4 if '1' in opt.p64 else 0]) - 2)
assert QSIG <= 1
KSLOT = 8 * G
VSLOT = 8192
KBASE = 10 * VSLOT
LDS_BYTES = 163840
FBASE = KBASE + 1024
PROG0 = 32
MRG0 = 40
THR = 16384.0
NWG = 256
def kslot(s): return KBASE + s*KSLOT
def vslot(s): return s*VSLOT
def ent(n): return FBASE + n*G

V_FA, V_LANE, V_PA, V_FL = 0, 1, 2, 3
V_KA = 4
V_VA = 8
V_L, V_PS, V_T0, V_T1 = 12, 13, 14, 15
V_NEGM = 16
V_Q = 32
V_K = 64
V_V = 96
V_S = [128, 144]
V_P = [160, 168]
V_E = 176
V_WA = 184
V_RA, V_SA, V_CK, V_X = 188, 189, 190, 191
V_O = 192
V_DMA, V_DMA2, V_SIG, V_THRV, V_POLL, V_PV, V_DL = 64, 65, 66, 67, 68, 69, 70

S_P1, S_K, S_V, S_O = 16, 20, 24, 28
S_MASK = 32
S_K2, S_V2 = 32, 36
T = 64
(T_SOFF, T_NREC, T_P1S, T_P1L, T_PK, T_QOFF, T_QST, T_KB, T_VB, T_FB, T_N, T_NV, T_OST, T_MB, T_MIN, T_MOUT) = range(T, T+16)
S_U, S_J, S_T0, S_T1, S_DK, S_DV = 80, 81, 82, 83, 84, 85
S_KWRAP, S_VWRAP, S_NM1, S_T2, S_THR, S_LO = 86, 87, 14, 15, 3, 98
S_2K, S_2V = 99, 10
S_BASE = 11
S_STAMP = 88

out = []
def e(s): out.append("    " + s)
def lab(s): out.append(s + ":")
def vr(b, n): return f"v[{b}:{b+n-1}]"
def sr(b, n): return f"s[{b}:{b+n-1}]"
def stamp(i):
    if opt.stamps == 5:
        if i in (1, 3): e(f"s_memtime {sr(S_STAMP + 2*i, 2)}")
        return
    if opt.stamps: e(f"{'s_memrealtime' if opt.stamps >= 3 else 's_memtime'} {sr(S_STAMP + 2*i, 2)}")

R_MAIN, R_INIT, R_IDLE, R_L4, R_L1 = 0, 1, 2, 3, 4
def seqL(s): return CU[s+1]-CU[s]
def seqnk(s): return (seqL(s)+31)//32
programs = []
def prog_id(desc):
    if desc not in programs: programs.append(desc)
    return 3 + programs.index(desc)
tails_used = set()
def entry(role, seq, tile=None, b0=0, n=None, slot0=0, f0=0, qst=0, ost=0, lo=0, hi=0, mb=0, ml=0, mi=None, mo=None,
          init=None, prio=0, ownq=True, qsrc=None, lvl1=0, swait=0, thr=None, alone=False):
    L = seqL(seq); nk = seqnk(seq)
    n = nk - b0 if n is None else n
    nv = L - 32*(b0+n-1)
    if opt.fake & 8 and seq == 2: n -= 2
    second = 1 if (init is not None and tile is not None and qsrc is None and ownq) else 0
    if mi is not None or mo is not None: tail = 2
    elif nv <= 8: tail = 0
    else: tail = 1
    if alone and opt.pkt and tail < 2: tail += 3
    if tile is not None: tails_used.add((tail, (n-1) & 1))
    ring = 1 if nk > 10 else 0
    leave = 1 if n == 2 else 0
    pk = role | leave << 20 | second << 6 | ring << 7 | lo << 8 | hi << 11 | (1 << (21 + tail)) | (1 if prio else 0) << 16 | lvl1 << 17 | swait << 18 | (0 if qsrc is None else 1) << 19
    return [CU[seq]*4096, (L-1)*4096+256, (1 if lvl1 else FBASE) if thr is None else thr, 400000, pk, (tile or 0)*0x20000, qst,
            kslot(slot0+b0), vslot(slot0+b0), ent(f0+b0), n, min(nv, 64), ost, mb | (qsrc or 0) << 24,
            0 if mi is None else ent(MRG0+mi), 0 if mo is None else ent(MRG0+mo)]
MLOFF = vslot(1)
QH = [KBASE - (4-k)*KSLOT for k in range(4)]
table = []
touches = []
def T4(seq, t0, nt, touch=None):
    rows = []
    for w in range(4):
        if w < nt:
            if seqnk(seq) > 10:
                rows.append(entry(R_MAIN, seq, tile=t0+w, qst=(QH[w] if opt.q4v else kslot(5+w)), ost=(vslot(9) if w < 2 else kslot(8))+4096*(w & 1), lo=w, hi=w, alone=True))
            else:
                rows.append(entry(R_MAIN, seq, tile=t0+w, qst=kslot(5+w), ost=vslot(0)+4096*w, lo=0, hi=3))
        else:
            if touch and opt.tw:
                touches.append(touch[1]); r_ = entry(R_IDLE, touch[0]); r_[10] = len(touches); rows.append(r_)
            else:
                r_ = entry(R_IDLE, seq); r_[10] = 0; rows.append(r_)
    pid = prog_id(("L4", seqnk(seq), False, None, opt.D4 if seqnk(seq) > 11 else opt.D3))
    for w in range(4):
        rows.append(entry(pid, seq, init=w))
    return rows
def T5(seq, t0):
    rows = [entry(R_MAIN, seq, tile=t0+w, qst=kslot(5+w), ost=vslot(0)+4096*w, lo=0, hi=4) for w in range(4)]
    cnt = [int(c) for c in opt.t5]; nh = len(cnt)
    assert sum(cnt) == seqnk(seq) and cnt[0] >= 3
    pid = prog_id(("L1", seqnk(seq), nh == 4, 4, opt.D5))
    for h in range(nh):
        rows.append(entry(R_INIT if h < 3 else pid, seq, tile=t0+4, b0=sum(cnt[:h]), n=cnt[h], qst=QH[3], ost=kslot(2),
                          lo=0, hi=(3 if h < nh-1 else 4), mb=kslot(0), mi=(h-1 if h else None), mo=(h if h < nh-1 else None), init=h,
                          prio=opt.hprio, qsrc=(4 if h else None), lvl1=(1 if h < nh-1 else 0), swait=(1 if h == 0 else 0)))
    if nh == 3: rows.append(entry(pid, seq, init=3))
    return rows
def T8(seq):
    pid = prog_id(("MD", seqnk(seq))) if opt.md else prog_id(("L4", seqnk(seq), True, None, opt.D8))
    if opt.md:
        rows = [entry(R_MAIN, seq, tile=w, qst=kslot(5+w), ost=(kslot(8)+4096*w if w < 3 else vslot(0)), lo=(w if w < 3 else 0), hi=(w if w < 3 else 7), alone=True) for w in range(4)]
    else:
        rows = [entry(R_MAIN, seq, tile=w, qst=kslot(5+w), ost=vslot(8)+4096*w, lo=w, hi=w) for w in range(4)]
    for h in range(4):
        r_ = entry(pid, seq, tile=4+h, qst=QH[h], ost=(vslot(8)+4096*h if opt.md else (kslot(8)+4096*h if h < 3 else vslot(0))),
                   lo=(4+h if h < 3 or opt.md else 0), hi=4+h, init=h,
                   ownq=bool(opt.md and not opt.mdq), prio=opt.md)
        if opt.md: r_[4] |= 1 << 20
        rows.append(r_)
    return rows
def T6(seq):
    nk = seqnk(seq)
    pid = prog_id(("L1", nk, True, 5, opt.D6))
    rows = [entry(R_MAIN, seq, tile=w, qst=kslot(5+w), ost=vslot(0)+4096*w, lo=0, hi=5) for w in range(4)]
    na, nb = (5, opt.t6b) if nk == 9 else ((opt.t6a10, opt.t6b10) if nk == 10 else (4, 5))
    spec = [(4, 0, na, None, 0, 0), (5, 0, nb, None, 1, 1), (4, na, nk-na, 0, None, 0), (5, nb, nk-nb, 1, None, 1)]
    for h, (tile, b0, n, mi, mo, buf) in enumerate(spec):
        rows.append(entry(R_INIT if h < 3 else pid, seq, tile=tile, b0=b0, n=n, qst=QH[2+buf], ost=vslot(9 if nk <= 9 else 2)+4096*buf,
                          lo=0, hi=5, mb=kslot(2*buf), mi=mi, mo=mo, init=h, prio=opt.hprio, qsrc=(h+2 if h >= 2 else None),
                          lvl1=(1 if buf == 0 else 0), swait=(1 if h < 2 else 0), thr=(FBASE+2*G if (h >= 2 and nk > 9) else None)))
    return rows
def T34(seqA, seqB, tB0):
    qa = [vslot(1) + k*KSLOT for k in range(4)]
    rows = [entry(R_MAIN, seqA, tile=w, slot0=6, f0=16, qst=kslot(2+w), ost=vslot(0)+4096*w, lo=4, hi=6) for w in range(4)]
    pid = prog_id(("L2", seqA, seqB))
    for h in range(3):
        rows.append(entry(R_INIT, seqB, tile=tB0+h, qst=vslot(2)+h*KSLOT, ost=vslot(2)+4096*h, lo=4, hi=6, init=h, thr=FBASE+2*G, alone=True))
    rows.append(entry(pid, seqB, init=3))
    return rows
def small(seq, t0, nt, two=0):
    return CU[seq] | seqL(seq) << 12 | t0 << 21 | nt << 25 | two << 28
TL8 = "K2 V0 K3 V1 Q4 Q5 Q6 Q7 K4 V2 K5 V3 K6 V4 K7 V5 V6 V7".split()
TL5 = "Q4 Q5 K3 V1 Q6 Q7 K4 V2 K5 V3 K6 V4 K7 V5 K8 V6 V7".split()
def own_touch(nk, par, mod=2):
    o = []
    for p_ in range(opt.tp0, nk):
        if p_ % mod == par:
            if p_+2 < nk: o.append(f"K{p_+2}")
            o.append(f"V{p_}")
    return o
jobs = {"s2a": (lambda: T4(2,0,4), small(2,0,4)), "s2b": (lambda: T4(2,4,4), small(2,4,4)), "s2c": (lambda: T4(2,8,3,(2,own_touch(14,0))), small(2,8,3)),
        "s2d": (lambda: T4(2,11,3,(2,own_touch(14,1))), small(2,11,3)), "T8": (lambda: T8(1), small(1,0,4) | (1 << 31 if opt.md and opt.mdq else 0)),
        "s6a": (lambda: T5(6,0), small(6,0,4)), "s6b": (lambda: T5(6,5), small(6,5,4)), "s7a": (lambda: T5(7,0), small(7,0,4)),
        "s7b": (lambda: T5(7,5), small(7,5,4)), "s0a": (lambda: T5(0,0), small(0,0,4)), "s0b": (lambda: T5(0,5), small(0,5,4)),
        "T6": (lambda: T6(5), small(5,0,4)), "T34": (lambda: T34(4,5,6), small(4,0,4,1)),
        "s3a": (lambda: T4(3,0,4), small(3,0,4)), "s3b": (lambda: T4(3,4,4), small(3,4,4)), "s3c": (lambda: T4(3,8,3,(3,own_touch(11,1)) if opt.t3 else None), small(3,8,3))}
if opt.fake & 1: jobs["T8"] = ((lambda: T6(1)), small(1,0,4))
if opt.fake & 2: jobs["T6"] = ((lambda: T4(5,0,4)), small(5,0,4))
for i_, sq in enumerate((6, 7, 0)):
    if opt.fake & 4:
        jobs[f"s{sq}a"] = ((lambda sq=sq: T4(sq,0,4)), small(sq,0,4))
        jobs[f"s{sq}b"] = ((lambda sq=sq: T4(sq,5,4)), small(sq,5,4))
    if opt.p64[i_] == "1":
        jobs[f"s{sq}a"] = ((lambda sq=sq: T6(sq)), small(sq,0,4))
        jobs[f"s{sq}b"] = ((lambda sq=sq: T4(sq,6,4)), small(sq,6,4) | opt.c4 << 29)
JOBORDER = ["s2a", "s2b", "s2c", "s2d", "T8", "s6a", "s6b",  "s0a", "s0b", "T6", "T34", "s3a", "s3b", "s3c",  "s7a", "s7b"]
if opt.order == 1: JOBORDER = ["T8", "s2a", "s2b", "s6a", "s6b", "s2c", "s2d",  "T6", "T34", "s0a", "s0b", "s3a", "s3b", "s3c",  "s7a", "s7b"]
if opt.order == 2: JOBORDER = ["T8", "s2a", "s2b", "s2c", "s2d", "s6a", "s6b",  "T6", "s0a", "s0b", "T34", "s3a", "s3b", "s3c",  "s7a", "s7b"]
GP = ["T8", "s2a", "s2b", "s2c", "s2d", "s3a", "s3b", "s3c"]
GQ = ["T6", "s6a", "s6b", "s7a", "s7b", "s0a", "s0b", "T34"]
if opt.skew == 2: JOBORDER = GP + GQ
if opt.skew == 3: JOBORDER = GQ + GP
stab = []
for j in JOBORDER:
    k_ = {"s2": 0, "T8": 1, "s6": 2, "s7": 2, "s0": 2, "T6": 3, "T3": 4, "s3": 5}[j[:2]]
    w_ = jobs[j][1] | int(opt.cls[k_]) << 29
    if k_ == 2 and opt.w3: w_ = jobs[j][1] | 1 << 25 | opt.w3 << 29
    table += jobs[j][0](); stab.append(w_)
assert len(table) == 128

def mfma(d, a, b, c):
    cs = "0" if c is None else vr(c, 16)
    return f"v_mfma_f32_32x32x16_bf16 {vr(d,16)}, {vr(a,4)}, {vr(b,4)}, {cs}"
def kread(ks, off):
    return f"ds_read_b128 {vr(V_K+4*ks,4)}, v{V_KA+(ks>>1)} offset:{off+(ks&1)*32}"
def vread(i, jj, off, base=V_V):
    kg, dt = i >> 2, i & 3
    return f"ds_read_b64_tr_b16 {vr(base+4*i+2*jj,2)}, v{V_VA+dt} offset:{off+jj*2048+kg*4096}"
def E(r): return V_E + (r & 7)

def softmax_list(par, R=16, mask=False):
    S, P = V_S[par], V_P[par]
    def ex(r):
        o = []
        if mask:
            if r == 0: o.append(f"v_cndmask_b32 v{S}, v{V_T1}, v{S}, {sr(S_MASK,2)}")
            if r+1 < R: o.append(f"v_cndmask_b32 v{S+r+1}, v{V_T1}, v{S+r+1}, {sr(S_MASK+2*r+2,2)}")
        o.append(f"v_exp_f32 v{E(r)}, v{S+r}")
        return o
    ops = ex(0) + ex(1)
    for r in range(2, R+1):
        if r < R: ops += ex(r)
        q = r - 1
        if q == 1: ops.append(f"v_add_f32 v{V_PS}, v{E(0)}, v{E(1)}")
        else: ops.append(f"v_add_f32 v{V_PS}, v{V_PS}, v{E(q)}")
        if q & 1: ops.append(f"v_cvt_pk_bf16_f32 v{P+(q>>1)}, v{E(q-1)}, v{E(q)}")
    return ops

def cost(x):
    if x.startswith("v_exp") or x.startswith("v_rcp") or x.startswith("v_permlane"): return 8
    if x.startswith("s_cbranch"): return 12
    return 4

rare_sites = []
def itstamp():
    if opt.stamps == 2:
        e(f"v_writelane_b32 v{V_LANE}, s100, m0")
        e("s_add_u32 m0, m0, 1")
        e("s_memtime s[100:101]")

def iteration(par, do_pv, koff, voff, foff, tag, first=False, misc=None, last_ops=None, extra=None, prog=None):
    itstamp()
    mf = []
    for i in range(8):
        mf.append(("qk", i))
        if do_pv: mf.append(("pv", i))
    n = len(mf)
    fixed = [[] for _ in range(n)]
    for g, (kind, i) in enumerate(mf):
        if kind == "qk":
            fixed[g].append(kread(i, koff))
            if not do_pv: fixed[g] += [vread(i, 0, voff), vread(i, 1, voff)]
        else:
            fixed[g] += [vread(i, 0, voff), vread(i, 1, voff)]
    fgap = 4 if n == 16 else 3
    fixed[fgap].append(f"ds_read_b32 v{V_FL}, v{V_FA} offset:{foff}")
    if prog: fixed[8 if n == 16 else 4].append(prog)
    q = []
    if not first: q.append(f"v_add_f32 v{V_L}, v{V_L}, v{V_PS}")
    q += softmax_list(par)
    if n != 16: q.append("WAITFLAG")
    q.append(f"v_cmp_lt_f32 vcc, v{V_FL}, v{V_PS}")
    if first: q.append(f"v_cmp_gt_f32 {sr(S_DK,2)}, s{S_LO}, v{V_PS}")
    misc = [(g_, x) for g_, ops in (misc or []) for x in ops]
    budget = opt.budget if n == 16 else (sum(cost(x) for x in q) + sum(4*len(f) for f in fixed) + n - 1)//n + 4
    nl = 0
    for g, (kind, i) in enumerate(mf):
        if n == 16:
            if g == 0: e("s_waitcnt lgkmcnt(12)")
            if g == 8: e("s_waitcnt lgkmcnt(5)")
        else:
            if g == 0: e("s_waitcnt lgkmcnt(4)")
            if g == 2: e("s_waitcnt lgkmcnt(6)")
        if kind == "qk":
            e(mfma(V_S[1-par], V_K+4*i, V_Q+4*i, V_NEGM if i == 0 else V_S[1-par]))
        else:
            kg, dt = i >> 2, i & 3
            e(mfma(V_O+16*dt, V_V+4*i, V_P[1-par]+4*kg, V_O+16*dt))
        used = 0
        for x in fixed[g]:
            e(x); used += 4
        if g > fgap: nl += len(fixed[g])
        for x in (extra or {}).get(g, []):
            e(x)
            assert not x.startswith("ds_")
        nw = 4 if (n == 16 and g+1 in (8, 16)) else 0
        lastgap = g == n-1
        while q and (used + cost(q[0]) + nw <= budget or lastgap):
            x = q.pop(0)
            if x == "WAITFLAG": x = f"s_waitcnt lgkmcnt({min(nl, 15)})"
            e(x); used += cost(x)
        while misc and misc[0][0] <= g and (used + cost(misc[0][1]) + nw <= budget or lastgap):
            x = misc.pop(0)[1]
            assert not x.startswith("ds_")
            e(x); used += cost(x)
    assert not q and not misc
    if first: e(f"s_or_b64 vcc, vcc, {sr(S_DK,2)}")
    e(f"s_cbranch_vccnz L_rare_{tag}")
    lab(f"L_back_{tag}")
    for x in (last_ops or []): e(x)
    rare_sites.append((tag, par, foff - (2*G if tag.startswith("B") else 0), first, 16))

def blockmax(S, t0, t1, R=16):
    if R == 16:
        e(f"v_max3_f32 v{t0}, v{S}, v{S+1}, v{S+2}")
        e(f"v_max3_f32 v{t1}, v{S+3}, v{S+4}, v{S+5}")
        e(f"v_max3_f32 v{t0}, v{t0}, v{S+6}, v{S+7}")
        e(f"v_max3_f32 v{t1}, v{t1}, v{S+8}, v{S+9}")
        e(f"v_max3_f32 v{t0}, v{t0}, v{S+10}, v{S+11}")
        e(f"v_max3_f32 v{t1}, v{t1}, v{S+12}, v{S+13}")
        e(f"v_max3_f32 v{t0}, v{t0}, v{S+14}, v{S+15}")
        e(f"v_max_f32 v{t0}, v{t0}, v{t1}")
    else:
        e(f"v_max3_f32 v{t0}, v{S}, v{S+1}, v{S+2}")
        e(f"v_max_f32 v{t0}, v{t0}, v{S+3}")
    e(f"v_mov_b32 v{t1}, v{t0}")
    e("s_nop 1")
    e(f"v_permlane32_swap_b32 v{t0}, v{t1}")
    e("s_nop 1")
    e(f"v_max_f32 v{t0}, v{t0}, v{t1}")

def bound():
    e(f"s_cselect_b32 s{T_SOFF}, 1, 0")
    e(f"s_sub_u32 s{T_P1L}, s{T_P1L}, 1")
    e("s_cbranch_scc1 L_end")
    e(f"s_cmp_lg_u32 s{T_SOFF}, 0")

def spin(label, foff, sleep=0):
    lab(label)
    bound()
    if sleep: e(f"s_sleep {sleep}")
    e(f"ds_read_b32 v{V_FL}, v{V_FA} offset:{foff}")
    e("s_waitcnt lgkmcnt(0)")
    e(f"v_cmp_gt_f32 vcc, 0, v{V_FL}")
    e(f"s_cbranch_vccnz {label}")

def rare(tag, par, foff, first, R, pprev=False):
    S, Sn = V_S[par], V_S[1-par]
    lab(f"L_rare_{tag}")
    if foff is not None:
        e(f"v_cmp_lt_f32 vcc, s{S_THR}, v{V_PS}")
        if first:
            e("s_nop 1")
            e(f"s_or_b64 vcc, vcc, {sr(S_DK,2)}")
        e(f"s_cbranch_vccz L_spin_{tag}")
    e("s_nop 15")
    e("s_nop 7")
    blockmax(S, V_E, V_E+1, R)
    if first:
        e(f"v_mov_b32 v{V_T0}, v{V_E}")
    else:
        e(f"v_max_f32 v{V_T0}, 0, v{V_E}")
        e(f"v_sub_f32 v{V_E+1}, 0, v{V_T0}")
        e(f"v_exp_f32 v{V_E+1}, v{V_E+1}")
    for r in range(16):
        e(f"v_sub_f32 v{S+r}, v{S+r}, v{V_T0}")
        if foff is not None: e(f"v_sub_f32 v{Sn+r}, v{Sn+r}, v{V_T0}")
        e(f"v_sub_f32 v{V_NEGM+r}, v{V_NEGM+r}, v{V_T0}")
    if not first:
        for r in range(64):
            e(f"v_mul_f32 v{V_O+r}, v{V_O+r}, v{V_E+1}")
        e(f"v_mul_f32 v{V_L}, v{V_L}, v{V_E+1}")
    for x in softmax_list(par, R): e(x)
    e("s_nop 1")
    if foff is not None: spin(f"L_spin_{tag}", foff)
    e(f"s_branch L_back_{tag}")

def finish():
    if opt.stamps == 4: stamp(2)
    e("s_branch L_stamps" if opt.stamps else "s_endpgm")

stage_spins = []
V_WB = V_NEGM + 8
def norm_ops(dt, pk=False):
    o = V_O+16*dt; ops = []
    for rq in range(4):
        if pk: ops += [f"v_pk_mul_f32 {vr(o+4*rq+2*k,2)}, {vr(o+4*rq+2*k,2)}, {vr(V_L,2)} op_sel_hi:[1,0]" for k in range(2)]
        else: ops += [f"v_mul_f32 v{o+4*rq+r}, v{o+4*rq+r}, v{V_L}" for r in range(4)]
        t = V_E + 2*rq
        ops.append(f"v_cvt_pk_bf16_f32 v{t}, v{o+4*rq}, v{o+4*rq+1}")
        ops.append(f"v_cvt_pk_bf16_f32 v{t+1}, v{o+4*rq+2}, v{o+4*rq+3}")
        ops.append(f"ds_write_b64 v{(V_WB if dt & 1 else V_WA)+rq}, {vr(t,2)}")
    return ops
def rd_ops(p):
    return [f"ds_read_b128 {vr(V_Q+16*p+4*i,4)}, v{V_RA} offset:{i*1024}" for i in range(4)]
ST_SOFF = [T_QOFF, S_T1, S_T0, S_DK]
def st_op(p, i):
    fl = opt.stflag.replace('+', ' ')
    return f"buffer_store_dwordx4 {vr(V_Q+16*p+4*i,4)}, v{V_SA}, {sr(S_O,4)}, s{ST_SOFF[i]} offen offset:{128*p} {fl}".rstrip()
def store_prep():
    return [f"s_add_u32 s{ST_SOFF[i]}, s{T_QOFF}, {i*0x8000:#x}" for i in (1, 2, 3)] + \
           [f"v_xor_b32 v{V_WB+rq}, 64, v{V_WA+rq}" for rq in range(4)]
def store_stream(pk):
    n1 = norm_ops(1)[:7] + norm_ops(1, pk)[(5 if pk else 7):]
    s = norm_ops(0) + n1 + rd_ops(0)
    n2, n3 = norm_ops(2, pk), norm_ops(3, pk)
    u = 5 if pk else 7
    if pk: s += n2[:3*u] + ["s_waitcnt lgkmcnt(3)", st_op(0, 0)] + n2[3*u:] + [st_op(0, 1)] + n3[:u] + [st_op(0, 2)] + n3[u:2*u] + [st_op(0, 3)] + n3[2*u:]
    else: s += n2[:14] + ["s_waitcnt lgkmcnt(2)", st_op(0, 0)] + n2[14:21] + [st_op(0, 1)] + n2[21:] + [st_op(0, 2)] + n3[:7] + [st_op(0, 3)] + n3[7:]
    s += rd_ops(1)
    for i in range(4):
        s += [f"s_waitcnt lgkmcnt({3-i})", st_op(1, i)]
    return s

def tail(kind, par):
    tag = f"T{kind}{par}"
    lab(f"L_tail_{kind}_{par}")
    if opt.stamps == 4: stamp(1)
    itstamp()
    pk = kind >= 3
    if pk: kind -= 3
    if kind == 0 and opt.ftail:
        return tail_short(par, tag, pk)
    voff = VSLOT if par else 2*VSLOT
    R = 4 if kind == 0 else 16
    nkg = 1 if kind == 0 else 2
    a = lambda i: mfma(V_O+16*(i & 3), V_V+4*i, V_P[1-par]+4*(i >> 2), V_O+16*(i & 3))
    f = lambda i: mfma(V_O+16*(i & 3), V_K+4*i, V_P[par]+4*(i >> 2), V_O+16*(i & 3))
    reads = [vread(i, jj, voff, V_K) for i in range(4*nkg) for jj in range(2)]
    q = [f"v_add_f32 v{V_L}, v{V_L}, v{V_PS}"] + softmax_list(par, R, mask=True)
    if kind == 0: q += [f"v_mov_b64 {vr(V_P[par]+2,2)}, 0"]
    q += [f"v_cmp_lt_f32 vcc, s{S_THR}, v{V_PS}"]
    per = (sum(cost(x) for x in q) + 4*len(reads) + 7)//8 + 4
    per = max(per, 24)
    e("s_waitcnt lgkmcnt(12)")
    nrd = 0
    for g in range(8):
        if g == 4:
            e(f"s_waitcnt lgkmcnt({nrd})")
        e(a(g)); used = 0
        if g == 4:
            e(f"ds_write_b32 v{V_PA}, v{V_FA}")
            e(f"ds_read_b32 v{V_FL}, v{V_CK}")
            used += 8
        for _ in range(2):
            if reads:
                e(reads.pop(0)); used += 4; nrd += 1
        while q and (used + cost(q[0]) <= per or g == 7):
            x = q.pop(0); e(x); used += cost(x)
    e(f"s_cbranch_vccnz L_rare_{tag}")
    lab(f"L_back_{tag}")
    rare_sites.append((tag, par, None, False, R))
    e(f"v_add_f32 v{V_L}, v{V_L}, v{V_PS}")
    e("s_waitcnt lgkmcnt(0)")
    e(f"v_cmp_gt_i32 vcc, s{S_T2}, v{V_FL}")
    fin = [i + 4*k for i in range(4) for k in range(nkg)]
    if kind == 2:
        for i in fin: e(f(i))
        e(f"s_cbranch_vccnz L_stg_{tag}")
        lab(f"L_stgback_{tag}")
        stage_spins.append(tag)
        e("s_branch L_merge")
        return
    e(f"v_mov_b32 v{V_T0}, v{V_L}")
    for _ in range(nkg): e(f(fin.pop(0)))
    e("s_nop 0")
    e(f"v_permlane32_swap_b32 v{V_L}, v{V_T0}")
    e(f"s_cbranch_vccnz L_stg_{tag}")
    lab(f"L_stgback_{tag}")
    stage_spins.append(tag)
    e(f(fin.pop(0)))
    e(f"v_add_f32 v{V_L}, v{V_L}, v{V_T0}")
    e(f"v_rcp_f32 v{V_L}, v{V_L}")
    e(f(fin.pop(0)))
    for x in store_prep(): e(x)
    cnt = 6
    for x in store_stream(pk):
        if x.startswith("NEED"): continue
        if fin and cnt >= 6:
            e(f(fin.pop(0))); cnt = 0
        e(x); cnt += 1
    itstamp()
    finish()

short_rares = []
def tail_short(par, tag, pk):
    voff = VSLOT if par else 2*VSLOT
    a = lambda i: mfma(V_O+16*(i & 3), V_V+4*i, V_P[1-par]+4*(i >> 2), V_O+16*(i & 3))
    f = lambda i: mfma(V_O+16*i, V_K+4*i, V_P[par], V_O+16*i)
    rd = [vread(i, jj, voff, V_K) for i in range(4) for jj in range(2)]
    sm = softmax_list(par, 4, mask=True)
    e("s_waitcnt lgkmcnt(12)")
    e(a(0))
    for x in rd[:4]: e(x)
    e(f"v_add_f32 v{V_L}, v{V_L}, v{V_PS}")
    for x in sm[:5]: e(x)
    e("s_waitcnt lgkmcnt(4)")
    e(a(4))
    e(f"ds_write_b32 v{V_PA}, v{V_FA}")
    e(f"ds_read_b32 v{V_FL}, v{V_CK}")
    for x in rd[4:]: e(x)
    for x in sm[5:9]: e(x)
    e(a(1))
    for x in sm[9:]: e(x)
    e(f"v_mov_b64 {vr(V_P[par]+2,2)}, 0")
    e(f"v_cmp_lt_f32 vcc, s{S_THR}, v{V_PS}")
    e(a(5))
    e(f"v_add_f32 v{V_T0}, v{V_L}, v{V_PS}")
    e(f"v_add_f32 v{V_X}, v{V_L}, v{V_PS}")
    e(f"s_cbranch_vccnz L_rare_{tag}")
    short_rares.append((tag, par))
    e("s_waitcnt lgkmcnt(4)")
    e(f(0))
    e(f"v_permlane32_swap_b32 v{V_T0}, v{V_X}")
    e(f"v_cmp_gt_i32 vcc, s{S_T2}, v{V_FL}")
    e(f(1))
    e(f"v_add_f32 v{V_L}, v{V_T0}, v{V_X}")
    e(f"v_rcp_f32 v{V_L}, v{V_L}")
    e(f"s_cbranch_vccnz L_stg_{tag}")
    lab(f"L_stgback_{tag}")
    stage_spins.append(tag)
    e(a(2))
    for x in store_prep(): e(x)
    e("s_waitcnt lgkmcnt(0)")
    rest = [a(6), f(2), a(3), a(7), f(3)]
    cnt = 5
    for x in store_stream(pk):
        if x.startswith("NEED"): continue
        if rest and cnt >= 5:
            e(rest.pop(0)); cnt = 0
        e(x); cnt += 1
    itstamp()
    finish()
def short_rare(tag, par):
    a = lambda i: mfma(V_O+16*(i & 3), V_V+4*i, V_P[1-par]+4*(i >> 2), V_O+16*(i & 3))
    f = lambda i: mfma(V_O+16*i, V_K+4*i, V_P[par], V_O+16*i)
    lab(f"L_rare_{tag}")
    for i in (2, 6, 3, 7): e(a(i))
    rare(tag + "x", par, None, False, 4)
    lab(f"L_back_{tag}x")
    e("s_waitcnt lgkmcnt(0)")
    for i in range(4): e(f(i))
    e(f"v_add_f32 v{V_L}, v{V_L}, v{V_PS}")
    e(f"v_mov_b32 v{V_T0}, v{V_L}")
    lab(f"L_stg_{tag}x")
    bound()
    e(f"ds_read_b32 v{V_FL}, v{V_CK}")
    e("s_waitcnt lgkmcnt(0)")
    e(f"v_cmp_gt_i32 vcc, s{S_T2}, v{V_FL}")
    e(f"s_cbranch_vccnz L_stg_{tag}x")
    e(f"v_permlane32_swap_b32 v{V_L}, v{V_T0}")
    e("s_nop 1")
    e(f"v_add_f32 v{V_L}, v{V_L}, v{V_T0}")
    e("s_branch L_store")

def merge_code():
    lab("L_merge")
    MA, ML = V_KA, V_KA+1
    if opt.mprio:
        e(f"s_cmp_eq_u32 s{T_MOUT}, 0")
        e("s_cbranch_scc1 L_merge_keep")
        e("s_setprio 0")
        lab("L_merge_keep")
    e(f"v_mov_b32 v{V_T1}, v{V_L}")
    e(f"v_mbcnt_lo_u32_b32 v{V_T0}, -1, 0")
    e(f"v_mbcnt_hi_u32_b32 v{V_T0}, -1, v{V_T0}")
    e(f"s_and_b32 s{T_MB}, s{T_MB}, 0xffffff")
    e(f"v_permlane32_swap_b32 v{V_L}, v{V_T1}")
    e(f"v_lshl_add_u32 v{MA}, v{V_T0}, 4, s{T_MB}")
    e(f"s_cmp_eq_u32 s{T_MB}, {KBASE}")
    e(f"s_cselect_b32 s{S_T0}, {ent(48)}, {ent(16)}") if False else None
    e(f"s_cselect_b32 s{S_T0}, {32*G}, 0")
    e(f"v_add_f32 v{V_L}, v{V_L}, v{V_T1}")
    e(f"s_add_u32 s{S_T0}, s{S_T0}, {ent(16)}")
    e(f"v_bfe_u32 v{ML}, v{V_T0}, 1, 4")
    e(f"v_mul_u32_u24 v{ML}, {G}, v{ML}")
    e(f"v_and_b32 v{V_T0}, 1, v{V_T0}")
    e(f"v_lshl_add_u32 v{ML}, v{V_T0}, 3, v{ML}")
    e(f"v_add_u32 v{ML}, s{S_T0}, v{ML}")
    e(f"s_cmp_eq_u32 s{T_MIN}, 0")
    e("s_cbranch_scc1 L_merge_out")
    e(f"v_mov_b32 v{V_FA}, s{T_MIN}")
    spin("L_merge_wait", 0, sleep=1)
    e(f"ds_read_b64 {vr(V_E,2)}, v{ML}")
    for i in range(12):
        e(f"ds_read_b128 {vr(V_K+4*i,4)}, v{MA} offset:{i*G}")
    e("s_waitcnt lgkmcnt(12)")
    e(f"v_cmp_neq_f32 vcc, v{V_NEGM}, v{V_E}")
    for i in range(12, 16):
        e(f"ds_read_b128 {vr(V_K+4*i,4)}, v{MA} offset:{i*G}")
    e("s_cbranch_vccnz L_merge_slow")
    lab("L_merge_add")
    e(f"v_add_f32 v{V_L}, v{V_L}, v{V_E+1}")
    e(f"s_cmp_lg_u32 s{T_MOUT}, 0")
    for i in range(4):
        e(f"s_waitcnt lgkmcnt({12-4*i})")
        for r in range(16*i, 16*i+16):
            e(f"v_add_f32 v{V_O+r}, v{V_O+r}, v{V_K+r}")
    e("s_cbranch_scc1 L_merge_out")
    lab("L_store")
    e(f"v_rcp_f32 v{V_L}, v{V_L}")
    for x in store_prep(): e(x)
    for x in store_stream(False):
        if not x.startswith("NEED"): e(x)
    itstamp()
    finish()
    lab("L_merge_slow")
    e(f"v_min_f32 v{V_E+2}, v{V_NEGM}, v{V_E}")
    e(f"v_sub_f32 v{V_E+4}, v{V_E+2}, v{V_NEGM}")
    e(f"v_sub_f32 v{V_E+6}, v{V_E+2}, v{V_E}")
    e(f"v_exp_f32 v{V_E+4}, v{V_E+4}")
    e(f"v_exp_f32 v{V_E+6}, v{V_E+6}")
    e(f"v_mov_b32 v{V_NEGM}, v{V_E+2}")
    e(f"v_mul_f32 v{V_L}, v{V_L}, v{V_E+4}")
    e(f"v_mul_f32 v{V_E+1}, v{V_E+1}, v{V_E+6}")
    e("s_waitcnt lgkmcnt(0)")
    for r in range(64):
        e(f"v_mul_f32 v{V_O+r}, v{V_O+r}, v{V_E+4}")
        e(f"v_mul_f32 v{V_K+r}, v{V_K+r}, v{V_E+6}")
    e("s_branch L_merge_add")
    lab("L_merge_out")
    e(f"v_mov_b32 v{V_E}, v{V_NEGM}")
    e(f"v_mov_b32 v{V_E+1}, v{V_L}")
    e(f"v_mov_b32 v{V_FA}, s{T_MOUT}")
    e(f"v_mov_b32 v{V_T0}, 1.0")
    e(f"ds_write_b64 v{ML}, {vr(V_E,2)}")
    for i in range(16):
        e(f"ds_write_b128 v{MA}, {vr(V_O+4*i,4)} offset:{i*G}")
    e(f"ds_write_b32 v{V_FA}, v{V_T0}")
    e("s_waitcnt lgkmcnt(0)")
    itstamp()
    finish()

def setup_compute():
    e(f"s_mov_b32 s{S_O+2}, s{T_NREC}" if not opt.fake & 16 else f"s_mov_b32 s{S_O+2}, 0")
    e(f"s_mov_b32 s{S_O+3}, 0x20000")
    e(f"s_add_u32 s{S_O}, s12, s{S_BASE}")
    e(f"s_addc_u32 s{S_O+1}, s13, 0")
    e(f"v_and_b32 v{V_T0}, 3, v{V_LANE}")
    e(f"v_lshl_add_u32 v{V_FA}, v{V_T0}, 2, s{T_FB}")
    e(f"v_bfe_u32 v{V_T1}, v{V_LANE}, 2, 3")
    e(f"v_mul_u32_u24 v{V_T1}, {G}, v{V_T1}")
    e(f"v_lshl_add_u32 v{V_T1}, v{V_T0}, 8, v{V_T1}")
    e(f"v_lshrrev_b32 v{V_L}, 5, v{V_LANE}")
    e(f"v_lshl_add_u32 v{V_T1}, v{V_L}, 4, v{V_T1}")
    for t in range(4):
        e(f"v_xor_b32 v{V_KA+t}, {t}, v{V_T0}")
        e(f"v_lshl_add_u32 v{V_KA+t}, v{V_KA+t}, 6, v{V_T1}")
        e(f"v_add_u32 v{V_E+t}, s{T_QST}, v{V_KA+t}")
        e(f"v_add_u32 v{V_KA+t}, s{T_KB}, v{V_KA+t}")
    e(f"v_lshrrev_b32 v{V_T1}, 3, v{V_LANE}")
    e(f"v_and_b32 v{V_T0}, 7, v{V_LANE}")
    e(f"v_lshlrev_b32 v{V_PS}, 4, v{V_T0}")
    e(f"v_lshl_add_u32 v{V_SA}, v{V_T1}, 12, v{V_PS}")
    e(f"v_xor_b32 v{V_T1}, v{V_T1}, v{V_LANE}")
    e(f"v_lshl_add_u32 v{V_RA}, v{V_T1}, 4, s{T_OST}")
    e(f"v_and_b32 v{V_T1}, 31, v{V_LANE}")
    e(f"v_lshl_add_u32 v{V_T1}, v{V_T1}, 7, s{T_OST}")
    e(f"v_lshl_add_u32 v{V_T1}, v{V_L}, 3, v{V_T1}")
    for rq in range(4):
        e(f"v_xor_b32 v{V_WA+rq}, {rq}, v{V_T0}")
        e(f"v_lshl_add_u32 v{V_WA+rq}, v{V_WA+rq}, 4, v{V_T1}")
    e(f"v_bfe_u32 v{V_T0}, v{V_LANE}, 2, 2")
    e(f"v_lshl_add_u32 v{V_T1}, v{V_L}, 2, v{V_T0}")
    e(f"v_lshl_add_u32 v{V_T1}, v{V_T1}, 8, s{T_VB}")
    e(f"v_bfe_u32 v{V_PS}, v{V_LANE}, 4, 1")
    e(f"v_lshl_add_u32 v{V_T1}, v{V_PS}, 5, v{V_T1}")
    e(f"v_and_b32 v{V_PS}, 3, v{V_LANE}")
    e(f"v_lshl_add_u32 v{V_T1}, v{V_PS}, 3, v{V_T1}")
    for dt in range(4):
        e(f"v_xor_b32 v{V_VA+dt}, {dt}, v{V_T0}")
        e(f"v_lshl_add_u32 v{V_VA+dt}, v{V_VA+dt}, 6, v{V_T1}")
    e(f"s_bfe_u32 s{S_T0}, s{T_PK}, {8 | 3 << 16:#x}")
    e(f"s_bfe_u32 s{S_T1}, s{T_PK}, {11 | 3 << 16:#x}")
    e(f"v_and_b32 v{V_CK}, 7, v{V_LANE}")
    e(f"v_max_u32 v{V_CK}, s{S_T0}, v{V_CK}")
    e(f"v_min_u32 v{V_CK}, s{S_T1}, v{V_CK}")
    e(f"v_mul_u32_u24 v{V_CK}, {G}, v{V_CK}")
    e(f"v_add_u32 v{V_CK}, {ent(PROG0)}, v{V_CK}")
    e(f"v_lshlrev_b32 v{V_T0}, 2, v{V_L}")
    e(f"v_sub_u32 v{V_T0}, s{T_NV}, v{V_T0}")
    for r in range(16):
        e(f"v_cmp_lt_i32 {sr(S_MASK+2*r,2)}, {(r & 3) + 8*(r >> 2)}, v{V_T0}")
    for r in range(0, 64, 2): e(f"v_mov_b64 {vr(V_O+r,2)}, 0")
    for r in range(0, 16, 2): e(f"v_mov_b64 {vr(V_NEGM+r,2)}, 0")
    e(f"v_mov_b32 v{V_L}, 0")
    e(f"v_mov_b32 v{V_T1}, 0xff800000")
    e(f"v_mov_b32 v{V_X}, 1")
    e(f"s_mov_b32 s{S_LO}, {f32bits(1.0/THR):#x}")
    e(f"s_mov_b32 s{S_THR}, {f32bits(THR):#x}")
    e(f"s_bitcmp1_b32 s{T_PK}, 7")
    e(f"s_cselect_b32 s{S_KWRAP}, 6, 0")
    e(f"s_cselect_b32 s{S_VWRAP}, 8, 0")
    e(f"s_mov_b32 s{S_2K}, {2*KSLOT}")
    e(f"s_mov_b32 s{S_2V}, {2*VSLOT}")
    e(f"s_mov_b32 s{S_J}, 2")
    e(f"s_sub_u32 s{S_NM1}, s{T_N}, 1")
    e(f"s_mov_b32 s{S_T2}, s{T_P1S}")

def prog_addr():
    e(f"s_mul_i32 s{S_T0}, s{S_U}, {G}")
    e(f"s_add_u32 s{S_T0}, s{S_T0}, {ent(PROG0)}")
    e(f"v_mov_b32 v{V_PA}, s{S_T0}")

def q_read():
    for ks in range(8):
        e(f"ds_read_b128 {vr(V_Q+4*ks,4)}, v{V_E+(ks>>1)} offset:{(ks&1)*32}")

CSCALE = math.log2(math.e) / math.sqrt(128.0)
def qscale(ks, pk=True):
    tb = V_S[1] + 8*(ks & 1)
    for k in range(4):
        r = V_Q+4*ks+k
        e(f"v_lshlrev_b32 v{tb+2*k}, 16, v{r}")
        e(f"v_and_b32 v{tb+2*k+1}, {f's{S_T0}' if pk else '0xffff0000'}, v{r}")
    for k in range(4):
        if pk:
            e(f"v_pk_mul_f32 {vr(tb+2*k,2)}, {vr(tb+2*k,2)}, {sr(S_DK,2)}")
        else:
            e(f"v_mul_f32 v{tb+2*k}, {f32bits(CSCALE):#x}, v{tb+2*k}")
            e(f"v_mul_f32 v{tb+2*k+1}, {f32bits(CSCALE):#x}, v{tb+2*k+1}")
    for k in range(4):
        e(f"v_cvt_pk_bf16_f32 v{V_Q+4*ks+k}, v{tb+2*k}, v{tb+2*k+1}")

def flag_init():
    e(f"v_mul_u32_u24 v{V_T0}, {G}, v{V_LANE}")
    e(f"v_add_u32 v{V_T0}, {FBASE}, v{V_T0}")
    for k in range(4): e(f"v_mov_b32 v{V_V+k}, -1.0")
    e(f"ds_write_b128 v{V_T0}, {vr(V_V,4)}")

def init_signal_regs(f0):
    e(f"s_and_b32 s{S_T0}, s{S_U}, 3")
    e(f"s_lshl_b32 s{S_T0}, s{S_T0}, 2")
    if f0 is None:
        e(f"s_cmp_lt_u32 s{S_U}, 4")
        e(f"s_cselect_b32 s{S_T1}, {16*G}, 0")
        e(f"s_add_u32 s{S_T0}, s{S_T0}, s{S_T1}")
    e(f"s_add_u32 s{S_T0}, s{S_T0}, {FBASE}")
    e(f"v_mov_b32 v{V_SIG}, s{S_T0}")
    e(f"v_mov_b32 v{V_THRV}, {f32bits(THR):#x}")

def kv_srds(sk, sv, base_s, nrec):
    for srd, p in ((sk, 6), (sv, 8)):
        e(f"s_add_u32 s{srd}, s{p}, s{base_s}")
        e(f"s_addc_u32 s{srd+1}, s{p+1}, 0")
        e(f"s_mov_b32 s{srd+2}, {nrec}")
        e(f"s_mov_b32 s{srd+3}, 0x20000")

class Loader:
    def __init__(self, name, quarter):
        self.pace = 0
        self.name = name; self.quarter = quarter; self.issued = []; self.npoll = 0; self.seen = {}
    def poll(self, lo, hi, thr, word=0):
        key = (lo, hi, word)
        if self.seen.get(key, -1) >= thr: return
        self.seen[key] = thr
        l_ = f"L_pw_{self.name}_{self.npoll}"; self.npoll += 1
        e(f"v_and_b32 v{V_POLL}, 7, v{V_LANE}")
        e(f"v_max_u32 v{V_POLL}, {lo}, v{V_POLL}")
        e(f"v_min_u32 v{V_POLL}, {hi}, v{V_POLL}")
        e(f"v_mul_u32_u24 v{V_POLL}, {G}, v{V_POLL}")
        e(f"v_add_u32 v{V_POLL}, {ent(PROG0)}, v{V_POLL}")
        e(f"s_mov_b32 s{S_T0}, {thr}")
        lab(l_)
        e(f"ds_read_b32 v{V_PV}, v{V_POLL} offset:{4*word}")
        e("s_waitcnt lgkmcnt(0)")
        e(f"v_cmp_gt_i32 vcc, s{S_T0}, v{V_PV}")
        e(f"s_cbranch_vccz {l_}_ok")
        e("s_sleep 1")
        bound()
        e(f"s_branch {l_}")
        lab(f"{l_}_ok")
    def block(self, tag, srd, b, lds, stride):
        if self.quarter:
            wreg = S_DK if stride == G else S_DV
            e(f"s_add_u32 m0, s{wreg}, {lds}")
            e(f"s_mov_b32 s{S_T1}, {b*0x20000:#x}")
            e(f"buffer_load_dwordx4 v{V_DMA}, {sr(srd,4)}, s{S_T1} offen lds")
            e(f"s_add_u32 m0, s{wreg}, {lds+4*stride}")
            e(f"s_sleep {self.pace}" if self.pace else "s_nop 0")
            e(f"buffer_load_dwordx4 v{V_DMA2}, {sr(srd,4)}, s{S_T1} offen lds")
            if self.pace: e(f"s_sleep {self.pace}")
            self.issued += [tag]*2
        else:
            for g in range(8):
                e(f"s_mov_b32 m0, {lds+g*stride}")
                e(f"s_mov_b32 s{S_T1}, {b*0x20000+g*0x4000:#x}")
                e(f"buffer_load_dwordx4 v{V_DMA}, {sr(srd,4)}, s{S_T1} offen lds")
            self.issued += [tag]*8
    def wait(self, tag):
        last = max(i for i, t in enumerate(self.issued) if t == tag)
        n = len(self.issued)-1-last
        assert n <= 63
        e(f"s_waitcnt vmcnt({n})")

def loader_single_stream(desc, pid):
    kind, nk = desc[0], desc[1]
    quarter = kind == "L4"
    late = desc[2]
    D = desc[4]
    ld = Loader(f"{kind}_{nk}_{pid}", quarter)
    lab(f"L_prog_{pid}")
    if opt.lprio: e(f"s_setprio {opt.lprio}")
    ld.issued += ["i1"]*4 + ["i2"]*4
    qsrc = desc[3] if late else None
    if not quarter: e(f"v_mov_b32 v{V_DMA}, v{V_DL}")
    ring = nk > 10
    ks = lambda b: b & 7 if ring else b
    vs = lambda b: (((b-1) & 7) + 1) if (ring and b > 8) else b
    hi = (7 if late else 3) if quarter else 6
    vq = (7 if desc[3] == 5 else {10: 8, 8: 5}.get(nk, 99)) if (late or not quarter) else 99
    def req(p):
        lv = []
        b = p+2
        def level(j):
            if j <= 0: return (0, 3, 1, 0, 0)
            if j & 1: return (0, 3, FBASE+(j-1)*G, j+opt.slack, 1)
            return (0, 3, FBASE+(j-2)*G, j+opt.slack, 0)
        if b < nk:
            if ks(b) != b: lv.append(level(b-9))
            elif b >= 5 and not (ring and opt.q4v): lv.append((0, 2 if (b < 8 and opt.w3) else 3, 0, QSIG, 0))
        if vs(p) != p: lv.append(level(p-7))
        elif p >= vq: lv.append((4, hi, 0, 2, 0))
        elif p >= 5 and ring and opt.q4v: lv.append((0, 3, 0, QSIG, 0))
        return lv
    nxt = [1]
    def pairs_upto(p, sig):
        while nxt[0] <= min(p, nk-1):
            r = req(nxt[0])
            if any(x[3] > sig for x in r): break
            for x in r: ld.poll(x[0], x[1], x[2], x[4])
            p_ = nxt[0]
            if p_+2 < nk: ld.block(p_, S_K, p_+2, kslot(ks(p_+2)), G)
            ld.block(p_, S_V, p_, vslot(vs(p_)), 1024)
            nxt[0] += 1
    chunks = []
    side = opt.side == 1 or (opt.side == 2 and quarter)
    if late:
        k0 = len(out); setup_compute(); prog_addr(); body = out[k0:]; del out[k0:]
        cut = next(i for i, x in enumerate(body) if "s_bfe_u32" in x)
        chunks = [body[:cut], body[cut:]]
        if side:
            cut = max(i for i, x in enumerate(body) if f"s{T_KB}," in x) + 1
            chunks = [body[:cut] + body[-3:] + [f"    v_mov_b32 v{V_X}, 0"], body[cut:-3]]
    pairs_upto((opt.npre3 if nk == 11 else opt.npre4) if quarter else opt.npre1, -1)
    ld.wait("i2")
    e(f"ds_write_b32 v{V_SIG}, v{V_THRV} offset:{G}")
    stamp(3)
    if not quarter:
        e(f"v_and_b32 v{V_SIG}, 3, v{V_LANE}")
        e(f"v_lshlrev_b32 v{V_SIG}, 2, v{V_SIG}")
        e(f"v_add_u32 v{V_SIG}, {FBASE}, v{V_SIG}")
    if late and qsrc is None:
        e(f"s_mov_b32 s{S_T0}, s{T_QOFF}")
        e(f"s_mov_b32 m0, s{T_QST}")
        dma_pass(S_T0)
        ld.issued += ["q"]*8
    pairs_upto(D, 0)
    if late: out.extend(chunks[0])
    ld.pace = opt.pace
    for j in range(1, nk):
        assert nxt[0] > j
        ld.wait(j)
        e(f"ds_write_b32 v{V_SIG}, v{V_THRV} offset:{(j+1)*G}")
        if late and j == 2:
            if qsrc is None: ld.wait("q")
            else: ld.poll(qsrc, qsrc, 0)
            q_read()
            e("s_waitcnt lgkmcnt(0)")
            e(f"ds_write_b32 v{V_PA}, v{V_X if side else V_L}")
        pairs_upto(j+D, j)
        if late and j == 1 and not side: out.extend(chunks[1])
        if late and 2 <= j <= 5 and not side:
            qscale(2*j-4, False); qscale(2*j-3, False)
    if late and side:
        e("s_setprio 0")
        out.extend(chunks[1])
        e("s_branch L_scale_h")
    elif late:
        e("s_branch L_spin_h" if quarter else "s_branch L_helper_go")
    else:
        e("s_waitcnt lgkmcnt(0)")
        stamp(4)
        finish()

def loader_two_streams(desc, pid):
    _, sa, sb = desc
    nka, nkb = seqnk(sa), seqnk(sb)
    ld = Loader("L2", False)
    lab(f"L_prog_{pid}")
    if opt.lprio: e(f"s_setprio {opt.lprio}")
    ld.issued += ["i1"]*4 + ["i2"]*4
    e(f"v_mov_b32 v{V_DMA}, v{V_DL}")
    for k in range(8): e(f"s_mov_b32 s{S_K2+k}, s{S_K+k}") if k % 4 != 3 else e(f"s_mov_b32 s{S_K2+k}, 0x20000")
    kv_srds(S_K, S_V, S_BASE, f"s{T_NREC}")
    def pa(p):
        if p+2 < nka: ld.block(("a", p), S_K2, p+2, kslot(6+p+2), G)
        ld.block(("a", p), S_V2, p, vslot(6+p), 1024)
    def pb(p):
        if p+2 >= 6 and p+2 < nkb: ld.poll(0, 3, ent(16))
        if p == 8: ld.poll(0, 3, ent(16)+2*G)
        if p+2 < nkb: ld.block(("b", p), S_K, p+2, kslot(p+2), G)
        ld.block(("b", p), S_V, p, vslot(p), 1024)
    def sig(t, p):
        ld.wait((t, p))
        e(f"ds_write_b32 v{V_SIG}, v{V_THRV} offset:{(p + 1 + (16 if t == 'a' else 0))*G}")
    pa(1)
    ld.wait("i2")
    e(f"ds_write_b32 v{V_SIG}, v{V_THRV} offset:{G}")
    stamp(3)
    e(f"v_and_b32 v{V_SIG}, 3, v{V_LANE}")
    e(f"v_lshlrev_b32 v{V_SIG}, 2, v{V_SIG}")
    e(f"v_add_u32 v{V_SIG}, {FBASE}, v{V_SIG}")
    pa(2); pa(3)
    ld.block(("b", -1), S_K, 0, kslot(0), G)
    sig("a", 1)
    ld.block(("b", -1), S_K, 1, kslot(1), G)
    sig("a", 2)
    ld.poll(0, 6, 0)
    pb(0); sig("a", 3)
    pb(1); sig("b", -1)
    pb(2); sig("b", 0)
    pb(3); sig("b", 1)
    pb(4); sig("b", 2)
    pb(5); sig("b", 3)
    pb(6); sig("b", 4)
    pb(7); sig("b", 5)
    pb(8); sig("b", 6); sig("b", 7); sig("b", 8)
    e("s_waitcnt lgkmcnt(0)")
    stamp(4)
    finish()

def md_program(desc, pid):
    nk = desc[1]
    ld = Loader(f"MD_{pid}", True)
    lab(f"L_prog_{pid}")
    if not opt.mdsync: e("s_setprio 1")
    ld.issued += (["i1"]*4 + ["q"]*8 + ["i2"]*4) if opt.mdq else (["i1"]*4 + ["i2"]*4 + ["q"]*8)
    def pair(p):
        if p+2 < nk: ld.block(p, S_K, p+2, kslot(p+2), G)
        ld.block(p, S_V, p, vslot(p), 1024)
    def sig(p):
        ld.wait(p)
        e(f"ds_write_b32 v{V_SIG}, v{V_THRV} offset:{(p+1)*G}")
    pair(1)
    setup_compute(); prog_addr()
    if not opt.mdq:
        ld.wait("i2"); e(f"ds_write_b32 v{V_SIG}, v{V_THRV} offset:{G}")
    ld.wait("q")
    stamp(3)
    q_read()
    e("s_waitcnt lgkmcnt(0)")
    e(f"ds_write_b32 v{V_PA}, v{V_L}")
    pair(2)
    if opt.mdsync:
        e(f"s_mov_b32 s{T_KB}, s{S_DK}")
        e(f"s_mov_b32 s{T_VB}, s{S_DV}")
        e(f"s_mov_b32 s{S_DK}, {f32bits(CSCALE):#x}")
        e(f"s_mov_b32 s{S_DV}, {f32bits(CSCALE):#x}")
        e(f"s_mov_b32 s{S_T0}, 0xffff0000")
        for ks in range(7): qscale(ks)
        e(f"ds_write_b32 v{V_SIG}, v{V_THRV}")
        qscale(7)
        e(f"s_mov_b32 s{S_DK}, s{T_KB}")
        e(f"s_mov_b32 s{S_DV}, s{T_VB}")
        e("s_setprio 1")
        ld.wait("i2"); e(f"ds_write_b32 v{V_SIG}, v{V_THRV} offset:{G}")
    else:
        for ks in range(4): qscale(ks, False)
        if opt.mdq:
            ld.wait("i2"); e(f"ds_write_b32 v{V_SIG}, v{V_THRV} offset:{G}")
        for ks in range(4, 8): qscale(ks, False)
    if QSIG: sig(1)
    ld.poll(0, 7, 0)
    pair(3)
    if not QSIG: sig(1)
    e(f"v_mov_b32 v{V_T1}, v{V_DMA}")
    e(f"v_readfirstlane_b32 s{T_QST}, v{V_SIG}")
    e(f"s_mov_b32 s{T_KB}, s{S_DK}")
    e(f"s_mov_b32 s{T_VB}, s{S_DV}")
    e("s_branch L_spin_h")
    lab(f"L_md_loop")
    kv_srds(S_K, S_V, S_BASE, f"s{T_NREC}")
    e(f"v_mov_b32 v{V_X}, {f32bits(THR):#x}")
    for j in range(1, nk-1):
        ex = {}
        p = j+3
        if j+1 < nk:
            last = max(i for i, t in enumerate(ld.issued) if t == j+1)
            e(f"s_waitcnt vmcnt({len(ld.issued)-1-last})")
            e(f"v_mov_b32 v{V_T0}, s{T_QST}")
            e(f"ds_write_b32 v{V_T0}, v{V_X} offset:{(j+2)*G}")
        if p < nk:
            items = []
            if p+2 < nk: items += [(S_K, T_KB, kslot(p+2), (p+2)*0x20000), (S_K, T_KB, kslot(p+2)+4*G, (p+2)*0x20000+0x10000)]
            items += [(S_V, T_VB, vslot(p), p*0x20000), (S_V, T_VB, vslot(p)+4096, p*0x20000+0x10000)]
            for k, (srd, wreg, lds, so) in enumerate(items):
                ops = [f"s_add_u32 m0, s{wreg}, {lds}", f"s_mov_b32 s{S_T1}, {so:#x}", f"buffer_load_dwordx4 v{V_T1}, {sr(srd,4)}, s{S_T1} offen lds"]
                if opt.stamps == 2: ops = [f"s_mov_b32 s{S_T0}, m0"] + ops + [f"s_mov_b32 m0, s{S_T0}"]
                ex[1+3*k] = ops
                ld.issued.append(p)
        if j & 1:
            ma = [(2+4*t, [f"v_add_u32 v{V_KA+t}, s{S_2K}, v{V_KA+t}"]) for t in range(4)]
            iteration(1, True, 3*KSLOT, VSLOT, 3*G, f"Amd{j}", misc=ma, extra=ex)
        else:
            mb = [(8, [f"v_add_u32 v{V_FA}, {2*G}, v{V_FA}"])]
            mb += [(9+2*t, [f"v_add_u32 v{V_VA+t}, s{S_2V}, v{V_VA+t}"]) for t in range(4)]
            iteration(0, True, 2*KSLOT, 2*VSLOT, 4*G, f"Bmd{j}", misc=mb, extra=ex, prog=f"ds_write_b32 v{V_PA}, v{V_FA}")
    e(f"v_mov_b32 v{V_T1}, 0xff800000")
    e("s_branch L_tail_odd" if (nk-1) & 1 else "s_branch L_tail_even")

hdr = open("cdna_kernels/" + NAME + ".s.ref").read().split("\n")
for line in hdr:
    if line.startswith("; @launch"): break
    out.append(line)
out.append(f"; @launch grid=({NWG},1,1) block=(512,1,1) lds={LDS_BYTES}")
out.append("; job order: " + " ".join(JOBORDER))
out.extend("; " + x if x else ";" for x in """
Varlen attention, written by gen/gen19.py (own generator).  256 workgroups (one per CU) x 8 waves.
 * 16 job slots per head; the fixed cu[] is folded into two tables in this file (L_small, L_table).
 * A compute wave owns 32 query rows: S^T = K Q^T and O^T = V^T P^T with 32x32x16 bf16 MFMA, three-stage software
   pipeline QK(j+1) | softmax(j) | PV(j-1).  Q is pre-scaled by log2(e)/sqrt(128).
 * Softmax stabiliser: the running reference m enters as the C operand of the first QK MFMA.  Every block's row sums
   are checked at run time (upper bound always, lower bound on the first block); when a check fails the wave
   switches to the true running row maximum and rescales O, l and the pending scores (L_rare_*).
 * K/V blocks reach LDS by LDS-DMA from loader waves; producers and consumers meet through flag words kept in
   the padding of the K slots (FULL / progress / merge flags), one barrier only (after the flags are initialised).
 * Extra query tiles are split along the keys over helper waves and merged through LDS (L_merge).
""".strip("\n").split("\n"))
out.append('.amdgcn_target "amdgcn-amd-amdhsa--gfx950"')
out.append(".text")
out.append(f".globl {NAME}_kernel")
out.append(".p2align 8")
out.append(f".type {NAME}_kernel,@function")
lab(f"{NAME}_kernel")
S_W, S_HOFF = S_KWRAP, S_VWRAP
if opt.stamps == 5: e(f"s_memtime {sr(S_STAMP,2)}")
e("s_load_dwordx4 s[4:7], s[0:1], 0")
e("s_load_dwordx2 s[8:9], s[0:1], 16")
e("s_load_dwordx2 s[12:13], s[0:1], 32")
e(f"s_getpc_b64 {sr(S_DK,2)}")
lab("L_pc")
if opt.skew >= 2:
    e(f"s_bfe_u32 s{S_T0}, s2, {5 | 3 << 16:#x}")
    e(f"s_and_b32 s{S_T1}, s2, 4")
    e(f"s_lshl_b32 s{S_T1}, s{S_T1}, 1")
    e(f"s_bfe_u32 s{S_HOFF}, s2, {3 | 1 << 16:#x}")
    e(f"s_add_u32 s{S_T0}, s{S_T0}, s{S_T1}")
    e(f"s_lshl_b32 s{S_T0}, s{S_T0}, 2")
elif opt.skew:
    e(f"s_bfe_u32 s{S_T0}, s2, {5 | 3 << 16:#x}")
    e(f"s_bfe_u32 s{S_J}, s2, {2 | 1 << 16:#x}")
    e(f"s_mul_i32 s{S_T1}, s{S_J}, 7")
    e(f"s_bfe_u32 s{S_HOFF}, s2, {3 | 1 << 16:#x}")
    e(f"s_add_u32 s{S_T2}, s{S_HOFF}, 7")
    e(f"s_cmp_eq_u32 s{S_T0}, 7")
    e(f"s_cselect_b32 s{S_T1}, s{S_T2}, s{S_T1}")
    e(f"s_cselect_b32 s{S_HOFF}, s{S_J}, s{S_HOFF}")
    e(f"s_add_u32 s{S_T0}, s{S_T0}, s{S_T1}")
    e(f"s_lshl_b32 s{S_T0}, s{S_T0}, 2")
else:
    e(f"s_lshr_b32 s{S_T0}, s2, 2")
    e(f"s_and_b32 s{S_T0}, s{S_T0}, 60")
e(f"s_add_u32 s{S_T1}, s{S_T0}, L_small-L_pc")
e(f"s_load_dword s{S_W}, {sr(S_DK,2)}, s{S_T1}")
e(f"v_lshrrev_b32 v{V_T0}, 6, v0")
e("s_branch L_go")
out.append(".type L_small,@object")
lab("L_small")
out.append("    .long " + ", ".join(f"{x:#x}" for x in stab))
out.append(".size L_small, .-L_small")
lab("L_go")
e(f"s_cmp_ge_u32 s2, {NWG}")
e("s_cbranch_scc1 L_end")
e(f"v_readfirstlane_b32 s{S_U}, v{V_T0}")
if opt.stamps:
    e("s_memrealtime s[100:101]")
stamp(0)
if opt.pf:
    e(f"s_lshr_b32 s{S_T1}, s2, 3")
    e(f"s_lshl_b32 s{S_T1}, s{S_T1}, 11")
    e(f"v_lshrrev_b32 v{V_T0}, 5, v0")
    e(f"v_lshl_add_u32 v{V_T0}, v{V_T0}, 7, s{S_T1}")
    e(f"global_load_dword v{V_S[0]}, v{V_T0}, {sr(S_DK,2)}")
e(f"v_and_b32 v{V_LANE}, 63, v0")
e(f"s_lshl_b32 s{S_T0}, s{S_T0}, 1")
e(f"s_add_u32 s{S_T0}, s{S_T0}, s{S_U}")
e(f"s_lshl_b32 s{S_T0}, s{S_T0}, 6")
e(f"s_add_u32 s{S_T2}, s{S_T0}, L_table-L_pc")
e(f"v_mov_b32 v{V_T0}, s{S_T2}")
e(f"global_load_dword v{V_S[0]+1}, v{V_T0}, {sr(S_DK,2)}")
if opt.skew and opt.str4:
    e(f"s_bfe_u32 s{S_T1}, s2, {4 | 1 << 16:#x}")
    e(f"s_lshl_b32 s{S_T1}, s{S_T1}, 1")
    e(f"s_add_u32 s{S_HOFF}, s{S_HOFF}, s{S_T1}")
    e(f"s_lshl_b32 s{S_HOFF}, s{S_HOFF}, 2")
    e(f"s_and_b32 s{S_T0}, s2, 3")
    e(f"s_add_u32 s{S_HOFF}, s{S_HOFF}, s{S_T0}")
    e(f"s_lshl_b32 s{S_HOFF}, s{S_HOFF}, 8")
elif opt.skew:
    e(f"s_and_b32 s{S_T0}, s2, 3")
    e(f"s_lshl_b32 s{S_T0}, s{S_T0}, 2")
    e(f"s_add_u32 s{S_HOFF}, s{S_HOFF}, s{S_T0}")
    e(f"s_bfe_u32 s{S_T1}, s2, {4 | 1 << 16:#x}")
    e(f"s_lshl_b32 s{S_T1}, s{S_T1}, 1")
    e(f"s_add_u32 s{S_HOFF}, s{S_HOFF}, s{S_T1}")
    e(f"s_lshl_b32 s{S_HOFF}, s{S_HOFF}, 8")
else:
    e(f"s_and_b32 s{S_T0}, s2, 7")
    e(f"s_lshl_b32 s{S_T0}, s{S_T0}, 9")
    e(f"s_bfe_u32 s{S_T1}, s2, {3 | 1 << 16:#x}")
    e(f"s_lshl_b32 s{S_T1}, s{S_T1}, 8")
    e(f"s_add_u32 s{S_HOFF}, s{S_T0}, s{S_T1}")
e(f"v_lshrrev_b32 v{V_T0}, 4, v{V_LANE}")
e(f"v_lshlrev_b32 v{V_T1}, 2, v{V_T0}")
e(f"v_and_b32 v{V_DL}, 15, v{V_LANE}")
e(f"v_xor_b32 v{V_DL}, v{V_DL}, v{V_T1}")
e(f"v_lshlrev_b32 v{V_DL}, 4, v{V_DL}")
e(f"v_lshl_add_u32 v{V_DL}, v{V_T0}, 12, v{V_DL}")
e(f"s_mov_b32 s{S_P1+3}, 0x20000")
e(f"s_mov_b32 s{S_K+3}, 0x20000")
e(f"s_and_b32 s{S_J}, s{S_U}, 3")
e(f"s_lshl_b32 s{S_T0}, s{S_J}, 14")
e(f"v_add_u32 v{V_DMA}, s{S_T0}, v{V_DL}")
e(f"v_add_u32 v{V_DMA2}, 0x10000, v{V_DMA}")
flag_init()
e("s_waitcnt lgkmcnt(0)")
e(f"s_load_dwordx16 {sr(T,16)}, {sr(S_DK,2)}, s{S_T2}")
stamp(1)
e(f"s_and_b32 s{S_BASE}, s{S_W}, 0xfff")
e(f"s_lshl_b32 s{S_BASE}, s{S_BASE}, 12")
e(f"s_add_u32 s{S_BASE}, s{S_BASE}, s{S_HOFF}")
e(f"s_and_b32 s{S_T0}, s{S_W}, 0x1ff000")
e(f"s_sub_u32 s{S_P1+2}, s{S_T0}, {4096-256}")
e(f"s_bitcmp1_b32 s{S_W}, 28")
e(f"s_cselect_b32 s{S_T2}, 1, 0")
e(f"s_cmp_ge_u32 s{S_U}, 4")
e("s_cbranch_scc1 L_first_kv")
def dma_pass(soff):
    e(f"s_add_u32 s{S_P1}, s4, s{S_BASE}")
    e(f"s_addc_u32 s{S_P1+1}, s5, 0")
    for i in range(8):
        e(f"buffer_load_dwordx4 v{V_DL}, {sr(S_P1,4)}, s{soff} offen lds")
        if i < 7:
            e(f"s_add_u32 m0, m0, {G}")
            e(f"s_addk_i32 s{soff}, 0x4000")
if opt.qprio:
    for w_ in range(3):
        e(f"s_cmp_gt_u32 s{S_U}, {2-w_}")
        e(f"s_cbranch_scc1 L_qp")
        e(f"s_setprio {w_+1}")
    lab("L_qp")
if opt.kfirst == 2: e("s_barrier")
e(f"s_bfe_u32 s{S_T0}, s{S_W}, {25 | 3 << 16:#x}")
e(f"s_cmp_ge_u32 s{S_U}, s{S_T0}")
e("s_cbranch_scc1 L_idle")
if opt.cls != "000000" or opt.hcls or opt.hl != "0000" or "1" in opt.p64:
    assert opt.kfirst == 2
    if opt.hl != "0000":
        e(f"s_lshr_b32 s{S_T0}, s{S_HOFF}, 6")
        e(f"s_and_b32 s{S_T0}, s{S_T0}, 12")
        e(f"s_lshr_b32 s{S_T0}, {sum(int(c) << (4*i) for i, c in enumerate(opt.hl)):#x}, s{S_T0}")
        e(f"s_and_b32 s{S_T0}, s{S_T0}, 15")
    elif opt.hcls == 1: e(f"s_bfe_u32 s{S_T0}, s2, {4 | 1 << 16:#x}")
    elif opt.hcls == 2:
        e(f"s_lshr_b32 s{S_T0}, s2, 3"); e(f"s_and_b32 s{S_T0}, s{S_T0}, 2")
    elif opt.hcls == 3:
        e(f"s_bfe_u32 s{S_T0}, s2, {3 | 2 << 16:#x}"); e(f"s_max_u32 s{S_T0}, s{S_T0}, 1"); e(f"s_sub_u32 s{S_T0}, s{S_T0}, 1"); e(f"s_cmp_lg_u32 s{S_T0}, 0")
    else:
        if opt.w3:
            e(f"s_sub_u32 s{S_T0}, s{S_T0}, s{S_U}")
            e(f"s_bfe_u32 s{S_T1}, s{S_W}, {25 | 3 << 16:#x}")
            e(f"s_cmp_eq_u32 s{S_T1}, 5")
            e(f"s_cselect_b32 s{S_T0}, s{S_T0}, 0")
            e(f"s_cmp_gt_u32 s{S_T0}, 2")
            e(f"s_cbranch_scc1 L_nohold")
        e(f"s_bfe_u32 s{S_T0}, s{S_W}, {29 | 2 << 16:#x}")
    e(f"s_cbranch_scc0 L_nohold")
    e(f"s_lshl_b32 s{S_T1}, s{S_T2}, 4")
    e(f"s_add_u32 s{S_T0}, s{S_T0}, s{S_T1}")
    e(f"s_mul_i32 s{S_T0}, s{S_T0}, {G}")
    e(f"s_add_u32 s{S_T0}, s{S_T0}, {FBASE-G}")
    e(f"v_and_b32 v{V_T0}, 3, v{V_LANE}")
    e(f"v_lshl_add_u32 v{V_FA}, v{V_T0}, 2, s{S_T0}")
    e("s_waitcnt lgkmcnt(0)")
    spin("L_hold", 0, sleep=1)
    lab("L_nohold")
e(f"s_mul_i32 s{S_T0}, s{S_T2}, {-3*KSLOT}")
if opt.q4v:
    e(f"s_cmp_gt_u32 s{S_P1+2}, {320*4096}")
    e(f"s_cselect_b32 s{S_T0}, {(-9*KSLOT) & 0xffffffff:#x}, s{S_T0}")
e(f"s_mul_i32 s{S_T1}, s{S_U}, {KSLOT}")
e(f"s_add_u32 s{S_T0}, s{S_T0}, s{S_T1}")
e(f"s_add_u32 m0, s{S_T0}, {kslot(5)}")
e(f"s_bfe_u32 s{S_T0}, s{S_W}, {21 | 4 << 16:#x}")
e(f"s_add_u32 s{S_T0}, s{S_T0}, s{S_U}")
e(f"s_lshl_b32 s{S_T0}, s{S_T0}, 17")
if opt.stamps == 5: e(f"s_memtime {sr(S_STAMP+4,2)}")
dma_pass(S_T0)
if opt.stamps == 5: e(f"s_memtime {sr(S_STAMP+8,2)}")
if opt.qprio: e("s_setprio 0")
if opt.kfirst != 2: e("s_barrier")
e("s_waitcnt lgkmcnt(0)")
e(f"s_mov_b32 s{S_J}, {R_MAIN}")
stamp(2)
e("s_branch L_compute")
lab("L_first_kv")
if opt.kfirst == 1: e("s_setprio 3")
e(f"s_add_u32 s{S_K}, s6, s{S_BASE}")
e(f"s_addc_u32 s{S_K+1}, s7, 0")
e(f"s_mov_b32 s{S_K+2}, s{S_P1+2}")
e(f"s_mul_i32 s{S_DK}, s{S_J}, {G}")
e(f"s_mul_i32 s{S_T0}, s{S_T2}, {6*KSLOT}")
e(f"s_add_u32 s{S_T0}, s{S_T0}, s{S_DK}")
e(f"s_add_u32 m0, s{S_T0}, {KBASE}")
e(f"s_mov_b32 s{S_T1}, 0x20000")
if opt.stamps == 5: e(f"s_memtime {sr(S_STAMP+4,2)}")
e(f"buffer_load_dwordx4 v{V_DMA}, {sr(S_K,4)}, 0 offen lds")
e(f"s_add_u32 m0, m0, {4*G}")
e(f"s_add_u32 s{S_V}, s8, s{S_BASE}")
e(f"buffer_load_dwordx4 v{V_DMA2}, {sr(S_K,4)}, 0 offen lds")
e(f"s_addc_u32 s{S_V+1}, s9, 0")
e(f"s_add_u32 m0, m0, {4*G}")
e(f"s_mov_b32 s{S_V+2}, s{S_P1+2}")
e(f"buffer_load_dwordx4 v{V_DMA}, {sr(S_K,4)}, s{S_T1} offen lds")
e(f"s_add_u32 m0, m0, {4*G}")
e(f"s_mov_b32 s{S_V+3}, 0x20000")
e(f"buffer_load_dwordx4 v{V_DMA2}, {sr(S_K,4)}, s{S_T1} offen lds")
e(f"s_add_u32 m0, m0, {4*G}")
e(f"s_mov_b32 s{S_T1}, 0x40000")
if opt.stamps == 5: e(f"s_memtime {sr(S_STAMP+8,2)}")
e(f"s_mul_i32 s{S_T0}, s{S_T2}, {16*G}")
e(f"s_lshl_b32 s{S_DV}, s{S_J}, 2")
e(f"s_add_u32 s{S_T0}, s{S_T0}, s{S_DV}")
e(f"s_add_u32 s{S_T0}, s{S_T0}, {FBASE}")
e(f"v_mov_b32 v{V_SIG}, s{S_T0}")
e(f"v_mov_b32 v{V_THRV}, {f32bits(THR):#x}")
e(f"s_lshl_b32 s{S_DV}, s{S_J}, 10")
e(f"s_mul_i32 s{S_T0}, s{S_T2}, {6*VSLOT}")
e("s_barrier")
if opt.kfirst == 1: e("s_setprio 0")
if opt.md and opt.mdq:
    e(f"s_bitcmp1_b32 s{S_W}, 31")
    e("s_cbranch_scc1 L_md_first")
if opt.hold:
    e("s_waitcnt vmcnt(0)")
    if not opt.mdsync: lab("L_md_back")
    e(f"ds_write_b32 v{V_SIG}, v{V_THRV}")
    if opt.mdsync: lab("L_md_back")
    stamp(2)
e(f"buffer_load_dwordx4 v{V_DMA}, {sr(S_K,4)}, s{S_T1} offen lds")
e(f"s_add_u32 m0, m0, {4*G}")
e("s_nop 0")
e(f"buffer_load_dwordx4 v{V_DMA2}, {sr(S_K,4)}, s{S_T1} offen lds")
e(f"s_add_u32 m0, s{S_T0}, s{S_DV}")
e("s_nop 0")
e(f"buffer_load_dwordx4 v{V_DMA}, {sr(S_V,4)}, 0 offen lds")
e(f"s_add_u32 m0, m0, 4096")
e("s_nop 0")
e(f"buffer_load_dwordx4 v{V_DMA2}, {sr(S_V,4)}, 0 offen lds")
if not opt.hold:
    e("s_waitcnt vmcnt(4)")
    e(f"ds_write_b32 v{V_SIG}, v{V_THRV}")
    stamp(2)
e("s_waitcnt lgkmcnt(0)")
e(f"s_add_u32 s{S_BASE}, s{S_HOFF}, s{T_SOFF}")
e(f"s_and_b32 s{S_J}, s{T_PK}, 15")
e(f"s_bitcmp1_b32 s{T_PK}, 6")
e("s_cbranch_scc0 L_pass_done")
e(f"s_mov_b32 s{S_P1+2}, s{T_NREC}")
e(f"s_mov_b32 s{S_T0}, s{T_QOFF}")
e(f"s_mov_b32 m0, s{T_QST}")
dma_pass(S_T0)
lab("L_pass_done")
e(f"s_cmp_ge_u32 s{S_J}, 3")
e("s_cbranch_scc1 L_loaders")
lab("L_compute")
e(f"s_mov_b32 s{S_DK}, s{S_J}")
setup_compute()
prog_addr()
e(f"s_cmp_lg_u32 s{S_DK}, {R_MAIN}")
e("s_cbranch_scc1 L_init")
if opt.tlb:
    e(f"buffer_load_dword v{V_LANE}, v{V_L}, {sr(S_O,4)}, s{T_QOFF} offen")
    e("s_waitcnt vmcnt(1)")
    e("s_branch L_noinit2")
lab("L_noinit")
e("s_waitcnt vmcnt(0)")
lab("L_noinit2")
stamp(3)
q_read()
e("s_waitcnt lgkmcnt(0)")
e(f"ds_write_b32 v{V_PA}, v{V_L}")
e(f"s_cmp_lg_u32 s{S_DK}, {R_MAIN}")
e("s_cbranch_scc1 L_scale_h")
e(f"s_mov_b32 s{S_DK}, {f32bits(CSCALE):#x}")
e(f"s_mov_b32 s{S_DV}, {f32bits(CSCALE):#x}")
e(f"s_mov_b32 s{S_T0}, 0xffff0000")
for ks in range(5):
    if ks == 4: e(f"ds_read_b32 v{V_FL}, v{V_FA}")
    qscale(ks)
e("s_waitcnt lgkmcnt(0)")
e(f"v_cmp_gt_f32 vcc, 0, v{V_FL}")
qscale(5)
e("s_cbranch_vccz L_back_pre")
spin("L_spin_pre", 0)
lab("L_back_pre")
def start_stamp():
    stamp(4)
    if opt.stamps == 2:
        e("s_mov_b32 m0, 0")
        e("s_memtime s[100:101]")
start_stamp()
for ks in range(8): e(kread(ks, 0))
qscale(6)
qscale(7)
lab("L_qk0")
for ks in range(8):
    if ks == 0: e("s_waitcnt lgkmcnt(0)")
    if ks == 7: e(f"v_cmp_gt_f32 vcc, 0, v{V_FL}")
    e(mfma(V_S[0], V_K+4*ks, V_Q+4*ks, None if ks == 0 else V_S[0]))
    e(kread(ks, 1*KSLOT))
    if ks == 3: e(f"ds_read_b32 v{V_FL}, v{V_FA} offset:{G}")
    if ks == 6: e("s_waitcnt lgkmcnt(3)")
e("s_cbranch_vccz L_back_pre2")
spin("L_spin_pre2", G)
lab("L_back_pre2")
e("s_nop 7")
iteration(0, False, 2*KSLOT, 0, 2*G, "i0", first=True, prog=f"ds_write_b32 v{V_PA}, v{V_X}",
          last_ops=[f"s_bitcmp1_b32 s{T_PK}, 20", "s_cbranch_scc1 L_leave"])
lab("L_loop")
ma = [(0, [f"s_cmp_eq_u32 s{S_J}, s{S_KWRAP}", f"s_cselect_b32 s{S_DK}, {(-6*KSLOT)&0xffffffff:#x}, s{S_2K}"])]
ma += [(2+4*t, [f"v_add_u32 v{V_KA+t}, s{S_DK}, v{V_KA+t}"]) for t in range(4)]
ma.insert(4, (10, [f"s_cmp_eq_u32 s{S_J}, s{S_NM1}"]))
iteration(1, True, 3*KSLOT, VSLOT, 3*G, "A", misc=ma, last_ops=["s_cbranch_scc1 L_tail_even"], prog=f"ds_write_b32 v{V_PA}, v{V_FA} offset:4")
mb = [(0, [f"s_cmp_eq_u32 s{S_J}, s{S_VWRAP}", f"s_cselect_b32 s{S_DV}, {(-6*VSLOT)&0xffffffff:#x}, s{S_2V}"]),
      (0, [f"s_add_u32 s{S_J}, s{S_J}, 2", f"s_cmp_eq_u32 s{S_J}, s{T_N}"]),
      (8, [f"v_add_u32 v{V_FA}, {2*G}, v{V_FA}"])]
mb += [(9+2*t, [f"v_add_u32 v{V_VA+t}, s{S_DV}, v{V_VA+t}"]) for t in range(4)]
iteration(0, True, 2*KSLOT, 2*VSLOT, 4*G, "B", misc=mb, last_ops=["s_cbranch_scc0 L_loop"], prog=f"ds_write_b32 v{V_PA}, v{V_FA}")
for par, nm in ((1, "odd"), (0, "even")):
    lab(f"L_tail_{nm}")
    kinds = [k for k in (3, 4, 0, 1, 2) if (k, par) in tails_used]
    for k in kinds[1:]:
        e(f"s_bitcmp1_b32 s{T_PK}, {21 + k}")
        e(f"s_cbranch_scc1 L_tail_{k}_{par}")
    assert kinds[0] == 0 or len(kinds) == 1 or True
    for k in kinds:
        tail(k, par)
merge_code()
lab("L_idle")
if opt.tq and opt.skew:
    e(f"s_cmp_lt_u32 s{S_P1+2}, {400*4096}")
    e("s_cbranch_scc1 L_idle2")
    e(f"s_add_u32 s{S_T0}, s{S_HOFF}, {CU[1]*4096}")
    e(f"s_add_u32 s{S_P1}, s4, s{S_T0}")
    e(f"s_addc_u32 s{S_P1+1}, s5, 0")
    e(f"s_mov_b32 s{S_P1+2}, {(seqL(1)-1)*4096+256}")
    e(f"s_bfe_u32 s{S_T0}, s{S_W}, {21 | 1 << 16:#x}")
    e(f"s_lshl_b32 s{S_T0}, s{S_T0}, 18")
    e(f"s_add_u32 s{S_T0}, s{S_T0}, {4*0x20000:#x}")
    e(f"s_add_u32 s{S_T1}, s{S_T0}, 0x20000")
    e(f"v_lshrrev_b32 v{V_T0}, 1, v{V_LANE}")
    e(f"v_and_b32 v{V_T1}, 1, v{V_LANE}")
    e(f"v_lshlrev_b32 v{V_T1}, 7, v{V_T1}")
    e(f"v_lshl_add_u32 v{V_T0}, v{V_T0}, 12, v{V_T1}")
    e(f"buffer_load_dword v{V_Q}, v{V_T0}, {sr(S_P1,4)}, s{S_T0} offen")
    e(f"buffer_load_dword v{V_Q+1}, v{V_T0}, {sr(S_P1,4)}, s{S_T1} offen")
    lab("L_idle2")
prog_addr()
e(f"v_mov_b32 v{V_T0}, 0x7fffffff")
if opt.kfirst != 2: e("s_barrier")
e(f"ds_write_b32 v{V_PA}, v{V_T0}")
e(f"ds_write_b32 v{V_PA}, v{V_T0} offset:4")
e("s_waitcnt lgkmcnt(0)")
if touches:
    e(f"s_add_u32 s{S_BASE}, s{S_HOFF}, s{T_SOFF}")
    kv_srds(S_K, S_V, S_BASE, f"s{T_NREC}")
    e(f"s_add_u32 s{S_P1}, s4, s{S_BASE}")
    e(f"s_addc_u32 s{S_P1+1}, s5, 0")
    e(f"s_mov_b32 s{S_P1+2}, s{T_NREC}")
    e(f"v_lshrrev_b32 v{V_T0}, 1, v{V_LANE}")
    e(f"v_and_b32 v{V_T1}, 1, v{V_LANE}")
    e(f"v_lshlrev_b32 v{V_T1}, 7, v{V_T1}")
    e(f"v_lshl_add_u32 v{V_T0}, v{V_T0}, 12, v{V_T1}")
    if opt.tstart >= 0:
        e(f"v_and_b32 v{V_FA}, 3, v{V_LANE}")
        e(f"v_lshlrev_b32 v{V_FA}, 2, v{V_FA}")
        e(f"v_add_u32 v{V_FA}, {ent(opt.tstart)}, v{V_FA}")
        spin("L_tstart", 0, sleep=1)
    for i in range(len(touches)):
        e(f"s_cmp_eq_u32 s{T_N}, {i+1}")
        e(f"s_cbranch_scc1 L_touch_{i}")
    finish()
    for i, lst in enumerate(touches):
        lab(f"L_touch_{i}")
        for k, it in enumerate(lst):
            srd = {"Q": S_P1, "K": S_K, "V": S_V}[it[0]]
            e(f"s_mov_b32 s{S_T0}, {int(it[1:])*0x20000:#x}")
            if k >= opt.tw: e(f"s_waitcnt vmcnt({opt.tw-1})")
            e(f"buffer_load_dword v{V_Q+k}, v{V_T0}, {sr(srd,4)}, s{S_T0} offen")
        finish()
else:
    finish()
lab("L_loaders")
for i in range(1, len(programs)):
    e(f"s_cmp_eq_u32 s{S_J}, {3+i}")
    e(f"s_cbranch_scc1 L_prog_{3+i}")
for i, d in enumerate(programs):
    if d[0] == "L2": loader_two_streams(d, 3+i)
    elif d[0] == "MD": md_program(d, 3+i)
    else: loader_single_stream(d, 3+i)
lab("L_leave")
e(f"s_cmp_eq_u32 s{T_N}, 2")
e("s_cbranch_scc1 L_tail_odd")
e("s_branch L_md_loop" if (opt.md and not opt.fake & 1) else "s_branch L_tail_odd")
if opt.md and opt.mdq:
    lab("L_md_first")
    e(f"s_mov_b32 s{S_LO}, m0")
    e(f"s_mul_i32 s{S_2K}, s{S_J}, {KSLOT}")
    e(f"s_add_u32 m0, s{S_2K}, {QH[0]}")
    e(f"s_lshl_b32 s{S_2K}, s{S_U}, 17")
    dma_pass(S_2K)
    e(f"s_mov_b32 m0, s{S_LO}")
    e("s_nop 0" if opt.mdsync == 2 else "s_waitcnt vmcnt(8)")
    e("s_branch L_md_back")
lab("L_scale_h")
for ks in range(8): qscale(ks, False)
spin("L_spin_h", 0, sleep=1)
e(f"s_bitcmp1_b32 s{T_PK}, 18")
e("s_cbranch_scc0 L_helper_go")
e(f"v_and_b32 v{V_T0}, {1 if opt.w3 else 3}, v{V_LANE}")
e(f"v_mul_u32_u24 v{V_T0}, {G}, v{V_T0}")
e(f"v_add_u32 v{V_T0}, {ent(PROG0)}, v{V_T0}")
lab("L_helper_wait")
bound()
e("s_sleep 1")
e(f"ds_read_b32 v{V_FL}, v{V_T0}")
e("s_waitcnt lgkmcnt(0)")
e(f"v_cmp_gt_i32 vcc, 1, v{V_FL}")
e("s_cbranch_vccnz L_helper_wait")
lab("L_helper_go")
e("s_setprio 0")
e(f"s_bitcmp1_b32 s{T_PK}, 16")
e("s_cbranch_scc0 L_helper_go2")
e(f"s_setprio {max(opt.hprio, 0)}")
lab("L_helper_go2")
start_stamp()
for ks in range(8): e(kread(ks, 0))
e("s_branch L_qk0")
lab("L_init")
e(f"s_bitcmp1_b32 s{T_PK}, 19")
e("s_cbranch_scc1 L_init_shared")
e("s_waitcnt vmcnt(8)")
e(f"ds_write_b32 v{V_SIG}, v{V_THRV} offset:{G}")
e("s_branch L_noinit")
lab("L_init_shared")
e("s_waitcnt vmcnt(0)")
e(f"ds_write_b32 v{V_SIG}, v{V_THRV} offset:{G}")
e(f"s_lshr_b32 s{S_T0}, s{T_MB}, 24")
e(f"s_mul_i32 s{S_T0}, s{S_T0}, {G}")
e(f"s_add_u32 s{S_T0}, s{S_T0}, {ent(PROG0)}")
e(f"v_mov_b32 v{V_T0}, s{S_T0}")
lab("L_init_wait")
bound()
e("s_sleep 1")
e(f"ds_read_b32 v{V_FL}, v{V_T0}")
e("s_waitcnt lgkmcnt(0)")
e(f"v_cmp_gt_i32 vcc, 0, v{V_FL}")
e("s_cbranch_vccnz L_init_wait")
e("s_branch L_noinit")
for tag in stage_spins:
    lab(f"L_stg_{tag}")
    bound()
    e("s_sleep 1")
    e(f"ds_read_b32 v{V_FL}, v{V_CK}")
    e("s_waitcnt lgkmcnt(0)")
    e(f"v_cmp_gt_i32 vcc, s{S_T2}, v{V_FL}")
    e(f"s_cbranch_vccnz L_stg_{tag}")
    e(f"s_branch L_stgback_{tag}")
for site in rare_sites:
    rare(*site)
for site in short_rares:
    short_rare(*site)
if opt.stamps:
    lab("L_stamps")
    e(f"s_load_dwordx2 {sr(S_MASK+6,2)}, s[0:1], 48")
    e("s_waitcnt vmcnt(0)")
    e(f"s_memtime {sr(S_MASK, 2)}")
    e(f"s_getreg_b32 s{S_MASK+2}, hwreg(HW_REG_HW_ID)")
    e(f"s_getreg_b32 s{S_MASK+3}, hwreg(HW_REG_XCC_ID)")
    e(f"s_memrealtime {sr(S_MASK+4, 2)}")
    e("s_waitcnt lgkmcnt(0)")
    e(f"s_lshl_b32 s{S_T0}, s2, 3")
    e(f"s_add_u32 s{S_T0}, s{S_T0}, s{S_U}")
    e(f"s_lshl_b32 s{S_T0}, s{S_T0}, 7")
    if opt.stamps == 2:
        e(f"v_writelane_b32 v{V_LANE}, s100, m0")
        e(f"s_lshl_b32 s{S_T1}, s{S_T0}, 1")
        e(f"s_add_u32 s{S_T1}, s{S_T1}, 0x100000")
        e(f"v_mbcnt_lo_u32_b32 v2, -1, 0")
        e(f"v_mbcnt_hi_u32_b32 v2, -1, v2")
        e(f"v_lshl_add_u32 v0, v2, 2, s{S_T1}")
        e(f"global_store_dword v0, v{V_LANE}, {sr(S_MASK+6,2)}")
    e(f"v_mov_b32 v0, s{S_T0}")
    e("s_mov_b64 exec, 1")
    regs = [S_STAMP+i for i in range(10)] + [S_MASK+i for i in range(6)] + [100, 101]
    for i, r_ in enumerate(regs):
        e(f"v_mov_b32 v2, s{r_}")
        e(f"global_store_dword v0, v2, {sr(S_MASK+6,2)} offset:{4*i}")
lab("L_end")
e("s_endpgm")
out.append(".p2align 6")
out.append(".type L_table,@object")
lab("L_table")
for row in table:
    out.append("    .long " + ", ".join(f"{x & 0xffffffff:#x}" for x in row))
out.append(".size L_table, .-L_table")
if opt.pf:
    out.append(".type L_padding,@object")
    lab("L_padding")
    out.append("    .fill 8192, 4, 0")
    out.append(".size L_padding, .-L_padding")
out.append('.section .rodata,"a"')
out.append(".p2align 6")
out.append(f".amdhsa_kernel {NAME}_kernel")
for x in ("next_free_vgpr 256", "next_free_sgpr 102", "accum_offset 256", "group_segment_fixed_size 0", "kernarg_size 56",
          "user_sgpr_count 2", "user_sgpr_kernarg_segment_ptr 1", "system_sgpr_workgroup_id_x 1"):
    out.append("  .amdhsa_" + x)
out.append(".end_amdhsa_kernel")
for i_, o_ in enumerate(out):
    if o_ and o_.rstrip().endswith("offen lds"):
        isq = f"s[{S_P1}:{S_P1+3}]" in o_
        if (isq and opt.ntq) or (not isq and opt.ntkv):
            out[i_] = o_.replace("offen lds", "offen nt lds")
open(sys.argv[1], "w").write("\n".join(o for o in out if o is not None) + "\n")
```

```python
import sys, struct, math

CU = [0, 289, 520, 939, 1289, 1402, 1666, 1973, 2275]
NAME = "standalone__varlen_attn_packed__ragged"
def f32bits(x):
    return struct.unpack("<I", struct.pack("<f", x))[0]

class Opt:
    stamps = 0
    D4 = 5
    D1 = 2
    slack = 3
    npre4 = 2
    hold = 1
    npre1 = 1
    stflag = "sc1"
    hprio = 1
    lprio = 1
    pf = 1
    budget = 24
    ntq = 0
    skew = 1
    ich = 0
    cs = "000001"
    spf = 0
    kp = 1
    w3 = 0
    tlb = 0
    pkt = 0
    npre3 = 2
    qprio = 0
    fake = 0
    p64 = "000"
    c4 = 2
    t6a10 = 5
    t6b10 = 7
    order = 2
    mdsync = 0
    tq = 1
    pace = 0
    tstart = -1
    tp0 = 3
    hl = "0000"
    hcls = 0
    q4v = 1
    md = 1
    mdq = 1
    side = 0
    tw = 0
    t3 = 1
    str4 = 1
    t5 = "433"
    t6b = 6
    D3 = 4
    D5 = 2
    D6 = 3
    D8 = 3
    cls = "000002"
    mprio = 1
    ftail = 1
    kfirst = 2
    ntkv = 0
opt = Opt()
for a in sys.argv[2:]:
    k, v = a.split("=")
    setattr(opt, k, int(v) if v.lstrip("-").isdigit() and k not in ("cls", "cs", "t5", "hl", "p64") else v)

G = 1040
QSIG = max(0, max([int(c) for c in opt.cls + opt.cs] + [opt.c4 if '1' in opt.p64 else 0]) - 2)
assert QSIG <= 1
KSLOT = 8 * G
VSLOT = 8192
KBASE = 10 * VSLOT
LDS_BYTES = 163840
FBASE = KBASE + 1024
PROG0 = 32
MRG0 = 40
THR = 16384.0
NWG = 256
def kslot(s): return KBASE + s*KSLOT
def vslot(s): return s*VSLOT
def ent(n): return FBASE + n*G

V_FA, V_LANE, V_PA, V_FL = 0, 1, 2, 3
V_KA = 4
V_VA = 8
V_L, V_PS, V_T0, V_T1 = 12, 13, 14, 15
V_NEGM = 16
V_Q = 32
V_K = 64
V_V = 96
V_S = [128, 144]
V_P = [160, 168]
V_E = 176
V_WA = 184
V_RA, V_SA, V_CK, V_X = 188, 189, 190, 191
V_O = 192
V_DMA, V_DMA2, V_SIG, V_THRV, V_POLL, V_PV, V_DL = 64, 65, 66, 67, 68, 69, 70

S_P1, S_K, S_V, S_O = 16, 20, 24, 28
S_MASK = 32
S_K2, S_V2 = 32, 36
T = 64
(T_SOFF, T_NREC, T_P1S, T_P1L, T_PK, T_QOFF, T_QST, T_KB, T_VB, T_FB, T_N, T_NV, T_OST, T_MB, T_MIN, T_MOUT) = range(T, T+16)
S_U, S_J, S_T0, S_T1, S_DK, S_DV = 80, 81, 82, 83, 84, 85
S_KWRAP, S_VWRAP, S_NM1, S_T2, S_THR, S_LO = 86, 87, 14, 15, 3, 98
S_2K, S_2V = 99, 10
S_BASE = 11
S_STAMP = 88

out = []
def e(s): out.append("    " + s)
def lab(s): out.append(s + ":")
def vr(b, n): return f"v[{b}:{b+n-1}]"
def sr(b, n): return f"s[{b}:{b+n-1}]"
def stamp(i):
    if opt.stamps == 5:
        if i in (1, 3): e(f"s_memtime {sr(S_STAMP + 2*i, 2)}")
        return
    if opt.stamps: e(f"{'s_memrealtime' if opt.stamps >= 3 else 's_memtime'} {sr(S_STAMP + 2*i, 2)}")

R_MAIN, R_INIT, R_IDLE, R_L4, R_L1 = 0, 1, 2, 3, 4
def seqL(s): return CU[s+1]-CU[s]
def seqnk(s): return (seqL(s)+31)//32
programs = []
def prog_id(desc):
    if desc not in programs: programs.append(desc)
    return 3 + programs.index(desc)
tails_used = set()
def entry(role, seq, tile=None, b0=0, n=None, slot0=0, f0=0, qst=0, ost=0, lo=0, hi=0, mb=0, ml=0, mi=None, mo=None,
          init=None, prio=0, ownq=True, qsrc=None, lvl1=0, swait=0, thr=None, alone=False):
    L = seqL(seq); nk = seqnk(seq)
    n = nk - b0 if n is None else n
    nv = L - 32*(b0+n-1)
    if opt.fake & 8 and seq == 2: n -= 2
    second = 1 if (init is not None and tile is not None and qsrc is None and ownq) else 0
    if mi is not None or mo is not None: tail = 2
    elif nv <= 8: tail = 0
    else: tail = 1
    if alone and opt.pkt and tail < 2: tail += 3
    if tile is not None: tails_used.add((tail, (n-1) & 1))
    ring = 1 if nk > 10 else 0
    leave = 1 if n == 2 else 0
    pk = role | leave << 20 | second << 6 | ring << 7 | lo << 8 | hi << 11 | (1 << (21 + tail)) | (1 if prio else 0) << 16 | lvl1 << 17 | swait << 18 | (0 if qsrc is None else 1) << 19
    return [CU[seq]*4096, (L-1)*4096+256, (1 if lvl1 else FBASE) if thr is None else thr, 400000, pk, (tile or 0)*0x20000, qst,
            kslot(slot0+b0), vslot(slot0+b0), ent(f0+b0), n, min(nv, 64), ost, mb | (qsrc or 0) << 24,
            0 if mi is None else ent(MRG0+mi), 0 if mo is None else ent(MRG0+mo)]
MLOFF = vslot(1)
QH = [KBASE - (4-k)*KSLOT for k in range(4)]
table = []
touches = []
def T4(seq, t0, nt, touch=None):
    rows = []
    for w in range(4):
        if w < nt:
            if seqnk(seq) > 10:
                rows.append(entry(R_MAIN, seq, tile=t0+w, qst=(QH[w] if opt.q4v else kslot(5+w)), ost=(vslot(9) if w < 2 else kslot(8))+4096*(w & 1), lo=w, hi=w, alone=True))
            else:
                rows.append(entry(R_MAIN, seq, tile=t0+w, qst=kslot(5+w), ost=vslot(0)+4096*w, lo=0, hi=3))
        else:
            if touch and opt.tw:
                touches.append(touch[1]); r_ = entry(R_IDLE, touch[0]); r_[10] = len(touches); rows.append(r_)
            else:
                r_ = entry(R_IDLE, seq); r_[10] = 0; rows.append(r_)
    pid = prog_id(("L4", seqnk(seq), False, None, opt.D4 if seqnk(seq) > 11 else opt.D3))
    for w in range(4):
        rows.append(entry(pid, seq, init=w))
    return rows
def T5(seq, t0):
    rows = [entry(R_MAIN, seq, tile=t0+w, qst=kslot(5+w), ost=vslot(0)+4096*w, lo=0, hi=4) for w in range(4)]
    cnt = [int(c) for c in opt.t5]; nh = len(cnt)
    assert sum(cnt) == seqnk(seq) and cnt[0] >= 3
    pid = prog_id(("L1", seqnk(seq), nh == 4, 4, opt.D5))
    for h in range(nh):
        rows.append(entry(R_INIT if h < 3 else pid, seq, tile=t0+4, b0=sum(cnt[:h]), n=cnt[h], qst=QH[3], ost=kslot(2),
                          lo=0, hi=(3 if h < nh-1 else 4), mb=kslot(0), mi=(h-1 if h else None), mo=(h if h < nh-1 else None), init=h,
                          prio=opt.hprio, qsrc=(4 if h else None), lvl1=(1 if h < nh-1 else 0), swait=(1 if h == 0 else 0)))
    if nh == 3: rows.append(entry(pid, seq, init=3))
    return rows
def T8(seq):
    pid = prog_id(("MD", seqnk(seq))) if opt.md else prog_id(("L4", seqnk(seq), True, None, opt.D8))
    if opt.md:
        rows = [entry(R_MAIN, seq, tile=w, qst=kslot(5+w), ost=(kslot(8)+4096*w if w < 3 else vslot(0)), lo=(w if w < 3 else 0), hi=(w if w < 3 else 7), alone=True) for w in range(4)]
    else:
        rows = [entry(R_MAIN, seq, tile=w, qst=kslot(5+w), ost=vslot(8)+4096*w, lo=w, hi=w) for w in range(4)]
    for h in range(4):
        r_ = entry(pid, seq, tile=4+h, qst=QH[h], ost=(vslot(8)+4096*h if opt.md else (kslot(8)+4096*h if h < 3 else vslot(0))),
                   lo=(4+h if h < 3 or opt.md else 0), hi=4+h, init=h,
                   ownq=bool(opt.md and not opt.mdq), prio=opt.md)
        if opt.md: r_[4] |= 1 << 20
        rows.append(r_)
    return rows
def T6(seq):
    nk = seqnk(seq)
    pid = prog_id(("L1", nk, True, 5, opt.D6))
    rows = [entry(R_MAIN, seq, tile=w, qst=kslot(5+w), ost=vslot(0)+4096*w, lo=0, hi=5) for w in range(4)]
    na, nb = (5, opt.t6b) if nk == 9 else ((opt.t6a10, opt.t6b10) if nk == 10 else (4, 5))
    spec = [(4, 0, na, None, 0, 0), (5, 0, nb, None, 1, 1), (4, na, nk-na, 0, None, 0), (5, nb, nk-nb, 1, None, 1)]
    for h, (tile, b0, n, mi, mo, buf) in enumerate(spec):
        rows.append(entry(R_INIT if h < 3 else pid, seq, tile=tile, b0=b0, n=n, qst=QH[2+buf], ost=vslot(9 if nk <= 9 else 2)+4096*buf,
                          lo=0, hi=5, mb=kslot(2*buf), mi=mi, mo=mo, init=h, prio=opt.hprio, qsrc=(h+2 if h >= 2 else None),
                          lvl1=(1 if buf == 0 else 0), swait=(1 if h < 2 else 0), thr=(FBASE+2*G if (h >= 2 and nk > 9) else None)))
    return rows
def T34(seqA, seqB, tB0):
    qa = [vslot(1) + k*KSLOT for k in range(4)]
    rows = [entry(R_MAIN, seqA, tile=w, slot0=6, f0=16, qst=kslot(2+w), ost=vslot(0)+4096*w, lo=4, hi=6) for w in range(4)]
    pid = prog_id(("L2", seqA, seqB))
    for h in range(3):
        rows.append(entry(R_INIT, seqB, tile=tB0+h, qst=vslot(2)+h*KSLOT, ost=vslot(2)+4096*h, lo=4, hi=6, init=h, thr=FBASE+2*G, alone=True))
    rows.append(entry(pid, seqB, init=3))
    return rows
def small(seq, t0, nt, two=0):
    return CU[seq] | seqL(seq) << 12 | t0 << 21 | nt << 25 | two << 28
TL8 = "K2 V0 K3 V1 Q4 Q5 Q6 Q7 K4 V2 K5 V3 K6 V4 K7 V5 V6 V7".split()
TL5 = "Q4 Q5 K3 V1 Q6 Q7 K4 V2 K5 V3 K6 V4 K7 V5 K8 V6 V7".split()
def own_touch(nk, par, mod=2):
    o = []
    for p_ in range(opt.tp0, nk):
        if p_ % mod == par:
            if p_+2 < nk: o.append(f"K{p_+2}")
            o.append(f"V{p_}")
    return o
jobs = {"s2a": (lambda: T4(2,0,4), small(2,0,4)), "s2b": (lambda: T4(2,4,4), small(2,4,4)), "s2c": (lambda: T4(2,8,3,(2,own_touch(14,0))), small(2,8,3)),
        "s2d": (lambda: T4(2,11,3,(2,own_touch(14,1))), small(2,11,3)), "T8": (lambda: T8(1), small(1,0,4) | (1 << 31 if opt.md and opt.mdq else 0)),
        "s6a": (lambda: T5(6,0), small(6,0,4)), "s6b": (lambda: T5(6,5), small(6,5,4)), "s7a": (lambda: T5(7,0), small(7,0,4)),
        "s7b": (lambda: T5(7,5), small(7,5,4)), "s0a": (lambda: T5(0,0), small(0,0,4)), "s0b": (lambda: T5(0,5), small(0,5,4)),
        "T6": (lambda: T6(5), small(5,0,4)), "T34": (lambda: T34(4,5,6), small(4,0,4,1)),
        "s3a": (lambda: T4(3,0,4), small(3,0,4)), "s3b": (lambda: T4(3,4,4), small(3,4,4)), "s3c": (lambda: T4(3,8,3,(3,own_touch(11,1)) if opt.t3 else None), small(3,8,3))}
if opt.fake & 1: jobs["T8"] = ((lambda: T6(1)), small(1,0,4))
if opt.fake & 2: jobs["T6"] = ((lambda: T4(5,0,4)), small(5,0,4))
for i_, sq in enumerate((6, 7, 0)):
    if opt.fake & 4:
        jobs[f"s{sq}a"] = ((lambda sq=sq: T4(sq,0,4)), small(sq,0,4))
        jobs[f"s{sq}b"] = ((lambda sq=sq: T4(sq,5,4)), small(sq,5,4))
    if opt.p64[i_] == "1":
        jobs[f"s{sq}a"] = ((lambda sq=sq: T6(sq)), small(sq,0,4))
        jobs[f"s{sq}b"] = ((lambda sq=sq: T4(sq,6,4)), small(sq,6,4) | opt.c4 << 29)
JOBORDER = ["s2a", "s2b", "s2c", "s2d", "T8", "s6a", "s6b",  "s0a", "s0b", "T6", "T34", "s3a", "s3b", "s3c",  "s7a", "s7b"]
if opt.order == 1: JOBORDER = ["T8", "s2a", "s2b", "s6a", "s6b", "s2c", "s2d",  "T6", "T34", "s0a", "s0b", "s3a", "s3b", "s3c",  "s7a", "s7b"]
if opt.order == 2: JOBORDER = ["T8", "s2a", "s2b", "s2c", "s2d", "s6a", "s6b",  "T6", "s0a", "s0b", "T34", "s3a", "s3b", "s3c",  "s7a", "s7b"]
GP = ["T8", "s2a", "s2b", "s2c", "s2d", "s3a", "s3b", "s3c"]
GQ = ["T6", "s6a", "s6b", "s7a", "s7b", "s0a", "s0b", "T34"]
if opt.skew == 2: JOBORDER = GP + GQ
if opt.skew == 3: JOBORDER = GQ + GP
stab = []; slowcls = []
for j in JOBORDER:
    k_ = {"s2": 0, "T8": 1, "s6": 2, "s7": 2, "s0": 2, "T6": 3, "T3": 4, "s3": 5}[j[:2]]
    w_ = jobs[j][1] | int(opt.cls[k_]) << 29
    if k_ == 2 and opt.w3 and opt.p64["670".index(j[1])] == "0": w_ = jobs[j][1] | 1 << 25 | opt.w3 << 29
    hs_ = int(opt.cs[k_])
    if k_ == 2: hs_ = (w_ >> 29) & 3
    table += jobs[j][0](); stab.append(w_); slowcls.append(hs_)
assert len(table) == 128

def mfma(d, a, b, c):
    cs = "0" if c is None else vr(c, 16)
    return f"v_mfma_f32_32x32x16_bf16 {vr(d,16)}, {vr(a,4)}, {vr(b,4)}, {cs}"
def kread(ks, off):
    return f"ds_read_b128 {vr(V_K+4*ks,4)}, v{V_KA+(ks>>1)} offset:{off+(ks&1)*32}"
def vread(i, jj, off, base=V_V):
    kg, dt = i >> 2, i & 3
    return f"ds_read_b64_tr_b16 {vr(base+4*i+2*jj,2)}, v{V_VA+dt} offset:{off+jj*2048+kg*4096}"
def E(r): return V_E + (r & 7)

def softmax_list(par, R=16, mask=False):
    S, P = V_S[par], V_P[par]
    def ex(r):
        o = []
        if mask:
            if r == 0: o.append(f"v_cndmask_b32 v{S}, v{V_T1}, v{S}, {sr(S_MASK,2)}")
            if r+1 < R: o.append(f"v_cndmask_b32 v{S+r+1}, v{V_T1}, v{S+r+1}, {sr(S_MASK+2*r+2,2)}")
        o.append(f"v_exp_f32 v{E(r)}, v{S+r}")
        return o
    ops = ex(0) + ex(1)
    for r in range(2, R+1):
        if r < R: ops += ex(r)
        q = r - 1
        if q == 1: ops.append(f"v_add_f32 v{V_PS}, v{E(0)}, v{E(1)}")
        else: ops.append(f"v_add_f32 v{V_PS}, v{V_PS}, v{E(q)}")
        if q & 1: ops.append(f"v_cvt_pk_bf16_f32 v{P+(q>>1)}, v{E(q-1)}, v{E(q)}")
    return ops

def cost(x):
    if x.startswith("v_exp") or x.startswith("v_rcp") or x.startswith("v_permlane"): return 8
    if x.startswith("s_cbranch"): return 12
    return 4

rare_sites = []
def itstamp():
    if opt.stamps == 2:
        e(f"v_writelane_b32 v{V_LANE}, s100, m0")
        e("s_add_u32 m0, m0, 1")
        e("s_memtime s[100:101]")

def iteration(par, do_pv, koff, voff, foff, tag, first=False, misc=None, last_ops=None, extra=None, prog=None):
    itstamp()
    mf = []
    for i in range(8):
        mf.append(("qk", i))
        if do_pv: mf.append(("pv", i))
    n = len(mf)
    fixed = [[] for _ in range(n)]
    for g, (kind, i) in enumerate(mf):
        if kind == "qk":
            fixed[g].append(kread(i, koff))
            if not do_pv: fixed[g] += [vread(i, 0, voff), vread(i, 1, voff)]
        else:
            fixed[g] += [vread(i, 0, voff), vread(i, 1, voff)]
    fgap = 4 if n == 16 else 3
    fixed[fgap].append(f"ds_read_b32 v{V_FL}, v{V_FA} offset:{foff}")
    if prog: fixed[8 if n == 16 else 4].append(prog)
    q = []
    if not first: q.append(f"v_add_f32 v{V_L}, v{V_L}, v{V_PS}")
    q += softmax_list(par)
    if n != 16: q.append("WAITFLAG")
    q.append(f"v_cmp_lt_f32 vcc, v{V_FL}, v{V_PS}")
    if first: q.append(f"v_cmp_gt_f32 {sr(S_DK,2)}, s{S_LO}, v{V_PS}")
    misc = [(g_, x) for g_, ops in (misc or []) for x in ops]
    budget = opt.budget if n == 16 else (sum(cost(x) for x in q) + sum(4*len(f) for f in fixed) + n - 1)//n + 4
    nl = 0
    for g, (kind, i) in enumerate(mf):
        if n == 16:
            if g == 0: e("s_waitcnt lgkmcnt(12)")
            if g == 8: e("s_waitcnt lgkmcnt(5)")
        else:
            if g == 0: e("s_waitcnt lgkmcnt(4)")
            if g == 2: e("s_waitcnt lgkmcnt(6)")
        if kind == "qk":
            e(mfma(V_S[1-par], V_K+4*i, V_Q+4*i, V_NEGM if i == 0 else V_S[1-par]))
        else:
            kg, dt = i >> 2, i & 3
            e(mfma(V_O+16*dt, V_V+4*i, V_P[1-par]+4*kg, V_O+16*dt))
        used = 0
        for x in fixed[g]:
            e(x); used += 4
        if g > fgap: nl += len(fixed[g])
        for x in (extra or {}).get(g, []):
            e(x)
            assert not x.startswith("ds_")
        nw = 4 if (n == 16 and g+1 in (8, 16)) else 0
        lastgap = g == n-1
        while q and (used + cost(q[0]) + nw <= budget or lastgap):
            x = q.pop(0)
            if x == "WAITFLAG": x = f"s_waitcnt lgkmcnt({min(nl, 15)})"
            e(x); used += cost(x)
        while misc and misc[0][0] <= g and (used + cost(misc[0][1]) + nw <= budget or lastgap):
            x = misc.pop(0)[1]
            assert not x.startswith("ds_")
            e(x); used += cost(x)
    assert not q and not misc
    if first: e(f"s_or_b64 vcc, vcc, {sr(S_DK,2)}")
    e(f"s_cbranch_vccnz L_rare_{tag}")
    lab(f"L_back_{tag}")
    for x in (last_ops or []): e(x)
    rare_sites.append((tag, par, foff - (2*G if tag.startswith("B") else 0), first, 16))

def blockmax(S, t0, t1, R=16):
    if R == 16:
        e(f"v_max3_f32 v{t0}, v{S}, v{S+1}, v{S+2}")
        e(f"v_max3_f32 v{t1}, v{S+3}, v{S+4}, v{S+5}")
        e(f"v_max3_f32 v{t0}, v{t0}, v{S+6}, v{S+7}")
        e(f"v_max3_f32 v{t1}, v{t1}, v{S+8}, v{S+9}")
        e(f"v_max3_f32 v{t0}, v{t0}, v{S+10}, v{S+11}")
        e(f"v_max3_f32 v{t1}, v{t1}, v{S+12}, v{S+13}")
        e(f"v_max3_f32 v{t0}, v{t0}, v{S+14}, v{S+15}")
        e(f"v_max_f32 v{t0}, v{t0}, v{t1}")
    else:
        e(f"v_max3_f32 v{t0}, v{S}, v{S+1}, v{S+2}")
        e(f"v_max_f32 v{t0}, v{t0}, v{S+3}")
    e(f"v_mov_b32 v{t1}, v{t0}")
    e("s_nop 1")
    e(f"v_permlane32_swap_b32 v{t0}, v{t1}")
    e("s_nop 1")
    e(f"v_max_f32 v{t0}, v{t0}, v{t1}")

def bound():
    e(f"s_cselect_b32 s{T_SOFF}, 1, 0")
    e(f"s_sub_u32 s{T_P1L}, s{T_P1L}, 1")
    e("s_cbranch_scc1 L_end")
    e(f"s_cmp_lg_u32 s{T_SOFF}, 0")

def spin(label, foff, sleep=0):
    lab(label)
    bound()
    if sleep: e(f"s_sleep {sleep}")
    e(f"ds_read_b32 v{V_FL}, v{V_FA} offset:{foff}")
    e("s_waitcnt lgkmcnt(0)")
    e(f"v_cmp_gt_f32 vcc, 0, v{V_FL}")
    e(f"s_cbranch_vccnz {label}")

def rare(tag, par, foff, first, R, pprev=False):
    S, Sn = V_S[par], V_S[1-par]
    lab(f"L_rare_{tag}")
    if foff is not None:
        e(f"v_cmp_lt_f32 vcc, s{S_THR}, v{V_PS}")
        if first:
            e("s_nop 1")
            e(f"s_or_b64 vcc, vcc, {sr(S_DK,2)}")
        e(f"s_cbranch_vccz L_spin_{tag}")
    e("s_nop 15")
    e("s_nop 7")
    blockmax(S, V_E, V_E+1, R)
    if first:
        e(f"v_mov_b32 v{V_T0}, v{V_E}")
    else:
        e(f"v_max_f32 v{V_T0}, 0, v{V_E}")
        e(f"v_sub_f32 v{V_E+1}, 0, v{V_T0}")
        e(f"v_exp_f32 v{V_E+1}, v{V_E+1}")
    for r in range(16):
        e(f"v_sub_f32 v{S+r}, v{S+r}, v{V_T0}")
        if foff is not None: e(f"v_sub_f32 v{Sn+r}, v{Sn+r}, v{V_T0}")
        e(f"v_sub_f32 v{V_NEGM+r}, v{V_NEGM+r}, v{V_T0}")
    if not first:
        for r in range(64):
            e(f"v_mul_f32 v{V_O+r}, v{V_O+r}, v{V_E+1}")
        e(f"v_mul_f32 v{V_L}, v{V_L}, v{V_E+1}")
    for x in softmax_list(par, R): e(x)
    e("s_nop 1")
    if foff is not None: spin(f"L_spin_{tag}", foff)
    e(f"s_branch L_back_{tag}")

def finish():
    if opt.stamps == 4: stamp(2)
    e("s_branch L_stamps" if opt.stamps else "s_endpgm")

stage_spins = []
V_WB = V_NEGM + 8
def norm_ops(dt, pk=False):
    o = V_O+16*dt; ops = []
    for rq in range(4):
        if pk: ops += [f"v_pk_mul_f32 {vr(o+4*rq+2*k,2)}, {vr(o+4*rq+2*k,2)}, {vr(V_L,2)} op_sel_hi:[1,0]" for k in range(2)]
        else: ops += [f"v_mul_f32 v{o+4*rq+r}, v{o+4*rq+r}, v{V_L}" for r in range(4)]
        t = V_E + 2*rq
        ops.append(f"v_cvt_pk_bf16_f32 v{t}, v{o+4*rq}, v{o+4*rq+1}")
        ops.append(f"v_cvt_pk_bf16_f32 v{t+1}, v{o+4*rq+2}, v{o+4*rq+3}")
        ops.append(f"ds_write_b64 v{(V_WB if dt & 1 else V_WA)+rq}, {vr(t,2)}")
    return ops
def rd_ops(p):
    return [f"ds_read_b128 {vr(V_Q+16*p+4*i,4)}, v{V_RA} offset:{i*1024}" for i in range(4)]
ST_SOFF = [T_QOFF, S_T1, S_T0, S_DK]
def st_op(p, i):
    fl = opt.stflag.replace('+', ' ')
    return f"buffer_store_dwordx4 {vr(V_Q+16*p+4*i,4)}, v{V_SA}, {sr(S_O,4)}, s{ST_SOFF[i]} offen offset:{128*p} {fl}".rstrip()
def store_prep():
    return [f"s_add_u32 s{ST_SOFF[i]}, s{T_QOFF}, {i*0x8000:#x}" for i in (1, 2, 3)] + \
           [f"v_xor_b32 v{V_WB+rq}, 64, v{V_WA+rq}" for rq in range(4)]
def store_stream(pk):
    n1 = norm_ops(1)[:7] + norm_ops(1, pk)[(5 if pk else 7):]
    s = norm_ops(0) + n1 + rd_ops(0)
    n2, n3 = norm_ops(2, pk), norm_ops(3, pk)
    u = 5 if pk else 7
    if pk: s += n2[:3*u] + ["s_waitcnt lgkmcnt(3)", st_op(0, 0)] + n2[3*u:] + [st_op(0, 1)] + n3[:u] + [st_op(0, 2)] + n3[u:2*u] + [st_op(0, 3)] + n3[2*u:]
    else: s += n2[:14] + ["s_waitcnt lgkmcnt(2)", st_op(0, 0)] + n2[14:21] + [st_op(0, 1)] + n2[21:] + [st_op(0, 2)] + n3[:7] + [st_op(0, 3)] + n3[7:]
    s += rd_ops(1)
    for i in range(4):
        s += [f"s_waitcnt lgkmcnt({3-i})", st_op(1, i)]
    return s

def tail(kind, par):
    tag = f"T{kind}{par}"
    lab(f"L_tail_{kind}_{par}")
    if opt.stamps == 4: stamp(1)
    itstamp()
    pk = kind >= 3
    if pk: kind -= 3
    if kind == 0 and opt.ftail:
        return tail_short(par, tag, pk)
    voff = VSLOT if par else 2*VSLOT
    R = 4 if kind == 0 else 16
    nkg = 1 if kind == 0 else 2
    a = lambda i: mfma(V_O+16*(i & 3), V_V+4*i, V_P[1-par]+4*(i >> 2), V_O+16*(i & 3))
    f = lambda i: mfma(V_O+16*(i & 3), V_K+4*i, V_P[par]+4*(i >> 2), V_O+16*(i & 3))
    reads = [vread(i, jj, voff, V_K) for i in range(4*nkg) for jj in range(2)]
    q = [f"v_add_f32 v{V_L}, v{V_L}, v{V_PS}"] + softmax_list(par, R, mask=True)
    if kind == 0: q += [f"v_mov_b64 {vr(V_P[par]+2,2)}, 0"]
    q += [f"v_cmp_lt_f32 vcc, s{S_THR}, v{V_PS}"]
    per = (sum(cost(x) for x in q) + 4*len(reads) + 7)//8 + 4
    per = max(per, 24)
    e("s_waitcnt lgkmcnt(12)")
    nrd = 0
    for g in range(8):
        if g == 4:
            e(f"s_waitcnt lgkmcnt({nrd})")
        e(a(g)); used = 0
        if g == 4:
            e(f"ds_write_b32 v{V_PA}, v{V_FA}")
            e(f"ds_read_b32 v{V_FL}, v{V_CK}")
            used += 8
        for _ in range(2):
            if reads:
                e(reads.pop(0)); used += 4; nrd += 1
        while q and (used + cost(q[0]) <= per or g == 7):
            x = q.pop(0); e(x); used += cost(x)
    e(f"s_cbranch_vccnz L_rare_{tag}")
    lab(f"L_back_{tag}")
    rare_sites.append((tag, par, None, False, R))
    e(f"v_add_f32 v{V_L}, v{V_L}, v{V_PS}")
    e("s_waitcnt lgkmcnt(0)")
    e(f"v_cmp_gt_i32 vcc, s{S_T2}, v{V_FL}")
    fin = [i + 4*k for i in range(4) for k in range(nkg)]
    if kind == 2:
        for i in fin: e(f(i))
        e(f"s_cbranch_vccnz L_stg_{tag}")
        lab(f"L_stgback_{tag}")
        stage_spins.append(tag)
        e("s_branch L_merge")
        return
    e(f"v_mov_b32 v{V_T0}, v{V_L}")
    for _ in range(nkg): e(f(fin.pop(0)))
    e("s_nop 0")
    e(f"v_permlane32_swap_b32 v{V_L}, v{V_T0}")
    e(f"s_cbranch_vccnz L_stg_{tag}")
    lab(f"L_stgback_{tag}")
    stage_spins.append(tag)
    e(f(fin.pop(0)))
    e(f"v_add_f32 v{V_L}, v{V_L}, v{V_T0}")
    e(f"v_rcp_f32 v{V_L}, v{V_L}")
    e(f(fin.pop(0)))
    for x in store_prep(): e(x)
    cnt = 6
    for x in store_stream(pk):
        if x.startswith("NEED"): continue
        if fin and cnt >= 6:
            e(f(fin.pop(0))); cnt = 0
        e(x); cnt += 1
    itstamp()
    finish()

short_rares = []
def tail_short(par, tag, pk):
    voff = VSLOT if par else 2*VSLOT
    a = lambda i: mfma(V_O+16*(i & 3), V_V+4*i, V_P[1-par]+4*(i >> 2), V_O+16*(i & 3))
    f = lambda i: mfma(V_O+16*i, V_K+4*i, V_P[par], V_O+16*i)
    rd = [vread(i, jj, voff, V_K) for i in range(4) for jj in range(2)]
    sm = softmax_list(par, 4, mask=True)
    e("s_waitcnt lgkmcnt(12)")
    e(a(0))
    for x in rd[:4]: e(x)
    e(f"v_add_f32 v{V_L}, v{V_L}, v{V_PS}")
    for x in sm[:5]: e(x)
    e("s_waitcnt lgkmcnt(4)")
    e(a(4))
    e(f"ds_write_b32 v{V_PA}, v{V_FA}")
    e(f"ds_read_b32 v{V_FL}, v{V_CK}")
    for x in rd[4:]: e(x)
    for x in sm[5:9]: e(x)
    e(a(1))
    for x in sm[9:]: e(x)
    e(f"v_mov_b64 {vr(V_P[par]+2,2)}, 0")
    e(f"v_cmp_lt_f32 vcc, s{S_THR}, v{V_PS}")
    e(a(5))
    e(f"v_add_f32 v{V_T0}, v{V_L}, v{V_PS}")
    e(f"v_add_f32 v{V_X}, v{V_L}, v{V_PS}")
    e(f"s_cbranch_vccnz L_rare_{tag}")
    short_rares.append((tag, par))
    e("s_waitcnt lgkmcnt(4)")
    e(f(0))
    e(f"v_permlane32_swap_b32 v{V_T0}, v{V_X}")
    e(f"v_cmp_gt_i32 vcc, s{S_T2}, v{V_FL}")
    e(f(1))
    e(f"v_add_f32 v{V_L}, v{V_T0}, v{V_X}")
    e(f"v_rcp_f32 v{V_L}, v{V_L}")
    e(f"s_cbranch_vccnz L_stg_{tag}")
    lab(f"L_stgback_{tag}")
    stage_spins.append(tag)
    e(a(2))
    for x in store_prep(): e(x)
    e("s_waitcnt lgkmcnt(0)")
    rest = [a(6), f(2), a(3), a(7), f(3)]
    cnt = 5
    for x in store_stream(pk):
        if x.startswith("NEED"): continue
        if rest and cnt >= 5:
            e(rest.pop(0)); cnt = 0
        e(x); cnt += 1
    itstamp()
    finish()
def short_rare(tag, par):
    a = lambda i: mfma(V_O+16*(i & 3), V_V+4*i, V_P[1-par]+4*(i >> 2), V_O+16*(i & 3))
    f = lambda i: mfma(V_O+16*i, V_K+4*i, V_P[par], V_O+16*i)
    lab(f"L_rare_{tag}")
    for i in (2, 6, 3, 7): e(a(i))
    rare(tag + "x", par, None, False, 4)
    lab(f"L_back_{tag}x")
    e("s_waitcnt lgkmcnt(0)")
    for i in range(4): e(f(i))
    e(f"v_add_f32 v{V_L}, v{V_L}, v{V_PS}")
    e(f"v_mov_b32 v{V_T0}, v{V_L}")
    lab(f"L_stg_{tag}x")
    bound()
    e(f"ds_read_b32 v{V_FL}, v{V_CK}")
    e("s_waitcnt lgkmcnt(0)")
    e(f"v_cmp_gt_i32 vcc, s{S_T2}, v{V_FL}")
    e(f"s_cbranch_vccnz L_stg_{tag}x")
    e(f"v_permlane32_swap_b32 v{V_L}, v{V_T0}")
    e("s_nop 1")
    e(f"v_add_f32 v{V_L}, v{V_L}, v{V_T0}")
    e("s_branch L_store")

def merge_code():
    lab("L_merge")
    MA, ML = V_KA, V_KA+1
    if opt.mprio:
        e(f"s_cmp_eq_u32 s{T_MOUT}, 0")
        e("s_cbranch_scc1 L_merge_keep")
        e("s_setprio 0")
        lab("L_merge_keep")
    e(f"v_mov_b32 v{V_T1}, v{V_L}")
    e(f"v_mbcnt_lo_u32_b32 v{V_T0}, -1, 0")
    e(f"v_mbcnt_hi_u32_b32 v{V_T0}, -1, v{V_T0}")
    e(f"s_and_b32 s{T_MB}, s{T_MB}, 0xffffff")
    e(f"v_permlane32_swap_b32 v{V_L}, v{V_T1}")
    e(f"v_lshl_add_u32 v{MA}, v{V_T0}, 4, s{T_MB}")
    e(f"s_cmp_eq_u32 s{T_MB}, {KBASE}")
    e(f"s_cselect_b32 s{S_T0}, {ent(48)}, {ent(16)}") if False else None
    e(f"s_cselect_b32 s{S_T0}, {32*G}, 0")
    e(f"v_add_f32 v{V_L}, v{V_L}, v{V_T1}")
    e(f"s_add_u32 s{S_T0}, s{S_T0}, {ent(16)}")
    e(f"v_bfe_u32 v{ML}, v{V_T0}, 1, 4")
    e(f"v_mul_u32_u24 v{ML}, {G}, v{ML}")
    e(f"v_and_b32 v{V_T0}, 1, v{V_T0}")
    e(f"v_lshl_add_u32 v{ML}, v{V_T0}, 3, v{ML}")
    e(f"v_add_u32 v{ML}, s{S_T0}, v{ML}")
    e(f"s_cmp_eq_u32 s{T_MIN}, 0")
    e("s_cbranch_scc1 L_merge_out")
    e(f"v_mov_b32 v{V_FA}, s{T_MIN}")
    spin("L_merge_wait", 0, sleep=1)
    e(f"ds_read_b64 {vr(V_E,2)}, v{ML}")
    for i in range(12):
        e(f"ds_read_b128 {vr(V_K+4*i,4)}, v{MA} offset:{i*G}")
    e("s_waitcnt lgkmcnt(12)")
    e(f"v_cmp_neq_f32 vcc, v{V_NEGM}, v{V_E}")
    for i in range(12, 16):
        e(f"ds_read_b128 {vr(V_K+4*i,4)}, v{MA} offset:{i*G}")
    e("s_cbranch_vccnz L_merge_slow")
    lab("L_merge_add")
    e(f"v_add_f32 v{V_L}, v{V_L}, v{V_E+1}")
    e(f"s_cmp_lg_u32 s{T_MOUT}, 0")
    for i in range(4):
        e(f"s_waitcnt lgkmcnt({12-4*i})")
        for r in range(16*i, 16*i+16):
            e(f"v_add_f32 v{V_O+r}, v{V_O+r}, v{V_K+r}")
    e("s_cbranch_scc1 L_merge_out")
    lab("L_store")
    e(f"v_rcp_f32 v{V_L}, v{V_L}")
    for x in store_prep(): e(x)
    for x in store_stream(False):
        if not x.startswith("NEED"): e(x)
    itstamp()
    finish()
    lab("L_merge_slow")
    e(f"v_min_f32 v{V_E+2}, v{V_NEGM}, v{V_E}")
    e(f"v_sub_f32 v{V_E+4}, v{V_E+2}, v{V_NEGM}")
    e(f"v_sub_f32 v{V_E+6}, v{V_E+2}, v{V_E}")
    e(f"v_exp_f32 v{V_E+4}, v{V_E+4}")
    e(f"v_exp_f32 v{V_E+6}, v{V_E+6}")
    e(f"v_mov_b32 v{V_NEGM}, v{V_E+2}")
    e(f"v_mul_f32 v{V_L}, v{V_L}, v{V_E+4}")
    e(f"v_mul_f32 v{V_E+1}, v{V_E+1}, v{V_E+6}")
    e("s_waitcnt lgkmcnt(0)")
    for r in range(64):
        e(f"v_mul_f32 v{V_O+r}, v{V_O+r}, v{V_E+4}")
        e(f"v_mul_f32 v{V_K+r}, v{V_K+r}, v{V_E+6}")
    e("s_branch L_merge_add")
    lab("L_merge_out")
    e(f"v_mov_b32 v{V_E}, v{V_NEGM}")
    e(f"v_mov_b32 v{V_E+1}, v{V_L}")
    e(f"v_mov_b32 v{V_FA}, s{T_MOUT}")
    e(f"v_mov_b32 v{V_T0}, 1.0")
    e(f"ds_write_b64 v{ML}, {vr(V_E,2)}")
    for i in range(16):
        e(f"ds_write_b128 v{MA}, {vr(V_O+4*i,4)} offset:{i*G}")
    e(f"ds_write_b32 v{V_FA}, v{V_T0}")
    e("s_waitcnt lgkmcnt(0)")
    itstamp()
    finish()

def setup_compute():
    e(f"s_mov_b32 s{S_O+2}, s{T_NREC}" if not opt.fake & 16 else f"s_mov_b32 s{S_O+2}, 0")
    e(f"s_mov_b32 s{S_O+3}, 0x20000")
    e(f"s_add_u32 s{S_O}, s12, s{S_BASE}")
    e(f"s_addc_u32 s{S_O+1}, s13, 0")
    e(f"v_and_b32 v{V_T0}, 3, v{V_LANE}")
    e(f"v_lshl_add_u32 v{V_FA}, v{V_T0}, 2, s{T_FB}")
    e(f"v_bfe_u32 v{V_T1}, v{V_LANE}, 2, 3")
    e(f"v_mul_u32_u24 v{V_T1}, {G}, v{V_T1}")
    e(f"v_lshl_add_u32 v{V_T1}, v{V_T0}, 8, v{V_T1}")
    e(f"v_lshrrev_b32 v{V_L}, 5, v{V_LANE}")
    e(f"v_lshl_add_u32 v{V_T1}, v{V_L}, 4, v{V_T1}")
    for t in range(4):
        e(f"v_xor_b32 v{V_KA+t}, {t}, v{V_T0}")
        e(f"v_lshl_add_u32 v{V_KA+t}, v{V_KA+t}, 6, v{V_T1}")
        e(f"v_add_u32 v{V_E+t}, s{T_QST}, v{V_KA+t}")
        e(f"v_add_u32 v{V_KA+t}, s{T_KB}, v{V_KA+t}")
    e(f"v_lshrrev_b32 v{V_T1}, 3, v{V_LANE}")
    e(f"v_and_b32 v{V_T0}, 7, v{V_LANE}")
    e(f"v_lshlrev_b32 v{V_PS}, 4, v{V_T0}")
    e(f"v_lshl_add_u32 v{V_SA}, v{V_T1}, 12, v{V_PS}")
    e(f"v_xor_b32 v{V_T1}, v{V_T1}, v{V_LANE}")
    e(f"v_lshl_add_u32 v{V_RA}, v{V_T1}, 4, s{T_OST}")
    e(f"v_and_b32 v{V_T1}, 31, v{V_LANE}")
    e(f"v_lshl_add_u32 v{V_T1}, v{V_T1}, 7, s{T_OST}")
    e(f"v_lshl_add_u32 v{V_T1}, v{V_L}, 3, v{V_T1}")
    for rq in range(4):
        e(f"v_xor_b32 v{V_WA+rq}, {rq}, v{V_T0}")
        e(f"v_lshl_add_u32 v{V_WA+rq}, v{V_WA+rq}, 4, v{V_T1}")
    e(f"v_bfe_u32 v{V_T0}, v{V_LANE}, 2, 2")
    e(f"v_lshl_add_u32 v{V_T1}, v{V_L}, 2, v{V_T0}")
    e(f"v_lshl_add_u32 v{V_T1}, v{V_T1}, 8, s{T_VB}")
    e(f"v_bfe_u32 v{V_PS}, v{V_LANE}, 4, 1")
    e(f"v_lshl_add_u32 v{V_T1}, v{V_PS}, 5, v{V_T1}")
    e(f"v_and_b32 v{V_PS}, 3, v{V_LANE}")
    e(f"v_lshl_add_u32 v{V_T1}, v{V_PS}, 3, v{V_T1}")
    for dt in range(4):
        e(f"v_xor_b32 v{V_VA+dt}, {dt}, v{V_T0}")
        e(f"v_lshl_add_u32 v{V_VA+dt}, v{V_VA+dt}, 6, v{V_T1}")
    e(f"s_bfe_u32 s{S_T0}, s{T_PK}, {8 | 3 << 16:#x}")
    e(f"s_bfe_u32 s{S_T1}, s{T_PK}, {11 | 3 << 16:#x}")
    e(f"v_and_b32 v{V_CK}, 7, v{V_LANE}")
    e(f"v_max_u32 v{V_CK}, s{S_T0}, v{V_CK}")
    e(f"v_min_u32 v{V_CK}, s{S_T1}, v{V_CK}")
    e(f"v_mul_u32_u24 v{V_CK}, {G}, v{V_CK}")
    e(f"v_add_u32 v{V_CK}, {ent(PROG0)}, v{V_CK}")
    e(f"v_lshlrev_b32 v{V_T0}, 2, v{V_L}")
    e(f"v_sub_u32 v{V_T0}, s{T_NV}, v{V_T0}")
    for r in range(16):
        e(f"v_cmp_lt_i32 {sr(S_MASK+2*r,2)}, {(r & 3) + 8*(r >> 2)}, v{V_T0}")
    for r in range(0, 64, 2): e(f"v_mov_b64 {vr(V_O+r,2)}, 0")
    for r in range(0, 16, 2): e(f"v_mov_b64 {vr(V_NEGM+r,2)}, 0")
    e(f"v_mov_b32 v{V_L}, 0")
    e(f"v_mov_b32 v{V_T1}, 0xff800000")
    e(f"v_mov_b32 v{V_X}, 1")
    e(f"s_mov_b32 s{S_LO}, {f32bits(1.0/THR):#x}")
    e(f"s_mov_b32 s{S_THR}, {f32bits(THR):#x}")
    e(f"s_bitcmp1_b32 s{T_PK}, 7")
    e(f"s_cselect_b32 s{S_KWRAP}, 6, 0")
    e(f"s_cselect_b32 s{S_VWRAP}, 8, 0")
    e(f"s_mov_b32 s{S_2K}, {2*KSLOT}")
    e(f"s_mov_b32 s{S_2V}, {2*VSLOT}")
    e(f"s_mov_b32 s{S_J}, 2")
    e(f"s_sub_u32 s{S_NM1}, s{T_N}, 1")
    e(f"s_mov_b32 s{S_T2}, s{T_P1S}")

def prog_addr():
    e(f"s_mul_i32 s{S_T0}, s{S_U}, {G}")
    e(f"s_add_u32 s{S_T0}, s{S_T0}, {ent(PROG0)}")
    e(f"v_mov_b32 v{V_PA}, s{S_T0}")

def q_read():
    for ks in range(8):
        e(f"ds_read_b128 {vr(V_Q+4*ks,4)}, v{V_E+(ks>>1)} offset:{(ks&1)*32}")

CSCALE = math.log2(math.e) / math.sqrt(128.0)
def qscale(ks, pk=True):
    tb = V_S[1] + 8*(ks & 1)
    for k in range(4):
        r = V_Q+4*ks+k
        e(f"v_lshlrev_b32 v{tb+2*k}, 16, v{r}")
        e(f"v_and_b32 v{tb+2*k+1}, {f's{S_T0}' if pk else '0xffff0000'}, v{r}")
    for k in range(4):
        if pk:
            e(f"v_pk_mul_f32 {vr(tb+2*k,2)}, {vr(tb+2*k,2)}, {sr(S_DK,2)}")
        else:
            e(f"v_mul_f32 v{tb+2*k}, {f32bits(CSCALE):#x}, v{tb+2*k}")
            e(f"v_mul_f32 v{tb+2*k+1}, {f32bits(CSCALE):#x}, v{tb+2*k+1}")
    for k in range(4):
        e(f"v_cvt_pk_bf16_f32 v{V_Q+4*ks+k}, v{tb+2*k}, v{tb+2*k+1}")

def flag_init():
    e(f"v_mul_u32_u24 v{V_T0}, {G}, v{V_LANE}")
    e(f"v_add_u32 v{V_T0}, {FBASE}, v{V_T0}")
    for k in range(4): e(f"v_mov_b32 v{V_V+k}, -1.0")
    e(f"ds_write_b128 v{V_T0}, {vr(V_V,4)}")

def init_signal_regs(f0):
    e(f"s_and_b32 s{S_T0}, s{S_U}, 3")
    e(f"s_lshl_b32 s{S_T0}, s{S_T0}, 2")
    if f0 is None:
        e(f"s_cmp_lt_u32 s{S_U}, 4")
        e(f"s_cselect_b32 s{S_T1}, {16*G}, 0")
        e(f"s_add_u32 s{S_T0}, s{S_T0}, s{S_T1}")
    e(f"s_add_u32 s{S_T0}, s{S_T0}, {FBASE}")
    e(f"v_mov_b32 v{V_SIG}, s{S_T0}")
    e(f"v_mov_b32 v{V_THRV}, {f32bits(THR):#x}")

def kv_srds(sk, sv, base_s, nrec):
    for srd, p in ((sk, 6), (sv, 8)):
        e(f"s_add_u32 s{srd}, s{p}, s{base_s}")
        e(f"s_addc_u32 s{srd+1}, s{p+1}, 0")
        e(f"s_mov_b32 s{srd+2}, {nrec}")
        e(f"s_mov_b32 s{srd+3}, 0x20000")

class Loader:
    def __init__(self, name, quarter):
        self.pace = 0
        self.name = name; self.quarter = quarter; self.issued = []; self.npoll = 0; self.seen = {}
    def poll(self, lo, hi, thr, word=0):
        key = (lo, hi, word)
        if self.seen.get(key, -1) >= thr: return
        self.seen[key] = thr
        l_ = f"L_pw_{self.name}_{self.npoll}"; self.npoll += 1
        e(f"v_and_b32 v{V_POLL}, 7, v{V_LANE}")
        e(f"v_max_u32 v{V_POLL}, {lo}, v{V_POLL}")
        e(f"v_min_u32 v{V_POLL}, {hi}, v{V_POLL}")
        e(f"v_mul_u32_u24 v{V_POLL}, {G}, v{V_POLL}")
        e(f"v_add_u32 v{V_POLL}, {ent(PROG0)}, v{V_POLL}")
        e(f"s_mov_b32 s{S_T0}, {thr}")
        lab(l_)
        e(f"ds_read_b32 v{V_PV}, v{V_POLL} offset:{4*word}")
        e("s_waitcnt lgkmcnt(0)")
        e(f"v_cmp_gt_i32 vcc, s{S_T0}, v{V_PV}")
        e(f"s_cbranch_vccz {l_}_ok")
        e("s_sleep 1")
        bound()
        e(f"s_branch {l_}")
        lab(f"{l_}_ok")
    def block(self, tag, srd, b, lds, stride):
        if self.quarter:
            wreg = S_DK if stride == G else S_DV
            e(f"s_add_u32 m0, s{wreg}, {lds}")
            e(f"s_mov_b32 s{S_T1}, {b*0x20000:#x}")
            e(f"buffer_load_dwordx4 v{V_DMA}, {sr(srd,4)}, s{S_T1} offen lds")
            e(f"s_add_u32 m0, s{wreg}, {lds+4*stride}")
            e(f"s_sleep {self.pace}" if self.pace else "s_nop 0")
            e(f"buffer_load_dwordx4 v{V_DMA2}, {sr(srd,4)}, s{S_T1} offen lds")
            if self.pace: e(f"s_sleep {self.pace}")
            self.issued += [tag]*2
        else:
            for g in range(8):
                e(f"s_mov_b32 m0, {lds+g*stride}")
                e(f"s_mov_b32 s{S_T1}, {b*0x20000+g*0x4000:#x}")
                e(f"buffer_load_dwordx4 v{V_DMA}, {sr(srd,4)}, s{S_T1} offen lds")
            self.issued += [tag]*8
    def wait(self, tag):
        last = max(i for i, t in enumerate(self.issued) if t == tag)
        n = len(self.issued)-1-last
        assert n <= 63
        e(f"s_waitcnt vmcnt({n})")

def loader_single_stream(desc, pid):
    kind, nk = desc[0], desc[1]
    quarter = kind == "L4"
    late = desc[2]
    D = desc[4]
    ld = Loader(f"{kind}_{nk}_{pid}", quarter)
    lab(f"L_prog_{pid}")
    if opt.lprio: e(f"s_setprio {opt.lprio}")
    ld.issued += ["i1"]*4 + ["i2"]*4
    qsrc = desc[3] if late else None
    if not quarter: e(f"v_mov_b32 v{V_DMA}, v{V_DL}")
    ring = nk > 10
    ks = lambda b: b & 7 if ring else b
    vs = lambda b: (((b-1) & 7) + 1) if (ring and b > 8) else b
    hi = (7 if late else 3) if quarter else 6
    vq = (7 if desc[3] == 5 else {10: 8, 8: 5}.get(nk, 99)) if (late or not quarter) else 99
    def req(p):
        lv = []
        b = p+2
        def level(j):
            if j <= 0: return (0, 3, 1, 0, 0)
            if j & 1: return (0, 3, FBASE+(j-1)*G, j+opt.slack, 1)
            return (0, 3, FBASE+(j-2)*G, j+opt.slack, 0)
        if b < nk:
            if ks(b) != b: lv.append(level(b-9))
            elif b >= 5 and not (ring and opt.q4v): lv.append((0, 2 if (b < 8 and opt.w3) else 3, 0, QSIG, 0))
        if vs(p) != p: lv.append(level(p-7))
        elif p >= vq: lv.append((4, hi, 0, 2, 0))
        elif p >= 5 and ring and opt.q4v: lv.append((0, 3, 0, QSIG, 0))
        return lv
    nxt = [1]
    def pairs_upto(p, sig):
        while nxt[0] <= min(p, nk-1):
            r = req(nxt[0])
            if any(x[3] > sig for x in r): break
            for x in r: ld.poll(x[0], x[1], x[2], x[4])
            p_ = nxt[0]
            if p_+2 < nk: ld.block(p_, S_K, p_+2, kslot(ks(p_+2)), G)
            ld.block(p_, S_V, p_, vslot(vs(p_)), 1024)
            nxt[0] += 1
    chunks = []
    side = opt.side == 1 or (opt.side == 2 and quarter)
    if late:
        k0 = len(out); setup_compute(); prog_addr(); body = out[k0:]; del out[k0:]
        cut = next(i for i, x in enumerate(body) if "s_bfe_u32" in x)
        chunks = [body[:cut], body[cut:]]
        if side:
            cut = max(i for i, x in enumerate(body) if f"s{T_KB}," in x) + 1
            chunks = [body[:cut] + body[-3:] + [f"    v_mov_b32 v{V_X}, 0"], body[cut:-3]]
    pairs_upto((opt.npre3 if nk == 11 else opt.npre4) if quarter else opt.npre1, -1)
    ld.wait("i2")
    e(f"ds_write_b32 v{V_SIG}, v{V_THRV} offset:{G}")
    stamp(3)
    if not quarter:
        e(f"v_and_b32 v{V_SIG}, 3, v{V_LANE}")
        e(f"v_lshlrev_b32 v{V_SIG}, 2, v{V_SIG}")
        e(f"v_add_u32 v{V_SIG}, {FBASE}, v{V_SIG}")
    if late and qsrc is None:
        e(f"s_mov_b32 s{S_T0}, s{T_QOFF}")
        e(f"s_mov_b32 m0, s{T_QST}")
        dma_pass(S_T0)
        ld.issued += ["q"]*8
    pairs_upto(D, 0)
    if late: out.extend(chunks[0])
    ld.pace = opt.pace
    for j in range(1, nk):
        assert nxt[0] > j
        ld.wait(j)
        e(f"ds_write_b32 v{V_SIG}, v{V_THRV} offset:{(j+1)*G}")
        if late and j == 2:
            if qsrc is None: ld.wait("q")
            else: ld.poll(qsrc, qsrc, 0)
            q_read()
            e("s_waitcnt lgkmcnt(0)")
            e(f"ds_write_b32 v{V_PA}, v{V_X if side else V_L}")
        pairs_upto(j+D, j)
        if late and j == 1 and not side: out.extend(chunks[1])
        if late and 2 <= j <= 5 and not side:
            qscale(2*j-4, False); qscale(2*j-3, False)
    if late and side:
        e("s_setprio 0")
        out.extend(chunks[1])
        e("s_branch L_scale_h")
    elif late:
        e("s_branch L_spin_h" if quarter else "s_branch L_helper_go")
    else:
        e("s_waitcnt lgkmcnt(0)")
        stamp(4)
        finish()

def loader_two_streams(desc, pid):
    _, sa, sb = desc
    nka, nkb = seqnk(sa), seqnk(sb)
    ld = Loader("L2", False)
    lab(f"L_prog_{pid}")
    if opt.lprio: e(f"s_setprio {opt.lprio}")
    ld.issued += ["i1"]*4 + ["i2"]*4
    e(f"v_mov_b32 v{V_DMA}, v{V_DL}")
    for k in range(8): e(f"s_mov_b32 s{S_K2+k}, s{S_K+k}") if k % 4 != 3 else e(f"s_mov_b32 s{S_K2+k}, 0x20000")
    kv_srds(S_K, S_V, S_BASE, f"s{T_NREC}")
    def pa(p):
        if p+2 < nka: ld.block(("a", p), S_K2, p+2, kslot(6+p+2), G)
        ld.block(("a", p), S_V2, p, vslot(6+p), 1024)
    def pb(p):
        if p+2 >= 6 and p+2 < nkb: ld.poll(0, 3, ent(16))
        if p == 8: ld.poll(0, 3, ent(16)+2*G)
        if p+2 < nkb: ld.block(("b", p), S_K, p+2, kslot(p+2), G)
        ld.block(("b", p), S_V, p, vslot(p), 1024)
    def sig(t, p):
        ld.wait((t, p))
        e(f"ds_write_b32 v{V_SIG}, v{V_THRV} offset:{(p + 1 + (16 if t == 'a' else 0))*G}")
    pa(1)
    ld.wait("i2")
    e(f"ds_write_b32 v{V_SIG}, v{V_THRV} offset:{G}")
    stamp(3)
    e(f"v_and_b32 v{V_SIG}, 3, v{V_LANE}")
    e(f"v_lshlrev_b32 v{V_SIG}, 2, v{V_SIG}")
    e(f"v_add_u32 v{V_SIG}, {FBASE}, v{V_SIG}")
    pa(2); pa(3)
    ld.block(("b", -1), S_K, 0, kslot(0), G)
    sig("a", 1)
    ld.block(("b", -1), S_K, 1, kslot(1), G)
    sig("a", 2)
    ld.poll(0, 6, 0)
    pb(0); sig("a", 3)
    pb(1); sig("b", -1)
    pb(2); sig("b", 0)
    pb(3); sig("b", 1)
    pb(4); sig("b", 2)
    pb(5); sig("b", 3)
    pb(6); sig("b", 4)
    pb(7); sig("b", 5)
    pb(8); sig("b", 6); sig("b", 7); sig("b", 8)
    e("s_waitcnt lgkmcnt(0)")
    stamp(4)
    finish()

def md_program(desc, pid):
    nk = desc[1]
    ld = Loader(f"MD_{pid}", True)
    lab(f"L_prog_{pid}")
    if not opt.mdsync: e("s_setprio 1")
    ld.issued += (["i1"]*4 + ["q"]*8 + ["i2"]*4) if opt.mdq else (["i1"]*4 + ["i2"]*4 + ["q"]*8)
    def pair(p):
        if p+2 < nk: ld.block(p, S_K, p+2, kslot(p+2), G)
        ld.block(p, S_V, p, vslot(p), 1024)
    def sig(p):
        ld.wait(p)
        e(f"ds_write_b32 v{V_SIG}, v{V_THRV} offset:{(p+1)*G}")
    pair(1)
    setup_compute(); prog_addr()
    if not opt.mdq:
        ld.wait("i2"); e(f"ds_write_b32 v{V_SIG}, v{V_THRV} offset:{G}")
    ld.wait("q")
    stamp(3)
    q_read()
    e("s_waitcnt lgkmcnt(0)")
    e(f"ds_write_b32 v{V_PA}, v{V_L}")
    pair(2)
    if opt.mdsync:
        e(f"s_mov_b32 s{T_KB}, s{S_DK}")
        e(f"s_mov_b32 s{T_VB}, s{S_DV}")
        e(f"s_mov_b32 s{S_DK}, {f32bits(CSCALE):#x}")
        e(f"s_mov_b32 s{S_DV}, {f32bits(CSCALE):#x}")
        e(f"s_mov_b32 s{S_T0}, 0xffff0000")
        for ks in range(7): qscale(ks)
        e(f"ds_write_b32 v{V_SIG}, v{V_THRV}")
        qscale(7)
        e(f"s_mov_b32 s{S_DK}, s{T_KB}")
        e(f"s_mov_b32 s{S_DV}, s{T_VB}")
        e("s_setprio 1")
        ld.wait("i2"); e(f"ds_write_b32 v{V_SIG}, v{V_THRV} offset:{G}")
    else:
        for ks in range(4): qscale(ks, False)
        if opt.mdq:
            ld.wait("i2"); e(f"ds_write_b32 v{V_SIG}, v{V_THRV} offset:{G}")
        for ks in range(4, 8): qscale(ks, False)
    if QSIG: sig(1)
    ld.poll(0, 7, 0)
    pair(3)
    if not QSIG: sig(1)
    e(f"v_mov_b32 v{V_T1}, v{V_DMA}")
    e(f"v_readfirstlane_b32 s{T_QST}, v{V_SIG}")
    e(f"s_mov_b32 s{T_KB}, s{S_DK}")
    e(f"s_mov_b32 s{T_VB}, s{S_DV}")
    e("s_branch L_spin_h")
    lab(f"L_md_loop")
    kv_srds(S_K, S_V, S_BASE, f"s{T_NREC}")
    e(f"v_mov_b32 v{V_X}, {f32bits(THR):#x}")
    for j in range(1, nk-1):
        ex = {}
        p = j+3
        if j+1 < nk:
            last = max(i for i, t in enumerate(ld.issued) if t == j+1)
            e(f"s_waitcnt vmcnt({len(ld.issued)-1-last})")
            e(f"v_mov_b32 v{V_T0}, s{T_QST}")
            e(f"ds_write_b32 v{V_T0}, v{V_X} offset:{(j+2)*G}")
        if p < nk:
            items = []
            if p+2 < nk: items += [(S_K, T_KB, kslot(p+2), (p+2)*0x20000), (S_K, T_KB, kslot(p+2)+4*G, (p+2)*0x20000+0x10000)]
            items += [(S_V, T_VB, vslot(p), p*0x20000), (S_V, T_VB, vslot(p)+4096, p*0x20000+0x10000)]
            for k, (srd, wreg, lds, so) in enumerate(items):
                ops = [f"s_add_u32 m0, s{wreg}, {lds}", f"s_mov_b32 s{S_T1}, {so:#x}", f"buffer_load_dwordx4 v{V_T1}, {sr(srd,4)}, s{S_T1} offen lds"]
                if opt.stamps == 2: ops = [f"s_mov_b32 s{S_T0}, m0"] + ops + [f"s_mov_b32 m0, s{S_T0}"]
                ex[1+3*k] = ops
                ld.issued.append(p)
        if j & 1:
            ma = [(2+4*t, [f"v_add_u32 v{V_KA+t}, s{S_2K}, v{V_KA+t}"]) for t in range(4)]
            iteration(1, True, 3*KSLOT, VSLOT, 3*G, f"Amd{j}", misc=ma, extra=ex)
        else:
            mb = [(8, [f"v_add_u32 v{V_FA}, {2*G}, v{V_FA}"])]
            mb += [(9+2*t, [f"v_add_u32 v{V_VA+t}, s{S_2V}, v{V_VA+t}"]) for t in range(4)]
            iteration(0, True, 2*KSLOT, 2*VSLOT, 4*G, f"Bmd{j}", misc=mb, extra=ex, prog=f"ds_write_b32 v{V_PA}, v{V_FA}")
    e(f"v_mov_b32 v{V_T1}, 0xff800000")
    e("s_branch L_tail_odd" if (nk-1) & 1 else "s_branch L_tail_even")

hdr = open("cdna_kernels/" + NAME + ".s.ref").read().split("\n")
for line in hdr:
    if line.startswith("; @launch"): break
    out.append(line)
out.append(f"; @launch grid=({NWG},1,1) block=(512,1,1) lds={LDS_BYTES}")
out.append("; job order: " + " ".join(JOBORDER))
out.extend("; " + x if x else ";" for x in """
Varlen attention, written by gen/gen24.py (own generator).  256 workgroups (one per CU) x 8 waves.
 * 16 job slots per head; the fixed cu[] is folded into two tables in this file (L_small, L_table).
 * A compute wave owns 32 query rows: S^T = K Q^T and O^T = V^T P^T with 32x32x16 bf16 MFMA, three-stage software
   pipeline QK(j+1) | softmax(j) | PV(j-1).  Q is pre-scaled by log2(e)/sqrt(128).
 * Softmax stabiliser: the running reference m enters as the C operand of the first QK MFMA.  Every block's row sums
   are checked at run time (upper bound always, lower bound on the first block); when a check fails the wave
   switches to the true running row maximum and rescales O, l and the pending scores (L_rare_*).
 * K/V blocks reach LDS by LDS-DMA from loader waves; producers and consumers meet through flag words kept in
   the padding of the K slots (FULL / progress / merge flags), one barrier only (after the flags are initialised).
 * Extra query tiles are split along the keys over helper waves and merged through LDS (L_merge).
""".strip("\n").split("\n"))
out.append('.amdgcn_target "amdgcn-amd-amdhsa--gfx950"')
out.append(".text")
out.append(f".globl {NAME}_kernel")
out.append(".p2align 8")
out.append(f".type {NAME}_kernel,@function")
lab(f"{NAME}_kernel")
S_W, S_HOFF = S_KWRAP, S_NM1
if opt.stamps == 5: e(f"s_memtime {sr(S_STAMP,2)}")
e("s_load_dwordx4 s[4:7], s[0:1], 0")
e(f"v_lshrrev_b32 v{V_T0}, 6, v0")
e(f"s_getpc_b64 {sr(S_DK,2)}")
lab("L_pc")
for k_ in range(opt.spf):
    e(f"s_load_dword s{T+k_}, {sr(S_DK,2)}, {0x100+0x80*k_:#x}")
if opt.skew >= 2:
    e(f"s_bfe_u32 s{S_T0}, s2, {5 | 3 << 16:#x}")
    e(f"s_and_b32 s{S_T1}, s2, 4")
    e(f"s_lshl_b32 s{S_T1}, s{S_T1}, 1")
    e(f"s_bfe_u32 s{S_HOFF}, s2, {3 | 1 << 16:#x}")
    e(f"s_add_u32 s{S_T0}, s{S_T0}, s{S_T1}")
    e(f"s_lshl_b32 s{S_T0}, s{S_T0}, 2")
elif opt.skew:
    e(f"s_bfe_u32 s{S_T0}, s2, {5 | 3 << 16:#x}")
    e(f"s_bfe_u32 s{S_J}, s2, {2 | 1 << 16:#x}")
    e(f"s_mul_i32 s{S_T1}, s{S_J}, 7")
    e(f"s_bfe_u32 s{S_HOFF}, s2, {3 | 1 << 16:#x}")
    e(f"s_add_u32 s{S_T2}, s{S_HOFF}, 7")
    e(f"s_cmp_eq_u32 s{S_T0}, 7")
    e(f"s_cselect_b32 s{S_T1}, s{S_T2}, s{S_T1}")
    e(f"s_cselect_b32 s{S_HOFF}, s{S_J}, s{S_HOFF}")
    e(f"s_add_u32 s{S_T0}, s{S_T0}, s{S_T1}")
    e(f"s_lshl_b32 s{S_T2}, s{S_T0}, 3")
else:
    e(f"s_lshr_b32 s{S_T0}, s2, 2")
    e(f"s_and_b32 s{S_T0}, s{S_T0}, 60")
assert opt.skew == 1 and opt.str4 and opt.q4v and not (opt.hcls or opt.hl != "0000" or opt.qprio)
S_W1 = S_W + 1
e(f"s_load_dwordx2 {sr(S_W,2)}, {sr(S_DK,2)}, s{S_T2} offset:SMALL_OFF")
e(f"v_readfirstlane_b32 s{S_U}, v{V_T0}")
if opt.ich:
    e(f"s_cmp_eq_u32 s{S_U}, {opt.ich if opt.ich > 1 else 7}")
    e("s_cbranch_scc1 L_ich")
e("s_branch L_go")
out.append(".type L_small,@object")
lab("L_small")
def word1(w, hs):
    nt, two, hold, L = (w >> 25) & 7, (w >> 28) & 1, (w >> 29) & 3, (w >> 12) & 511
    mask = 0xf7 if nt == 5 else 0xf0 | (0 if hold else (1 << nt) - 1)
    masks = 0xf7 if nt == 5 else 0xf0 | (0 if hs else (1 << nt) - 1)
    return mask | (0 if L > 320 else (6 if two else 9)) << 8 | hold << 12 | hs << 14 | (10 if two else 4) << 16 | masks << 24
out.append("    .long " + ", ".join(f"{x:#x}, {word1(x, h_):#x}" for x, h_ in zip(stab, slowcls)))
out.append(".size L_small, .-L_small")
lab("L_go")
if opt.stamps and opt.stamps != 5:
    e("s_memrealtime s[100:101]")
stamp(0)
e(f"v_and_b32 v{V_LANE}, 63, v0")
if opt.pf:
    e(f"s_and_b32 s{S_T1}, s2, 0xf8") if False else None
    e(f"s_bfe_u32 s{S_T1}, s2, {3 | 5 << 16:#x}")
    e(f"v_lshl_add_u32 v{V_T0}, s{S_T1}, 9, v0")
    e(f"v_lshlrev_b32 v{V_T0}, 2, v{V_T0}")
    e(f"global_load_dword v{V_S[0]}, v{V_T0}, {sr(S_DK,2)}")
else:
    e(f"s_lshr_b32 s{S_T1}, s2, 3")
e(f"s_and_b32 s{S_T1}, s{S_T1}, 2")
e(f"s_add_u32 s{S_HOFF}, s{S_HOFF}, s{S_T1}")
e(f"s_lshl_b32 s{S_HOFF}, s{S_HOFF}, 2")
e(f"s_and_b32 s{S_T0}, s2, 3")
e(f"s_add_u32 s{S_HOFF}, s{S_HOFF}, s{S_T0}")
e(f"s_lshl_b32 s{S_HOFF}, s{S_HOFF}, 8")
e(f"v_lshrrev_b32 v{V_T0}, 4, v{V_LANE}")
e(f"v_lshlrev_b32 v{V_T1}, 2, v{V_T0}")
e(f"v_and_b32 v{V_DL}, 15, v{V_LANE}")
e(f"v_xor_b32 v{V_DL}, v{V_DL}, v{V_T1}")
e(f"v_lshlrev_b32 v{V_DL}, 4, v{V_DL}")
e(f"v_lshl_add_u32 v{V_DL}, v{V_T0}, 12, v{V_DL}")
e(f"s_mov_b32 s{S_P1+3}, 0x20000")
A_MS, A_SS, A_N, A_M0, A_SO, A_F1, A_F0, A_B, A_H = range(S_MASK, S_MASK+9)
e(f"s_and_b32 s{S_J}, s{S_U}, 3")
e(f"s_lshr_b32 s{S_T0}, s{S_U}, 2")
e(f"s_lshl_b32 s{S_T1}, s{S_T0}, 1")
e(f"s_lshl_b32 s{A_MS}, {G}, s{S_T1}")
e(f"s_lshl_b32 s{A_SS}, 0x4000, s{S_T1}")
e(f"s_lshr_b32 s{A_N}, 8, s{S_T0}")
e(f"s_mul_i32 s{S_T1}, s{S_T0}, 3")
e(f"s_lshr_b32 s{A_M0}, {KSLOT}, s{S_T1}")
e(f"s_mul_i32 s{A_M0}, s{A_M0}, s{S_J}")
e(f"s_add_u32 s{A_M0}, s{A_M0}, {KBASE-4*KSLOT}")
e(f"s_lshr_b32 s{A_SO}, 0x20000, s{S_T1}")
e(f"s_mul_i32 s{A_SO}, s{A_SO}, s{S_J}")
e(f"s_lshl_b32 s{A_F1}, s{S_T0}, 3")
e(f"s_add_u32 s{A_F1}, s{A_F1}, {8 | 4 << 16:#x}")
SAMEMASK = all((a_ == "0") == (b_ == "0") for a_, b_ in zip(opt.cls, opt.cs))
def slow_sel():
    e(f"s_and_b32 s{S_T0}, s2, 3")
    e(f"s_cmp_eq_u32 s{S_T0}, 1")
    e(f"s_cselect_b32 s{A_H}, 24, 0")
if not SAMEMASK:
    slow_sel()
    e(f"s_add_u32 s{A_B}, s{A_H}, s{S_U}")
e(f"s_cmp_ge_u32 s{S_U}, 4")
e(f"s_cselect_b32 s{A_F0}, 0, {21 | 4 << 16:#x}")
if opt.kp:
    e("s_cbranch_scc0 L_kp")
    e("s_setprio 3")
    lab("L_kp")
e("s_waitcnt lgkmcnt(0)")
stamp(1)
e(f"s_cselect_b64 {sr(S_P1,2)}, s[6:7], s[4:5]")
e(f"s_bfe_u32 s{S_T0}, s{S_W1}, s{A_F1}")
e(f"s_mulk_i32 s{S_T0}, {KSLOT}")
e(f"s_add_u32 m0, s{S_T0}, s{A_M0}")
e(f"s_and_b32 s{S_BASE}, s{S_W}, 0xfff")
e(f"s_lshl_b32 s{S_BASE}, s{S_BASE}, 12")
e(f"s_add_u32 s{S_BASE}, s{S_BASE}, s{S_HOFF}")
e(f"s_add_u32 s{S_P1}, s{S_P1}, s{S_BASE}")
e(f"s_addc_u32 s{S_P1+1}, s{S_P1+1}, 0")
e(f"s_and_b32 s{S_P1+2}, s{S_W}, 0x1ff000")
e(f"s_addk_i32 s{S_P1+2}, {-(4096-256)}")
e(f"s_bfe_u32 s{S_T0}, s{S_W}, s{A_F0}")
e(f"s_lshl_b32 s{S_T0}, s{S_T0}, 17")
e(f"s_add_u32 s{A_SO}, s{A_SO}, s{S_T0}")
e(f"s_bitcmp1_b32 s{S_W1}, s{S_U if SAMEMASK else A_B}")
e("s_cbranch_scc0 L_first_done")
if opt.stamps == 5: e(f"s_memtime {sr(S_STAMP+4,2)}")
lab("L_first")
e(f"buffer_load_dwordx4 v{V_DL}, {sr(S_P1,4)}, s{A_SO} offen lds")
e(f"s_add_u32 m0, m0, s{A_MS}")
e(f"s_add_u32 s{A_SO}, s{A_SO}, s{A_SS}")
e(f"s_sub_u32 s{A_N}, s{A_N}, 1")
e(f"s_cmp_lg_u32 s{A_N}, 0")
e("s_cbranch_scc1 L_first")
if opt.stamps == 5: e(f"s_memtime {sr(S_STAMP+8,2)}")
lab("L_first_done")
if opt.kp: e("s_setprio 0")
e(f"s_cmp_ge_u32 s2, {NWG}")
e("s_cbranch_scc1 L_end")
if opt.stamps == 5: e("s_memrealtime s[100:101]")
e("s_load_dwordx2 s[8:9], s[0:1], 16")
e("s_load_dwordx2 s[12:13], s[0:1], 32")
e(f"s_add_u32 s{S_T2}, s{S_T2}, s{S_U}")
e(f"s_lshl_b32 s{S_T2}, s{S_T2}, 6")
e(f"s_add_u32 s{S_T2}, s{S_T2}, L_table-L_pc")
if SAMEMASK: slow_sel()
flag_init()
e("s_waitcnt lgkmcnt(0)")
e(f"s_load_dwordx16 {sr(T,16)}, {sr(S_DK,2)}, s{S_T2}")
e(f"s_bfe_u32 s{S_T2}, s{S_W}, {28 | 1 << 16:#x}")
e(f"s_lshr_b32 s{A_H}, s{A_H}, 3")
e(f"s_and_b32 s{A_H}, s{A_H}, 2")
e(f"s_add_u32 s{A_H}, s{A_H}, {12 | 2 << 16:#x}")
e(f"s_bfe_u32 s{A_H}, s{S_W1}, s{A_H}")
e("s_barrier")
e(f"s_cmp_ge_u32 s{S_U}, 4")
e("s_cbranch_scc1 L_first_kv")
def dma_pass(soff):
    e(f"s_add_u32 s{S_P1}, s4, s{S_BASE}")
    e(f"s_addc_u32 s{S_P1+1}, s5, 0")
    for i in range(8):
        e(f"buffer_load_dwordx4 v{V_DL}, {sr(S_P1,4)}, s{soff} offen lds")
        if i < 7:
            e(f"s_add_u32 m0, m0, {G}")
            e(f"s_addk_i32 s{soff}, 0x4000")
e(f"s_cmp_lg_u32 s{A_N}, 0")
e("s_cbranch_scc1 L_late_q")
lab("L_q_issued")
e("s_waitcnt lgkmcnt(0)")
e(f"s_mov_b32 s{S_J}, {R_MAIN}")
stamp(2)
e("s_branch L_compute")
lab("L_ich")
e("s_branch L_go")
lab("L_late_q")
e(f"s_bfe_u32 s{S_T0}, s{S_W}, {25 | 3 << 16:#x}")
e(f"s_cmp_ge_u32 s{S_U}, s{S_T0}")
e("s_cbranch_scc1 L_idle")
e(f"s_lshl_b32 s{S_T1}, s{S_T2}, 4")
e(f"s_add_u32 s{S_T0}, s{A_H}, s{S_T1}")
e(f"s_mul_i32 s{S_T0}, s{S_T0}, {G}")
e(f"s_add_u32 s{S_T0}, s{S_T0}, {FBASE-G}")
e(f"v_and_b32 v{V_T0}, 3, v{V_LANE}")
e(f"v_lshl_add_u32 v{V_FA}, v{V_T0}, 2, s{S_T0}")
e("s_waitcnt lgkmcnt(0)")
spin("L_hold", 0, sleep=1)
dma_pass(A_SO)
e("s_branch L_q_issued")
lab("L_first_kv")
e(f"s_mov_b64 {sr(S_K,2)}, {sr(S_P1,2)}")
e(f"s_mov_b32 s{S_K+2}, s{S_P1+2}")
e(f"s_mov_b32 s{S_K+3}, 0x20000")
e(f"s_add_u32 s{S_V}, s8, s{S_BASE}")
e(f"s_addc_u32 s{S_V+1}, s9, 0")
e(f"s_mov_b32 s{S_V+2}, s{S_P1+2}")
e(f"s_mov_b32 s{S_V+3}, 0x20000")
e(f"s_lshl_b32 s{S_T0}, s{S_J}, 14")
e(f"v_add_u32 v{V_DMA}, s{S_T0}, v{V_DL}")
e(f"v_add_u32 v{V_DMA2}, 0x10000, v{V_DMA}")
e(f"s_mul_i32 s{S_DK}, s{S_J}, {G}")
e(f"s_mov_b32 s{S_T1}, 0x40000")
e(f"s_mul_i32 s{S_T0}, s{S_T2}, {16*G}")
e(f"s_lshl_b32 s{S_DV}, s{S_J}, 2")
e(f"s_add_u32 s{S_T0}, s{S_T0}, s{S_DV}")
e(f"s_add_u32 s{S_T0}, s{S_T0}, {FBASE}")
e(f"v_mov_b32 v{V_SIG}, s{S_T0}")
e(f"v_mov_b32 v{V_THRV}, {f32bits(THR):#x}")
e(f"s_lshl_b32 s{S_DV}, s{S_J}, 10")
e(f"s_mul_i32 s{S_T0}, s{S_T2}, {6*VSLOT}")
if opt.md and opt.mdq:
    e(f"s_bitcmp1_b32 s{S_W}, 31")
    e("s_cbranch_scc1 L_md_first")
if opt.hold:
    e("s_waitcnt vmcnt(0)")
    if not opt.mdsync: lab("L_md_back")
    e(f"ds_write_b32 v{V_SIG}, v{V_THRV}")
    if opt.mdsync: lab("L_md_back")
    stamp(2)
e(f"buffer_load_dwordx4 v{V_DMA}, {sr(S_K,4)}, s{S_T1} offen lds")
e(f"s_add_u32 m0, m0, {4*G}")
e("s_nop 0")
e(f"buffer_load_dwordx4 v{V_DMA2}, {sr(S_K,4)}, s{S_T1} offen lds")
e(f"s_add_u32 m0, s{S_T0}, s{S_DV}")
e("s_nop 0")
e(f"buffer_load_dwordx4 v{V_DMA}, {sr(S_V,4)}, 0 offen lds")
e(f"s_add_u32 m0, m0, 4096")
e("s_nop 0")
e(f"buffer_load_dwordx4 v{V_DMA2}, {sr(S_V,4)}, 0 offen lds")
if not opt.hold:
    e("s_waitcnt vmcnt(4)")
    e(f"ds_write_b32 v{V_SIG}, v{V_THRV}")
    stamp(2)
e("s_waitcnt lgkmcnt(0)")
e(f"s_add_u32 s{S_BASE}, s{S_HOFF}, s{T_SOFF}")
e(f"s_and_b32 s{S_J}, s{T_PK}, 15")
e(f"s_bitcmp1_b32 s{T_PK}, 6")
e("s_cbranch_scc0 L_pass_done")
e(f"s_mov_b32 s{S_P1+2}, s{T_NREC}")
e(f"s_mov_b32 s{S_T0}, s{T_QOFF}")
e(f"s_mov_b32 m0, s{T_QST}")
dma_pass(S_T0)
lab("L_pass_done")
e(f"s_cmp_ge_u32 s{S_J}, 3")
e("s_cbranch_scc1 L_loaders")
lab("L_compute")
e(f"s_mov_b32 s{S_DK}, s{S_J}")
setup_compute()
prog_addr()
e(f"s_cmp_lg_u32 s{S_DK}, {R_MAIN}")
e("s_cbranch_scc1 L_init")
if opt.tlb:
    e(f"buffer_load_dword v{V_LANE}, v{V_L}, {sr(S_O,4)}, s{T_QOFF} offen")
    e("s_waitcnt vmcnt(1)")
    e("s_branch L_noinit2")
lab("L_noinit")
e("s_waitcnt vmcnt(0)")
lab("L_noinit2")
stamp(3)
q_read()
e("s_waitcnt lgkmcnt(0)")
e(f"ds_write_b32 v{V_PA}, v{V_L}")
e(f"s_cmp_lg_u32 s{S_DK}, {R_MAIN}")
e("s_cbranch_scc1 L_scale_h")
e(f"s_mov_b32 s{S_DK}, {f32bits(CSCALE):#x}")
e(f"s_mov_b32 s{S_DV}, {f32bits(CSCALE):#x}")
e(f"s_mov_b32 s{S_T0}, 0xffff0000")
for ks in range(5):
    if ks == 4: e(f"ds_read_b32 v{V_FL}, v{V_FA}")
    qscale(ks)
e("s_waitcnt lgkmcnt(0)")
e(f"v_cmp_gt_f32 vcc, 0, v{V_FL}")
qscale(5)
e("s_cbranch_vccz L_back_pre")
spin("L_spin_pre", 0)
lab("L_back_pre")
def start_stamp():
    stamp(4)
    if opt.stamps == 2:
        e("s_mov_b32 m0, 0")
        e("s_memtime s[100:101]")
start_stamp()
for ks in range(8): e(kread(ks, 0))
qscale(6)
qscale(7)
lab("L_qk0")
for ks in range(8):
    if ks == 0: e("s_waitcnt lgkmcnt(0)")
    if ks == 7: e(f"v_cmp_gt_f32 vcc, 0, v{V_FL}")
    e(mfma(V_S[0], V_K+4*ks, V_Q+4*ks, None if ks == 0 else V_S[0]))
    e(kread(ks, 1*KSLOT))
    if ks == 3: e(f"ds_read_b32 v{V_FL}, v{V_FA} offset:{G}")
    if ks == 6: e("s_waitcnt lgkmcnt(3)")
e("s_cbranch_vccz L_back_pre2")
spin("L_spin_pre2", G)
lab("L_back_pre2")
e("s_nop 7")
iteration(0, False, 2*KSLOT, 0, 2*G, "i0", first=True, prog=f"ds_write_b32 v{V_PA}, v{V_X}",
          last_ops=[f"s_bitcmp1_b32 s{T_PK}, 20", "s_cbranch_scc1 L_leave"])
lab("L_loop")
ma = [(0, [f"s_cmp_eq_u32 s{S_J}, s{S_KWRAP}", f"s_cselect_b32 s{S_DK}, {(-6*KSLOT)&0xffffffff:#x}, s{S_2K}"])]
ma += [(2+4*t, [f"v_add_u32 v{V_KA+t}, s{S_DK}, v{V_KA+t}"]) for t in range(4)]
ma.insert(4, (10, [f"s_cmp_eq_u32 s{S_J}, s{S_NM1}"]))
iteration(1, True, 3*KSLOT, VSLOT, 3*G, "A", misc=ma, last_ops=["s_cbranch_scc1 L_tail_even"], prog=f"ds_write_b32 v{V_PA}, v{V_FA} offset:4")
mb = [(0, [f"s_cmp_eq_u32 s{S_J}, s{S_VWRAP}", f"s_cselect_b32 s{S_DV}, {(-6*VSLOT)&0xffffffff:#x}, s{S_2V}"]),
      (0, [f"s_add_u32 s{S_J}, s{S_J}, 2", f"s_cmp_eq_u32 s{S_J}, s{T_N}"]),
      (8, [f"v_add_u32 v{V_FA}, {2*G}, v{V_FA}"])]
mb += [(9+2*t, [f"v_add_u32 v{V_VA+t}, s{S_DV}, v{V_VA+t}"]) for t in range(4)]
iteration(0, True, 2*KSLOT, 2*VSLOT, 4*G, "B", misc=mb, last_ops=["s_cbranch_scc0 L_loop"], prog=f"ds_write_b32 v{V_PA}, v{V_FA}")
for par, nm in ((1, "odd"), (0, "even")):
    lab(f"L_tail_{nm}")
    kinds = [k for k in (3, 4, 0, 1, 2) if (k, par) in tails_used]
    for k in kinds[1:]:
        e(f"s_bitcmp1_b32 s{T_PK}, {21 + k}")
        e(f"s_cbranch_scc1 L_tail_{k}_{par}")
    assert kinds[0] == 0 or len(kinds) == 1 or True
    for k in kinds:
        tail(k, par)
merge_code()
lab("L_idle")
if opt.tq and opt.skew:
    e(f"s_cmp_lt_u32 s{S_P1+2}, {400*4096}")
    e("s_cbranch_scc1 L_idle2")
    e(f"s_add_u32 s{S_T0}, s{S_HOFF}, {CU[1]*4096}")
    e(f"s_add_u32 s{S_P1}, s4, s{S_T0}")
    e(f"s_addc_u32 s{S_P1+1}, s5, 0")
    e(f"s_mov_b32 s{S_P1+2}, {(seqL(1)-1)*4096+256}")
    e(f"s_bfe_u32 s{S_T0}, s{S_W}, {21 | 1 << 16:#x}")
    e(f"s_lshl_b32 s{S_T0}, s{S_T0}, 18")
    e(f"s_add_u32 s{S_T0}, s{S_T0}, {4*0x20000:#x}")
    e(f"s_add_u32 s{S_T1}, s{S_T0}, 0x20000")
    e(f"v_lshrrev_b32 v{V_T0}, 1, v{V_LANE}")
    e(f"v_and_b32 v{V_T1}, 1, v{V_LANE}")
    e(f"v_lshlrev_b32 v{V_T1}, 7, v{V_T1}")
    e(f"v_lshl_add_u32 v{V_T0}, v{V_T0}, 12, v{V_T1}")
    e(f"buffer_load_dword v{V_Q}, v{V_T0}, {sr(S_P1,4)}, s{S_T0} offen")
    e(f"buffer_load_dword v{V_Q+1}, v{V_T0}, {sr(S_P1,4)}, s{S_T1} offen")
    lab("L_idle2")
prog_addr()
e(f"v_mov_b32 v{V_T0}, 0x7fffffff")
if opt.kfirst != 2: e("s_barrier")
e(f"ds_write_b32 v{V_PA}, v{V_T0}")
e(f"ds_write_b32 v{V_PA}, v{V_T0} offset:4")
e("s_waitcnt lgkmcnt(0)")
if touches:
    e(f"s_add_u32 s{S_BASE}, s{S_HOFF}, s{T_SOFF}")
    kv_srds(S_K, S_V, S_BASE, f"s{T_NREC}")
    e(f"s_add_u32 s{S_P1}, s4, s{S_BASE}")
    e(f"s_addc_u32 s{S_P1+1}, s5, 0")
    e(f"s_mov_b32 s{S_P1+2}, s{T_NREC}")
    e(f"v_lshrrev_b32 v{V_T0}, 1, v{V_LANE}")
    e(f"v_and_b32 v{V_T1}, 1, v{V_LANE}")
    e(f"v_lshlrev_b32 v{V_T1}, 7, v{V_T1}")
    e(f"v_lshl_add_u32 v{V_T0}, v{V_T0}, 12, v{V_T1}")
    if opt.tstart >= 0:
        e(f"v_and_b32 v{V_FA}, 3, v{V_LANE}")
        e(f"v_lshlrev_b32 v{V_FA}, 2, v{V_FA}")
        e(f"v_add_u32 v{V_FA}, {ent(opt.tstart)}, v{V_FA}")
        spin("L_tstart", 0, sleep=1)
    for i in range(len(touches)):
        e(f"s_cmp_eq_u32 s{T_N}, {i+1}")
        e(f"s_cbranch_scc1 L_touch_{i}")
    finish()
    for i, lst in enumerate(touches):
        lab(f"L_touch_{i}")
        for k, it in enumerate(lst):
            srd = {"Q": S_P1, "K": S_K, "V": S_V}[it[0]]
            e(f"s_mov_b32 s{S_T0}, {int(it[1:])*0x20000:#x}")
            if k >= opt.tw: e(f"s_waitcnt vmcnt({opt.tw-1})")
            e(f"buffer_load_dword v{V_Q+k}, v{V_T0}, {sr(srd,4)}, s{S_T0} offen")
        finish()
else:
    finish()
lab("L_loaders")
for i in range(1, len(programs)):
    e(f"s_cmp_eq_u32 s{S_J}, {3+i}")
    e(f"s_cbranch_scc1 L_prog_{3+i}")
for i, d in enumerate(programs):
    if d[0] == "L2": loader_two_streams(d, 3+i)
    elif d[0] == "MD": md_program(d, 3+i)
    else: loader_single_stream(d, 3+i)
lab("L_leave")
e(f"s_cmp_eq_u32 s{T_N}, 2")
e("s_cbranch_scc1 L_tail_odd")
e("s_branch L_md_loop" if (opt.md and not opt.fake & 1) else "s_branch L_tail_odd")
if opt.md and opt.mdq:
    lab("L_md_first")
    e(f"s_mov_b32 s{S_LO}, m0")
    e(f"s_mul_i32 s{S_2K}, s{S_J}, {KSLOT}")
    e(f"s_add_u32 m0, s{S_2K}, {QH[0]}")
    e(f"s_lshl_b32 s{S_2K}, s{S_U}, 17")
    dma_pass(S_2K)
    e(f"s_mov_b32 m0, s{S_LO}")
    e("s_nop 0" if opt.mdsync == 2 else "s_waitcnt vmcnt(8)")
    e("s_branch L_md_back")
lab("L_scale_h")
for ks in range(8): qscale(ks, False)
spin("L_spin_h", 0, sleep=1)
e(f"s_bitcmp1_b32 s{T_PK}, 18")
e("s_cbranch_scc0 L_helper_go")
e(f"v_and_b32 v{V_T0}, {1 if opt.w3 else 3}, v{V_LANE}")
e(f"v_mul_u32_u24 v{V_T0}, {G}, v{V_T0}")
e(f"v_add_u32 v{V_T0}, {ent(PROG0)}, v{V_T0}")
lab("L_helper_wait")
bound()
e("s_sleep 1")
e(f"ds_read_b32 v{V_FL}, v{V_T0}")
e("s_waitcnt lgkmcnt(0)")
e(f"v_cmp_gt_i32 vcc, 1, v{V_FL}")
e("s_cbranch_vccnz L_helper_wait")
lab("L_helper_go")
e("s_setprio 0")
e(f"s_bitcmp1_b32 s{T_PK}, 16")
e("s_cbranch_scc0 L_helper_go2")
e(f"s_setprio {max(opt.hprio, 0)}")
lab("L_helper_go2")
start_stamp()
for ks in range(8): e(kread(ks, 0))
e("s_branch L_qk0")
lab("L_init")
e(f"s_bitcmp1_b32 s{T_PK}, 19")
e("s_cbranch_scc1 L_init_shared")
e("s_waitcnt vmcnt(8)")
e(f"ds_write_b32 v{V_SIG}, v{V_THRV} offset:{G}")
e("s_branch L_noinit")
lab("L_init_shared")
e("s_waitcnt vmcnt(0)")
e(f"ds_write_b32 v{V_SIG}, v{V_THRV} offset:{G}")
e(f"s_lshr_b32 s{S_T0}, s{T_MB}, 24")
e(f"s_mul_i32 s{S_T0}, s{S_T0}, {G}")
e(f"s_add_u32 s{S_T0}, s{S_T0}, {ent(PROG0)}")
e(f"v_mov_b32 v{V_T0}, s{S_T0}")
lab("L_init_wait")
bound()
e("s_sleep 1")
e(f"ds_read_b32 v{V_FL}, v{V_T0}")
e("s_waitcnt lgkmcnt(0)")
e(f"v_cmp_gt_i32 vcc, 0, v{V_FL}")
e("s_cbranch_vccnz L_init_wait")
e("s_branch L_noinit")
for tag in stage_spins:
    lab(f"L_stg_{tag}")
    bound()
    e("s_sleep 1")
    e(f"ds_read_b32 v{V_FL}, v{V_CK}")
    e("s_waitcnt lgkmcnt(0)")
    e(f"v_cmp_gt_i32 vcc, s{S_T2}, v{V_FL}")
    e(f"s_cbranch_vccnz L_stg_{tag}")
    e(f"s_branch L_stgback_{tag}")
for site in rare_sites:
    rare(*site)
for site in short_rares:
    short_rare(*site)
if opt.stamps:
    lab("L_stamps")
    e(f"s_load_dwordx2 {sr(S_MASK+6,2)}, s[0:1], 48")
    e("s_waitcnt vmcnt(0)")
    e(f"s_memtime {sr(S_MASK, 2)}")
    e(f"s_getreg_b32 s{S_MASK+2}, hwreg(HW_REG_HW_ID)")
    e(f"s_getreg_b32 s{S_MASK+3}, hwreg(HW_REG_XCC_ID)")
    e(f"s_memrealtime {sr(S_MASK+4, 2)}")
    e("s_waitcnt lgkmcnt(0)")
    e(f"s_lshl_b32 s{S_T0}, s2, 3")
    e(f"s_add_u32 s{S_T0}, s{S_T0}, s{S_U}")
    e(f"s_lshl_b32 s{S_T0}, s{S_T0}, 7")
    if opt.stamps == 2:
        e(f"v_writelane_b32 v{V_LANE}, s100, m0")
        e(f"s_lshl_b32 s{S_T1}, s{S_T0}, 1")
        e(f"s_add_u32 s{S_T1}, s{S_T1}, 0x100000")
        e(f"v_mbcnt_lo_u32_b32 v2, -1, 0")
        e(f"v_mbcnt_hi_u32_b32 v2, -1, v2")
        e(f"v_lshl_add_u32 v0, v2, 2, s{S_T1}")
        e(f"global_store_dword v0, v{V_LANE}, {sr(S_MASK+6,2)}")
    e(f"v_mov_b32 v0, s{S_T0}")
    e("s_mov_b64 exec, 1")
    regs = [S_STAMP+i for i in range(10)] + [S_MASK+i for i in range(6)] + [100, 101]
    for i, r_ in enumerate(regs):
        e(f"v_mov_b32 v2, s{r_}")
        e(f"global_store_dword v0, v2, {sr(S_MASK+6,2)} offset:{4*i}")
lab("L_end")
e("s_endpgm")
out.append(".p2align 6")
out.append(".type L_table,@object")
lab("L_table")
for row in table:
    out.append("    .long " + ", ".join(f"{x & 0xffffffff:#x}" for x in row))
out.append(".size L_table, .-L_table")
if opt.pf:
    out.append(".type L_padding,@object")
    lab("L_padding")
    out.append("    .fill 8192, 4, 0")
    out.append(".size L_padding, .-L_padding")
out.append('.section .rodata,"a"')
out.append(".p2align 6")
out.append(f".amdhsa_kernel {NAME}_kernel")
for x in ("next_free_vgpr 256", "next_free_sgpr 102", "accum_offset 256", "group_segment_fixed_size 0", "kernarg_size 56",
          "user_sgpr_count 2", "user_sgpr_kernarg_segment_ptr 1", "system_sgpr_workgroup_id_x 1"):
    out.append("  .amdhsa_" + x)
out.append(".end_amdhsa_kernel")
i0_, i1_ = out.index("L_pc:"), out.index("L_small:")
nb_ = sum(8 if ("0x" in x or "s_load" in x) else 4 for x in out[i0_+1:i1_] if x and x.startswith("    "))
out[:] = [x.replace("SMALL_OFF", str(nb_)) if x else x for x in out]
out.insert(i1_+1, f".if (L_small - L_pc) != {nb_}\n.error \"table offset\"\n.endif")
for i_, o_ in enumerate(out):
    if o_ and o_.rstrip().endswith("offen lds"):
        isq = f"s[{S_P1}:{S_P1+3}]" in o_
        if (isq and opt.ntq) or (not isq and opt.ntkv):
            out[i_] = o_.replace("offen lds", "offen nt lds")
open(sys.argv[1], "w").write("\n".join(o for o in out if o is not None) + "\n")
```

```python
import sys, struct, math

CU = [0, 289, 520, 939, 1289, 1402, 1666, 1973, 2275]
NAME = "standalone__varlen_attn_packed__ragged"
def f32bits(x):
    return struct.unpack("<I", struct.pack("<f", x))[0]

class Opt:
    stamps = 0
    D4 = 5
    D1 = 2
    slack = 3
    npre4 = 2
    hold = 1
    npre1 = 2
    stflag = "sc1"
    hprio = 1
    lprio = 1
    pf = 1
    budget = 24
    ntq = 0
    skew = 1
    ich = 0
    cs = "000001"
    spf = 0
    kp = 1
    w3 = 3
    tlb = 0
    pkt = 0
    npre3 = 2
    qprio = 0
    fake = 0
    p64 = "000"
    c4 = 2
    t6a10 = 5
    t6b10 = 7
    order = 2
    mdsync = 0
    tq = 1
    pace = 0
    tstart = -1
    tp0 = 3
    hl = "0000"
    hcls = 0
    q4v = 1
    md = 1
    mdq = 1
    side = 0
    tw = 0
    t3 = 1
    str4 = 1
    t5 = "433"
    t6b = 6
    D3 = 4
    D5 = 3
    D6 = 3
    D8 = 3
    cls = "000001"
    mprio = 1
    ftail = 1
    kfirst = 2
    ntkv = 0
opt = Opt()
for a in sys.argv[2:]:
    k, v = a.split("=")
    setattr(opt, k, int(v) if v.lstrip("-").isdigit() and k not in ("cls", "cs", "t5", "hl", "p64") else v)

G = 1040
QSIG = max(0, max([int(c) for c in opt.cls + opt.cs] + [opt.c4 if '1' in opt.p64 else 0]) - 2)
assert QSIG <= 1
KSLOT = 8 * G
VSLOT = 8192
KBASE = 10 * VSLOT
LDS_BYTES = 163840
FBASE = KBASE + 1024
PROG0 = 32
MRG0 = 40
THR = 16384.0
NWG = 256
def kslot(s): return KBASE + s*KSLOT
def vslot(s): return s*VSLOT
def ent(n): return FBASE + n*G

V_FA, V_LANE, V_PA, V_FL = 0, 1, 2, 3
V_KA = 4
V_VA = 8
V_L, V_PS, V_T0, V_T1 = 12, 13, 14, 15
V_NEGM = 16
V_Q = 32
V_K = 64
V_V = 96
V_S = [128, 144]
V_P = [160, 168]
V_E = 176
V_WA = 184
V_RA, V_SA, V_CK, V_X = 188, 189, 190, 191
V_O = 192
V_DMA, V_DMA2, V_SIG, V_THRV, V_POLL, V_PV, V_DL = 64, 65, 66, 67, 68, 69, 70

S_P1, S_K, S_V, S_O = 16, 20, 24, 28
S_MASK = 32
S_K2, S_V2 = 32, 36
T = 64
(T_SOFF, T_NREC, T_P1S, T_P1L, T_PK, T_QOFF, T_QST, T_KB, T_VB, T_FB, T_N, T_NV, T_OST, T_MB, T_MIN, T_MOUT) = range(T, T+16)
S_U, S_J, S_T0, S_T1, S_DK, S_DV = 80, 81, 82, 83, 84, 85
S_KWRAP, S_VWRAP, S_NM1, S_T2, S_THR, S_LO = 86, 87, 14, 15, 3, 98
S_2K, S_2V = 99, 10
S_BASE = 11
S_STAMP = 88

out = []
def e(s): out.append("    " + s)
def lab(s): out.append(s + ":")
def vr(b, n): return f"v[{b}:{b+n-1}]"
def sr(b, n): return f"s[{b}:{b+n-1}]"
def stamp(i):
    if opt.stamps == 5:
        if i in (1, 3): e(f"s_memtime {sr(S_STAMP + 2*i, 2)}")
        return
    if opt.stamps: e(f"{'s_memrealtime' if opt.stamps >= 3 else 's_memtime'} {sr(S_STAMP + 2*i, 2)}")

R_MAIN, R_INIT, R_IDLE, R_L4, R_L1 = 0, 1, 2, 3, 4
def seqL(s): return CU[s+1]-CU[s]
def seqnk(s): return (seqL(s)+31)//32
programs = []
def prog_id(desc):
    if desc not in programs: programs.append(desc)
    return 3 + programs.index(desc)
tails_used = set()
def entry(role, seq, tile=None, b0=0, n=None, slot0=0, f0=0, qst=0, ost=0, lo=0, hi=0, mb=0, ml=0, mi=None, mo=None,
          init=None, prio=0, ownq=True, qsrc=None, lvl1=0, swait=0, thr=None, alone=False):
    L = seqL(seq); nk = seqnk(seq)
    n = nk - b0 if n is None else n
    nv = L - 32*(b0+n-1)
    if opt.fake & 8 and seq == 2: n -= 2
    second = 1 if (init is not None and tile is not None and qsrc is None and ownq) else 0
    if mi is not None or mo is not None: tail = 2
    elif nv <= 8: tail = 0
    else: tail = 1
    if alone and opt.pkt and tail < 2: tail += 3
    if tile is not None: tails_used.add((tail, (n-1) & 1))
    ring = 1 if nk > 10 else 0
    leave = 1 if n == 2 else 0
    pk = role | leave << 20 | second << 6 | ring << 7 | lo << 8 | hi << 11 | (1 << (21 + tail)) | (1 if prio else 0) << 16 | lvl1 << 17 | swait << 18 | (0 if qsrc is None else 1) << 19
    return [CU[seq]*4096, (L-1)*4096+256, (1 if lvl1 else FBASE) if thr is None else thr, 400000, pk, (tile or 0)*0x20000, qst,
            kslot(slot0+b0), vslot(slot0+b0), ent(f0+b0), n, min(nv, 64), ost, mb | (qsrc or 0) << 24,
            0 if mi is None else ent(MRG0+mi), 0 if mo is None else ent(MRG0+mo)]
MLOFF = vslot(1)
QH = [KBASE - (4-k)*KSLOT for k in range(4)]
table = []
touches = []
def T4(seq, t0, nt, touch=None):
    rows = []
    for w in range(4):
        if w < nt:
            if seqnk(seq) > 10:
                rows.append(entry(R_MAIN, seq, tile=t0+w, qst=(QH[w] if opt.q4v else kslot(5+w)), ost=(vslot(9) if w < 2 else kslot(8))+4096*(w & 1), lo=w, hi=w, alone=True))
            else:
                rows.append(entry(R_MAIN, seq, tile=t0+w, qst=kslot(5+w), ost=vslot(0)+4096*w, lo=0, hi=3))
        else:
            if touch and opt.tw:
                touches.append(touch[1]); r_ = entry(R_IDLE, touch[0]); r_[10] = len(touches); rows.append(r_)
            else:
                r_ = entry(R_IDLE, seq); r_[10] = 0; rows.append(r_)
    pid = prog_id(("L4", seqnk(seq), False, None, opt.D4 if seqnk(seq) > 11 else opt.D3))
    for w in range(4):
        rows.append(entry(pid, seq, init=w))
    return rows
def T5(seq, t0):
    rows = [entry(R_MAIN, seq, tile=t0+w, qst=kslot(5+w), ost=vslot(0)+4096*w, lo=0, hi=4) for w in range(4)]
    cnt = [int(c) for c in opt.t5]; nh = len(cnt)
    assert sum(cnt) == seqnk(seq) and cnt[0] >= 3
    pid = prog_id(("L1", seqnk(seq), nh == 4, 4, opt.D5))
    for h in range(nh):
        rows.append(entry(R_INIT if h < 3 else pid, seq, tile=t0+4, b0=sum(cnt[:h]), n=cnt[h], qst=QH[3], ost=kslot(2),
                          lo=0, hi=(3 if h < nh-1 else 4), mb=kslot(0), mi=(h-1 if h else None), mo=(h if h < nh-1 else None), init=h,
                          prio=opt.hprio, qsrc=(4 if h else None), lvl1=(1 if h < nh-1 else 0), swait=(1 if h == 0 else 0)))
    if nh == 3: rows.append(entry(pid, seq, init=3))
    return rows
def T8(seq):
    pid = prog_id(("MD", seqnk(seq))) if opt.md else prog_id(("L4", seqnk(seq), True, None, opt.D8))
    if opt.md:
        rows = [entry(R_MAIN, seq, tile=w, qst=kslot(5+w), ost=(kslot(8)+4096*w if w < 3 else vslot(0)), lo=(w if w < 3 else 0), hi=(w if w < 3 else 7), alone=True) for w in range(4)]
    else:
        rows = [entry(R_MAIN, seq, tile=w, qst=kslot(5+w), ost=vslot(8)+4096*w, lo=w, hi=w) for w in range(4)]
    for h in range(4):
        r_ = entry(pid, seq, tile=4+h, qst=QH[h], ost=(vslot(8)+4096*h if opt.md else (kslot(8)+4096*h if h < 3 else vslot(0))),
                   lo=(4+h if h < 3 or opt.md else 0), hi=4+h, init=h,
                   ownq=bool(opt.md and not opt.mdq), prio=opt.md)
        if opt.md: r_[4] |= 1 << 20
        rows.append(r_)
    return rows
def T6(seq):
    nk = seqnk(seq)
    pid = prog_id(("L1", nk, True, 5, opt.D6))
    rows = [entry(R_MAIN, seq, tile=w, qst=kslot(5+w), ost=vslot(0)+4096*w, lo=0, hi=5) for w in range(4)]
    na, nb = (5, opt.t6b) if nk == 9 else ((opt.t6a10, opt.t6b10) if nk == 10 else (4, 5))
    spec = [(4, 0, na, None, 0, 0), (5, 0, nb, None, 1, 1), (4, na, nk-na, 0, None, 0), (5, nb, nk-nb, 1, None, 1)]
    for h, (tile, b0, n, mi, mo, buf) in enumerate(spec):
        rows.append(entry(R_INIT if h < 3 else pid, seq, tile=tile, b0=b0, n=n, qst=QH[2+buf], ost=vslot(9 if nk <= 9 else 2)+4096*buf,
                          lo=0, hi=5, mb=kslot(2*buf), mi=mi, mo=mo, init=h, prio=opt.hprio, qsrc=(h+2 if h >= 2 else None),
                          lvl1=(1 if buf == 0 else 0), swait=(1 if h < 2 else 0), thr=(FBASE+2*G if (h >= 2 and nk > 9) else None)))
    return rows
def T34(seqA, seqB, tB0):
    qa = [vslot(1) + k*KSLOT for k in range(4)]
    rows = [entry(R_MAIN, seqA, tile=w, slot0=6, f0=16, qst=kslot(2+w), ost=vslot(0)+4096*w, lo=4, hi=6) for w in range(4)]
    pid = prog_id(("L2", seqA, seqB))
    for h in range(3):
        rows.append(entry(R_INIT, seqB, tile=tB0+h, qst=vslot(2)+h*KSLOT, ost=vslot(2)+4096*h, lo=4, hi=6, init=h, thr=FBASE+2*G, alone=True))
    rows.append(entry(pid, seqB, init=3))
    return rows
def small(seq, t0, nt, two=0):
    return CU[seq] | seqL(seq) << 12 | t0 << 21 | nt << 25 | two << 28
TL8 = "K2 V0 K3 V1 Q4 Q5 Q6 Q7 K4 V2 K5 V3 K6 V4 K7 V5 V6 V7".split()
TL5 = "Q4 Q5 K3 V1 Q6 Q7 K4 V2 K5 V3 K6 V4 K7 V5 K8 V6 V7".split()
def own_touch(nk, par, mod=2):
    o = []
    for p_ in range(opt.tp0, nk):
        if p_ % mod == par:
            if p_+2 < nk: o.append(f"K{p_+2}")
            o.append(f"V{p_}")
    return o
jobs = {"s2a": (lambda: T4(2,0,4), small(2,0,4)), "s2b": (lambda: T4(2,4,4), small(2,4,4)), "s2c": (lambda: T4(2,8,3,(2,own_touch(14,0))), small(2,8,3)),
        "s2d": (lambda: T4(2,11,3,(2,own_touch(14,1))), small(2,11,3)), "T8": (lambda: T8(1), small(1,0,4) | (1 << 31 if opt.md and opt.mdq else 0)),
        "s6a": (lambda: T5(6,0), small(6,0,4)), "s6b": (lambda: T5(6,5), small(6,5,4)), "s7a": (lambda: T5(7,0), small(7,0,4)),
        "s7b": (lambda: T5(7,5), small(7,5,4)), "s0a": (lambda: T5(0,0), small(0,0,4)), "s0b": (lambda: T5(0,5), small(0,5,4)),
        "T6": (lambda: T6(5), small(5,0,4)), "T34": (lambda: T34(4,5,6), small(4,0,4,1)),
        "s3a": (lambda: T4(3,0,4), small(3,0,4)), "s3b": (lambda: T4(3,4,4), small(3,4,4)), "s3c": (lambda: T4(3,8,3,(3,own_touch(11,1)) if opt.t3 else None), small(3,8,3))}
if opt.fake & 1: jobs["T8"] = ((lambda: T6(1)), small(1,0,4))
if opt.fake & 2: jobs["T6"] = ((lambda: T4(5,0,4)), small(5,0,4))
for i_, sq in enumerate((6, 7, 0)):
    if opt.fake & 4:
        jobs[f"s{sq}a"] = ((lambda sq=sq: T4(sq,0,4)), small(sq,0,4))
        jobs[f"s{sq}b"] = ((lambda sq=sq: T4(sq,5,4)), small(sq,5,4))
    if opt.p64[i_] == "1":
        jobs[f"s{sq}a"] = ((lambda sq=sq: T6(sq)), small(sq,0,4))
        jobs[f"s{sq}b"] = ((lambda sq=sq: T4(sq,6,4)), small(sq,6,4) | opt.c4 << 29)
JOBORDER = ["s2a", "s2b", "s2c", "s2d", "T8", "s6a", "s6b",  "s0a", "s0b", "T6", "T34", "s3a", "s3b", "s3c",  "s7a", "s7b"]
if opt.order == 1: JOBORDER = ["T8", "s2a", "s2b", "s6a", "s6b", "s2c", "s2d",  "T6", "T34", "s0a", "s0b", "s3a", "s3b", "s3c",  "s7a", "s7b"]
if opt.order == 2: JOBORDER = ["T8", "s2a", "s2b", "s2c", "s2d", "s6a", "s6b",  "T6", "s0a", "s0b", "T34", "s3a", "s3b", "s3c",  "s7a", "s7b"]
GP = ["T8", "s2a", "s2b", "s2c", "s2d", "s3a", "s3b", "s3c"]
GQ = ["T6", "s6a", "s6b", "s7a", "s7b", "s0a", "s0b", "T34"]
if opt.skew == 2: JOBORDER = GP + GQ
if opt.skew == 3: JOBORDER = GQ + GP
stab = []; slowcls = []
for j in JOBORDER:
    k_ = {"s2": 0, "T8": 1, "s6": 2, "s7": 2, "s0": 2, "T6": 3, "T3": 4, "s3": 5}[j[:2]]
    w_ = jobs[j][1] | int(opt.cls[k_]) << 29
    if k_ == 2 and opt.w3 and opt.p64["670".index(j[1])] == "0": w_ = jobs[j][1] | 1 << 25 | min(opt.w3, 3) << 29
    hs_ = int(opt.cs[k_])
    if k_ == 2: hs_ = (w_ >> 29) & 3
    table += jobs[j][0](); stab.append(w_); slowcls.append(hs_)
assert len(table) == 128

def mfma(d, a, b, c):
    cs = "0" if c is None else vr(c, 16)
    return f"v_mfma_f32_32x32x16_bf16 {vr(d,16)}, {vr(a,4)}, {vr(b,4)}, {cs}"
def kread(ks, off):
    return f"ds_read_b128 {vr(V_K+4*ks,4)}, v{V_KA+(ks>>1)} offset:{off+(ks&1)*32}"
def vread(i, jj, off, base=V_V):
    kg, dt = i >> 2, i & 3
    return f"ds_read_b64_tr_b16 {vr(base+4*i+2*jj,2)}, v{V_VA+dt} offset:{off+jj*2048+kg*4096}"
def E(r): return V_E + (r & 7)

def softmax_list(par, R=16, mask=False):
    S, P = V_S[par], V_P[par]
    def ex(r):
        o = []
        if mask:
            if r == 0: o.append(f"v_cndmask_b32 v{S}, v{V_T1}, v{S}, {sr(S_MASK,2)}")
            if r+1 < R: o.append(f"v_cndmask_b32 v{S+r+1}, v{V_T1}, v{S+r+1}, {sr(S_MASK+2*r+2,2)}")
        o.append(f"v_exp_f32 v{E(r)}, v{S+r}")
        return o
    ops = ex(0) + ex(1)
    for r in range(2, R+1):
        if r < R: ops += ex(r)
        q = r - 1
        if q == 1: ops.append(f"v_add_f32 v{V_PS}, v{E(0)}, v{E(1)}")
        else: ops.append(f"v_add_f32 v{V_PS}, v{V_PS}, v{E(q)}")
        if q & 1: ops.append(f"v_cvt_pk_bf16_f32 v{P+(q>>1)}, v{E(q-1)}, v{E(q)}")
    return ops

def cost(x):
    if x.startswith("v_exp") or x.startswith("v_rcp") or x.startswith("v_permlane"): return 8
    if x.startswith("s_cbranch"): return 12
    return 4

rare_sites = []
def itstamp():
    if opt.stamps == 2:
        e(f"v_writelane_b32 v{V_LANE}, s100, m0")
        e("s_add_u32 m0, m0, 1")
        e("s_memtime s[100:101]")

def iteration(par, do_pv, koff, voff, foff, tag, first=False, misc=None, last_ops=None, extra=None, prog=None):
    itstamp()
    mf = []
    for i in range(8):
        mf.append(("qk", i))
        if do_pv: mf.append(("pv", i))
    n = len(mf)
    fixed = [[] for _ in range(n)]
    for g, (kind, i) in enumerate(mf):
        if kind == "qk":
            fixed[g].append(kread(i, koff))
            if not do_pv: fixed[g] += [vread(i, 0, voff), vread(i, 1, voff)]
        else:
            fixed[g] += [vread(i, 0, voff), vread(i, 1, voff)]
    fgap = 4 if n == 16 else 3
    fixed[fgap].append(f"ds_read_b32 v{V_FL}, v{V_FA} offset:{foff}")
    if prog: fixed[8 if n == 16 else 4].append(prog)
    q = []
    if not first: q.append(f"v_add_f32 v{V_L}, v{V_L}, v{V_PS}")
    q += softmax_list(par)
    if n != 16: q.append("WAITFLAG")
    q.append(f"v_cmp_lt_f32 vcc, v{V_FL}, v{V_PS}")
    if first: q.append(f"v_cmp_gt_f32 {sr(S_DK,2)}, s{S_LO}, v{V_PS}")
    misc = [(g_, x) for g_, ops in (misc or []) for x in ops]
    budget = opt.budget if n == 16 else (sum(cost(x) for x in q) + sum(4*len(f) for f in fixed) + n - 1)//n + 4
    nl = 0
    for g, (kind, i) in enumerate(mf):
        if n == 16:
            if g == 0: e("s_waitcnt lgkmcnt(12)")
            if g == 8: e("s_waitcnt lgkmcnt(5)")
        else:
            if g == 0: e("s_waitcnt lgkmcnt(4)")
            if g == 2: e("s_waitcnt lgkmcnt(6)")
        if kind == "qk":
            e(mfma(V_S[1-par], V_K+4*i, V_Q+4*i, V_NEGM if i == 0 else V_S[1-par]))
        else:
            kg, dt = i >> 2, i & 3
            e(mfma(V_O+16*dt, V_V+4*i, V_P[1-par]+4*kg, V_O+16*dt))
        used = 0
        for x in fixed[g]:
            e(x); used += 4
        if g > fgap: nl += len(fixed[g])
        for x in (extra or {}).get(g, []):
            e(x)
            assert not x.startswith("ds_")
        nw = 4 if (n == 16 and g+1 in (8, 16)) else 0
        lastgap = g == n-1
        while q and (used + cost(q[0]) + nw <= budget or lastgap):
            x = q.pop(0)
            if x == "WAITFLAG": x = f"s_waitcnt lgkmcnt({min(nl, 15)})"
            e(x); used += cost(x)
        while misc and misc[0][0] <= g and (used + cost(misc[0][1]) + nw <= budget or lastgap):
            x = misc.pop(0)[1]
            assert not x.startswith("ds_")
            e(x); used += cost(x)
    assert not q and not misc
    if first: e(f"s_or_b64 vcc, vcc, {sr(S_DK,2)}")
    e(f"s_cbranch_vccnz L_rare_{tag}")
    lab(f"L_back_{tag}")
    for x in (last_ops or []): e(x)
    rare_sites.append((tag, par, foff - (2*G if tag.startswith("B") else 0), first, 16))

def blockmax(S, t0, t1, R=16):
    if R == 16:
        e(f"v_max3_f32 v{t0}, v{S}, v{S+1}, v{S+2}")
        e(f"v_max3_f32 v{t1}, v{S+3}, v{S+4}, v{S+5}")
        e(f"v_max3_f32 v{t0}, v{t0}, v{S+6}, v{S+7}")
        e(f"v_max3_f32 v{t1}, v{t1}, v{S+8}, v{S+9}")
        e(f"v_max3_f32 v{t0}, v{t0}, v{S+10}, v{S+11}")
        e(f"v_max3_f32 v{t1}, v{t1}, v{S+12}, v{S+13}")
        e(f"v_max3_f32 v{t0}, v{t0}, v{S+14}, v{S+15}")
        e(f"v_max_f32 v{t0}, v{t0}, v{t1}")
    else:
        e(f"v_max3_f32 v{t0}, v{S}, v{S+1}, v{S+2}")
        e(f"v_max_f32 v{t0}, v{t0}, v{S+3}")
    e(f"v_mov_b32 v{t1}, v{t0}")
    e("s_nop 1")
    e(f"v_permlane32_swap_b32 v{t0}, v{t1}")
    e("s_nop 1")
    e(f"v_max_f32 v{t0}, v{t0}, v{t1}")

def bound():
    e(f"s_cselect_b32 s{T_SOFF}, 1, 0")
    e(f"s_sub_u32 s{T_P1L}, s{T_P1L}, 1")
    e("s_cbranch_scc1 L_end")
    e(f"s_cmp_lg_u32 s{T_SOFF}, 0")

def spin(label, foff, sleep=0):
    lab(label)
    bound()
    if sleep: e(f"s_sleep {sleep}")
    e(f"ds_read_b32 v{V_FL}, v{V_FA} offset:{foff}")
    e("s_waitcnt lgkmcnt(0)")
    e(f"v_cmp_gt_f32 vcc, 0, v{V_FL}")
    e(f"s_cbranch_vccnz {label}")

def rare(tag, par, foff, first, R, pprev=False):
    S, Sn = V_S[par], V_S[1-par]
    lab(f"L_rare_{tag}")
    if foff is not None:
        e(f"v_cmp_lt_f32 vcc, s{S_THR}, v{V_PS}")
        if first:
            e("s_nop 1")
            e(f"s_or_b64 vcc, vcc, {sr(S_DK,2)}")
        e(f"s_cbranch_vccz L_spin_{tag}")
    e("s_nop 15")
    e("s_nop 7")
    blockmax(S, V_E, V_E+1, R)
    if first:
        e(f"v_mov_b32 v{V_T0}, v{V_E}")
    else:
        e(f"v_max_f32 v{V_T0}, 0, v{V_E}")
        e(f"v_sub_f32 v{V_E+1}, 0, v{V_T0}")
        e(f"v_exp_f32 v{V_E+1}, v{V_E+1}")
    for r in range(16):
        e(f"v_sub_f32 v{S+r}, v{S+r}, v{V_T0}")
        if foff is not None: e(f"v_sub_f32 v{Sn+r}, v{Sn+r}, v{V_T0}")
        e(f"v_sub_f32 v{V_NEGM+r}, v{V_NEGM+r}, v{V_T0}")
    if not first:
        for r in range(64):
            e(f"v_mul_f32 v{V_O+r}, v{V_O+r}, v{V_E+1}")
        e(f"v_mul_f32 v{V_L}, v{V_L}, v{V_E+1}")
    for x in softmax_list(par, R): e(x)
    e("s_nop 1")
    if foff is not None: spin(f"L_spin_{tag}", foff)
    e(f"s_branch L_back_{tag}")

def finish():
    if opt.stamps == 4: stamp(2)
    e("s_branch L_stamps" if opt.stamps else "s_endpgm")

stage_spins = []
V_WB = V_NEGM + 8
def norm_ops(dt, pk=False):
    o = V_O+16*dt; ops = []
    for rq in range(4):
        if pk: ops += [f"v_pk_mul_f32 {vr(o+4*rq+2*k,2)}, {vr(o+4*rq+2*k,2)}, {vr(V_L,2)} op_sel_hi:[1,0]" for k in range(2)]
        else: ops += [f"v_mul_f32 v{o+4*rq+r}, v{o+4*rq+r}, v{V_L}" for r in range(4)]
        t = V_E + 2*rq
        ops.append(f"v_cvt_pk_bf16_f32 v{t}, v{o+4*rq}, v{o+4*rq+1}")
        ops.append(f"v_cvt_pk_bf16_f32 v{t+1}, v{o+4*rq+2}, v{o+4*rq+3}")
        ops.append(f"ds_write_b64 v{(V_WB if dt & 1 else V_WA)+rq}, {vr(t,2)}")
    return ops
def rd_ops(p):
    return [f"ds_read_b128 {vr(V_Q+16*p+4*i,4)}, v{V_RA} offset:{i*1024}" for i in range(4)]
ST_SOFF = [T_QOFF, S_T1, S_T0, S_DK]
def st_op(p, i):
    fl = opt.stflag.replace('+', ' ')
    return f"buffer_store_dwordx4 {vr(V_Q+16*p+4*i,4)}, v{V_SA}, {sr(S_O,4)}, s{ST_SOFF[i]} offen offset:{128*p} {fl}".rstrip()
def store_prep():
    return [f"s_add_u32 s{ST_SOFF[i]}, s{T_QOFF}, {i*0x8000:#x}" for i in (1, 2, 3)] + \
           [f"v_xor_b32 v{V_WB+rq}, 64, v{V_WA+rq}" for rq in range(4)]
def store_stream(pk):
    n1 = norm_ops(1)[:7] + norm_ops(1, pk)[(5 if pk else 7):]
    s = norm_ops(0) + n1 + rd_ops(0)
    n2, n3 = norm_ops(2, pk), norm_ops(3, pk)
    u = 5 if pk else 7
    if pk: s += n2[:3*u] + ["s_waitcnt lgkmcnt(3)", st_op(0, 0)] + n2[3*u:] + [st_op(0, 1)] + n3[:u] + [st_op(0, 2)] + n3[u:2*u] + [st_op(0, 3)] + n3[2*u:]
    else: s += n2[:14] + ["s_waitcnt lgkmcnt(2)", st_op(0, 0)] + n2[14:21] + [st_op(0, 1)] + n2[21:] + [st_op(0, 2)] + n3[:7] + [st_op(0, 3)] + n3[7:]
    s += rd_ops(1)
    for i in range(4):
        s += [f"s_waitcnt lgkmcnt({3-i})", st_op(1, i)]
    return s

def tail(kind, par):
    tag = f"T{kind}{par}"
    lab(f"L_tail_{kind}_{par}")
    if opt.stamps == 4: stamp(1)
    itstamp()
    pk = kind >= 3
    if pk: kind -= 3
    if kind == 0 and opt.ftail:
        return tail_short(par, tag, pk)
    voff = VSLOT if par else 2*VSLOT
    R = 4 if kind == 0 else 16
    nkg = 1 if kind == 0 else 2
    a = lambda i: mfma(V_O+16*(i & 3), V_V+4*i, V_P[1-par]+4*(i >> 2), V_O+16*(i & 3))
    f = lambda i: mfma(V_O+16*(i & 3), V_K+4*i, V_P[par]+4*(i >> 2), V_O+16*(i & 3))
    reads = [vread(i, jj, voff, V_K) for i in range(4*nkg) for jj in range(2)]
    q = [f"v_add_f32 v{V_L}, v{V_L}, v{V_PS}"] + softmax_list(par, R, mask=True)
    if kind == 0: q += [f"v_mov_b64 {vr(V_P[par]+2,2)}, 0"]
    q += [f"v_cmp_lt_f32 vcc, s{S_THR}, v{V_PS}"]
    per = (sum(cost(x) for x in q) + 4*len(reads) + 7)//8 + 4
    per = max(per, 24)
    e("s_waitcnt lgkmcnt(12)")
    nrd = 0
    for g in range(8):
        if g == 4:
            e(f"s_waitcnt lgkmcnt({nrd})")
        e(a(g)); used = 0
        if g == 4:
            e(f"ds_write_b32 v{V_PA}, v{V_FA}")
            e(f"ds_read_b32 v{V_FL}, v{V_CK}")
            used += 8
        for _ in range(2):
            if reads:
                e(reads.pop(0)); used += 4; nrd += 1
        while q and (used + cost(q[0]) <= per or g == 7):
            x = q.pop(0); e(x); used += cost(x)
    e(f"s_cbranch_vccnz L_rare_{tag}")
    lab(f"L_back_{tag}")
    rare_sites.append((tag, par, None, False, R))
    e(f"v_add_f32 v{V_L}, v{V_L}, v{V_PS}")
    e("s_waitcnt lgkmcnt(0)")
    e(f"v_cmp_gt_i32 vcc, s{S_T2}, v{V_FL}")
    fin = [i + 4*k for i in range(4) for k in range(nkg)]
    if kind == 2:
        for i in fin: e(f(i))
        e(f"s_cbranch_vccnz L_stg_{tag}")
        lab(f"L_stgback_{tag}")
        stage_spins.append(tag)
        e("s_branch L_merge")
        return
    e(f"v_mov_b32 v{V_T0}, v{V_L}")
    for _ in range(nkg): e(f(fin.pop(0)))
    e("s_nop 0")
    e(f"v_permlane32_swap_b32 v{V_L}, v{V_T0}")
    e(f"s_cbranch_vccnz L_stg_{tag}")
    lab(f"L_stgback_{tag}")
    stage_spins.append(tag)
    e(f(fin.pop(0)))
    e(f"v_add_f32 v{V_L}, v{V_L}, v{V_T0}")
    e(f"v_rcp_f32 v{V_L}, v{V_L}")
    e(f(fin.pop(0)))
    for x in store_prep(): e(x)
    cnt = 6
    for x in store_stream(pk):
        if x.startswith("NEED"): continue
        if fin and cnt >= 6:
            e(f(fin.pop(0))); cnt = 0
        e(x); cnt += 1
    itstamp()
    finish()

short_rares = []
def tail_short(par, tag, pk):
    voff = VSLOT if par else 2*VSLOT
    a = lambda i: mfma(V_O+16*(i & 3), V_V+4*i, V_P[1-par]+4*(i >> 2), V_O+16*(i & 3))
    f = lambda i: mfma(V_O+16*i, V_K+4*i, V_P[par], V_O+16*i)
    rd = [vread(i, jj, voff, V_K) for i in range(4) for jj in range(2)]
    sm = softmax_list(par, 4, mask=True)
    e("s_waitcnt lgkmcnt(12)")
    e(a(0))
    for x in rd[:4]: e(x)
    e(f"v_add_f32 v{V_L}, v{V_L}, v{V_PS}")
    for x in sm[:5]: e(x)
    e("s_waitcnt lgkmcnt(4)")
    e(a(4))
    e(f"ds_write_b32 v{V_PA}, v{V_FA}")
    e(f"ds_read_b32 v{V_FL}, v{V_CK}")
    for x in rd[4:]: e(x)
    for x in sm[5:9]: e(x)
    e(a(1))
    for x in sm[9:]: e(x)
    e(f"v_mov_b64 {vr(V_P[par]+2,2)}, 0")
    e(f"v_cmp_lt_f32 vcc, s{S_THR}, v{V_PS}")
    e(a(5))
    e(f"v_add_f32 v{V_T0}, v{V_L}, v{V_PS}")
    e(f"v_add_f32 v{V_X}, v{V_L}, v{V_PS}")
    e(f"s_cbranch_vccnz L_rare_{tag}")
    short_rares.append((tag, par))
    e("s_waitcnt lgkmcnt(4)")
    e(f(0))
    e(f"v_permlane32_swap_b32 v{V_T0}, v{V_X}")
    e(f"v_cmp_gt_i32 vcc, s{S_T2}, v{V_FL}")
    e(f(1))
    e(f"v_add_f32 v{V_L}, v{V_T0}, v{V_X}")
    e(f"v_rcp_f32 v{V_L}, v{V_L}")
    e(f"s_cbranch_vccnz L_stg_{tag}")
    lab(f"L_stgback_{tag}")
    stage_spins.append(tag)
    e(a(2))
    for x in store_prep(): e(x)
    e("s_waitcnt lgkmcnt(0)")
    rest = [a(6), f(2), a(3), a(7), f(3)]
    cnt = 5
    for x in store_stream(pk):
        if x.startswith("NEED"): continue
        if rest and cnt >= 5:
            e(rest.pop(0)); cnt = 0
        e(x); cnt += 1
    itstamp()
    finish()
def short_rare(tag, par):
    a = lambda i: mfma(V_O+16*(i & 3), V_V+4*i, V_P[1-par]+4*(i >> 2), V_O+16*(i & 3))
    f = lambda i: mfma(V_O+16*i, V_K+4*i, V_P[par], V_O+16*i)
    lab(f"L_rare_{tag}")
    for i in (2, 6, 3, 7): e(a(i))
    rare(tag + "x", par, None, False, 4)
    lab(f"L_back_{tag}x")
    e("s_waitcnt lgkmcnt(0)")
    for i in range(4): e(f(i))
    e(f"v_add_f32 v{V_L}, v{V_L}, v{V_PS}")
    e(f"v_mov_b32 v{V_T0}, v{V_L}")
    lab(f"L_stg_{tag}x")
    bound()
    e(f"ds_read_b32 v{V_FL}, v{V_CK}")
    e("s_waitcnt lgkmcnt(0)")
    e(f"v_cmp_gt_i32 vcc, s{S_T2}, v{V_FL}")
    e(f"s_cbranch_vccnz L_stg_{tag}x")
    e(f"v_permlane32_swap_b32 v{V_L}, v{V_T0}")
    e("s_nop 1")
    e(f"v_add_f32 v{V_L}, v{V_L}, v{V_T0}")
    e("s_branch L_store")

def merge_code():
    lab("L_merge")
    MA, ML = V_KA, V_KA+1
    if opt.mprio:
        e(f"s_cmp_eq_u32 s{T_MOUT}, 0")
        e("s_cbranch_scc1 L_merge_keep")
        e("s_setprio 0")
        lab("L_merge_keep")
    e(f"v_mov_b32 v{V_T1}, v{V_L}")
    e(f"v_mbcnt_lo_u32_b32 v{V_T0}, -1, 0")
    e(f"v_mbcnt_hi_u32_b32 v{V_T0}, -1, v{V_T0}")
    e(f"s_and_b32 s{T_MB}, s{T_MB}, 0xffffff")
    e(f"v_permlane32_swap_b32 v{V_L}, v{V_T1}")
    e(f"v_lshl_add_u32 v{MA}, v{V_T0}, 4, s{T_MB}")
    e(f"s_cmp_eq_u32 s{T_MB}, {KBASE}")
    e(f"s_cselect_b32 s{S_T0}, {ent(48)}, {ent(16)}") if False else None
    e(f"s_cselect_b32 s{S_T0}, {32*G}, 0")
    e(f"v_add_f32 v{V_L}, v{V_L}, v{V_T1}")
    e(f"s_add_u32 s{S_T0}, s{S_T0}, {ent(16)}")
    e(f"v_bfe_u32 v{ML}, v{V_T0}, 1, 4")
    e(f"v_mul_u32_u24 v{ML}, {G}, v{ML}")
    e(f"v_and_b32 v{V_T0}, 1, v{V_T0}")
    e(f"v_lshl_add_u32 v{ML}, v{V_T0}, 3, v{ML}")
    e(f"v_add_u32 v{ML}, s{S_T0}, v{ML}")
    e(f"s_cmp_eq_u32 s{T_MIN}, 0")
    e("s_cbranch_scc1 L_merge_out")
    e(f"v_mov_b32 v{V_FA}, s{T_MIN}")
    spin("L_merge_wait", 0, sleep=1)
    e(f"ds_read_b64 {vr(V_E,2)}, v{ML}")
    for i in range(12):
        e(f"ds_read_b128 {vr(V_K+4*i,4)}, v{MA} offset:{i*G}")
    e("s_waitcnt lgkmcnt(12)")
    e(f"v_cmp_neq_f32 vcc, v{V_NEGM}, v{V_E}")
    for i in range(12, 16):
        e(f"ds_read_b128 {vr(V_K+4*i,4)}, v{MA} offset:{i*G}")
    e("s_cbranch_vccnz L_merge_slow")
    lab("L_merge_add")
    e(f"v_add_f32 v{V_L}, v{V_L}, v{V_E+1}")
    e(f"s_cmp_lg_u32 s{T_MOUT}, 0")
    for i in range(4):
        e(f"s_waitcnt lgkmcnt({12-4*i})")
        for r in range(16*i, 16*i+16):
            e(f"v_add_f32 v{V_O+r}, v{V_O+r}, v{V_K+r}")
    e("s_cbranch_scc1 L_merge_out")
    lab("L_store")
    e(f"v_rcp_f32 v{V_L}, v{V_L}")
    for x in store_prep(): e(x)
    for x in store_stream(False):
        if not x.startswith("NEED"): e(x)
    itstamp()
    finish()
    lab("L_merge_slow")
    e(f"v_min_f32 v{V_E+2}, v{V_NEGM}, v{V_E}")
    e(f"v_sub_f32 v{V_E+4}, v{V_E+2}, v{V_NEGM}")
    e(f"v_sub_f32 v{V_E+6}, v{V_E+2}, v{V_E}")
    e(f"v_exp_f32 v{V_E+4}, v{V_E+4}")
    e(f"v_exp_f32 v{V_E+6}, v{V_E+6}")
    e(f"v_mov_b32 v{V_NEGM}, v{V_E+2}")
    e(f"v_mul_f32 v{V_L}, v{V_L}, v{V_E+4}")
    e(f"v_mul_f32 v{V_E+1}, v{V_E+1}, v{V_E+6}")
    e("s_waitcnt lgkmcnt(0)")
    for r in range(64):
        e(f"v_mul_f32 v{V_O+r}, v{V_O+r}, v{V_E+4}")
        e(f"v_mul_f32 v{V_K+r}, v{V_K+r}, v{V_E+6}")
    e("s_branch L_merge_add")
    lab("L_merge_out")
    e(f"v_mov_b32 v{V_E}, v{V_NEGM}")
    e(f"v_mov_b32 v{V_E+1}, v{V_L}")
    e(f"v_mov_b32 v{V_FA}, s{T_MOUT}")
    e(f"v_mov_b32 v{V_T0}, 1.0")
    e(f"ds_write_b64 v{ML}, {vr(V_E,2)}")
    for i in range(16):
        e(f"ds_write_b128 v{MA}, {vr(V_O+4*i,4)} offset:{i*G}")
    e(f"ds_write_b32 v{V_FA}, v{V_T0}")
    e("s_waitcnt lgkmcnt(0)")
    itstamp()
    finish()

def setup_compute():
    e(f"s_mov_b32 s{S_O+2}, s{T_NREC}" if not opt.fake & 16 else f"s_mov_b32 s{S_O+2}, 0")
    e(f"s_mov_b32 s{S_O+3}, 0x20000")
    e(f"s_add_u32 s{S_O}, s12, s{S_BASE}")
    e(f"s_addc_u32 s{S_O+1}, s13, 0")
    e(f"v_and_b32 v{V_T0}, 3, v{V_LANE}")
    e(f"v_lshl_add_u32 v{V_FA}, v{V_T0}, 2, s{T_FB}")
    e(f"v_bfe_u32 v{V_T1}, v{V_LANE}, 2, 3")
    e(f"v_mul_u32_u24 v{V_T1}, {G}, v{V_T1}")
    e(f"v_lshl_add_u32 v{V_T1}, v{V_T0}, 8, v{V_T1}")
    e(f"v_lshrrev_b32 v{V_L}, 5, v{V_LANE}")
    e(f"v_lshl_add_u32 v{V_T1}, v{V_L}, 4, v{V_T1}")
    for t in range(4):
        e(f"v_xor_b32 v{V_KA+t}, {t}, v{V_T0}")
        e(f"v_lshl_add_u32 v{V_KA+t}, v{V_KA+t}, 6, v{V_T1}")
        e(f"v_add_u32 v{V_E+t}, s{T_QST}, v{V_KA+t}")
        e(f"v_add_u32 v{V_KA+t}, s{T_KB}, v{V_KA+t}")
    e(f"v_lshrrev_b32 v{V_T1}, 3, v{V_LANE}")
    e(f"v_and_b32 v{V_T0}, 7, v{V_LANE}")
    e(f"v_lshlrev_b32 v{V_PS}, 4, v{V_T0}")
    e(f"v_lshl_add_u32 v{V_SA}, v{V_T1}, 12, v{V_PS}")
    e(f"v_xor_b32 v{V_T1}, v{V_T1}, v{V_LANE}")
    e(f"v_lshl_add_u32 v{V_RA}, v{V_T1}, 4, s{T_OST}")
    e(f"v_and_b32 v{V_T1}, 31, v{V_LANE}")
    e(f"v_lshl_add_u32 v{V_T1}, v{V_T1}, 7, s{T_OST}")
    e(f"v_lshl_add_u32 v{V_T1}, v{V_L}, 3, v{V_T1}")
    for rq in range(4):
        e(f"v_xor_b32 v{V_WA+rq}, {rq}, v{V_T0}")
        e(f"v_lshl_add_u32 v{V_WA+rq}, v{V_WA+rq}, 4, v{V_T1}")
    e(f"v_bfe_u32 v{V_T0}, v{V_LANE}, 2, 2")
    e(f"v_lshl_add_u32 v{V_T1}, v{V_L}, 2, v{V_T0}")
    e(f"v_lshl_add_u32 v{V_T1}, v{V_T1}, 8, s{T_VB}")
    e(f"v_bfe_u32 v{V_PS}, v{V_LANE}, 4, 1")
    e(f"v_lshl_add_u32 v{V_T1}, v{V_PS}, 5, v{V_T1}")
    e(f"v_and_b32 v{V_PS}, 3, v{V_LANE}")
    e(f"v_lshl_add_u32 v{V_T1}, v{V_PS}, 3, v{V_T1}")
    for dt in range(4):
        e(f"v_xor_b32 v{V_VA+dt}, {dt}, v{V_T0}")
        e(f"v_lshl_add_u32 v{V_VA+dt}, v{V_VA+dt}, 6, v{V_T1}")
    e(f"s_bfe_u32 s{S_T0}, s{T_PK}, {8 | 3 << 16:#x}")
    e(f"s_bfe_u32 s{S_T1}, s{T_PK}, {11 | 3 << 16:#x}")
    e(f"v_and_b32 v{V_CK}, 7, v{V_LANE}")
    e(f"v_max_u32 v{V_CK}, s{S_T0}, v{V_CK}")
    e(f"v_min_u32 v{V_CK}, s{S_T1}, v{V_CK}")
    e(f"v_mul_u32_u24 v{V_CK}, {G}, v{V_CK}")
    e(f"v_add_u32 v{V_CK}, {ent(PROG0)}, v{V_CK}")
    e(f"v_lshlrev_b32 v{V_T0}, 2, v{V_L}")
    e(f"v_sub_u32 v{V_T0}, s{T_NV}, v{V_T0}")
    for r in range(16):
        e(f"v_cmp_lt_i32 {sr(S_MASK+2*r,2)}, {(r & 3) + 8*(r >> 2)}, v{V_T0}")
    for r in range(0, 64, 2): e(f"v_mov_b64 {vr(V_O+r,2)}, 0")
    for r in range(0, 16, 2): e(f"v_mov_b64 {vr(V_NEGM+r,2)}, 0")
    e(f"v_mov_b32 v{V_L}, 0")
    e(f"v_mov_b32 v{V_T1}, 0xff800000")
    e(f"v_mov_b32 v{V_X}, 1")
    e(f"s_mov_b32 s{S_LO}, {f32bits(1.0/THR):#x}")
    e(f"s_mov_b32 s{S_THR}, {f32bits(THR):#x}")
    e(f"s_bitcmp1_b32 s{T_PK}, 7")
    e(f"s_cselect_b32 s{S_KWRAP}, 6, 0")
    e(f"s_cselect_b32 s{S_VWRAP}, 8, 0")
    e(f"s_mov_b32 s{S_2K}, {2*KSLOT}")
    e(f"s_mov_b32 s{S_2V}, {2*VSLOT}")
    e(f"s_mov_b32 s{S_J}, 2")
    e(f"s_sub_u32 s{S_NM1}, s{T_N}, 1")
    e(f"s_mov_b32 s{S_T2}, s{T_P1S}")

def prog_addr():
    e(f"s_mul_i32 s{S_T0}, s{S_U}, {G}")
    e(f"s_add_u32 s{S_T0}, s{S_T0}, {ent(PROG0)}")
    e(f"v_mov_b32 v{V_PA}, s{S_T0}")

def q_read():
    for ks in range(8):
        e(f"ds_read_b128 {vr(V_Q+4*ks,4)}, v{V_E+(ks>>1)} offset:{(ks&1)*32}")

CSCALE = math.log2(math.e) / math.sqrt(128.0)
def qscale(ks, pk=True):
    tb = V_S[1] + 8*(ks & 1)
    for k in range(4):
        r = V_Q+4*ks+k
        e(f"v_lshlrev_b32 v{tb+2*k}, 16, v{r}")
        e(f"v_and_b32 v{tb+2*k+1}, {f's{S_T0}' if pk else '0xffff0000'}, v{r}")
    for k in range(4):
        if pk:
            e(f"v_pk_mul_f32 {vr(tb+2*k,2)}, {vr(tb+2*k,2)}, {sr(S_DK,2)}")
        else:
            e(f"v_mul_f32 v{tb+2*k}, {f32bits(CSCALE):#x}, v{tb+2*k}")
            e(f"v_mul_f32 v{tb+2*k+1}, {f32bits(CSCALE):#x}, v{tb+2*k+1}")
    for k in range(4):
        e(f"v_cvt_pk_bf16_f32 v{V_Q+4*ks+k}, v{tb+2*k}, v{tb+2*k+1}")

def flag_init():
    e(f"v_mul_u32_u24 v{V_T0}, {G}, v{V_LANE}")
    e(f"v_add_u32 v{V_T0}, {FBASE}, v{V_T0}")
    for k in range(4): e(f"v_mov_b32 v{V_V+k}, -1.0")
    e(f"ds_write_b128 v{V_T0}, {vr(V_V,4)}")

def init_signal_regs(f0):
    e(f"s_and_b32 s{S_T0}, s{S_U}, 3")
    e(f"s_lshl_b32 s{S_T0}, s{S_T0}, 2")
    if f0 is None:
        e(f"s_cmp_lt_u32 s{S_U}, 4")
        e(f"s_cselect_b32 s{S_T1}, {16*G}, 0")
        e(f"s_add_u32 s{S_T0}, s{S_T0}, s{S_T1}")
    e(f"s_add_u32 s{S_T0}, s{S_T0}, {FBASE}")
    e(f"v_mov_b32 v{V_SIG}, s{S_T0}")
    e(f"v_mov_b32 v{V_THRV}, {f32bits(THR):#x}")

def kv_srds(sk, sv, base_s, nrec):
    for srd, p in ((sk, 6), (sv, 8)):
        e(f"s_add_u32 s{srd}, s{p}, s{base_s}")
        e(f"s_addc_u32 s{srd+1}, s{p+1}, 0")
        e(f"s_mov_b32 s{srd+2}, {nrec}")
        e(f"s_mov_b32 s{srd+3}, 0x20000")

class Loader:
    def __init__(self, name, quarter):
        self.pace = 0
        self.name = name; self.quarter = quarter; self.issued = []; self.npoll = 0; self.seen = {}
    def poll(self, lo, hi, thr, word=0):
        key = (lo, hi, word)
        if self.seen.get(key, -1) >= thr: return
        self.seen[key] = thr
        l_ = f"L_pw_{self.name}_{self.npoll}"; self.npoll += 1
        e(f"v_and_b32 v{V_POLL}, 7, v{V_LANE}")
        e(f"v_max_u32 v{V_POLL}, {lo}, v{V_POLL}")
        e(f"v_min_u32 v{V_POLL}, {hi}, v{V_POLL}")
        e(f"v_mul_u32_u24 v{V_POLL}, {G}, v{V_POLL}")
        e(f"v_add_u32 v{V_POLL}, {ent(PROG0)}, v{V_POLL}")
        e(f"s_mov_b32 s{S_T0}, {thr}")
        lab(l_)
        e(f"ds_read_b32 v{V_PV}, v{V_POLL} offset:{4*word}")
        e("s_waitcnt lgkmcnt(0)")
        e(f"v_cmp_gt_i32 vcc, s{S_T0}, v{V_PV}")
        e(f"s_cbranch_vccz {l_}_ok")
        e("s_sleep 1")
        bound()
        e(f"s_branch {l_}")
        lab(f"{l_}_ok")
    def block(self, tag, srd, b, lds, stride):
        if self.quarter:
            wreg = S_DK if stride == G else S_DV
            e(f"s_add_u32 m0, s{wreg}, {lds}")
            e(f"s_mov_b32 s{S_T1}, {b*0x20000:#x}")
            e(f"buffer_load_dwordx4 v{V_DMA}, {sr(srd,4)}, s{S_T1} offen lds")
            e(f"s_add_u32 m0, s{wreg}, {lds+4*stride}")
            e(f"s_sleep {self.pace}" if self.pace else "s_nop 0")
            e(f"buffer_load_dwordx4 v{V_DMA2}, {sr(srd,4)}, s{S_T1} offen lds")
            if self.pace: e(f"s_sleep {self.pace}")
            self.issued += [tag]*2
        else:
            for g in range(8):
                e(f"s_mov_b32 m0, {lds+g*stride}")
                e(f"s_mov_b32 s{S_T1}, {b*0x20000+g*0x4000:#x}")
                e(f"buffer_load_dwordx4 v{V_DMA}, {sr(srd,4)}, s{S_T1} offen lds")
            self.issued += [tag]*8
    def wait(self, tag):
        last = max(i for i, t in enumerate(self.issued) if t == tag)
        n = len(self.issued)-1-last
        assert n <= 63
        e(f"s_waitcnt vmcnt({n})")

def loader_single_stream(desc, pid):
    kind, nk = desc[0], desc[1]
    quarter = kind == "L4"
    late = desc[2]
    D = desc[4]
    ld = Loader(f"{kind}_{nk}_{pid}", quarter)
    lab(f"L_prog_{pid}")
    if opt.lprio: e(f"s_setprio {opt.lprio}")
    ld.issued += ["i1"]*4 + ["i2"]*4
    qsrc = desc[3] if late else None
    if not quarter: e(f"v_mov_b32 v{V_DMA}, v{V_DL}")
    ring = nk > 10
    ks = lambda b: b & 7 if ring else b
    vs = lambda b: (((b-1) & 7) + 1) if (ring and b > 8) else b
    hi = (7 if late else 3) if quarter else 6
    vq = (7 if desc[3] == 5 else {10: 8, 8: 5}.get(nk, 99)) if (late or not quarter) else 99
    def req(p):
        lv = []
        b = p+2
        def level(j):
            if j <= 0: return (0, 3, 1, 0, 0)
            if j & 1: return (0, 3, FBASE+(j-1)*G, j+opt.slack, 1)
            return (0, 3, FBASE+(j-2)*G, j+opt.slack, 0)
        if b < nk:
            if ks(b) != b: lv.append(level(b-9))
            elif b >= 5 and not (ring and opt.q4v): lv.append((0, 2 if (b < 8 and opt.w3) else 3, 0, max(QSIG, opt.w3-2) if b >= 8 else QSIG, 0))
        if vs(p) != p: lv.append(level(p-7))
        elif p >= vq: lv.append((4, hi, 0, 2, 0))
        elif p >= 5 and ring and opt.q4v: lv.append((0, 3, 0, QSIG, 0))
        return lv
    nxt = [1]
    def pairs_upto(p, sig):
        while nxt[0] <= min(p, nk-1):
            r = req(nxt[0])
            if any(x[3] > sig for x in r): break
            for x in r: ld.poll(x[0], x[1], x[2], x[4])
            p_ = nxt[0]
            if p_+2 < nk: ld.block(p_, S_K, p_+2, kslot(ks(p_+2)), G)
            ld.block(p_, S_V, p_, vslot(vs(p_)), 1024)
            nxt[0] += 1
    chunks = []
    side = opt.side == 1 or (opt.side == 2 and quarter)
    if late:
        k0 = len(out); setup_compute(); prog_addr(); body = out[k0:]; del out[k0:]
        cut = next(i for i, x in enumerate(body) if "s_bfe_u32" in x)
        chunks = [body[:cut], body[cut:]]
        if side:
            cut = max(i for i, x in enumerate(body) if f"s{T_KB}," in x) + 1
            chunks = [body[:cut] + body[-3:] + [f"    v_mov_b32 v{V_X}, 0"], body[cut:-3]]
    pairs_upto((opt.npre3 if nk == 11 else opt.npre4) if quarter else opt.npre1, -1)
    ld.wait("i2")
    e(f"ds_write_b32 v{V_SIG}, v{V_THRV} offset:{G}")
    stamp(3)
    if not quarter:
        e(f"v_and_b32 v{V_SIG}, 3, v{V_LANE}")
        e(f"v_lshlrev_b32 v{V_SIG}, 2, v{V_SIG}")
        e(f"v_add_u32 v{V_SIG}, {FBASE}, v{V_SIG}")
    if late and qsrc is None:
        e(f"s_mov_b32 s{S_T0}, s{T_QOFF}")
        e(f"s_mov_b32 m0, s{T_QST}")
        dma_pass(S_T0)
        ld.issued += ["q"]*8
    pairs_upto(D, 0)
    if late: out.extend(chunks[0])
    ld.pace = opt.pace
    for j in range(1, nk):
        assert nxt[0] > j
        ld.wait(j)
        e(f"ds_write_b32 v{V_SIG}, v{V_THRV} offset:{(j+1)*G}")
        if late and j == 2:
            if qsrc is None: ld.wait("q")
            else: ld.poll(qsrc, qsrc, 0)
            q_read()
            e("s_waitcnt lgkmcnt(0)")
            e(f"ds_write_b32 v{V_PA}, v{V_X if side else V_L}")
        pairs_upto(j+D, j)
        if late and j == 1 and not side: out.extend(chunks[1])
        if late and 2 <= j <= 5 and not side:
            qscale(2*j-4, False); qscale(2*j-3, False)
    if late and side:
        e("s_setprio 0")
        out.extend(chunks[1])
        e("s_branch L_scale_h")
    elif late:
        e("s_branch L_spin_h" if quarter else "s_branch L_helper_go")
    else:
        e("s_waitcnt lgkmcnt(0)")
        stamp(4)
        finish()

def loader_two_streams(desc, pid):
    _, sa, sb = desc
    nka, nkb = seqnk(sa), seqnk(sb)
    ld = Loader("L2", False)
    lab(f"L_prog_{pid}")
    if opt.lprio: e(f"s_setprio {opt.lprio}")
    ld.issued += ["i1"]*4 + ["i2"]*4
    e(f"v_mov_b32 v{V_DMA}, v{V_DL}")
    for k in range(8): e(f"s_mov_b32 s{S_K2+k}, s{S_K+k}") if k % 4 != 3 else e(f"s_mov_b32 s{S_K2+k}, 0x20000")
    kv_srds(S_K, S_V, S_BASE, f"s{T_NREC}")
    def pa(p):
        if p+2 < nka: ld.block(("a", p), S_K2, p+2, kslot(6+p+2), G)
        ld.block(("a", p), S_V2, p, vslot(6+p), 1024)
    def pb(p):
        if p+2 >= 6 and p+2 < nkb: ld.poll(0, 3, ent(16))
        if p == 8: ld.poll(0, 3, ent(16)+2*G)
        if p+2 < nkb: ld.block(("b", p), S_K, p+2, kslot(p+2), G)
        ld.block(("b", p), S_V, p, vslot(p), 1024)
    def sig(t, p):
        ld.wait((t, p))
        e(f"ds_write_b32 v{V_SIG}, v{V_THRV} offset:{(p + 1 + (16 if t == 'a' else 0))*G}")
    pa(1)
    ld.wait("i2")
    e(f"ds_write_b32 v{V_SIG}, v{V_THRV} offset:{G}")
    stamp(3)
    e(f"v_and_b32 v{V_SIG}, 3, v{V_LANE}")
    e(f"v_lshlrev_b32 v{V_SIG}, 2, v{V_SIG}")
    e(f"v_add_u32 v{V_SIG}, {FBASE}, v{V_SIG}")
    pa(2); pa(3)
    ld.block(("b", -1), S_K, 0, kslot(0), G)
    sig("a", 1)
    ld.block(("b", -1), S_K, 1, kslot(1), G)
    sig("a", 2)
    ld.poll(0, 6, 0)
    pb(0); sig("a", 3)
    pb(1); sig("b", -1)
    pb(2); sig("b", 0)
    pb(3); sig("b", 1)
    pb(4); sig("b", 2)
    pb(5); sig("b", 3)
    pb(6); sig("b", 4)
    pb(7); sig("b", 5)
    pb(8); sig("b", 6); sig("b", 7); sig("b", 8)
    e("s_waitcnt lgkmcnt(0)")
    stamp(4)
    finish()

def md_program(desc, pid):
    nk = desc[1]
    ld = Loader(f"MD_{pid}", True)
    lab(f"L_prog_{pid}")
    if not opt.mdsync: e("s_setprio 1")
    ld.issued += (["i1"]*4 + ["q"]*8 + ["i2"]*4) if opt.mdq else (["i1"]*4 + ["i2"]*4 + ["q"]*8)
    def pair(p):
        if p+2 < nk: ld.block(p, S_K, p+2, kslot(p+2), G)
        ld.block(p, S_V, p, vslot(p), 1024)
    def sig(p):
        ld.wait(p)
        e(f"ds_write_b32 v{V_SIG}, v{V_THRV} offset:{(p+1)*G}")
    pair(1)
    setup_compute(); prog_addr()
    if not opt.mdq:
        ld.wait("i2"); e(f"ds_write_b32 v{V_SIG}, v{V_THRV} offset:{G}")
    ld.wait("q")
    stamp(3)
    q_read()
    e("s_waitcnt lgkmcnt(0)")
    e(f"ds_write_b32 v{V_PA}, v{V_L}")
    pair(2)
    if opt.mdsync:
        e(f"s_mov_b32 s{T_KB}, s{S_DK}")
        e(f"s_mov_b32 s{T_VB}, s{S_DV}")
        e(f"s_mov_b32 s{S_DK}, {f32bits(CSCALE):#x}")
        e(f"s_mov_b32 s{S_DV}, {f32bits(CSCALE):#x}")
        e(f"s_mov_b32 s{S_T0}, 0xffff0000")
        for ks in range(7): qscale(ks)
        e(f"ds_write_b32 v{V_SIG}, v{V_THRV}")
        qscale(7)
        e(f"s_mov_b32 s{S_DK}, s{T_KB}")
        e(f"s_mov_b32 s{S_DV}, s{T_VB}")
        e("s_setprio 1")
        ld.wait("i2"); e(f"ds_write_b32 v{V_SIG}, v{V_THRV} offset:{G}")
    else:
        for ks in range(4): qscale(ks, False)
        if opt.mdq:
            ld.wait("i2"); e(f"ds_write_b32 v{V_SIG}, v{V_THRV} offset:{G}")
        for ks in range(4, 8): qscale(ks, False)
    if QSIG: sig(1)
    ld.poll(0, 7, 0)
    pair(3)
    if not QSIG: sig(1)
    e(f"v_mov_b32 v{V_T1}, v{V_DMA}")
    e(f"v_readfirstlane_b32 s{T_QST}, v{V_SIG}")
    e(f"s_mov_b32 s{T_KB}, s{S_DK}")
    e(f"s_mov_b32 s{T_VB}, s{S_DV}")
    e("s_branch L_spin_h")
    lab(f"L_md_loop")
    kv_srds(S_K, S_V, S_BASE, f"s{T_NREC}")
    e(f"v_mov_b32 v{V_X}, {f32bits(THR):#x}")
    for j in range(1, nk-1):
        ex = {}
        p = j+3
        if j+1 < nk:
            last = max(i for i, t in enumerate(ld.issued) if t == j+1)
            e(f"s_waitcnt vmcnt({len(ld.issued)-1-last})")
            e(f"v_mov_b32 v{V_T0}, s{T_QST}")
            e(f"ds_write_b32 v{V_T0}, v{V_X} offset:{(j+2)*G}")
        if p < nk:
            items = []
            if p+2 < nk: items += [(S_K, T_KB, kslot(p+2), (p+2)*0x20000), (S_K, T_KB, kslot(p+2)+4*G, (p+2)*0x20000+0x10000)]
            items += [(S_V, T_VB, vslot(p), p*0x20000), (S_V, T_VB, vslot(p)+4096, p*0x20000+0x10000)]
            for k, (srd, wreg, lds, so) in enumerate(items):
                ops = [f"s_add_u32 m0, s{wreg}, {lds}", f"s_mov_b32 s{S_T1}, {so:#x}", f"buffer_load_dwordx4 v{V_T1}, {sr(srd,4)}, s{S_T1} offen lds"]
                if opt.stamps == 2: ops = [f"s_mov_b32 s{S_T0}, m0"] + ops + [f"s_mov_b32 m0, s{S_T0}"]
                ex[1+3*k] = ops
                ld.issued.append(p)
        if j & 1:
            ma = [(2+4*t, [f"v_add_u32 v{V_KA+t}, s{S_2K}, v{V_KA+t}"]) for t in range(4)]
            iteration(1, True, 3*KSLOT, VSLOT, 3*G, f"Amd{j}", misc=ma, extra=ex)
        else:
            mb = [(8, [f"v_add_u32 v{V_FA}, {2*G}, v{V_FA}"])]
            mb += [(9+2*t, [f"v_add_u32 v{V_VA+t}, s{S_2V}, v{V_VA+t}"]) for t in range(4)]
            iteration(0, True, 2*KSLOT, 2*VSLOT, 4*G, f"Bmd{j}", misc=mb, extra=ex, prog=f"ds_write_b32 v{V_PA}, v{V_FA}")
    e(f"v_mov_b32 v{V_T1}, 0xff800000")
    e("s_branch L_tail_odd" if (nk-1) & 1 else "s_branch L_tail_even")

hdr = open("cdna_kernels/" + NAME + ".s.ref").read().split("\n")
for line in hdr:
    if line.startswith("; @launch"): break
    out.append(line)
out.append(f"; @launch grid=({NWG},1,1) block=(512,1,1) lds={LDS_BYTES}")
out.append("; job order: " + " ".join(JOBORDER))
out.extend("; " + x if x else ";" for x in """
Varlen attention, written by gen/gen24.py (own generator).  256 workgroups (one per CU) x 8 waves.
 * 16 job slots per head; the fixed cu[] is folded into two tables in this file (L_small, L_table).
 * A compute wave owns 32 query rows: S^T = K Q^T and O^T = V^T P^T with 32x32x16 bf16 MFMA, three-stage software
   pipeline QK(j+1) | softmax(j) | PV(j-1).  Q is pre-scaled by log2(e)/sqrt(128).
 * Softmax stabiliser: the running reference m enters as the C operand of the first QK MFMA.  Every block's row sums
   are checked at run time (upper bound always, lower bound on the first block); when a check fails the wave
   switches to the true running row maximum and rescales O, l and the pending scores (L_rare_*).
 * K/V blocks reach LDS by LDS-DMA from loader waves; producers and consumers meet through flag words kept in
   the padding of the K slots (FULL / progress / merge flags), one barrier only (after the flags are initialised).
 * Extra query tiles are split along the keys over helper waves and merged through LDS (L_merge).
""".strip("\n").split("\n"))
out.append('.amdgcn_target "amdgcn-amd-amdhsa--gfx950"')
out.append(".text")
out.append(f".globl {NAME}_kernel")
out.append(".p2align 8")
out.append(f".type {NAME}_kernel,@function")
lab(f"{NAME}_kernel")
S_W, S_HOFF = S_KWRAP, S_NM1
if opt.stamps == 5: e(f"s_memtime {sr(S_STAMP,2)}")
e("s_load_dwordx4 s[4:7], s[0:1], 0")
e(f"v_lshrrev_b32 v{V_T0}, 6, v0")
e(f"s_getpc_b64 {sr(S_DK,2)}")
lab("L_pc")
for k_ in range(opt.spf):
    e(f"s_load_dword s{T+k_}, {sr(S_DK,2)}, {0x100+0x80*k_:#x}")
if opt.skew >= 2:
    e(f"s_bfe_u32 s{S_T0}, s2, {5 | 3 << 16:#x}")
    e(f"s_and_b32 s{S_T1}, s2, 4")
    e(f"s_lshl_b32 s{S_T1}, s{S_T1}, 1")
    e(f"s_bfe_u32 s{S_HOFF}, s2, {3 | 1 << 16:#x}")
    e(f"s_add_u32 s{S_T0}, s{S_T0}, s{S_T1}")
    e(f"s_lshl_b32 s{S_T0}, s{S_T0}, 2")
elif opt.skew:
    e(f"s_bfe_u32 s{S_T0}, s2, {5 | 3 << 16:#x}")
    e(f"s_bfe_u32 s{S_J}, s2, {2 | 1 << 16:#x}")
    e(f"s_mul_i32 s{S_T1}, s{S_J}, 7")
    e(f"s_bfe_u32 s{S_HOFF}, s2, {3 | 1 << 16:#x}")
    e(f"s_add_u32 s{S_T2}, s{S_HOFF}, 7")
    e(f"s_cmp_eq_u32 s{S_T0}, 7")
    e(f"s_cselect_b32 s{S_T1}, s{S_T2}, s{S_T1}")
    e(f"s_cselect_b32 s{S_HOFF}, s{S_J}, s{S_HOFF}")
    e(f"s_add_u32 s{S_T0}, s{S_T0}, s{S_T1}")
    e(f"s_lshl_b32 s{S_T2}, s{S_T0}, 3")
else:
    e(f"s_lshr_b32 s{S_T0}, s2, 2")
    e(f"s_and_b32 s{S_T0}, s{S_T0}, 60")
assert opt.skew == 1 and opt.str4 and opt.q4v and not (opt.hcls or opt.hl != "0000" or opt.qprio)
S_W1 = S_W + 1
e(f"s_load_dwordx2 {sr(S_W,2)}, {sr(S_DK,2)}, s{S_T2} offset:SMALL_OFF")
e(f"v_readfirstlane_b32 s{S_U}, v{V_T0}")
if opt.ich:
    e(f"s_cmp_eq_u32 s{S_U}, {opt.ich if opt.ich > 1 else 7}")
    e("s_cbranch_scc1 L_ich")
e("s_branch L_go")
out.append(".type L_small,@object")
lab("L_small")
def word1(w, hs):
    nt, two, hold, L = (w >> 25) & 7, (w >> 28) & 1, (w >> 29) & 3, (w >> 12) & 511
    mask = 0xf7 if nt == 5 else 0xf0 | (0 if hold else (1 << nt) - 1)
    masks = 0xf7 if nt == 5 else 0xf0 | (0 if hs else (1 << nt) - 1)
    return mask | (0 if L > 320 else (6 if two else 9)) << 8 | hold << 12 | hs << 14 | (10 if two else 4) << 16 | masks << 24
out.append("    .long " + ", ".join(f"{x:#x}, {word1(x, h_):#x}" for x, h_ in zip(stab, slowcls)))
out.append(".size L_small, .-L_small")
lab("L_go")
if opt.stamps and opt.stamps != 5:
    e("s_memrealtime s[100:101]")
stamp(0)
e(f"v_and_b32 v{V_LANE}, 63, v0")
if opt.pf:
    e(f"s_and_b32 s{S_T1}, s2, 0xf8") if False else None
    e(f"s_bfe_u32 s{S_T1}, s2, {3 | 5 << 16:#x}")
    e(f"v_lshl_add_u32 v{V_T0}, s{S_T1}, 9, v0")
    e(f"v_lshlrev_b32 v{V_T0}, 2, v{V_T0}")
    e(f"global_load_dword v{V_S[0]}, v{V_T0}, {sr(S_DK,2)}")
else:
    e(f"s_lshr_b32 s{S_T1}, s2, 3")
e(f"s_and_b32 s{S_T1}, s{S_T1}, 2")
e(f"s_add_u32 s{S_HOFF}, s{S_HOFF}, s{S_T1}")
e(f"s_lshl_b32 s{S_HOFF}, s{S_HOFF}, 2")
e(f"s_and_b32 s{S_T0}, s2, 3")
e(f"s_add_u32 s{S_HOFF}, s{S_HOFF}, s{S_T0}")
e(f"s_lshl_b32 s{S_HOFF}, s{S_HOFF}, 8")
e(f"v_lshrrev_b32 v{V_T0}, 4, v{V_LANE}")
e(f"v_lshlrev_b32 v{V_T1}, 2, v{V_T0}")
e(f"v_and_b32 v{V_DL}, 15, v{V_LANE}")
e(f"v_xor_b32 v{V_DL}, v{V_DL}, v{V_T1}")
e(f"v_lshlrev_b32 v{V_DL}, 4, v{V_DL}")
e(f"v_lshl_add_u32 v{V_DL}, v{V_T0}, 12, v{V_DL}")
e(f"s_mov_b32 s{S_P1+3}, 0x20000")
A_MS, A_SS, A_N, A_M0, A_SO, A_F1, A_F0, A_B, A_H = range(S_MASK, S_MASK+9)
e(f"s_and_b32 s{S_J}, s{S_U}, 3")
e(f"s_lshr_b32 s{S_T0}, s{S_U}, 2")
e(f"s_lshl_b32 s{S_T1}, s{S_T0}, 1")
e(f"s_lshl_b32 s{A_MS}, {G}, s{S_T1}")
e(f"s_lshl_b32 s{A_SS}, 0x4000, s{S_T1}")
e(f"s_lshr_b32 s{A_N}, 8, s{S_T0}")
e(f"s_mul_i32 s{S_T1}, s{S_T0}, 3")
e(f"s_lshr_b32 s{A_M0}, {KSLOT}, s{S_T1}")
e(f"s_mul_i32 s{A_M0}, s{A_M0}, s{S_J}")
e(f"s_add_u32 s{A_M0}, s{A_M0}, {KBASE-4*KSLOT}")
e(f"s_lshr_b32 s{A_SO}, 0x20000, s{S_T1}")
e(f"s_mul_i32 s{A_SO}, s{A_SO}, s{S_J}")
e(f"s_lshl_b32 s{A_F1}, s{S_T0}, 3")
e(f"s_add_u32 s{A_F1}, s{A_F1}, {8 | 4 << 16:#x}")
SAMEMASK = all((a_ == "0") == (b_ == "0") for a_, b_ in zip(opt.cls, opt.cs))
def slow_sel():
    e(f"s_and_b32 s{S_T0}, s2, 3")
    e(f"s_cmp_eq_u32 s{S_T0}, 1")
    e(f"s_cselect_b32 s{A_H}, 24, 0")
if not SAMEMASK:
    slow_sel()
    e(f"s_add_u32 s{A_B}, s{A_H}, s{S_U}")
e(f"s_cmp_ge_u32 s{S_U}, 4")
e(f"s_cselect_b32 s{A_F0}, 0, {21 | 4 << 16:#x}")
if opt.kp:
    e("s_cbranch_scc0 L_kp")
    e("s_setprio 3")
    lab("L_kp")
e("s_waitcnt lgkmcnt(0)")
stamp(1)
e(f"s_cselect_b64 {sr(S_P1,2)}, s[6:7], s[4:5]")
e(f"s_bfe_u32 s{S_T0}, s{S_W1}, s{A_F1}")
e(f"s_mulk_i32 s{S_T0}, {KSLOT}")
e(f"s_add_u32 m0, s{S_T0}, s{A_M0}")
e(f"s_and_b32 s{S_BASE}, s{S_W}, 0xfff")
e(f"s_lshl_b32 s{S_BASE}, s{S_BASE}, 12")
e(f"s_add_u32 s{S_BASE}, s{S_BASE}, s{S_HOFF}")
e(f"s_add_u32 s{S_P1}, s{S_P1}, s{S_BASE}")
e(f"s_addc_u32 s{S_P1+1}, s{S_P1+1}, 0")
e(f"s_and_b32 s{S_P1+2}, s{S_W}, 0x1ff000")
e(f"s_addk_i32 s{S_P1+2}, {-(4096-256)}")
e(f"s_bfe_u32 s{S_T0}, s{S_W}, s{A_F0}")
e(f"s_lshl_b32 s{S_T0}, s{S_T0}, 17")
e(f"s_add_u32 s{A_SO}, s{A_SO}, s{S_T0}")
e(f"s_bitcmp1_b32 s{S_W1}, s{S_U if SAMEMASK else A_B}")
e("s_cbranch_scc0 L_first_done")
if opt.stamps == 5: e(f"s_memtime {sr(S_STAMP+4,2)}")
lab("L_first")
e(f"buffer_load_dwordx4 v{V_DL}, {sr(S_P1,4)}, s{A_SO} offen lds")
e(f"s_add_u32 m0, m0, s{A_MS}")
e(f"s_add_u32 s{A_SO}, s{A_SO}, s{A_SS}")
e(f"s_sub_u32 s{A_N}, s{A_N}, 1")
e(f"s_cmp_lg_u32 s{A_N}, 0")
e("s_cbranch_scc1 L_first")
if opt.stamps == 5: e(f"s_memtime {sr(S_STAMP+8,2)}")
lab("L_first_done")
if opt.kp: e("s_setprio 0")
e(f"s_cmp_ge_u32 s2, {NWG}")
e("s_cbranch_scc1 L_end")
if opt.stamps == 5: e("s_memrealtime s[100:101]")
e("s_load_dwordx2 s[8:9], s[0:1], 16")
e("s_load_dwordx2 s[12:13], s[0:1], 32")
e(f"s_add_u32 s{S_T2}, s{S_T2}, s{S_U}")
e(f"s_lshl_b32 s{S_T2}, s{S_T2}, 6")
e(f"s_add_u32 s{S_T2}, s{S_T2}, L_table-L_pc")
if SAMEMASK: slow_sel()
flag_init()
e("s_waitcnt lgkmcnt(0)")
e(f"s_load_dwordx16 {sr(T,16)}, {sr(S_DK,2)}, s{S_T2}")
e(f"s_bfe_u32 s{S_T2}, s{S_W}, {28 | 1 << 16:#x}")
e(f"s_lshr_b32 s{A_H}, s{A_H}, 3")
e(f"s_and_b32 s{A_H}, s{A_H}, 2")
e(f"s_add_u32 s{A_H}, s{A_H}, {12 | 2 << 16:#x}")
e(f"s_bfe_u32 s{A_H}, s{S_W1}, s{A_H}")
e("s_barrier")
e(f"s_cmp_ge_u32 s{S_U}, 4")
e("s_cbranch_scc1 L_first_kv")
def dma_pass(soff):
    e(f"s_add_u32 s{S_P1}, s4, s{S_BASE}")
    e(f"s_addc_u32 s{S_P1+1}, s5, 0")
    for i in range(8):
        e(f"buffer_load_dwordx4 v{V_DL}, {sr(S_P1,4)}, s{soff} offen lds")
        if i < 7:
            e(f"s_add_u32 m0, m0, {G}")
            e(f"s_addk_i32 s{soff}, 0x4000")
e(f"s_cmp_lg_u32 s{A_N}, 0")
e("s_cbranch_scc1 L_late_q")
lab("L_q_issued")
e("s_waitcnt lgkmcnt(0)")
e(f"s_mov_b32 s{S_J}, {R_MAIN}")
stamp(2)
e("s_branch L_compute")
lab("L_ich")
e("s_branch L_go")
lab("L_late_q")
e(f"s_bfe_u32 s{S_T0}, s{S_W}, {25 | 3 << 16:#x}")
e(f"s_cmp_ge_u32 s{S_U}, s{S_T0}")
e("s_cbranch_scc1 L_idle")
if opt.w3 > 3:
    e(f"s_cmp_eq_u32 s{S_T0}, 5")
    e(f"s_cselect_b32 s{A_H}, {opt.w3}, s{A_H}")
e(f"s_lshl_b32 s{S_T1}, s{S_T2}, 4")
e(f"s_add_u32 s{S_T0}, s{A_H}, s{S_T1}")
e(f"s_mul_i32 s{S_T0}, s{S_T0}, {G}")
e(f"s_add_u32 s{S_T0}, s{S_T0}, {FBASE-G}")
e(f"v_and_b32 v{V_T0}, 3, v{V_LANE}")
e(f"v_lshl_add_u32 v{V_FA}, v{V_T0}, 2, s{S_T0}")
e("s_waitcnt lgkmcnt(0)")
spin("L_hold", 0, sleep=1)
dma_pass(A_SO)
e("s_branch L_q_issued")
lab("L_first_kv")
e(f"s_mov_b64 {sr(S_K,2)}, {sr(S_P1,2)}")
e(f"s_mov_b32 s{S_K+2}, s{S_P1+2}")
e(f"s_mov_b32 s{S_K+3}, 0x20000")
e(f"s_add_u32 s{S_V}, s8, s{S_BASE}")
e(f"s_addc_u32 s{S_V+1}, s9, 0")
e(f"s_mov_b32 s{S_V+2}, s{S_P1+2}")
e(f"s_mov_b32 s{S_V+3}, 0x20000")
e(f"s_lshl_b32 s{S_T0}, s{S_J}, 14")
e(f"v_add_u32 v{V_DMA}, s{S_T0}, v{V_DL}")
e(f"v_add_u32 v{V_DMA2}, 0x10000, v{V_DMA}")
e(f"s_mul_i32 s{S_DK}, s{S_J}, {G}")
e(f"s_mov_b32 s{S_T1}, 0x40000")
e(f"s_mul_i32 s{S_T0}, s{S_T2}, {16*G}")
e(f"s_lshl_b32 s{S_DV}, s{S_J}, 2")
e(f"s_add_u32 s{S_T0}, s{S_T0}, s{S_DV}")
e(f"s_add_u32 s{S_T0}, s{S_T0}, {FBASE}")
e(f"v_mov_b32 v{V_SIG}, s{S_T0}")
e(f"v_mov_b32 v{V_THRV}, {f32bits(THR):#x}")
e(f"s_lshl_b32 s{S_DV}, s{S_J}, 10")
e(f"s_mul_i32 s{S_T0}, s{S_T2}, {6*VSLOT}")
if opt.md and opt.mdq:
    e(f"s_bitcmp1_b32 s{S_W}, 31")
    e("s_cbranch_scc1 L_md_first")
if opt.hold:
    e("s_waitcnt vmcnt(0)")
    if not opt.mdsync: lab("L_md_back")
    e(f"ds_write_b32 v{V_SIG}, v{V_THRV}")
    if opt.mdsync: lab("L_md_back")
    stamp(2)
e(f"buffer_load_dwordx4 v{V_DMA}, {sr(S_K,4)}, s{S_T1} offen lds")
e(f"s_add_u32 m0, m0, {4*G}")
e("s_nop 0")
e(f"buffer_load_dwordx4 v{V_DMA2}, {sr(S_K,4)}, s{S_T1} offen lds")
e(f"s_add_u32 m0, s{S_T0}, s{S_DV}")
e("s_nop 0")
e(f"buffer_load_dwordx4 v{V_DMA}, {sr(S_V,4)}, 0 offen lds")
e(f"s_add_u32 m0, m0, 4096")
e("s_nop 0")
e(f"buffer_load_dwordx4 v{V_DMA2}, {sr(S_V,4)}, 0 offen lds")
if not opt.hold:
    e("s_waitcnt vmcnt(4)")
    e(f"ds_write_b32 v{V_SIG}, v{V_THRV}")
    stamp(2)
e("s_waitcnt lgkmcnt(0)")
e(f"s_add_u32 s{S_BASE}, s{S_HOFF}, s{T_SOFF}")
e(f"s_and_b32 s{S_J}, s{T_PK}, 15")
e(f"s_bitcmp1_b32 s{T_PK}, 6")
e("s_cbranch_scc0 L_pass_done")
e(f"s_mov_b32 s{S_P1+2}, s{T_NREC}")
e(f"s_mov_b32 s{S_T0}, s{T_QOFF}")
e(f"s_mov_b32 m0, s{T_QST}")
dma_pass(S_T0)
lab("L_pass_done")
e(f"s_cmp_ge_u32 s{S_J}, 3")
e("s_cbranch_scc1 L_loaders")
lab("L_compute")
e(f"s_mov_b32 s{S_DK}, s{S_J}")
setup_compute()
prog_addr()
e(f"s_cmp_lg_u32 s{S_DK}, {R_MAIN}")
e("s_cbranch_scc1 L_init")
if opt.tlb:
    e(f"buffer_load_dword v{V_LANE}, v{V_L}, {sr(S_O,4)}, s{T_QOFF} offen")
    e("s_waitcnt vmcnt(1)")
    e("s_branch L_noinit2")
lab("L_noinit")
e("s_waitcnt vmcnt(0)")
lab("L_noinit2")
stamp(3)
q_read()
e("s_waitcnt lgkmcnt(0)")
e(f"ds_write_b32 v{V_PA}, v{V_L}")
e(f"s_cmp_lg_u32 s{S_DK}, {R_MAIN}")
e("s_cbranch_scc1 L_scale_h")
e(f"s_mov_b32 s{S_DK}, {f32bits(CSCALE):#x}")
e(f"s_mov_b32 s{S_DV}, {f32bits(CSCALE):#x}")
e(f"s_mov_b32 s{S_T0}, 0xffff0000")
for ks in range(5):
    if ks == 4: e(f"ds_read_b32 v{V_FL}, v{V_FA}")
    qscale(ks)
e("s_waitcnt lgkmcnt(0)")
e(f"v_cmp_gt_f32 vcc, 0, v{V_FL}")
qscale(5)
e("s_cbranch_vccz L_back_pre")
spin("L_spin_pre", 0)
lab("L_back_pre")
def start_stamp():
    stamp(4)
    if opt.stamps == 2:
        e("s_mov_b32 m0, 0")
        e("s_memtime s[100:101]")
start_stamp()
for ks in range(8): e(kread(ks, 0))
qscale(6)
qscale(7)
lab("L_qk0")
for ks in range(8):
    if ks == 0: e("s_waitcnt lgkmcnt(0)")
    if ks == 7: e(f"v_cmp_gt_f32 vcc, 0, v{V_FL}")
    e(mfma(V_S[0], V_K+4*ks, V_Q+4*ks, None if ks == 0 else V_S[0]))
    e(kread(ks, 1*KSLOT))
    if ks == 3: e(f"ds_read_b32 v{V_FL}, v{V_FA} offset:{G}")
    if ks == 6: e("s_waitcnt lgkmcnt(3)")
e("s_cbranch_vccz L_back_pre2")
spin("L_spin_pre2", G)
lab("L_back_pre2")
e("s_nop 7")
iteration(0, False, 2*KSLOT, 0, 2*G, "i0", first=True, prog=f"ds_write_b32 v{V_PA}, v{V_X}",
          last_ops=[f"s_bitcmp1_b32 s{T_PK}, 20", "s_cbranch_scc1 L_leave"])
lab("L_loop")
ma = [(0, [f"s_cmp_eq_u32 s{S_J}, s{S_KWRAP}", f"s_cselect_b32 s{S_DK}, {(-6*KSLOT)&0xffffffff:#x}, s{S_2K}"])]
ma += [(2+4*t, [f"v_add_u32 v{V_KA+t}, s{S_DK}, v{V_KA+t}"]) for t in range(4)]
ma.insert(4, (10, [f"s_cmp_eq_u32 s{S_J}, s{S_NM1}"]))
iteration(1, True, 3*KSLOT, VSLOT, 3*G, "A", misc=ma, last_ops=["s_cbranch_scc1 L_tail_even"], prog=f"ds_write_b32 v{V_PA}, v{V_FA} offset:4")
mb = [(0, [f"s_cmp_eq_u32 s{S_J}, s{S_VWRAP}", f"s_cselect_b32 s{S_DV}, {(-6*VSLOT)&0xffffffff:#x}, s{S_2V}"]),
      (0, [f"s_add_u32 s{S_J}, s{S_J}, 2", f"s_cmp_eq_u32 s{S_J}, s{T_N}"]),
      (8, [f"v_add_u32 v{V_FA}, {2*G}, v{V_FA}"])]
mb += [(9+2*t, [f"v_add_u32 v{V_VA+t}, s{S_DV}, v{V_VA+t}"]) for t in range(4)]
iteration(0, True, 2*KSLOT, 2*VSLOT, 4*G, "B", misc=mb, last_ops=["s_cbranch_scc0 L_loop"], prog=f"ds_write_b32 v{V_PA}, v{V_FA}")
for par, nm in ((1, "odd"), (0, "even")):
    lab(f"L_tail_{nm}")
    kinds = [k for k in (3, 4, 0, 1, 2) if (k, par) in tails_used]
    for k in kinds[1:]:
        e(f"s_bitcmp1_b32 s{T_PK}, {21 + k}")
        e(f"s_cbranch_scc1 L_tail_{k}_{par}")
    assert kinds[0] == 0 or len(kinds) == 1 or True
    for k in kinds:
        tail(k, par)
merge_code()
lab("L_idle")
if opt.tq and opt.skew:
    e(f"s_cmp_lt_u32 s{S_P1+2}, {400*4096}")
    e("s_cbranch_scc1 L_idle2")
    e(f"s_add_u32 s{S_T0}, s{S_HOFF}, {CU[1]*4096}")
    e(f"s_add_u32 s{S_P1}, s4, s{S_T0}")
    e(f"s_addc_u32 s{S_P1+1}, s5, 0")
    e(f"s_mov_b32 s{S_P1+2}, {(seqL(1)-1)*4096+256}")
    e(f"s_bfe_u32 s{S_T0}, s{S_W}, {21 | 1 << 16:#x}")
    e(f"s_lshl_b32 s{S_T0}, s{S_T0}, 18")
    e(f"s_add_u32 s{S_T0}, s{S_T0}, {4*0x20000:#x}")
    e(f"s_add_u32 s{S_T1}, s{S_T0}, 0x20000")
    e(f"v_lshrrev_b32 v{V_T0}, 1, v{V_LANE}")
    e(f"v_and_b32 v{V_T1}, 1, v{V_LANE}")
    e(f"v_lshlrev_b32 v{V_T1}, 7, v{V_T1}")
    e(f"v_lshl_add_u32 v{V_T0}, v{V_T0}, 12, v{V_T1}")
    e(f"buffer_load_dword v{V_Q}, v{V_T0}, {sr(S_P1,4)}, s{S_T0} offen")
    e(f"buffer_load_dword v{V_Q+1}, v{V_T0}, {sr(S_P1,4)}, s{S_T1} offen")
    lab("L_idle2")
prog_addr()
e(f"v_mov_b32 v{V_T0}, 0x7fffffff")
if opt.kfirst != 2: e("s_barrier")
e(f"ds_write_b32 v{V_PA}, v{V_T0}")
e(f"ds_write_b32 v{V_PA}, v{V_T0} offset:4")
e("s_waitcnt lgkmcnt(0)")
if touches:
    e(f"s_add_u32 s{S_BASE}, s{S_HOFF}, s{T_SOFF}")
    kv_srds(S_K, S_V, S_BASE, f"s{T_NREC}")
    e(f"s_add_u32 s{S_P1}, s4, s{S_BASE}")
    e(f"s_addc_u32 s{S_P1+1}, s5, 0")
    e(f"s_mov_b32 s{S_P1+2}, s{T_NREC}")
    e(f"v_lshrrev_b32 v{V_T0}, 1, v{V_LANE}")
    e(f"v_and_b32 v{V_T1}, 1, v{V_LANE}")
    e(f"v_lshlrev_b32 v{V_T1}, 7, v{V_T1}")
    e(f"v_lshl_add_u32 v{V_T0}, v{V_T0}, 12, v{V_T1}")
    if opt.tstart >= 0:
        e(f"v_and_b32 v{V_FA}, 3, v{V_LANE}")
        e(f"v_lshlrev_b32 v{V_FA}, 2, v{V_FA}")
        e(f"v_add_u32 v{V_FA}, {ent(opt.tstart)}, v{V_FA}")
        spin("L_tstart", 0, sleep=1)
    for i in range(len(touches)):
        e(f"s_cmp_eq_u32 s{T_N}, {i+1}")
        e(f"s_cbranch_scc1 L_touch_{i}")
    finish()
    for i, lst in enumerate(touches):
        lab(f"L_touch_{i}")
        for k, it in enumerate(lst):
            srd = {"Q": S_P1, "K": S_K, "V": S_V}[it[0]]
            e(f"s_mov_b32 s{S_T0}, {int(it[1:])*0x20000:#x}")
            if k >= opt.tw: e(f"s_waitcnt vmcnt({opt.tw-1})")
            e(f"buffer_load_dword v{V_Q+k}, v{V_T0}, {sr(srd,4)}, s{S_T0} offen")
        finish()
else:
    finish()
lab("L_loaders")
for i in range(1, len(programs)):
    e(f"s_cmp_eq_u32 s{S_J}, {3+i}")
    e(f"s_cbranch_scc1 L_prog_{3+i}")
for i, d in enumerate(programs):
    if d[0] == "L2": loader_two_streams(d, 3+i)
    elif d[0] == "MD": md_program(d, 3+i)
    else: loader_single_stream(d, 3+i)
lab("L_leave")
e(f"s_cmp_eq_u32 s{T_N}, 2")
e("s_cbranch_scc1 L_tail_odd")
e("s_branch L_md_loop" if (opt.md and not opt.fake & 1) else "s_branch L_tail_odd")
if opt.md and opt.mdq:
    lab("L_md_first")
    e(f"s_mov_b32 s{S_LO}, m0")
    e(f"s_mul_i32 s{S_2K}, s{S_J}, {KSLOT}")
    e(f"s_add_u32 m0, s{S_2K}, {QH[0]}")
    e(f"s_lshl_b32 s{S_2K}, s{S_U}, 17")
    dma_pass(S_2K)
    e(f"s_mov_b32 m0, s{S_LO}")
    e("s_nop 0" if opt.mdsync == 2 else "s_waitcnt vmcnt(8)")
    e("s_branch L_md_back")
lab("L_scale_h")
for ks in range(8): qscale(ks, False)
spin("L_spin_h", 0, sleep=1)
e(f"s_bitcmp1_b32 s{T_PK}, 18")
e("s_cbranch_scc0 L_helper_go")
e(f"v_and_b32 v{V_T0}, {1 if opt.w3 else 3}, v{V_LANE}")
e(f"v_mul_u32_u24 v{V_T0}, {G}, v{V_T0}")
e(f"v_add_u32 v{V_T0}, {ent(PROG0)}, v{V_T0}")
lab("L_helper_wait")
bound()
e("s_sleep 1")
e(f"ds_read_b32 v{V_FL}, v{V_T0}")
e("s_waitcnt lgkmcnt(0)")
e(f"v_cmp_gt_i32 vcc, 1, v{V_FL}")
e("s_cbranch_vccnz L_helper_wait")
lab("L_helper_go")
e("s_setprio 0")
e(f"s_bitcmp1_b32 s{T_PK}, 16")
e("s_cbranch_scc0 L_helper_go2")
e(f"s_setprio {max(opt.hprio, 0)}")
lab("L_helper_go2")
start_stamp()
for ks in range(8): e(kread(ks, 0))
e("s_branch L_qk0")
lab("L_init")
e(f"s_bitcmp1_b32 s{T_PK}, 19")
e("s_cbranch_scc1 L_init_shared")
e("s_waitcnt vmcnt(8)")
e(f"ds_write_b32 v{V_SIG}, v{V_THRV} offset:{G}")
e("s_branch L_noinit")
lab("L_init_shared")
e("s_waitcnt vmcnt(0)")
e(f"ds_write_b32 v{V_SIG}, v{V_THRV} offset:{G}")
e(f"s_lshr_b32 s{S_T0}, s{T_MB}, 24")
e(f"s_mul_i32 s{S_T0}, s{S_T0}, {G}")
e(f"s_add_u32 s{S_T0}, s{S_T0}, {ent(PROG0)}")
e(f"v_mov_b32 v{V_T0}, s{S_T0}")
lab("L_init_wait")
bound()
e("s_sleep 1")
e(f"ds_read_b32 v{V_FL}, v{V_T0}")
e("s_waitcnt lgkmcnt(0)")
e(f"v_cmp_gt_i32 vcc, 0, v{V_FL}")
e("s_cbranch_vccnz L_init_wait")
e("s_branch L_noinit")
for tag in stage_spins:
    lab(f"L_stg_{tag}")
    bound()
    e("s_sleep 1")
    e(f"ds_read_b32 v{V_FL}, v{V_CK}")
    e("s_waitcnt lgkmcnt(0)")
    e(f"v_cmp_gt_i32 vcc, s{S_T2}, v{V_FL}")
    e(f"s_cbranch_vccnz L_stg_{tag}")
    e(f"s_branch L_stgback_{tag}")
for site in rare_sites:
    rare(*site)
for site in short_rares:
    short_rare(*site)
if opt.stamps:
    lab("L_stamps")
    e(f"s_load_dwordx2 {sr(S_MASK+6,2)}, s[0:1], 48")
    e("s_waitcnt vmcnt(0)")
    e(f"s_memtime {sr(S_MASK, 2)}")
    e(f"s_getreg_b32 s{S_MASK+2}, hwreg(HW_REG_HW_ID)")
    e(f"s_getreg_b32 s{S_MASK+3}, hwreg(HW_REG_XCC_ID)")
    e(f"s_memrealtime {sr(S_MASK+4, 2)}")
    e("s_waitcnt lgkmcnt(0)")
    e(f"s_lshl_b32 s{S_T0}, s2, 3")
    e(f"s_add_u32 s{S_T0}, s{S_T0}, s{S_U}")
    e(f"s_lshl_b32 s{S_T0}, s{S_T0}, 7")
    if opt.stamps == 2:
        e(f"v_writelane_b32 v{V_LANE}, s100, m0")
        e(f"s_lshl_b32 s{S_T1}, s{S_T0}, 1")
        e(f"s_add_u32 s{S_T1}, s{S_T1}, 0x100000")
        e(f"v_mbcnt_lo_u32_b32 v2, -1, 0")
        e(f"v_mbcnt_hi_u32_b32 v2, -1, v2")
        e(f"v_lshl_add_u32 v0, v2, 2, s{S_T1}")
        e(f"global_store_dword v0, v{V_LANE}, {sr(S_MASK+6,2)}")
    e(f"v_mov_b32 v0, s{S_T0}")
    e("s_mov_b64 exec, 1")
    regs = [S_STAMP+i for i in range(10)] + [S_MASK+i for i in range(6)] + [100, 101]
    for i, r_ in enumerate(regs):
        e(f"v_mov_b32 v2, s{r_}")
        e(f"global_store_dword v0, v2, {sr(S_MASK+6,2)} offset:{4*i}")
lab("L_end")
e("s_endpgm")
out.append(".p2align 6")
out.append(".type L_table,@object")
lab("L_table")
for row in table:
    out.append("    .long " + ", ".join(f"{x & 0xffffffff:#x}" for x in row))
out.append(".size L_table, .-L_table")
if opt.pf:
    out.append(".type L_padding,@object")
    lab("L_padding")
    out.append("    .fill 8192, 4, 0")
    out.append(".size L_padding, .-L_padding")
out.append('.section .rodata,"a"')
out.append(".p2align 6")
out.append(f".amdhsa_kernel {NAME}_kernel")
for x in ("next_free_vgpr 256", "next_free_sgpr 102", "accum_offset 256", "group_segment_fixed_size 0", "kernarg_size 56",
          "user_sgpr_count 2", "user_sgpr_kernarg_segment_ptr 1", "system_sgpr_workgroup_id_x 1"):
    out.append("  .amdhsa_" + x)
out.append(".end_amdhsa_kernel")
i0_, i1_ = out.index("L_pc:"), out.index("L_small:")
nb_ = sum(8 if ("0x" in x or "s_load" in x) else 4 for x in out[i0_+1:i1_] if x and x.startswith("    "))
out[:] = [x.replace("SMALL_OFF", str(nb_)) if x else x for x in out]
out.insert(i1_+1, f".if (L_small - L_pc) != {nb_}\n.error \"table offset\"\n.endif")
for i_, o_ in enumerate(out):
    if o_ and o_.rstrip().endswith("offen lds"):
        isq = f"s[{S_P1}:{S_P1+3}]" in o_
        if (isq and opt.ntq) or (not isq and opt.ntkv):
            out[i_] = o_.replace("offen lds", "offen nt lds")
open(sys.argv[1], "w").write("\n".join(o for o in out if o is not None) + "\n")
```

```python
import sys, struct, math

CU = [0, 289, 520, 939, 1289, 1402, 1666, 1973, 2275]
NAME = "standalone__varlen_attn_packed__ragged"
def f32bits(x):
    return struct.unpack("<I", struct.pack("<f", x))[0]

class Opt:
    stamps = 0
    D4 = 4
    D1 = 2
    slack = 3
    npre4 = 0
    hold = 1
    npre1 = 2
    stflag = "sc1"
    hprio = 1
    lprio = 2
    pf = 1
    budget = 24
    ntq = 0
    skew = 1
    lal = -1
    ich = 0
    cs = "000001"
    spf = 0
    kp = 1
    w3 = 3
    tlb = 0
    pkt = 0
    npre3 = 4
    qprio = 0
    fake = 0
    p64 = "000"
    c4 = 2
    t6a10 = 5
    t6b10 = 7
    order = 2
    mdsync = 0
    tq = 1
    pace = 0
    tstart = -1
    tp0 = 3
    hl = "0000"
    hcls = 0
    q4v = 1
    md = 1
    mdq = 1
    side = 0
    tw = 0
    t3 = 1
    str4 = 1
    t5 = "433"
    t6b = 6
    D3 = 4
    D5 = 3
    D6 = 3
    D8 = 3
    cls = "100011"
    mprio = 0
    ftail = 1
    kfirst = 2
    ntkv = 0
opt = Opt()
for a in sys.argv[2:]:
    k, v = a.split("=")
    setattr(opt, k, int(v) if v.lstrip("-").isdigit() and k not in ("cls", "cs", "t5", "hl", "p64") else v)

G = 1040
QSIG = max(0, max([int(c) for c in opt.cls + opt.cs] + [opt.c4 if '1' in opt.p64 else 0]) - 2)
assert QSIG <= 1
KSLOT = 8 * G
VSLOT = 8192
KBASE = 10 * VSLOT
LDS_BYTES = 163840
FBASE = KBASE + 1024
PROG0 = 32
MRG0 = 40
THR = 16384.0
NWG = 256
def kslot(s): return KBASE + s*KSLOT
def vslot(s): return s*VSLOT
def ent(n): return FBASE + n*G

V_FA, V_LANE, V_PA, V_FL = 0, 1, 2, 3
V_KA = 4
V_VA = 8
V_L, V_PS, V_T0, V_T1 = 12, 13, 14, 15
V_NEGM = 16
V_Q = 32
V_K = 64
V_V = 96
V_S = [128, 144]
V_P = [160, 168]
V_E = 176
V_WA = 184
V_RA, V_SA, V_CK, V_X = 188, 189, 190, 191
V_O = 192
V_DMA, V_DMA2, V_SIG, V_THRV, V_POLL, V_PV, V_DL = 64, 65, 66, 67, 68, 69, 70

S_P1, S_K, S_V, S_O = 16, 20, 24, 28
S_MASK = 32
S_K2, S_V2 = 32, 36
T = 64
(T_SOFF, T_NREC, T_P1S, T_P1L, T_PK, T_QOFF, T_QST, T_KB, T_VB, T_FB, T_N, T_NV, T_OST, T_MB, T_MIN, T_MOUT) = range(T, T+16)
S_U, S_J, S_T0, S_T1, S_DK, S_DV = 80, 81, 82, 83, 84, 85
S_KWRAP, S_VWRAP, S_NM1, S_T2, S_THR, S_LO = 86, 87, 14, 15, 3, 98
S_2K, S_2V = 99, 10
S_BASE = 11
S_STAMP = 88

out = []
def e(s): out.append("    " + s)
def lab(s): out.append(s + ":")
def vr(b, n): return f"v[{b}:{b+n-1}]"
def sr(b, n): return f"s[{b}:{b+n-1}]"
def stamp(i):
    if opt.stamps == 5:
        if i in (1, 3): e(f"s_memtime {sr(S_STAMP + 2*i, 2)}")
        return
    if opt.stamps: e(f"{'s_memrealtime' if opt.stamps >= 3 else 's_memtime'} {sr(S_STAMP + 2*i, 2)}")

R_MAIN, R_INIT, R_IDLE, R_L4, R_L1 = 0, 1, 2, 3, 4
def seqL(s): return CU[s+1]-CU[s]
def seqnk(s): return (seqL(s)+31)//32
programs = []
def prog_id(desc):
    if desc not in programs: programs.append(desc)
    return 3 + programs.index(desc)
tails_used = set()
def entry(role, seq, tile=None, b0=0, n=None, slot0=0, f0=0, qst=0, ost=0, lo=0, hi=0, mb=0, ml=0, mi=None, mo=None,
          init=None, prio=0, ownq=True, qsrc=None, lvl1=0, swait=0, thr=None, alone=False):
    L = seqL(seq); nk = seqnk(seq)
    n = nk - b0 if n is None else n
    nv = L - 32*(b0+n-1)
    if opt.fake & 8 and seq == 2: n -= 2
    second = 1 if (init is not None and tile is not None and qsrc is None and ownq) else 0
    if mi is not None or mo is not None: tail = 2
    elif nv <= 8: tail = 0
    else: tail = 1
    if alone and opt.pkt and tail < 2: tail += 3
    if tile is not None: tails_used.add((tail, (n-1) & 1))
    ring = 1 if nk > 10 else 0
    leave = 1 if n == 2 else 0
    pk = role | leave << 20 | second << 6 | ring << 7 | lo << 8 | hi << 11 | (1 << (21 + tail)) | (1 if prio else 0) << 16 | lvl1 << 17 | swait << 18 | (0 if qsrc is None else 1) << 19
    return [CU[seq]*4096, (L-1)*4096+256, (1 if lvl1 else FBASE) if thr is None else thr, 400000, pk, (tile or 0)*0x20000, qst,
            kslot(slot0+b0), vslot(slot0+b0), ent(f0+b0), n, min(nv, 64), ost, mb | (qsrc or 0) << 24,
            0 if mi is None else ent(MRG0+mi), 0 if mo is None else ent(MRG0+mo)]
MLOFF = vslot(1)
QH = [KBASE - (4-k)*KSLOT for k in range(4)]
table = []
touches = []
def T4(seq, t0, nt, touch=None):
    rows = []
    for w in range(4):
        if w < nt:
            if seqnk(seq) > 10:
                rows.append(entry(R_MAIN, seq, tile=t0+w, qst=(QH[w] if opt.q4v else kslot(5+w)), ost=(vslot(9) if w < 2 else kslot(8))+4096*(w & 1), lo=w, hi=w, alone=True))
            else:
                rows.append(entry(R_MAIN, seq, tile=t0+w, qst=kslot(5+w), ost=vslot(0)+4096*w, lo=0, hi=3))
        else:
            if touch and opt.tw:
                touches.append(touch[1]); r_ = entry(R_IDLE, touch[0]); r_[10] = len(touches); rows.append(r_)
            else:
                r_ = entry(R_IDLE, seq); r_[10] = 0; rows.append(r_)
    pid = prog_id(("L4", seqnk(seq), False, None, opt.D4 if seqnk(seq) > 11 else opt.D3))
    for w in range(4):
        rows.append(entry(pid, seq, init=w))
    return rows
def T5(seq, t0):
    rows = [entry(R_MAIN, seq, tile=t0+w, qst=kslot(5+w), ost=vslot(0)+4096*w, lo=0, hi=4) for w in range(4)]
    cnt = [int(c) for c in opt.t5]; nh = len(cnt)
    assert sum(cnt) == seqnk(seq) and cnt[0] >= 3
    pid = prog_id(("L1", seqnk(seq), nh == 4, 4, opt.D5))
    for h in range(nh):
        rows.append(entry(R_INIT if h < 3 else pid, seq, tile=t0+4, b0=sum(cnt[:h]), n=cnt[h], qst=QH[3], ost=kslot(2),
                          lo=0, hi=(3 if h < nh-1 else 4), mb=kslot(0), mi=(h-1 if h else None), mo=(h if h < nh-1 else None), init=h,
                          prio=opt.hprio, qsrc=(4 if h else None), lvl1=(1 if h < nh-1 else 0), swait=(1 if h == 0 else 0)))
    if nh == 3: rows.append(entry(pid, seq, init=3))
    return rows
def T8(seq):
    pid = prog_id(("MD", seqnk(seq))) if opt.md else prog_id(("L4", seqnk(seq), True, None, opt.D8))
    if opt.md:
        rows = [entry(R_MAIN, seq, tile=w, qst=kslot(5+w), ost=(kslot(8)+4096*w if w < 3 else vslot(0)), lo=(w if w < 3 else 0), hi=(w if w < 3 else 7), alone=True) for w in range(4)]
    else:
        rows = [entry(R_MAIN, seq, tile=w, qst=kslot(5+w), ost=vslot(8)+4096*w, lo=w, hi=w) for w in range(4)]
    for h in range(4):
        r_ = entry(pid, seq, tile=4+h, qst=QH[h], ost=(vslot(8)+4096*h if opt.md else (kslot(8)+4096*h if h < 3 else vslot(0))),
                   lo=(4+h if h < 3 or opt.md else 0), hi=4+h, init=h,
                   ownq=bool(opt.md and not opt.mdq), prio=opt.md)
        if opt.md: r_[4] |= 1 << 20
        rows.append(r_)
    return rows
def T6(seq):
    nk = seqnk(seq)
    pid = prog_id(("L1", nk, True, 5, opt.D6))
    rows = [entry(R_MAIN, seq, tile=w, qst=kslot(5+w), ost=vslot(0)+4096*w, lo=0, hi=5) for w in range(4)]
    na, nb = (5, opt.t6b) if nk == 9 else ((opt.t6a10, opt.t6b10) if nk == 10 else (4, 5))
    spec = [(4, 0, na, None, 0, 0), (5, 0, nb, None, 1, 1), (4, na, nk-na, 0, None, 0), (5, nb, nk-nb, 1, None, 1)]
    for h, (tile, b0, n, mi, mo, buf) in enumerate(spec):
        rows.append(entry(R_INIT if h < 3 else pid, seq, tile=tile, b0=b0, n=n, qst=QH[2+buf], ost=vslot(9 if nk <= 9 else 2)+4096*buf,
                          lo=0, hi=5, mb=kslot(2*buf), mi=mi, mo=mo, init=h, prio=opt.hprio, qsrc=(h+2 if h >= 2 else None),
                          lvl1=(1 if buf == 0 else 0), swait=(1 if h < 2 else 0), thr=(FBASE+2*G if (h >= 2 and nk > 9) else None)))
    return rows
def T34(seqA, seqB, tB0):
    qa = [vslot(1) + k*KSLOT for k in range(4)]
    rows = [entry(R_MAIN, seqA, tile=w, slot0=6, f0=16, qst=kslot(2+w), ost=vslot(0)+4096*w, lo=4, hi=6) for w in range(4)]
    pid = prog_id(("L2", seqA, seqB))
    for h in range(3):
        rows.append(entry(R_INIT, seqB, tile=tB0+h, qst=vslot(2)+h*KSLOT, ost=vslot(2)+4096*h, lo=4, hi=6, init=h, thr=FBASE+2*G, alone=True))
    rows.append(entry(pid, seqB, init=3))
    return rows
def small(seq, t0, nt, two=0):
    return CU[seq] | seqL(seq) << 12 | t0 << 21 | nt << 25 | two << 28
TL8 = "K2 V0 K3 V1 Q4 Q5 Q6 Q7 K4 V2 K5 V3 K6 V4 K7 V5 V6 V7".split()
TL5 = "Q4 Q5 K3 V1 Q6 Q7 K4 V2 K5 V3 K6 V4 K7 V5 K8 V6 V7".split()
def own_touch(nk, par, mod=2):
    o = []
    for p_ in range(opt.tp0, nk):
        if p_ % mod == par:
            if p_+2 < nk: o.append(f"K{p_+2}")
            o.append(f"V{p_}")
    return o
jobs = {"s2a": (lambda: T4(2,0,4), small(2,0,4)), "s2b": (lambda: T4(2,4,4), small(2,4,4)), "s2c": (lambda: T4(2,8,3,(2,own_touch(14,0))), small(2,8,3)),
        "s2d": (lambda: T4(2,11,3,(2,own_touch(14,1))), small(2,11,3)), "T8": (lambda: T8(1), small(1,0,4) | (1 << 31 if opt.md and opt.mdq else 0)),
        "s6a": (lambda: T5(6,0), small(6,0,4)), "s6b": (lambda: T5(6,5), small(6,5,4)), "s7a": (lambda: T5(7,0), small(7,0,4)),
        "s7b": (lambda: T5(7,5), small(7,5,4)), "s0a": (lambda: T5(0,0), small(0,0,4)), "s0b": (lambda: T5(0,5), small(0,5,4)),
        "T6": (lambda: T6(5), small(5,0,4)), "T34": (lambda: T34(4,5,6), small(4,0,4,1)),
        "s3a": (lambda: T4(3,0,4), small(3,0,4)), "s3b": (lambda: T4(3,4,4), small(3,4,4)), "s3c": (lambda: T4(3,8,3,(3,own_touch(11,1)) if opt.t3 else None), small(3,8,3))}
if opt.fake & 1: jobs["T8"] = ((lambda: T6(1)), small(1,0,4))
if opt.fake & 2: jobs["T6"] = ((lambda: T4(5,0,4)), small(5,0,4))
for i_, sq in enumerate((6, 7, 0)):
    if opt.fake & 4:
        jobs[f"s{sq}a"] = ((lambda sq=sq: T4(sq,0,4)), small(sq,0,4))
        jobs[f"s{sq}b"] = ((lambda sq=sq: T4(sq,5,4)), small(sq,5,4))
    if opt.p64[i_] == "1":
        jobs[f"s{sq}a"] = ((lambda sq=sq: T6(sq)), small(sq,0,4))
        jobs[f"s{sq}b"] = ((lambda sq=sq: T4(sq,6,4)), small(sq,6,4) | opt.c4 << 29)
JOBORDER = ["s2a", "s2b", "s2c", "s2d", "T8", "s6a", "s6b",  "s0a", "s0b", "T6", "T34", "s3a", "s3b", "s3c",  "s7a", "s7b"]
if opt.order == 1: JOBORDER = ["T8", "s2a", "s2b", "s6a", "s6b", "s2c", "s2d",  "T6", "T34", "s0a", "s0b", "s3a", "s3b", "s3c",  "s7a", "s7b"]
if opt.order == 2: JOBORDER = ["T8", "s2a", "s2b", "s2c", "s2d", "s6a", "s6b",  "T6", "s0a", "s0b", "T34", "s3a", "s3b", "s3c",  "s7a", "s7b"]
GP = ["T8", "s2a", "s2b", "s2c", "s2d", "s3a", "s3b", "s3c"]
GQ = ["T6", "s6a", "s6b", "s7a", "s7b", "s0a", "s0b", "T34"]
if opt.skew == 2: JOBORDER = GP + GQ
if opt.skew == 3: JOBORDER = GQ + GP
stab = []; slowcls = []
for j in JOBORDER:
    k_ = {"s2": 0, "T8": 1, "s6": 2, "s7": 2, "s0": 2, "T6": 3, "T3": 4, "s3": 5}[j[:2]]
    w_ = jobs[j][1] | int(opt.cls[k_]) << 29
    if k_ == 2 and opt.w3 and opt.p64["670".index(j[1])] == "0": w_ = jobs[j][1] | 1 << 25 | min(opt.w3, 3) << 29
    hs_ = int(opt.cs[k_])
    if k_ == 2: hs_ = (w_ >> 29) & 3
    table += jobs[j][0](); stab.append(w_); slowcls.append(hs_)
assert len(table) == 128

def mfma(d, a, b, c):
    cs = "0" if c is None else vr(c, 16)
    return f"v_mfma_f32_32x32x16_bf16 {vr(d,16)}, {vr(a,4)}, {vr(b,4)}, {cs}"
def kread(ks, off):
    return f"ds_read_b128 {vr(V_K+4*ks,4)}, v{V_KA+(ks>>1)} offset:{off+(ks&1)*32}"
def vread(i, jj, off, base=V_V):
    kg, dt = i >> 2, i & 3
    return f"ds_read_b64_tr_b16 {vr(base+4*i+2*jj,2)}, v{V_VA+dt} offset:{off+jj*2048+kg*4096}"
def E(r): return V_E + (r & 7)

def softmax_list(par, R=16, mask=False):
    S, P = V_S[par], V_P[par]
    def ex(r):
        o = []
        if mask:
            if r == 0: o.append(f"v_cndmask_b32 v{S}, v{V_T1}, v{S}, {sr(S_MASK,2)}")
            if r+1 < R: o.append(f"v_cndmask_b32 v{S+r+1}, v{V_T1}, v{S+r+1}, {sr(S_MASK+2*r+2,2)}")
        o.append(f"v_exp_f32 v{E(r)}, v{S+r}")
        return o
    ops = ex(0) + ex(1)
    for r in range(2, R+1):
        if r < R: ops += ex(r)
        q = r - 1
        if q == 1: ops.append(f"v_add_f32 v{V_PS}, v{E(0)}, v{E(1)}")
        else: ops.append(f"v_add_f32 v{V_PS}, v{V_PS}, v{E(q)}")
        if q & 1: ops.append(f"v_cvt_pk_bf16_f32 v{P+(q>>1)}, v{E(q-1)}, v{E(q)}")
    return ops

def cost(x):
    if x.startswith("v_exp") or x.startswith("v_rcp") or x.startswith("v_permlane"): return 8
    if x.startswith("s_cbranch"): return 12
    return 4

rare_sites = []
def itstamp():
    if opt.stamps == 2:
        e(f"v_writelane_b32 v{V_LANE}, s100, m0")
        e("s_add_u32 m0, m0, 1")
        e("s_memtime s[100:101]")

def iteration(par, do_pv, koff, voff, foff, tag, first=False, misc=None, last_ops=None, extra=None, prog=None):
    itstamp()
    mf = []
    for i in range(8):
        mf.append(("qk", i))
        if do_pv: mf.append(("pv", i))
    n = len(mf)
    fixed = [[] for _ in range(n)]
    for g, (kind, i) in enumerate(mf):
        if kind == "qk":
            fixed[g].append(kread(i, koff))
            if not do_pv: fixed[g] += [vread(i, 0, voff), vread(i, 1, voff)]
        else:
            fixed[g] += [vread(i, 0, voff), vread(i, 1, voff)]
    fgap = 4 if n == 16 else 3
    fixed[fgap].append(f"ds_read_b32 v{V_FL}, v{V_FA} offset:{foff}")
    if prog: fixed[8 if n == 16 else 4].append(prog)
    q = []
    if not first: q.append(f"v_add_f32 v{V_L}, v{V_L}, v{V_PS}")
    q += softmax_list(par)
    if n != 16: q.append("WAITFLAG")
    q.append(f"v_cmp_lt_f32 vcc, v{V_FL}, v{V_PS}")
    if first: q.append(f"v_cmp_gt_f32 {sr(S_DK,2)}, s{S_LO}, v{V_PS}")
    misc = [(g_, x) for g_, ops in (misc or []) for x in ops]
    budget = opt.budget if n == 16 else (sum(cost(x) for x in q) + sum(4*len(f) for f in fixed) + n - 1)//n + 4
    nl = 0
    for g, (kind, i) in enumerate(mf):
        if n == 16:
            if g == 0: e("s_waitcnt lgkmcnt(12)")
            if g == 8: e("s_waitcnt lgkmcnt(5)")
        else:
            if g == 0: e("s_waitcnt lgkmcnt(4)")
            if g == 2: e("s_waitcnt lgkmcnt(6)")
        if kind == "qk":
            e(mfma(V_S[1-par], V_K+4*i, V_Q+4*i, V_NEGM if i == 0 else V_S[1-par]))
        else:
            kg, dt = i >> 2, i & 3
            e(mfma(V_O+16*dt, V_V+4*i, V_P[1-par]+4*kg, V_O+16*dt))
        used = 0
        for x in fixed[g]:
            e(x); used += 4
        if g > fgap: nl += len(fixed[g])
        for x in (extra or {}).get(g, []):
            e(x)
            assert not x.startswith("ds_")
        nw = 4 if (n == 16 and g+1 in (8, 16)) else 0
        lastgap = g == n-1
        while q and (used + cost(q[0]) + nw <= budget or lastgap):
            x = q.pop(0)
            if x == "WAITFLAG": x = f"s_waitcnt lgkmcnt({min(nl, 15)})"
            e(x); used += cost(x)
        while misc and misc[0][0] <= g and (used + cost(misc[0][1]) + nw <= budget or lastgap):
            x = misc.pop(0)[1]
            assert not x.startswith("ds_")
            e(x); used += cost(x)
    assert not q and not misc
    if first: e(f"s_or_b64 vcc, vcc, {sr(S_DK,2)}")
    e(f"s_cbranch_vccnz L_rare_{tag}")
    lab(f"L_back_{tag}")
    for x in (last_ops or []): e(x)
    rare_sites.append((tag, par, foff - (2*G if tag.startswith("B") else 0), first, 16))

def blockmax(S, t0, t1, R=16):
    if R == 16:
        e(f"v_max3_f32 v{t0}, v{S}, v{S+1}, v{S+2}")
        e(f"v_max3_f32 v{t1}, v{S+3}, v{S+4}, v{S+5}")
        e(f"v_max3_f32 v{t0}, v{t0}, v{S+6}, v{S+7}")
        e(f"v_max3_f32 v{t1}, v{t1}, v{S+8}, v{S+9}")
        e(f"v_max3_f32 v{t0}, v{t0}, v{S+10}, v{S+11}")
        e(f"v_max3_f32 v{t1}, v{t1}, v{S+12}, v{S+13}")
        e(f"v_max3_f32 v{t0}, v{t0}, v{S+14}, v{S+15}")
        e(f"v_max_f32 v{t0}, v{t0}, v{t1}")
    else:
        e(f"v_max3_f32 v{t0}, v{S}, v{S+1}, v{S+2}")
        e(f"v_max_f32 v{t0}, v{t0}, v{S+3}")
    e(f"v_mov_b32 v{t1}, v{t0}")
    e("s_nop 1")
    e(f"v_permlane32_swap_b32 v{t0}, v{t1}")
    e("s_nop 1")
    e(f"v_max_f32 v{t0}, v{t0}, v{t1}")

def bound():
    e(f"s_cselect_b32 s{T_SOFF}, 1, 0")
    e(f"s_sub_u32 s{T_P1L}, s{T_P1L}, 1")
    e("s_cbranch_scc1 L_end")
    e(f"s_cmp_lg_u32 s{T_SOFF}, 0")

def spin(label, foff, sleep=0):
    lab(label)
    bound()
    if sleep: e(f"s_sleep {sleep}")
    e(f"ds_read_b32 v{V_FL}, v{V_FA} offset:{foff}")
    e("s_waitcnt lgkmcnt(0)")
    e(f"v_cmp_gt_f32 vcc, 0, v{V_FL}")
    e(f"s_cbranch_vccnz {label}")

def rare(tag, par, foff, first, R, pprev=False):
    S, Sn = V_S[par], V_S[1-par]
    lab(f"L_rare_{tag}")
    if foff is not None:
        e(f"v_cmp_lt_f32 vcc, s{S_THR}, v{V_PS}")
        if first:
            e("s_nop 1")
            e(f"s_or_b64 vcc, vcc, {sr(S_DK,2)}")
        e(f"s_cbranch_vccz L_spin_{tag}")
    e("s_nop 15")
    e("s_nop 7")
    blockmax(S, V_E, V_E+1, R)
    if first:
        e(f"v_mov_b32 v{V_T0}, v{V_E}")
    else:
        e(f"v_max_f32 v{V_T0}, 0, v{V_E}")
        e(f"v_sub_f32 v{V_E+1}, 0, v{V_T0}")
        e(f"v_exp_f32 v{V_E+1}, v{V_E+1}")
    for r in range(16):
        e(f"v_sub_f32 v{S+r}, v{S+r}, v{V_T0}")
        if foff is not None: e(f"v_sub_f32 v{Sn+r}, v{Sn+r}, v{V_T0}")
        e(f"v_sub_f32 v{V_NEGM+r}, v{V_NEGM+r}, v{V_T0}")
    if not first:
        for r in range(64):
            e(f"v_mul_f32 v{V_O+r}, v{V_O+r}, v{V_E+1}")
        e(f"v_mul_f32 v{V_L}, v{V_L}, v{V_E+1}")
    for x in softmax_list(par, R): e(x)
    e("s_nop 1")
    if foff is not None: spin(f"L_spin_{tag}", foff)
    e(f"s_branch L_back_{tag}")

def finish():
    if opt.stamps == 4: stamp(2)
    e("s_branch L_stamps" if opt.stamps else "s_endpgm")

stage_spins = []
V_WB = V_NEGM + 8
def norm_ops(dt, pk=False):
    o = V_O+16*dt; ops = []
    for rq in range(4):
        if pk: ops += [f"v_pk_mul_f32 {vr(o+4*rq+2*k,2)}, {vr(o+4*rq+2*k,2)}, {vr(V_L,2)} op_sel_hi:[1,0]" for k in range(2)]
        else: ops += [f"v_mul_f32 v{o+4*rq+r}, v{o+4*rq+r}, v{V_L}" for r in range(4)]
        t = V_E + 2*rq
        ops.append(f"v_cvt_pk_bf16_f32 v{t}, v{o+4*rq}, v{o+4*rq+1}")
        ops.append(f"v_cvt_pk_bf16_f32 v{t+1}, v{o+4*rq+2}, v{o+4*rq+3}")
        ops.append(f"ds_write_b64 v{(V_WB if dt & 1 else V_WA)+rq}, {vr(t,2)}")
    return ops
def rd_ops(p):
    return [f"ds_read_b128 {vr(V_Q+16*p+4*i,4)}, v{V_RA} offset:{i*1024}" for i in range(4)]
ST_SOFF = [T_QOFF, S_T1, S_T0, S_DK]
def st_op(p, i):
    fl = opt.stflag.replace('+', ' ')
    return f"buffer_store_dwordx4 {vr(V_Q+16*p+4*i,4)}, v{V_SA}, {sr(S_O,4)}, s{ST_SOFF[i]} offen offset:{128*p} {fl}".rstrip()
def store_prep():
    return [f"s_add_u32 s{ST_SOFF[i]}, s{T_QOFF}, {i*0x8000:#x}" for i in (1, 2, 3)] + \
           [f"v_xor_b32 v{V_WB+rq}, 64, v{V_WA+rq}" for rq in range(4)]
def store_stream(pk):
    n1 = norm_ops(1)[:7] + norm_ops(1, pk)[(5 if pk else 7):]
    s = norm_ops(0) + n1 + rd_ops(0)
    n2, n3 = norm_ops(2, pk), norm_ops(3, pk)
    u = 5 if pk else 7
    if pk: s += n2[:3*u] + ["s_waitcnt lgkmcnt(3)", st_op(0, 0)] + n2[3*u:] + [st_op(0, 1)] + n3[:u] + [st_op(0, 2)] + n3[u:2*u] + [st_op(0, 3)] + n3[2*u:]
    else: s += n2[:14] + ["s_waitcnt lgkmcnt(2)", st_op(0, 0)] + n2[14:21] + [st_op(0, 1)] + n2[21:] + [st_op(0, 2)] + n3[:7] + [st_op(0, 3)] + n3[7:]
    s += rd_ops(1)
    for i in range(4):
        s += [f"s_waitcnt lgkmcnt({3-i})", st_op(1, i)]
    return s

def tail(kind, par):
    tag = f"T{kind}{par}"
    lab(f"L_tail_{kind}_{par}")
    if opt.stamps == 4: stamp(1)
    itstamp()
    pk = kind >= 3
    if pk: kind -= 3
    if kind == 0 and opt.ftail:
        return tail_short(par, tag, pk)
    voff = VSLOT if par else 2*VSLOT
    R = 4 if kind == 0 else 16
    nkg = 1 if kind == 0 else 2
    a = lambda i: mfma(V_O+16*(i & 3), V_V+4*i, V_P[1-par]+4*(i >> 2), V_O+16*(i & 3))
    f = lambda i: mfma(V_O+16*(i & 3), V_K+4*i, V_P[par]+4*(i >> 2), V_O+16*(i & 3))
    reads = [vread(i, jj, voff, V_K) for i in range(4*nkg) for jj in range(2)]
    q = [f"v_add_f32 v{V_L}, v{V_L}, v{V_PS}"] + softmax_list(par, R, mask=True)
    if kind == 0: q += [f"v_mov_b64 {vr(V_P[par]+2,2)}, 0"]
    q += [f"v_cmp_lt_f32 vcc, s{S_THR}, v{V_PS}"]
    per = (sum(cost(x) for x in q) + 4*len(reads) + 7)//8 + 4
    per = max(per, 24)
    e("s_waitcnt lgkmcnt(12)")
    nrd = 0
    for g in range(8):
        if g == 4:
            e(f"s_waitcnt lgkmcnt({nrd})")
        e(a(g)); used = 0
        if g == 4:
            e(f"ds_write_b32 v{V_PA}, v{V_FA}")
            e(f"ds_read_b32 v{V_FL}, v{V_CK}")
            used += 8
        for _ in range(2):
            if reads:
                e(reads.pop(0)); used += 4; nrd += 1
        while q and (used + cost(q[0]) <= per or g == 7):
            x = q.pop(0); e(x); used += cost(x)
    e(f"s_cbranch_vccnz L_rare_{tag}")
    lab(f"L_back_{tag}")
    rare_sites.append((tag, par, None, False, R))
    e(f"v_add_f32 v{V_L}, v{V_L}, v{V_PS}")
    e("s_waitcnt lgkmcnt(0)")
    e(f"v_cmp_gt_i32 vcc, s{S_T2}, v{V_FL}")
    fin = [i + 4*k for i in range(4) for k in range(nkg)]
    if kind == 2:
        for i in fin: e(f(i))
        e(f"s_cbranch_vccnz L_stg_{tag}")
        lab(f"L_stgback_{tag}")
        stage_spins.append(tag)
        e("s_branch L_merge")
        return
    e(f"v_mov_b32 v{V_T0}, v{V_L}")
    for _ in range(nkg): e(f(fin.pop(0)))
    e("s_nop 0")
    e(f"v_permlane32_swap_b32 v{V_L}, v{V_T0}")
    e(f"s_cbranch_vccnz L_stg_{tag}")
    lab(f"L_stgback_{tag}")
    stage_spins.append(tag)
    e(f(fin.pop(0)))
    e(f"v_add_f32 v{V_L}, v{V_L}, v{V_T0}")
    e(f"v_rcp_f32 v{V_L}, v{V_L}")
    e(f(fin.pop(0)))
    for x in store_prep(): e(x)
    cnt = 6
    for x in store_stream(pk):
        if x.startswith("NEED"): continue
        if fin and cnt >= 6:
            e(f(fin.pop(0))); cnt = 0
        e(x); cnt += 1
    itstamp()
    finish()

short_rares = []
def tail_short(par, tag, pk):
    voff = VSLOT if par else 2*VSLOT
    a = lambda i: mfma(V_O+16*(i & 3), V_V+4*i, V_P[1-par]+4*(i >> 2), V_O+16*(i & 3))
    f = lambda i: mfma(V_O+16*i, V_K+4*i, V_P[par], V_O+16*i)
    rd = [vread(i, jj, voff, V_K) for i in range(4) for jj in range(2)]
    sm = softmax_list(par, 4, mask=True)
    e("s_waitcnt lgkmcnt(12)")
    e(a(0))
    for x in rd[:4]: e(x)
    e(f"v_add_f32 v{V_L}, v{V_L}, v{V_PS}")
    for x in sm[:5]: e(x)
    e("s_waitcnt lgkmcnt(4)")
    e(a(4))
    e(f"ds_write_b32 v{V_PA}, v{V_FA}")
    e(f"ds_read_b32 v{V_FL}, v{V_CK}")
    for x in rd[4:]: e(x)
    for x in sm[5:9]: e(x)
    e(a(1))
    for x in sm[9:]: e(x)
    e(f"v_mov_b64 {vr(V_P[par]+2,2)}, 0")
    e(f"v_cmp_lt_f32 vcc, s{S_THR}, v{V_PS}")
    e(a(5))
    e(f"v_add_f32 v{V_T0}, v{V_L}, v{V_PS}")
    e(f"v_add_f32 v{V_X}, v{V_L}, v{V_PS}")
    e(f"s_cbranch_vccnz L_rare_{tag}")
    short_rares.append((tag, par))
    e("s_waitcnt lgkmcnt(4)")
    e(f(0))
    e(f"v_permlane32_swap_b32 v{V_T0}, v{V_X}")
    e(f"v_cmp_gt_i32 vcc, s{S_T2}, v{V_FL}")
    e(f(1))
    e(f"v_add_f32 v{V_L}, v{V_T0}, v{V_X}")
    e(f"v_rcp_f32 v{V_L}, v{V_L}")
    e(f"s_cbranch_vccnz L_stg_{tag}")
    lab(f"L_stgback_{tag}")
    stage_spins.append(tag)
    e(a(2))
    for x in store_prep(): e(x)
    e("s_waitcnt lgkmcnt(0)")
    rest = [a(6), f(2), a(3), a(7), f(3)]
    cnt = 5
    for x in store_stream(pk):
        if x.startswith("NEED"): continue
        if rest and cnt >= 5:
            e(rest.pop(0)); cnt = 0
        e(x); cnt += 1
    itstamp()
    finish()
def short_rare(tag, par):
    a = lambda i: mfma(V_O+16*(i & 3), V_V+4*i, V_P[1-par]+4*(i >> 2), V_O+16*(i & 3))
    f = lambda i: mfma(V_O+16*i, V_K+4*i, V_P[par], V_O+16*i)
    lab(f"L_rare_{tag}")
    for i in (2, 6, 3, 7): e(a(i))
    rare(tag + "x", par, None, False, 4)
    lab(f"L_back_{tag}x")
    e("s_waitcnt lgkmcnt(0)")
    for i in range(4): e(f(i))
    e(f"v_add_f32 v{V_L}, v{V_L}, v{V_PS}")
    e(f"v_mov_b32 v{V_T0}, v{V_L}")
    lab(f"L_stg_{tag}x")
    bound()
    e(f"ds_read_b32 v{V_FL}, v{V_CK}")
    e("s_waitcnt lgkmcnt(0)")
    e(f"v_cmp_gt_i32 vcc, s{S_T2}, v{V_FL}")
    e(f"s_cbranch_vccnz L_stg_{tag}x")
    e(f"v_permlane32_swap_b32 v{V_L}, v{V_T0}")
    e("s_nop 1")
    e(f"v_add_f32 v{V_L}, v{V_L}, v{V_T0}")
    e("s_branch L_store")

def merge_code():
    lab("L_merge")
    MA, ML = V_KA, V_KA+1
    if opt.mprio:
        e(f"s_cmp_eq_u32 s{T_MOUT}, 0")
        e("s_cbranch_scc1 L_merge_keep")
        e("s_setprio 0")
        lab("L_merge_keep")
    e(f"v_mov_b32 v{V_T1}, v{V_L}")
    e(f"v_mbcnt_lo_u32_b32 v{V_T0}, -1, 0")
    e(f"v_mbcnt_hi_u32_b32 v{V_T0}, -1, v{V_T0}")
    e(f"s_and_b32 s{T_MB}, s{T_MB}, 0xffffff")
    e(f"v_permlane32_swap_b32 v{V_L}, v{V_T1}")
    e(f"v_lshl_add_u32 v{MA}, v{V_T0}, 4, s{T_MB}")
    e(f"s_cmp_eq_u32 s{T_MB}, {KBASE}")
    e(f"s_cselect_b32 s{S_T0}, {ent(48)}, {ent(16)}") if False else None
    e(f"s_cselect_b32 s{S_T0}, {32*G}, 0")
    e(f"v_add_f32 v{V_L}, v{V_L}, v{V_T1}")
    e(f"s_add_u32 s{S_T0}, s{S_T0}, {ent(16)}")
    e(f"v_bfe_u32 v{ML}, v{V_T0}, 1, 4")
    e(f"v_mul_u32_u24 v{ML}, {G}, v{ML}")
    e(f"v_and_b32 v{V_T0}, 1, v{V_T0}")
    e(f"v_lshl_add_u32 v{ML}, v{V_T0}, 3, v{ML}")
    e(f"v_add_u32 v{ML}, s{S_T0}, v{ML}")
    e(f"s_cmp_eq_u32 s{T_MIN}, 0")
    e("s_cbranch_scc1 L_merge_out")
    e(f"v_mov_b32 v{V_FA}, s{T_MIN}")
    spin("L_merge_wait", 0, sleep=1)
    e(f"ds_read_b64 {vr(V_E,2)}, v{ML}")
    for i in range(12):
        e(f"ds_read_b128 {vr(V_K+4*i,4)}, v{MA} offset:{i*G}")
    e("s_waitcnt lgkmcnt(12)")
    e(f"v_cmp_neq_f32 vcc, v{V_NEGM}, v{V_E}")
    for i in range(12, 16):
        e(f"ds_read_b128 {vr(V_K+4*i,4)}, v{MA} offset:{i*G}")
    e("s_cbranch_vccnz L_merge_slow")
    lab("L_merge_add")
    e(f"v_add_f32 v{V_L}, v{V_L}, v{V_E+1}")
    e(f"s_cmp_lg_u32 s{T_MOUT}, 0")
    for i in range(4):
        e(f"s_waitcnt lgkmcnt({12-4*i})")
        for r in range(16*i, 16*i+16):
            e(f"v_add_f32 v{V_O+r}, v{V_O+r}, v{V_K+r}")
    e("s_cbranch_scc1 L_merge_out")
    lab("L_store")
    e(f"v_rcp_f32 v{V_L}, v{V_L}")
    for x in store_prep(): e(x)
    for x in store_stream(False):
        if not x.startswith("NEED"): e(x)
    itstamp()
    finish()
    lab("L_merge_slow")
    e(f"v_min_f32 v{V_E+2}, v{V_NEGM}, v{V_E}")
    e(f"v_sub_f32 v{V_E+4}, v{V_E+2}, v{V_NEGM}")
    e(f"v_sub_f32 v{V_E+6}, v{V_E+2}, v{V_E}")
    e(f"v_exp_f32 v{V_E+4}, v{V_E+4}")
    e(f"v_exp_f32 v{V_E+6}, v{V_E+6}")
    e(f"v_mov_b32 v{V_NEGM}, v{V_E+2}")
    e(f"v_mul_f32 v{V_L}, v{V_L}, v{V_E+4}")
    e(f"v_mul_f32 v{V_E+1}, v{V_E+1}, v{V_E+6}")
    e("s_waitcnt lgkmcnt(0)")
    for r in range(64):
        e(f"v_mul_f32 v{V_O+r}, v{V_O+r}, v{V_E+4}")
        e(f"v_mul_f32 v{V_K+r}, v{V_K+r}, v{V_E+6}")
    e("s_branch L_merge_add")
    lab("L_merge_out")
    e(f"v_mov_b32 v{V_E}, v{V_NEGM}")
    e(f"v_mov_b32 v{V_E+1}, v{V_L}")
    e(f"v_mov_b32 v{V_FA}, s{T_MOUT}")
    e(f"v_mov_b32 v{V_T0}, 1.0")
    e(f"ds_write_b64 v{ML}, {vr(V_E,2)}")
    for i in range(16):
        e(f"ds_write_b128 v{MA}, {vr(V_O+4*i,4)} offset:{i*G}")
    e(f"ds_write_b32 v{V_FA}, v{V_T0}")
    e("s_waitcnt lgkmcnt(0)")
    itstamp()
    finish()

def setup_compute():
    e(f"s_mov_b32 s{S_O+2}, s{T_NREC}" if not opt.fake & 16 else f"s_mov_b32 s{S_O+2}, 0")
    e(f"s_mov_b32 s{S_O+3}, 0x20000")
    e(f"s_add_u32 s{S_O}, s12, s{S_BASE}")
    e(f"s_addc_u32 s{S_O+1}, s13, 0")
    e(f"v_and_b32 v{V_T0}, 3, v{V_LANE}")
    e(f"v_lshl_add_u32 v{V_FA}, v{V_T0}, 2, s{T_FB}")
    e(f"v_bfe_u32 v{V_T1}, v{V_LANE}, 2, 3")
    e(f"v_mul_u32_u24 v{V_T1}, {G}, v{V_T1}")
    e(f"v_lshl_add_u32 v{V_T1}, v{V_T0}, 8, v{V_T1}")
    e(f"v_lshrrev_b32 v{V_L}, 5, v{V_LANE}")
    e(f"v_lshl_add_u32 v{V_T1}, v{V_L}, 4, v{V_T1}")
    for t in range(4):
        e(f"v_xor_b32 v{V_KA+t}, {t}, v{V_T0}")
        e(f"v_lshl_add_u32 v{V_KA+t}, v{V_KA+t}, 6, v{V_T1}")
        e(f"v_add_u32 v{V_E+t}, s{T_QST}, v{V_KA+t}")
        e(f"v_add_u32 v{V_KA+t}, s{T_KB}, v{V_KA+t}")
    e(f"v_lshrrev_b32 v{V_T1}, 3, v{V_LANE}")
    e(f"v_and_b32 v{V_T0}, 7, v{V_LANE}")
    e(f"v_lshlrev_b32 v{V_PS}, 4, v{V_T0}")
    e(f"v_lshl_add_u32 v{V_SA}, v{V_T1}, 12, v{V_PS}")
    e(f"v_xor_b32 v{V_T1}, v{V_T1}, v{V_LANE}")
    e(f"v_lshl_add_u32 v{V_RA}, v{V_T1}, 4, s{T_OST}")
    e(f"v_and_b32 v{V_T1}, 31, v{V_LANE}")
    e(f"v_lshl_add_u32 v{V_T1}, v{V_T1}, 7, s{T_OST}")
    e(f"v_lshl_add_u32 v{V_T1}, v{V_L}, 3, v{V_T1}")
    for rq in range(4):
        e(f"v_xor_b32 v{V_WA+rq}, {rq}, v{V_T0}")
        e(f"v_lshl_add_u32 v{V_WA+rq}, v{V_WA+rq}, 4, v{V_T1}")
    e(f"v_bfe_u32 v{V_T0}, v{V_LANE}, 2, 2")
    e(f"v_lshl_add_u32 v{V_T1}, v{V_L}, 2, v{V_T0}")
    e(f"v_lshl_add_u32 v{V_T1}, v{V_T1}, 8, s{T_VB}")
    e(f"v_bfe_u32 v{V_PS}, v{V_LANE}, 4, 1")
    e(f"v_lshl_add_u32 v{V_T1}, v{V_PS}, 5, v{V_T1}")
    e(f"v_and_b32 v{V_PS}, 3, v{V_LANE}")
    e(f"v_lshl_add_u32 v{V_T1}, v{V_PS}, 3, v{V_T1}")
    for dt in range(4):
        e(f"v_xor_b32 v{V_VA+dt}, {dt}, v{V_T0}")
        e(f"v_lshl_add_u32 v{V_VA+dt}, v{V_VA+dt}, 6, v{V_T1}")
    e(f"s_bfe_u32 s{S_T0}, s{T_PK}, {8 | 3 << 16:#x}")
    e(f"s_bfe_u32 s{S_T1}, s{T_PK}, {11 | 3 << 16:#x}")
    e(f"v_and_b32 v{V_CK}, 7, v{V_LANE}")
    e(f"v_max_u32 v{V_CK}, s{S_T0}, v{V_CK}")
    e(f"v_min_u32 v{V_CK}, s{S_T1}, v{V_CK}")
    e(f"v_mul_u32_u24 v{V_CK}, {G}, v{V_CK}")
    e(f"v_add_u32 v{V_CK}, {ent(PROG0)}, v{V_CK}")
    e(f"v_lshlrev_b32 v{V_T0}, 2, v{V_L}")
    e(f"v_sub_u32 v{V_T0}, s{T_NV}, v{V_T0}")
    for r in range(16):
        e(f"v_cmp_lt_i32 {sr(S_MASK+2*r,2)}, {(r & 3) + 8*(r >> 2)}, v{V_T0}")
    for r in range(0, 64, 2): e(f"v_mov_b64 {vr(V_O+r,2)}, 0")
    for r in range(0, 16, 2): e(f"v_mov_b64 {vr(V_NEGM+r,2)}, 0")
    e(f"v_mov_b32 v{V_L}, 0")
    e(f"v_mov_b32 v{V_T1}, 0xff800000")
    e(f"v_mov_b32 v{V_X}, 1")
    e(f"s_mov_b32 s{S_LO}, {f32bits(1.0/THR):#x}")
    e(f"s_mov_b32 s{S_THR}, {f32bits(THR):#x}")
    e(f"s_bitcmp1_b32 s{T_PK}, 7")
    e(f"s_cselect_b32 s{S_KWRAP}, 6, 0")
    e(f"s_cselect_b32 s{S_VWRAP}, 8, 0")
    e(f"s_mov_b32 s{S_2K}, {2*KSLOT}")
    e(f"s_mov_b32 s{S_2V}, {2*VSLOT}")
    e(f"s_mov_b32 s{S_J}, 2")
    e(f"s_sub_u32 s{S_NM1}, s{T_N}, 1")
    e(f"s_mov_b32 s{S_T2}, s{T_P1S}")

def prog_addr():
    e(f"s_mul_i32 s{S_T0}, s{S_U}, {G}")
    e(f"s_add_u32 s{S_T0}, s{S_T0}, {ent(PROG0)}")
    e(f"v_mov_b32 v{V_PA}, s{S_T0}")

def q_read():
    for ks in range(8):
        e(f"ds_read_b128 {vr(V_Q+4*ks,4)}, v{V_E+(ks>>1)} offset:{(ks&1)*32}")

CSCALE = math.log2(math.e) / math.sqrt(128.0)
def qscale(ks, pk=True):
    tb = V_S[1] + 8*(ks & 1)
    for k in range(4):
        r = V_Q+4*ks+k
        e(f"v_lshlrev_b32 v{tb+2*k}, 16, v{r}")
        e(f"v_and_b32 v{tb+2*k+1}, {f's{S_T0}' if pk else '0xffff0000'}, v{r}")
    for k in range(4):
        if pk:
            e(f"v_pk_mul_f32 {vr(tb+2*k,2)}, {vr(tb+2*k,2)}, {sr(S_DK,2)}")
        else:
            e(f"v_mul_f32 v{tb+2*k}, {f32bits(CSCALE):#x}, v{tb+2*k}")
            e(f"v_mul_f32 v{tb+2*k+1}, {f32bits(CSCALE):#x}, v{tb+2*k+1}")
    for k in range(4):
        e(f"v_cvt_pk_bf16_f32 v{V_Q+4*ks+k}, v{tb+2*k}, v{tb+2*k+1}")

def flag_init():
    e(f"v_mul_u32_u24 v{V_T0}, {G}, v{V_LANE}")
    e(f"v_add_u32 v{V_T0}, {FBASE}, v{V_T0}")
    for k in range(4): e(f"v_mov_b32 v{V_V+k}, -1.0")
    e(f"ds_write_b128 v{V_T0}, {vr(V_V,4)}")

def init_signal_regs(f0):
    e(f"s_and_b32 s{S_T0}, s{S_U}, 3")
    e(f"s_lshl_b32 s{S_T0}, s{S_T0}, 2")
    if f0 is None:
        e(f"s_cmp_lt_u32 s{S_U}, 4")
        e(f"s_cselect_b32 s{S_T1}, {16*G}, 0")
        e(f"s_add_u32 s{S_T0}, s{S_T0}, s{S_T1}")
    e(f"s_add_u32 s{S_T0}, s{S_T0}, {FBASE}")
    e(f"v_mov_b32 v{V_SIG}, s{S_T0}")
    e(f"v_mov_b32 v{V_THRV}, {f32bits(THR):#x}")

def kv_srds(sk, sv, base_s, nrec):
    for srd, p in ((sk, 6), (sv, 8)):
        e(f"s_add_u32 s{srd}, s{p}, s{base_s}")
        e(f"s_addc_u32 s{srd+1}, s{p+1}, 0")
        e(f"s_mov_b32 s{srd+2}, {nrec}")
        e(f"s_mov_b32 s{srd+3}, 0x20000")

class Loader:
    def __init__(self, name, quarter):
        self.pace = 0
        self.name = name; self.quarter = quarter; self.issued = []; self.npoll = 0; self.seen = {}
    def poll(self, lo, hi, thr, word=0):
        key = (lo, hi, word)
        if self.seen.get(key, -1) >= thr: return
        self.seen[key] = thr
        l_ = f"L_pw_{self.name}_{self.npoll}"; self.npoll += 1
        e(f"v_and_b32 v{V_POLL}, 7, v{V_LANE}")
        e(f"v_max_u32 v{V_POLL}, {lo}, v{V_POLL}")
        e(f"v_min_u32 v{V_POLL}, {hi}, v{V_POLL}")
        e(f"v_mul_u32_u24 v{V_POLL}, {G}, v{V_POLL}")
        e(f"v_add_u32 v{V_POLL}, {ent(PROG0)}, v{V_POLL}")
        e(f"s_mov_b32 s{S_T0}, {thr}")
        lab(l_)
        e(f"ds_read_b32 v{V_PV}, v{V_POLL} offset:{4*word}")
        e("s_waitcnt lgkmcnt(0)")
        e(f"v_cmp_gt_i32 vcc, s{S_T0}, v{V_PV}")
        e(f"s_cbranch_vccz {l_}_ok")
        e("s_sleep 1")
        bound()
        e(f"s_branch {l_}")
        lab(f"{l_}_ok")
    def block(self, tag, srd, b, lds, stride):
        if self.quarter:
            wreg = S_DK if stride == G else S_DV
            e(f"s_add_u32 m0, s{wreg}, {lds}")
            e(f"s_mov_b32 s{S_T1}, {b*0x20000:#x}")
            e(f"buffer_load_dwordx4 v{V_DMA}, {sr(srd,4)}, s{S_T1} offen lds")
            e(f"s_add_u32 m0, s{wreg}, {lds+4*stride}")
            e(f"s_sleep {self.pace}" if self.pace else "s_nop 0")
            e(f"buffer_load_dwordx4 v{V_DMA2}, {sr(srd,4)}, s{S_T1} offen lds")
            if self.pace: e(f"s_sleep {self.pace}")
            self.issued += [tag]*2
        else:
            for g in range(8):
                e(f"s_mov_b32 m0, {lds+g*stride}")
                e(f"s_mov_b32 s{S_T1}, {b*0x20000+g*0x4000:#x}")
                e(f"buffer_load_dwordx4 v{V_DMA}, {sr(srd,4)}, s{S_T1} offen lds")
            self.issued += [tag]*8
    def wait(self, tag):
        last = max(i for i, t in enumerate(self.issued) if t == tag)
        n = len(self.issued)-1-last
        assert n <= 63
        e(f"s_waitcnt vmcnt({n})")

def loader_single_stream(desc, pid):
    kind, nk = desc[0], desc[1]
    quarter = kind == "L4"
    late = desc[2]
    D = desc[4]
    ld = Loader(f"{kind}_{nk}_{pid}", quarter)
    lab(f"L_prog_{pid}")
    if opt.lprio: e(f"s_setprio {opt.lprio}")
    ld.issued += ["i1"]*4 + ["i2"]*4
    qsrc = desc[3] if late else None
    if not quarter: e(f"v_mov_b32 v{V_DMA}, v{V_DL}")
    ring = nk > 10
    ks = lambda b: b & 7 if ring else b
    vs = lambda b: (((b-1) & 7) + 1) if (ring and b > 8) else b
    hi = (7 if late else 3) if quarter else 6
    vq = (7 if desc[3] == 5 else {10: 8, 8: 5}.get(nk, 99)) if (late or not quarter) else 99
    def req(p):
        lv = []
        b = p+2
        def level(j):
            if j <= 0: return (0, 3, 1, 0, 0)
            if j & 1: return (0, 3, FBASE+(j-1)*G, j+opt.slack, 1)
            return (0, 3, FBASE+(j-2)*G, j+opt.slack, 0)
        if b < nk:
            if ks(b) != b: lv.append(level(b-9))
            elif b >= 5 and not (ring and opt.q4v): lv.append((0, 2 if (b < 8 and opt.w3) else 3, 0, max(QSIG, opt.w3-2) if b >= 8 else QSIG, 0))
        if vs(p) != p: lv.append(level(p-7))
        elif p >= vq: lv.append((4, hi, 0, 2, 0))
        elif p >= 5 and ring and opt.q4v: lv.append((0, 3, 0, QSIG, 0))
        return lv
    nxt = [1]
    def pairs_upto(p, sig):
        while nxt[0] <= min(p, nk-1):
            r = req(nxt[0])
            if any(x[3] > sig for x in r): break
            for x in r: ld.poll(x[0], x[1], x[2], x[4])
            p_ = nxt[0]
            if p_+2 < nk: ld.block(p_, S_K, p_+2, kslot(ks(p_+2)), G)
            ld.block(p_, S_V, p_, vslot(vs(p_)), 1024)
            nxt[0] += 1
    chunks = []
    side = opt.side == 1 or (opt.side == 2 and quarter)
    if late:
        k0 = len(out); setup_compute(); prog_addr(); body = out[k0:]; del out[k0:]
        cut = next(i for i, x in enumerate(body) if "s_bfe_u32" in x)
        chunks = [body[:cut], body[cut:]]
        if side:
            cut = max(i for i, x in enumerate(body) if f"s{T_KB}," in x) + 1
            chunks = [body[:cut] + body[-3:] + [f"    v_mov_b32 v{V_X}, 0"], body[cut:-3]]
    pairs_upto((opt.npre3 if nk == 11 else opt.npre4) if quarter else opt.npre1, -1)
    ld.wait("i2")
    e(f"ds_write_b32 v{V_SIG}, v{V_THRV} offset:{G}")
    stamp(3)
    if not quarter:
        e(f"v_and_b32 v{V_SIG}, 3, v{V_LANE}")
        e(f"v_lshlrev_b32 v{V_SIG}, 2, v{V_SIG}")
        e(f"v_add_u32 v{V_SIG}, {FBASE}, v{V_SIG}")
    if late and qsrc is None:
        e(f"s_mov_b32 s{S_T0}, s{T_QOFF}")
        e(f"s_mov_b32 m0, s{T_QST}")
        dma_pass(S_T0)
        ld.issued += ["q"]*8
    pairs_upto(D, 0)
    if late: out.extend(chunks[0])
    ld.pace = opt.pace
    for j in range(1, nk):
        assert nxt[0] > j
        ld.wait(j)
        e(f"ds_write_b32 v{V_SIG}, v{V_THRV} offset:{(j+1)*G}")
        if late and j == 2:
            if qsrc is None: ld.wait("q")
            else: ld.poll(qsrc, qsrc, 0)
            q_read()
            e("s_waitcnt lgkmcnt(0)")
            e(f"ds_write_b32 v{V_PA}, v{V_X if side else V_L}")
        pairs_upto(j+D, j)
        if late and j == 1 and not side: out.extend(chunks[1])
        if late and 2 <= j <= 5 and not side:
            qscale(2*j-4, False); qscale(2*j-3, False)
    if late and side:
        e("s_setprio 0")
        out.extend(chunks[1])
        e("s_branch L_scale_h")
    elif late:
        e("s_branch L_spin_h" if quarter else "s_branch L_helper_go")
    else:
        e("s_waitcnt lgkmcnt(0)")
        stamp(4)
        finish()

def loader_two_streams(desc, pid):
    _, sa, sb = desc
    nka, nkb = seqnk(sa), seqnk(sb)
    ld = Loader("L2", False)
    lab(f"L_prog_{pid}")
    if opt.lprio: e(f"s_setprio {opt.lprio}")
    ld.issued += ["i1"]*4 + ["i2"]*4
    e(f"v_mov_b32 v{V_DMA}, v{V_DL}")
    for k in range(8): e(f"s_mov_b32 s{S_K2+k}, s{S_K+k}") if k % 4 != 3 else e(f"s_mov_b32 s{S_K2+k}, 0x20000")
    kv_srds(S_K, S_V, S_BASE, f"s{T_NREC}")
    def pa(p):
        if p+2 < nka: ld.block(("a", p), S_K2, p+2, kslot(6+p+2), G)
        ld.block(("a", p), S_V2, p, vslot(6+p), 1024)
    def pb(p):
        if p+2 >= 6 and p+2 < nkb: ld.poll(0, 3, ent(16))
        if p == 8: ld.poll(0, 3, ent(16)+2*G)
        if p+2 < nkb: ld.block(("b", p), S_K, p+2, kslot(p+2), G)
        ld.block(("b", p), S_V, p, vslot(p), 1024)
    def sig(t, p):
        ld.wait((t, p))
        e(f"ds_write_b32 v{V_SIG}, v{V_THRV} offset:{(p + 1 + (16 if t == 'a' else 0))*G}")
    pa(1)
    ld.wait("i2")
    e(f"ds_write_b32 v{V_SIG}, v{V_THRV} offset:{G}")
    stamp(3)
    e(f"v_and_b32 v{V_SIG}, 3, v{V_LANE}")
    e(f"v_lshlrev_b32 v{V_SIG}, 2, v{V_SIG}")
    e(f"v_add_u32 v{V_SIG}, {FBASE}, v{V_SIG}")
    pa(2); pa(3)
    ld.block(("b", -1), S_K, 0, kslot(0), G)
    sig("a", 1)
    ld.block(("b", -1), S_K, 1, kslot(1), G)
    sig("a", 2)
    ld.poll(0, 6, 0)
    pb(0); sig("a", 3)
    pb(1); sig("b", -1)
    pb(2); sig("b", 0)
    pb(3); sig("b", 1)
    pb(4); sig("b", 2)
    pb(5); sig("b", 3)
    pb(6); sig("b", 4)
    pb(7); sig("b", 5)
    pb(8); sig("b", 6); sig("b", 7); sig("b", 8)
    e("s_waitcnt lgkmcnt(0)")
    stamp(4)
    finish()

def md_program(desc, pid):
    nk = desc[1]
    ld = Loader(f"MD_{pid}", True)
    lab(f"L_prog_{pid}")
    if not opt.mdsync: e("s_setprio 1")
    ld.issued += (["i1"]*4 + ["q"]*8 + ["i2"]*4) if opt.mdq else (["i1"]*4 + ["i2"]*4 + ["q"]*8)
    def pair(p):
        if p+2 < nk: ld.block(p, S_K, p+2, kslot(p+2), G)
        ld.block(p, S_V, p, vslot(p), 1024)
    def sig(p):
        ld.wait(p)
        e(f"ds_write_b32 v{V_SIG}, v{V_THRV} offset:{(p+1)*G}")
    pair(1)
    setup_compute(); prog_addr()
    if not opt.mdq:
        ld.wait("i2"); e(f"ds_write_b32 v{V_SIG}, v{V_THRV} offset:{G}")
    ld.wait("q")
    stamp(3)
    q_read()
    e("s_waitcnt lgkmcnt(0)")
    e(f"ds_write_b32 v{V_PA}, v{V_L}")
    pair(2)
    if opt.mdsync:
        e(f"s_mov_b32 s{T_KB}, s{S_DK}")
        e(f"s_mov_b32 s{T_VB}, s{S_DV}")
        e(f"s_mov_b32 s{S_DK}, {f32bits(CSCALE):#x}")
        e(f"s_mov_b32 s{S_DV}, {f32bits(CSCALE):#x}")
        e(f"s_mov_b32 s{S_T0}, 0xffff0000")
        for ks in range(7): qscale(ks)
        e(f"ds_write_b32 v{V_SIG}, v{V_THRV}")
        qscale(7)
        e(f"s_mov_b32 s{S_DK}, s{T_KB}")
        e(f"s_mov_b32 s{S_DV}, s{T_VB}")
        e("s_setprio 1")
        ld.wait("i2"); e(f"ds_write_b32 v{V_SIG}, v{V_THRV} offset:{G}")
    else:
        for ks in range(4): qscale(ks, False)
        if opt.mdq:
            ld.wait("i2"); e(f"ds_write_b32 v{V_SIG}, v{V_THRV} offset:{G}")
        for ks in range(4, 8): qscale(ks, False)
    if QSIG: sig(1)
    ld.poll(0, 7, 0)
    pair(3)
    if not QSIG: sig(1)
    e(f"v_mov_b32 v{V_T1}, v{V_DMA}")
    e(f"v_readfirstlane_b32 s{T_QST}, v{V_SIG}")
    e(f"s_mov_b32 s{T_KB}, s{S_DK}")
    e(f"s_mov_b32 s{T_VB}, s{S_DV}")
    e("s_branch L_spin_h")
    lab(f"L_md_loop")
    kv_srds(S_K, S_V, S_BASE, f"s{T_NREC}")
    e(f"v_mov_b32 v{V_X}, {f32bits(THR):#x}")
    for j in range(1, nk-1):
        ex = {}
        p = j+3
        if j+1 < nk:
            last = max(i for i, t in enumerate(ld.issued) if t == j+1)
            e(f"s_waitcnt vmcnt({len(ld.issued)-1-last})")
            e(f"v_mov_b32 v{V_T0}, s{T_QST}")
            e(f"ds_write_b32 v{V_T0}, v{V_X} offset:{(j+2)*G}")
        if p < nk:
            items = []
            if p+2 < nk: items += [(S_K, T_KB, kslot(p+2), (p+2)*0x20000), (S_K, T_KB, kslot(p+2)+4*G, (p+2)*0x20000+0x10000)]
            items += [(S_V, T_VB, vslot(p), p*0x20000), (S_V, T_VB, vslot(p)+4096, p*0x20000+0x10000)]
            for k, (srd, wreg, lds, so) in enumerate(items):
                ops = [f"s_add_u32 m0, s{wreg}, {lds}", f"s_mov_b32 s{S_T1}, {so:#x}", f"buffer_load_dwordx4 v{V_T1}, {sr(srd,4)}, s{S_T1} offen lds"]
                if opt.stamps == 2: ops = [f"s_mov_b32 s{S_T0}, m0"] + ops + [f"s_mov_b32 m0, s{S_T0}"]
                ex[1+3*k] = ops
                ld.issued.append(p)
        if j & 1:
            ma = [(2+4*t, [f"v_add_u32 v{V_KA+t}, s{S_2K}, v{V_KA+t}"]) for t in range(4)]
            iteration(1, True, 3*KSLOT, VSLOT, 3*G, f"Amd{j}", misc=ma, extra=ex)
        else:
            mb = [(8, [f"v_add_u32 v{V_FA}, {2*G}, v{V_FA}"])]
            mb += [(9+2*t, [f"v_add_u32 v{V_VA+t}, s{S_2V}, v{V_VA+t}"]) for t in range(4)]
            iteration(0, True, 2*KSLOT, 2*VSLOT, 4*G, f"Bmd{j}", misc=mb, extra=ex, prog=f"ds_write_b32 v{V_PA}, v{V_FA}")
    e(f"v_mov_b32 v{V_T1}, 0xff800000")
    e("s_branch L_tail_odd" if (nk-1) & 1 else "s_branch L_tail_even")

hdr = open("cdna_kernels/" + NAME + ".s.ref").read().split("\n")
for line in hdr:
    if line.startswith("; @launch"): break
    out.append(line)
out.append(f"; @launch grid=({NWG},1,1) block=(512,1,1) lds={LDS_BYTES}")
out.append("; job order: " + " ".join(JOBORDER))
out.extend("; " + x if x else ";" for x in """
Varlen attention, written by gen/gen25.py (own generator).  256 workgroups (one per CU) x 8 waves.
 * 16 job slots per head; the fixed cu[] is folded into two tables in this file (L_small, L_table).
 * A compute wave owns 32 query rows: S^T = K Q^T and O^T = V^T P^T with 32x32x16 bf16 MFMA, three-stage software
   pipeline QK(j+1) | softmax(j) | PV(j-1).  Q is pre-scaled by log2(e)/sqrt(128).
 * Softmax stabiliser: the running reference m enters as the C operand of the first QK MFMA.  Every block's row sums
   are checked at run time (upper bound always, lower bound on the first block); when a check fails the wave
   switches to the true running row maximum and rescales O, l and the pending scores (L_rare_*).
 * K/V blocks reach LDS by LDS-DMA from loader waves; producers and consumers meet through flag words kept in
   the padding of the K slots (FULL / progress / merge flags), one barrier only (after the flags are initialised).
 * Extra query tiles are split along the keys over helper waves and merged through LDS (L_merge).
""".strip("\n").split("\n"))
out.append('.amdgcn_target "amdgcn-amd-amdhsa--gfx950"')
out.append(".text")
out.append(f".globl {NAME}_kernel")
out.append(".p2align 8")
out.append(f".type {NAME}_kernel,@function")
lab(f"{NAME}_kernel")
S_W, S_HOFF = S_KWRAP, S_NM1
if opt.stamps == 5: e(f"s_memtime {sr(S_STAMP,2)}")
e("s_load_dwordx4 s[4:7], s[0:1], 0")
e(f"v_lshrrev_b32 v{V_T0}, 6, v0")
e(f"s_getpc_b64 {sr(S_DK,2)}")
lab("L_pc")
for k_ in range(opt.spf):
    e(f"s_load_dword s{T+k_}, {sr(S_DK,2)}, {0x100+0x80*k_:#x}")
if opt.skew >= 2:
    e(f"s_bfe_u32 s{S_T0}, s2, {5 | 3 << 16:#x}")
    e(f"s_and_b32 s{S_T1}, s2, 4")
    e(f"s_lshl_b32 s{S_T1}, s{S_T1}, 1")
    e(f"s_bfe_u32 s{S_HOFF}, s2, {3 | 1 << 16:#x}")
    e(f"s_add_u32 s{S_T0}, s{S_T0}, s{S_T1}")
    e(f"s_lshl_b32 s{S_T0}, s{S_T0}, 2")
elif opt.skew:
    e(f"s_bfe_u32 s{S_T0}, s2, {5 | 3 << 16:#x}")
    e(f"s_bfe_u32 s{S_J}, s2, {2 | 1 << 16:#x}")
    e(f"s_mul_i32 s{S_T1}, s{S_J}, 7")
    e(f"s_bfe_u32 s{S_HOFF}, s2, {3 | 1 << 16:#x}")
    e(f"s_add_u32 s{S_T2}, s{S_HOFF}, 7")
    e(f"s_cmp_eq_u32 s{S_T0}, 7")
    e(f"s_cselect_b32 s{S_T1}, s{S_T2}, s{S_T1}")
    e(f"s_cselect_b32 s{S_HOFF}, s{S_J}, s{S_HOFF}")
    e(f"s_add_u32 s{S_T0}, s{S_T0}, s{S_T1}")
    e(f"s_lshl_b32 s{S_T2}, s{S_T0}, 3")
else:
    e(f"s_lshr_b32 s{S_T0}, s2, 2")
    e(f"s_and_b32 s{S_T0}, s{S_T0}, 60")
assert opt.skew == 1 and opt.str4 and opt.q4v and not (opt.hcls or opt.hl != "0000" or opt.qprio)
S_W1 = S_W + 1
e(f"s_load_dwordx2 {sr(S_W,2)}, {sr(S_DK,2)}, s{S_T2} offset:SMALL_OFF")
e(f"v_readfirstlane_b32 s{S_U}, v{V_T0}")
if opt.ich:
    e(f"s_cmp_eq_u32 s{S_U}, {opt.ich if opt.ich > 1 else 7}")
    e("s_cbranch_scc1 L_ich")
e("s_branch L_go")
out.append(".type L_small,@object")
lab("L_small")
def word1(w, hs):
    nt, two, hold, L = (w >> 25) & 7, (w >> 28) & 1, (w >> 29) & 3, (w >> 12) & 511
    mask = 0xf7 if nt == 5 else 0xf0 | (0 if hold else (1 << nt) - 1)
    masks = 0xf7 if nt == 5 else 0xf0 | (0 if hs else (1 << nt) - 1)
    return mask | (2 if L > 320 else (8 if two else 11)) << 8 | hold << 12 | hs << 14 | (12 if two else 6) << 16 | masks << 24
out.append("    .long " + ", ".join(f"{x:#x}, {word1(x, h_):#x}" for x, h_ in zip(stab, slowcls)))
out.append(".size L_small, .-L_small")
lab("L_go")
if opt.stamps and opt.stamps != 5:
    e("s_memrealtime s[100:101]")
stamp(0)
e(f"v_and_b32 v{V_LANE}, 63, v0")
if opt.pf:
    e(f"s_and_b32 s{S_T1}, s2, 0xf8") if False else None
    e(f"s_bfe_u32 s{S_T1}, s2, {3 | 5 << 16:#x}")
    e(f"v_lshl_add_u32 v{V_T0}, s{S_T1}, 9, v0")
    e(f"v_lshlrev_b32 v{V_T0}, 2, v{V_T0}")
    e(f"global_load_dword v{V_S[0]}, v{V_T0}, {sr(S_DK,2)}")
else:
    e(f"s_lshr_b32 s{S_T1}, s2, 3")
e(f"s_and_b32 s{S_T1}, s{S_T1}, 2")
e(f"s_add_u32 s{S_HOFF}, s{S_HOFF}, s{S_T1}")
e(f"s_lshl_b32 s{S_HOFF}, s{S_HOFF}, 2")
e(f"s_and_b32 s{S_T0}, s2, 3")
e(f"s_add_u32 s{S_HOFF}, s{S_HOFF}, s{S_T0}")
e(f"s_lshl_b32 s{S_HOFF}, s{S_HOFF}, 8")
e(f"s_cmp_eq_u32 s{S_T0}, 1")
e(f"s_cselect_b32 s{S_MASK+8}, 24, 0")
e(f"s_add_u32 s{S_MASK+7}, s{S_MASK+8}, s{S_U}")
e(f"v_lshrrev_b32 v{V_T0}, 4, v{V_LANE}")
e(f"v_lshlrev_b32 v{V_T1}, 2, v{V_T0}")
e(f"v_and_b32 v{V_DL}, 15, v{V_LANE}")
e(f"v_xor_b32 v{V_DL}, v{V_DL}, v{V_T1}")
e(f"v_lshlrev_b32 v{V_DL}, 4, v{V_DL}")
e(f"v_lshl_add_u32 v{V_DL}, v{V_T0}, 12, v{V_DL}")
e(f"s_mov_b32 s{S_P1+3}, 0x20000")
A_MS, A_SS, A_N, A_M0, A_SO, A_F1, A_F0, A_B, A_H = range(S_MASK, S_MASK+9)
e(f"s_and_b32 s{S_J}, s{S_U}, 3")
e(f"s_lshr_b32 s{S_T0}, s{S_U}, 2")
e(f"s_lshl_b32 s{S_T1}, s{S_T0}, 1")
e(f"s_lshl_b32 s{A_MS}, {G}, s{S_T1}")
e(f"s_lshl_b32 s{A_SS}, 0x4000, s{S_T1}")
e(f"s_lshr_b32 s{A_N}, 8, s{S_T0}")
e(f"s_mul_i32 s{S_T1}, s{S_T0}, 3")
e(f"s_lshr_b32 s{A_M0}, {KSLOT}, s{S_T1}")
e(f"s_mul_i32 s{A_M0}, s{A_M0}, s{S_J}")
e(f"s_addk_i32 s{A_M0}, {KBASE-6*KSLOT}")
e(f"s_lshr_b32 s{A_SO}, s{S_P1+3}, s{S_T1}")
e(f"s_mul_i32 s{A_SO}, s{A_SO}, s{S_J}")
e(f"s_lshl_b32 s{A_F1}, s{S_T0}, 3")
e(f"s_add_u32 s{A_F1}, s{A_F1}, {8 | 4 << 16:#x}")
e(f"s_cmp_ge_u32 s{S_U}, 4")
e(f"s_cselect_b32 s{A_F0}, 0, {21 | 4 << 16:#x}")
if opt.kp:
    e("s_cbranch_scc0 L_kp")
    e("s_setprio 3")
    lab("L_kp")
e("s_waitcnt lgkmcnt(0)")
stamp(1)
e(f"s_cselect_b64 {sr(S_P1,2)}, s[6:7], s[4:5]")
e(f"s_bfe_u32 s{S_T0}, s{S_W1}, s{A_F1}")
e(f"s_mulk_i32 s{S_T0}, {KSLOT}")
e(f"s_add_u32 m0, s{S_T0}, s{A_M0}")
e(f"s_and_b32 s{S_BASE}, s{S_W}, 0xfff")
e(f"s_lshl_b32 s{S_BASE}, s{S_BASE}, 12")
e(f"s_add_u32 s{S_BASE}, s{S_BASE}, s{S_HOFF}")
e(f"s_add_u32 s{S_P1}, s{S_P1}, s{S_BASE}")
e(f"s_addc_u32 s{S_P1+1}, s{S_P1+1}, 0")
e(f"s_and_b32 s{S_P1+2}, s{S_W}, 0x1ff000")
e(f"s_addk_i32 s{S_P1+2}, {-(4096-256)}")
e(f"s_bfe_u32 s{S_T0}, s{S_W}, s{A_F0}")
e(f"s_lshl_b32 s{S_T0}, s{S_T0}, 17")
e(f"s_add_u32 s{A_SO}, s{A_SO}, s{S_T0}")
e(f"s_bitcmp1_b32 s{S_W1}, s{A_B}")
e("s_cbranch_scc0 L_first_done")
if opt.stamps == 5: e(f"s_memtime {sr(S_STAMP+4,2)}")
lab("L_first")
e(f"buffer_load_dwordx4 v{V_DL}, {sr(S_P1,4)}, s{A_SO} offen lds")
e(f"s_add_u32 m0, m0, s{A_MS}")
e(f"s_add_u32 s{A_SO}, s{A_SO}, s{A_SS}")
e(f"s_sub_u32 s{A_N}, s{A_N}, 1")
e(f"s_cmp_lg_u32 s{A_N}, 0")
e("s_cbranch_scc1 L_first")
if opt.stamps == 5: e(f"s_memtime {sr(S_STAMP+8,2)}")
lab("L_first_done")
if opt.kp: e("s_setprio 0")
e(f"s_cmp_ge_u32 s2, {NWG}")
e("s_cbranch_scc1 L_end")
if opt.stamps == 5: e("s_memrealtime s[100:101]")
e("s_load_dwordx2 s[8:9], s[0:1], 16")
e("s_load_dwordx2 s[12:13], s[0:1], 32")
e(f"s_add_u32 s{S_T2}, s{S_T2}, s{S_U}")
e(f"s_lshl_b32 s{S_T2}, s{S_T2}, 6")
e(f"s_add_u32 s{S_T2}, s{S_T2}, L_table-L_pc")
flag_init()
e("s_waitcnt lgkmcnt(0)")
e(f"s_load_dwordx16 {sr(T,16)}, {sr(S_DK,2)}, s{S_T2}")
e(f"s_bfe_u32 s{S_T2}, s{S_W}, {28 | 1 << 16:#x}")
e(f"s_lshr_b32 s{A_H}, s{A_H}, 3")
e(f"s_and_b32 s{A_H}, s{A_H}, 2")
e(f"s_add_u32 s{A_H}, s{A_H}, {12 | 2 << 16:#x}")
e(f"s_bfe_u32 s{A_H}, s{S_W1}, s{A_H}")
e("s_barrier")
e(f"s_cmp_ge_u32 s{S_U}, 4")
e("s_cbranch_scc1 L_first_kv")
def dma_pass(soff):
    e(f"s_add_u32 s{S_P1}, s4, s{S_BASE}")
    e(f"s_addc_u32 s{S_P1+1}, s5, 0")
    for i in range(8):
        e(f"buffer_load_dwordx4 v{V_DL}, {sr(S_P1,4)}, s{soff} offen lds")
        if i < 7:
            e(f"s_add_u32 m0, m0, {G}")
            e(f"s_addk_i32 s{soff}, 0x4000")
e(f"s_cmp_lg_u32 s{A_N}, 0")
e("s_cbranch_scc1 L_late_q")
lab("L_q_issued")
e("s_waitcnt lgkmcnt(0)")
e(f"s_mov_b32 s{S_J}, {R_MAIN}")
stamp(2)
e("s_branch L_compute")
lab("L_ich")
e("s_branch L_go")
lab("L_late_q")
e(f"s_bfe_u32 s{S_T0}, s{S_W}, {25 | 3 << 16:#x}")
e(f"s_cmp_ge_u32 s{S_U}, s{S_T0}")
e("s_cbranch_scc1 L_idle")
if opt.w3 > 3:
    e(f"s_cmp_eq_u32 s{S_T0}, 5")
    e(f"s_cselect_b32 s{A_H}, {opt.w3}, s{A_H}")
e(f"s_lshl_b32 s{S_T1}, s{S_T2}, 4")
e(f"s_add_u32 s{S_T0}, s{A_H}, s{S_T1}")
e(f"s_mul_i32 s{S_T0}, s{S_T0}, {G}")
e(f"s_add_u32 s{S_T0}, s{S_T0}, {FBASE-G}")
e(f"v_and_b32 v{V_T0}, 3, v{V_LANE}")
e(f"v_lshl_add_u32 v{V_FA}, v{V_T0}, 2, s{S_T0}")
e("s_waitcnt lgkmcnt(0)")
spin("L_hold", 0, sleep=1)
dma_pass(A_SO)
e("s_branch L_q_issued")
lab("L_first_kv")
e(f"s_mov_b64 {sr(S_K,2)}, {sr(S_P1,2)}")
e(f"s_mov_b32 s{S_K+2}, s{S_P1+2}")
e(f"s_mov_b32 s{S_K+3}, 0x20000")
e(f"s_add_u32 s{S_V}, s8, s{S_BASE}")
e(f"s_addc_u32 s{S_V+1}, s9, 0")
e(f"s_mov_b32 s{S_V+2}, s{S_P1+2}")
e(f"s_mov_b32 s{S_V+3}, 0x20000")
e(f"s_lshl_b32 s{S_T0}, s{S_J}, 14")
e(f"v_add_u32 v{V_DMA}, s{S_T0}, v{V_DL}")
e(f"v_add_u32 v{V_DMA2}, 0x10000, v{V_DMA}")
e(f"s_mul_i32 s{S_DK}, s{S_J}, {G}")
e(f"s_mov_b32 s{S_T1}, 0x40000")
e(f"s_mul_i32 s{S_T0}, s{S_T2}, {16*G}")
e(f"s_lshl_b32 s{S_DV}, s{S_J}, 2")
e(f"s_add_u32 s{S_T0}, s{S_T0}, s{S_DV}")
e(f"s_add_u32 s{S_T0}, s{S_T0}, {FBASE}")
e(f"v_mov_b32 v{V_SIG}, s{S_T0}")
e(f"v_mov_b32 v{V_THRV}, {f32bits(THR):#x}")
e(f"s_lshl_b32 s{S_DV}, s{S_J}, 10")
e(f"s_mul_i32 s{S_T0}, s{S_T2}, {6*VSLOT}")
if opt.md and opt.mdq:
    e(f"s_bitcmp1_b32 s{S_W}, 31")
    e("s_cbranch_scc1 L_md_first")
if opt.hold:
    e("s_waitcnt vmcnt(0)")
    if not opt.mdsync: lab("L_md_back")
    e(f"ds_write_b32 v{V_SIG}, v{V_THRV}")
    if opt.mdsync: lab("L_md_back")
    stamp(2)
e(f"buffer_load_dwordx4 v{V_DMA}, {sr(S_K,4)}, s{S_T1} offen lds")
e(f"s_add_u32 m0, m0, {4*G}")
e("s_nop 0")
e(f"buffer_load_dwordx4 v{V_DMA2}, {sr(S_K,4)}, s{S_T1} offen lds")
e(f"s_add_u32 m0, s{S_T0}, s{S_DV}")
e("s_nop 0")
e(f"buffer_load_dwordx4 v{V_DMA}, {sr(S_V,4)}, 0 offen lds")
e(f"s_add_u32 m0, m0, 4096")
e("s_nop 0")
e(f"buffer_load_dwordx4 v{V_DMA2}, {sr(S_V,4)}, 0 offen lds")
if not opt.hold:
    e("s_waitcnt vmcnt(4)")
    e(f"ds_write_b32 v{V_SIG}, v{V_THRV}")
    stamp(2)
e("s_waitcnt lgkmcnt(0)")
e(f"s_add_u32 s{S_BASE}, s{S_HOFF}, s{T_SOFF}")
e(f"s_and_b32 s{S_J}, s{T_PK}, 15")
e(f"s_bitcmp1_b32 s{T_PK}, 6")
e("s_cbranch_scc0 L_pass_done")
e(f"s_mov_b32 s{S_P1+2}, s{T_NREC}")
e(f"s_mov_b32 s{S_T0}, s{T_QOFF}")
e(f"s_mov_b32 m0, s{T_QST}")
dma_pass(S_T0)
lab("L_pass_done")
e(f"s_cmp_ge_u32 s{S_J}, 3")
e("s_cbranch_scc1 L_loaders")
lab("L_compute")
e(f"s_mov_b32 s{S_DK}, s{S_J}")
setup_compute()
prog_addr()
e(f"s_cmp_lg_u32 s{S_DK}, {R_MAIN}")
e("s_cbranch_scc1 L_init")
if opt.tlb:
    e(f"buffer_load_dword v{V_LANE}, v{V_L}, {sr(S_O,4)}, s{T_QOFF} offen")
    e("s_waitcnt vmcnt(1)")
    e("s_branch L_noinit2")
lab("L_noinit")
e("s_waitcnt vmcnt(0)")
lab("L_noinit2")
stamp(3)
q_read()
e("s_waitcnt lgkmcnt(0)")
e(f"ds_write_b32 v{V_PA}, v{V_L}")
e(f"s_cmp_lg_u32 s{S_DK}, {R_MAIN}")
e("s_cbranch_scc1 L_scale_h")
e(f"s_mov_b32 s{S_DK}, {f32bits(CSCALE):#x}")
e(f"s_mov_b32 s{S_DV}, {f32bits(CSCALE):#x}")
e(f"s_mov_b32 s{S_T0}, 0xffff0000")
for ks in range(5):
    if ks == 4: e(f"ds_read_b32 v{V_FL}, v{V_FA}")
    qscale(ks)
e("s_waitcnt lgkmcnt(0)")
e(f"v_cmp_gt_f32 vcc, 0, v{V_FL}")
qscale(5)
e("s_cbranch_vccz L_back_pre")
spin("L_spin_pre", 0)
lab("L_back_pre")
def start_stamp():
    stamp(4)
    if opt.stamps == 2:
        e("s_mov_b32 m0, 0")
        e("s_memtime s[100:101]")
start_stamp()
for ks in range(8): e(kread(ks, 0))
qscale(6)
qscale(7)
lab("L_qk0")
for ks in range(8):
    if ks == 0: e("s_waitcnt lgkmcnt(0)")
    if ks == 7: e(f"v_cmp_gt_f32 vcc, 0, v{V_FL}")
    e(mfma(V_S[0], V_K+4*ks, V_Q+4*ks, None if ks == 0 else V_S[0]))
    e(kread(ks, 1*KSLOT))
    if ks == 3: e(f"ds_read_b32 v{V_FL}, v{V_FA} offset:{G}")
    if ks == 6: e("s_waitcnt lgkmcnt(3)")
e("s_cbranch_vccz L_back_pre2")
spin("L_spin_pre2", G)
lab("L_back_pre2")
e("s_nop 7")
out.append("LALPAD")
iteration(0, False, 2*KSLOT, 0, 2*G, "i0", first=True, prog=f"ds_write_b32 v{V_PA}, v{V_X}",
          last_ops=[f"s_bitcmp1_b32 s{T_PK}, 20", "s_cbranch_scc1 L_leave"])
lab("L_loop")
ma = [(0, [f"s_cmp_eq_u32 s{S_J}, s{S_KWRAP}", f"s_cselect_b32 s{S_DK}, {(-6*KSLOT)&0xffffffff:#x}, s{S_2K}"])]
ma += [(2+4*t, [f"v_add_u32 v{V_KA+t}, s{S_DK}, v{V_KA+t}"]) for t in range(4)]
ma.insert(4, (10, [f"s_cmp_eq_u32 s{S_J}, s{S_NM1}"]))
iteration(1, True, 3*KSLOT, VSLOT, 3*G, "A", misc=ma, last_ops=["s_cbranch_scc1 L_tail_even"], prog=f"ds_write_b32 v{V_PA}, v{V_FA} offset:4")
mb = [(0, [f"s_cmp_eq_u32 s{S_J}, s{S_VWRAP}", f"s_cselect_b32 s{S_DV}, {(-6*VSLOT)&0xffffffff:#x}, s{S_2V}"]),
      (0, [f"s_add_u32 s{S_J}, s{S_J}, 2", f"s_cmp_eq_u32 s{S_J}, s{T_N}"]),
      (8, [f"v_add_u32 v{V_FA}, {2*G}, v{V_FA}"])]
mb += [(9+2*t, [f"v_add_u32 v{V_VA+t}, s{S_DV}, v{V_VA+t}"]) for t in range(4)]
iteration(0, True, 2*KSLOT, 2*VSLOT, 4*G, "B", misc=mb, last_ops=["s_cbranch_scc0 L_loop"], prog=f"ds_write_b32 v{V_PA}, v{V_FA}")
for par, nm in ((1, "odd"), (0, "even")):
    lab(f"L_tail_{nm}")
    kinds = [k for k in (3, 4, 0, 1, 2) if (k, par) in tails_used]
    for k in kinds[1:]:
        e(f"s_bitcmp1_b32 s{T_PK}, {21 + k}")
        e(f"s_cbranch_scc1 L_tail_{k}_{par}")
    assert kinds[0] == 0 or len(kinds) == 1 or True
    for k in kinds:
        tail(k, par)
merge_code()
lab("L_idle")
if opt.tq and opt.skew:
    e(f"s_cmp_lt_u32 s{S_P1+2}, {400*4096}")
    e("s_cbranch_scc1 L_idle2")
    e(f"s_add_u32 s{S_T0}, s{S_HOFF}, {CU[1]*4096}")
    e(f"s_add_u32 s{S_P1}, s4, s{S_T0}")
    e(f"s_addc_u32 s{S_P1+1}, s5, 0")
    e(f"s_mov_b32 s{S_P1+2}, {(seqL(1)-1)*4096+256}")
    e(f"s_bfe_u32 s{S_T0}, s{S_W}, {21 | 1 << 16:#x}")
    e(f"s_lshl_b32 s{S_T0}, s{S_T0}, 18")
    e(f"s_add_u32 s{S_T0}, s{S_T0}, {4*0x20000:#x}")
    e(f"s_add_u32 s{S_T1}, s{S_T0}, 0x20000")
    e(f"v_lshrrev_b32 v{V_T0}, 1, v{V_LANE}")
    e(f"v_and_b32 v{V_T1}, 1, v{V_LANE}")
    e(f"v_lshlrev_b32 v{V_T1}, 7, v{V_T1}")
    e(f"v_lshl_add_u32 v{V_T0}, v{V_T0}, 12, v{V_T1}")
    e(f"buffer_load_dword v{V_Q}, v{V_T0}, {sr(S_P1,4)}, s{S_T0} offen")
    e(f"buffer_load_dword v{V_Q+1}, v{V_T0}, {sr(S_P1,4)}, s{S_T1} offen")
    lab("L_idle2")
prog_addr()
e(f"v_mov_b32 v{V_T0}, 0x7fffffff")
if opt.kfirst != 2: e("s_barrier")
e(f"ds_write_b32 v{V_PA}, v{V_T0}")
e(f"ds_write_b32 v{V_PA}, v{V_T0} offset:4")
e("s_waitcnt lgkmcnt(0)")
if touches:
    e(f"s_add_u32 s{S_BASE}, s{S_HOFF}, s{T_SOFF}")
    kv_srds(S_K, S_V, S_BASE, f"s{T_NREC}")
    e(f"s_add_u32 s{S_P1}, s4, s{S_BASE}")
    e(f"s_addc_u32 s{S_P1+1}, s5, 0")
    e(f"s_mov_b32 s{S_P1+2}, s{T_NREC}")
    e(f"v_lshrrev_b32 v{V_T0}, 1, v{V_LANE}")
    e(f"v_and_b32 v{V_T1}, 1, v{V_LANE}")
    e(f"v_lshlrev_b32 v{V_T1}, 7, v{V_T1}")
    e(f"v_lshl_add_u32 v{V_T0}, v{V_T0}, 12, v{V_T1}")
    if opt.tstart >= 0:
        e(f"v_and_b32 v{V_FA}, 3, v{V_LANE}")
        e(f"v_lshlrev_b32 v{V_FA}, 2, v{V_FA}")
        e(f"v_add_u32 v{V_FA}, {ent(opt.tstart)}, v{V_FA}")
        spin("L_tstart", 0, sleep=1)
    for i in range(len(touches)):
        e(f"s_cmp_eq_u32 s{T_N}, {i+1}")
        e(f"s_cbranch_scc1 L_touch_{i}")
    finish()
    for i, lst in enumerate(touches):
        lab(f"L_touch_{i}")
        for k, it in enumerate(lst):
            srd = {"Q": S_P1, "K": S_K, "V": S_V}[it[0]]
            e(f"s_mov_b32 s{S_T0}, {int(it[1:])*0x20000:#x}")
            if k >= opt.tw: e(f"s_waitcnt vmcnt({opt.tw-1})")
            e(f"buffer_load_dword v{V_Q+k}, v{V_T0}, {sr(srd,4)}, s{S_T0} offen")
        finish()
else:
    finish()
lab("L_loaders")
for i in range(1, len(programs)):
    e(f"s_cmp_eq_u32 s{S_J}, {3+i}")
    e(f"s_cbranch_scc1 L_prog_{3+i}")
for i, d in enumerate(programs):
    if d[0] == "L2": loader_two_streams(d, 3+i)
    elif d[0] == "MD": md_program(d, 3+i)
    else: loader_single_stream(d, 3+i)
lab("L_leave")
e(f"s_cmp_eq_u32 s{T_N}, 2")
e("s_cbranch_scc1 L_tail_odd")
e("s_branch L_md_loop" if (opt.md and not opt.fake & 1) else "s_branch L_tail_odd")
if opt.md and opt.mdq:
    lab("L_md_first")
    e(f"s_mov_b32 s{S_LO}, m0")
    e(f"s_mul_i32 s{S_2K}, s{S_J}, {KSLOT}")
    e(f"s_add_u32 m0, s{S_2K}, {QH[0]}")
    e(f"s_lshl_b32 s{S_2K}, s{S_U}, 17")
    dma_pass(S_2K)
    e(f"s_mov_b32 m0, s{S_LO}")
    e("s_nop 0" if opt.mdsync == 2 else "s_waitcnt vmcnt(8)")
    e("s_branch L_md_back")
lab("L_scale_h")
for ks in range(8): qscale(ks, False)
spin("L_spin_h", 0, sleep=1)
e(f"s_bitcmp1_b32 s{T_PK}, 18")
e("s_cbranch_scc0 L_helper_go")
e(f"v_and_b32 v{V_T0}, {1 if opt.w3 else 3}, v{V_LANE}")
e(f"v_mul_u32_u24 v{V_T0}, {G}, v{V_T0}")
e(f"v_add_u32 v{V_T0}, {ent(PROG0)}, v{V_T0}")
lab("L_helper_wait")
bound()
e("s_sleep 1")
e(f"ds_read_b32 v{V_FL}, v{V_T0}")
e("s_waitcnt lgkmcnt(0)")
e(f"v_cmp_gt_i32 vcc, 1, v{V_FL}")
e("s_cbranch_vccnz L_helper_wait")
lab("L_helper_go")
e("s_setprio 0")
e(f"s_bitcmp1_b32 s{T_PK}, 16")
e("s_cbranch_scc0 L_helper_go2")
e(f"s_setprio {max(opt.hprio, 0)}")
lab("L_helper_go2")
start_stamp()
for ks in range(8): e(kread(ks, 0))
e("s_branch L_qk0")
lab("L_init")
e(f"s_bitcmp1_b32 s{T_PK}, 19")
e("s_cbranch_scc1 L_init_shared")
e("s_waitcnt vmcnt(8)")
e(f"ds_write_b32 v{V_SIG}, v{V_THRV} offset:{G}")
e("s_branch L_noinit")
lab("L_init_shared")
e("s_waitcnt vmcnt(0)")
e(f"ds_write_b32 v{V_SIG}, v{V_THRV} offset:{G}")
e(f"s_lshr_b32 s{S_T0}, s{T_MB}, 24")
e(f"s_mul_i32 s{S_T0}, s{S_T0}, {G}")
e(f"s_add_u32 s{S_T0}, s{S_T0}, {ent(PROG0)}")
e(f"v_mov_b32 v{V_T0}, s{S_T0}")
lab("L_init_wait")
bound()
e("s_sleep 1")
e(f"ds_read_b32 v{V_FL}, v{V_T0}")
e("s_waitcnt lgkmcnt(0)")
e(f"v_cmp_gt_i32 vcc, 0, v{V_FL}")
e("s_cbranch_vccnz L_init_wait")
e("s_branch L_noinit")
for tag in stage_spins:
    lab(f"L_stg_{tag}")
    bound()
    e("s_sleep 1")
    e(f"ds_read_b32 v{V_FL}, v{V_CK}")
    e("s_waitcnt lgkmcnt(0)")
    e(f"v_cmp_gt_i32 vcc, s{S_T2}, v{V_FL}")
    e(f"s_cbranch_vccnz L_stg_{tag}")
    e(f"s_branch L_stgback_{tag}")
for site in rare_sites:
    rare(*site)
for site in short_rares:
    short_rare(*site)
if opt.stamps:
    lab("L_stamps")
    e(f"s_load_dwordx2 {sr(S_MASK+6,2)}, s[0:1], 48")
    e("s_waitcnt vmcnt(0)")
    e(f"s_memtime {sr(S_MASK, 2)}")
    e(f"s_getreg_b32 s{S_MASK+2}, hwreg(HW_REG_HW_ID)")
    e(f"s_getreg_b32 s{S_MASK+3}, hwreg(HW_REG_XCC_ID)")
    e(f"s_memrealtime {sr(S_MASK+4, 2)}")
    e("s_waitcnt lgkmcnt(0)")
    e(f"s_lshl_b32 s{S_T0}, s2, 3")
    e(f"s_add_u32 s{S_T0}, s{S_T0}, s{S_U}")
    e(f"s_lshl_b32 s{S_T0}, s{S_T0}, 7")
    if opt.stamps == 2:
        e(f"v_writelane_b32 v{V_LANE}, s100, m0")
        e(f"s_lshl_b32 s{S_T1}, s{S_T0}, 1")
        e(f"s_add_u32 s{S_T1}, s{S_T1}, 0x100000")
        e(f"v_mbcnt_lo_u32_b32 v2, -1, 0")
        e(f"v_mbcnt_hi_u32_b32 v2, -1, v2")
        e(f"v_lshl_add_u32 v0, v2, 2, s{S_T1}")
        e(f"global_store_dword v0, v{V_LANE}, {sr(S_MASK+6,2)}")
    e(f"v_mov_b32 v0, s{S_T0}")
    e("s_mov_b64 exec, 1")
    regs = [S_STAMP+i for i in range(10)] + [S_MASK+i for i in range(6)] + [100, 101]
    for i, r_ in enumerate(regs):
        e(f"v_mov_b32 v2, s{r_}")
        e(f"global_store_dword v0, v2, {sr(S_MASK+6,2)} offset:{4*i}")
lab("L_end")
e("s_endpgm")
out.append(".p2align 6")
out.append(".type L_table,@object")
lab("L_table")
for row in table:
    out.append("    .long " + ", ".join(f"{x & 0xffffffff:#x}" for x in row))
out.append(".size L_table, .-L_table")
if opt.pf:
    out.append(".type L_padding,@object")
    lab("L_padding")
    out.append("    .fill 8192, 4, 0")
    out.append(".size L_padding, .-L_padding")
out.append('.section .rodata,"a"')
out.append(".p2align 6")
out.append(f".amdhsa_kernel {NAME}_kernel")
for x in ("next_free_vgpr 256", "next_free_sgpr 102", "accum_offset 256", "group_segment_fixed_size 0", "kernarg_size 56",
          "user_sgpr_count 2", "user_sgpr_kernarg_segment_ptr 1", "system_sgpr_workgroup_id_x 1"):
    out.append("  .amdhsa_" + x)
out.append(".end_amdhsa_kernel")
k_ = out.index("LALPAD")
out[k_:k_+1] = ["    s_nop 0"] * max(opt.lal, 0)
i0_, i1_ = out.index("L_pc:"), out.index("L_small:")
nb_ = sum(8 if ("0x" in x or "s_load" in x) else 4 for x in out[i0_+1:i1_] if x and x.startswith("    "))
out[:] = [x.replace("SMALL_OFF", str(nb_)) if x else x for x in out]
out.insert(i1_+1, f".if (L_small - L_pc) != {nb_}\n.error \"table offset\"\n.endif")
for i_, o_ in enumerate(out):
    if o_ and o_.rstrip().endswith("offen lds"):
        isq = f"s[{S_P1}:{S_P1+3}]" in o_
        if (isq and opt.ntq) or (not isq and opt.ntkv):
            out[i_] = o_.replace("offen lds", "offen nt lds")
open(sys.argv[1], "w").write("\n".join(o for o in out if o is not None) + "\n")
```
